```python
import torch

def _softmax(x, axis=-1):
    return torch.softmax(x, dim=axis)
def _gelu(x):
    return torch.nn.functional.gelu(x, approximate="tanh")
def _silu(x):
    return torch.nn.functional.silu(x)
def _sigmoid(x):
    return torch.sigmoid(x)
def _layernorm(x, axis=-1, eps=1e-5):
    m = x.mean(dim=axis, keepdim=True)
    v = x.var(dim=axis, keepdim=True, unbiased=False)
    return (x - m) / torch.sqrt(v + eps)
def _scatter_add(tgt, idx, src, axis=0):
    return tgt.clone().index_add_(axis, idx, src)
def _segment_sum(src, seg, n):
    out = torch.zeros((n,) + src.shape[1:], dtype=src.dtype)
    return out.index_add_(0, seg, src)
def _pad(x, pw):
    flat = tuple(v for pair in reversed(pw) for v in pair)
    return torch.nn.functional.pad(x, flat)

kernel_name = 'parallel_sum__grouped_kv_mqa__dense_activation_silu__prompt'

def setup_inputs():

    _w = (lambda a: (lambda t: t.to(torch.bfloat16) if t.is_floating_point() else t)(torch.as_tensor(a)))
    def _A_setup():
        B, S, D, H = 1, 2048, 640, 32
        Dh = D // H
        return {
            "x": _w((lambda *s: torch.randn(*s, dtype=torch.bfloat16) * 0.05)(B, S, D)),
            "wq": _w((lambda *s: torch.randn(*s, dtype=torch.bfloat16) * 0.05)(D, H * Dh)),
            "wk": _w((lambda *s: torch.randn(*s, dtype=torch.bfloat16) * 0.05)(D, Dh)),
            "wv": _w((lambda *s: torch.randn(*s, dtype=torch.bfloat16) * 0.05)(D, Dh)),
            "wo": _w((lambda *s: torch.randn(*s, dtype=torch.bfloat16) * 0.05)(H * Dh, D)),
        }
    _A_in = _A_setup()

    def _B_setup():
        B, S, D, F = 1, 2048, 640, 1536
        return {
            "x": _w((lambda *s: torch.randn(*s, dtype=torch.bfloat16) * 0.05)(B, S, D)),
            "w1": _w((lambda *s: torch.randn(*s, dtype=torch.bfloat16) * 0.8)(D, F) * (D ** -0.5)),
            "w2": _w((lambda *s: torch.randn(*s, dtype=torch.bfloat16) * 0.8)(F, D) * (F ** -0.5)),
        }
    _B_in = _B_setup()

    return {
        "A_x": _A_in["x"],
        "A_wq": _A_in["wq"],
        "A_wk": _A_in["wk"],
        "A_wv": _A_in["wv"],
        "A_wo": _A_in["wo"],
        "B_x": _B_in["x"],
        "B_w1": _B_in["w1"],
        "B_w2": _B_in["w2"],
    }

def reference(A_x, A_wq, A_wk, A_wv, A_wo, B_x, B_w1, B_w2):
    def _A_ref(x, wq, wk, wv, wo):
        B, S, D = x.shape
        H = 32
        Dh = D // H
        q = (lambda x, *d: x.permute(*d))((x @ wq).reshape(B, S, H, Dh), 0, 2, 1, 3)
        k = x @ wk
        v = x @ wv
        scores = torch.einsum("bhqd,bkd->bhqk", q, k) * (Dh ** -0.5)
        p = _softmax(scores, axis=-1)
        o = torch.einsum("bhqk,bkd->bhqd", p, v)
        return (lambda x, *d: x.permute(*d))(o, 0, 2, 1, 3).reshape(B, S, H * Dh) @ wo

    def _B_ref(x, w1, w2):
        h = torch.einsum("bsd,df->bsf", x, w1)
        h = _silu(h)
        out = torch.einsum("bsf,fd->bsd", h, w2)
        return out

    x = A_x
    xn = _layernorm(x, axis=-1)
    return x + _A_ref(xn, A_wq, A_wk, A_wv, A_wo) + _B_ref(xn, B_w1, B_w2)
```

```python
import sys, math
NAME = "parallel_sum__grouped_kv_mqa__dense_activation_silu__prompt"
WS_Q, WS_KV, WS_H, WS_O, WS_END = 0, 0x300000, 0x340000, 0x940000, 0xC00000
LOG2E = 1.4426950408889634
import struct
def f32(x): return "0x%08x" % struct.unpack("<I", struct.pack("<f", x))[0]

class Asm:
    def __init__(self): self.l = []
    def __call__(self, s):
        for x in s.strip("\n").split("\n"):
            x = x.strip()
            if x: self.l.append(("" if x.endswith(":") else "    ") + x)
    def text(self): return "\n".join(self.l) + "\n"

def vr(a, n): return "v[%d:%d]" % (a, a + n - 1)
def sr(a, n): return "s[%d:%d]" % (a, a + n - 1)

def srd(a, d, base, nbytes):
    a(f"s_mov_b32 s{d}, s{base}\ns_mov_b32 s{d+1}, s{base+1}\ns_mov_b32 s{d+2}, {nbytes}\ns_mov_b32 s{d+3}, 0x00020000")

def kdesc(name, vgpr, sgpr=102):
    acc = (vgpr + 3) // 4 * 4
    return f""".p2align 6
.amdhsa_kernel {name}
  .amdhsa_next_free_vgpr {vgpr}
  .amdhsa_next_free_sgpr {sgpr}
  .amdhsa_accum_offset {acc}
  .amdhsa_group_segment_fixed_size 0
  .amdhsa_kernarg_size 88
  .amdhsa_user_sgpr_count 2
  .amdhsa_user_sgpr_kernarg_segment_ptr 1
  .amdhsa_system_sgpr_workgroup_id_x 1
.end_amdhsa_kernel
"""

def khead(a, name):
    a.l.append(f".globl {name}\n.p2align 8\n.type {name},@function\n{name}:")

def round_bf16(a, d, s):
    a(f"v_cvt_pk_bf16_f32 v{d}, v{s}, v{s}\nv_lshlrev_b32 v{d}, 16, v{d}")

def gen_k1(a):
    khead(a, "k1_kernel")
    SLOT = 36864
    sW, sR, sG, sRB, sCB, sHD = 32, 33, 34, 35, 36, 37
    sI, sK, sSlot, sT0, sT1, sMx, sMq, sM2, sOnes, sDelta, sRd = 38, 39, 40, 41, 42, 43, 44, 45, 46, 47, 48
    sKVb, sKVs, sT2, sT3 = 50, 52, 53, 54
    X, W1, WS = 20, 24, 28
    vL, vXs0, vXs1, vW1s, vW2s, vQb, vQa, vQst = 0, 1, 2, 3, 4, 6, 8, 10
    vAx, vAq, vAh = 12, 16, 17
    vSx, vSxx, vCq, vCh, vC2 = 18, 19, 20, 21, 22
    vT = 24
    aQ, aH, a2 = 32, 48, 64
    fX, fQ, fH, f2 = 80, 96, 112, 128
    a(f"""
    s_cmp_ge_u32 s2, 256
    s_cbranch_scc1 K1_end
    s_load_dwordx8 s[8:15], s[0:1], 0
    s_load_dwordx2 s[16:17], s[0:1], 48
    s_load_dwordx2 s[18:19], s[0:1], 80
    v_lshrrev_b32 v1, 6, v0
    v_and_b32 v{vL}, 63, v0
    v_readfirstlane_b32 s{sW}, v1
    s_and_b32 s{sT0}, s2, 3
    s_lshl_b32 s{sRB}, s{sT0}, 2
    s_bfe_u32 s{sT0}, s2, 0x20003
    s_add_u32 s{sRB}, s{sRB}, s{sT0}
    s_bfe_u32 s{sT0}, s2, 0x10002
    s_lshl_b32 s{sCB}, s{sT0}, 3
    s_lshr_b32 s{sT0}, s2, 5
    s_add_u32 s{sCB}, s{sCB}, s{sT0}
    s_and_b32 s{sR}, s{sW}, 3
    s_lshr_b32 s{sG}, s{sW}, 2
    s_lshl_b32 s{sHD}, s{sCB}, 1
    s_add_u32 s{sHD}, s{sHD}, s{sG}
    """)
    a(f"""
    s_lshl_b32 s{sT0}, s{sRB}, 7
    s_lshl_b32 s{sT1}, s{sW}, 4
    s_add_u32 s{sT0}, s{sT0}, s{sT1}
    s_mul_i32 s{sT0}, s{sT0}, 1280
    v_lshrrev_b32 v{vT}, 3, v{vL}
    v_mul_u32_u24 v{vT}, 1280, v{vT}
    v_add_u32 v{vT}, s{sT0}, v{vT}
    v_and_b32 v{vT+1}, 7, v{vL}
    v_lshrrev_b32 v{vT+2}, 4, v{vL}
    v_xor_b32 v{vT+1}, v{vT+1}, v{vT+2}
    v_lshl_add_u32 v{vXs0}, v{vT+1}, 4, v{vT}
    v_xor_b32 v{vT+1}, 4, v{vT+1}
    v_lshl_add_u32 v{vXs1}, v{vT+1}, 4, v{vT}
    v_add_u32 v{vXs1}, {10240-1024}, v{vXs1}
    """)
    a(f"""
    v_lshrrev_b32 v{vT}, 2, v{vL}
    v_and_b32 v{vT+1}, 3, v{vL}
    v_mul_u32_u24 v{vT+2}, 3072, v{vT}
    v_lshl_add_u32 v{vT+2}, v{vT+1}, 4, v{vT+2}
    s_mul_i32 s{sT0}, s{sCB}, 192
    s_mul_i32 s{sT1}, s{sR}, {16*3072}
    s_add_u32 s{sT1}, s{sT1}, s{sT0}
    s_lshl_b32 s{sT2}, s{sG}, 6
    s_add_u32 s{sT1}, s{sT1}, s{sT2}
    v_add_u32 v{vW1s}, s{sT1}, v{vT+2}
    s_mul_i32 s{sT1}, s{sW}, {8*3072}
    s_add_u32 s{sT1}, s{sT1}, s{sT0}
    s_add_u32 s{sT1}, s{sT1}, 128
    v_add_u32 v{vW2s}, s{sT1}, v{vT+2}
    """)
    a(f"""
    v_and_b32 v{vT+2}, 31, v{vL}
    v_lshrrev_b32 v{vT+3}, 5, v{vL}
    v_bfe_u32 v{vT+4}, v{vL}, 1, 3
    v_xor_b32 v{vT+4}, v{vT+4}, v{vT+3}
    s_lshl_b32 s{sT0}, s{sR}, 12
    v_lshlrev_b32 v{vT+2}, 7, v{vT+2}
    v_add_u32 v{vT+2}, s{sT0}, v{vT+2}
    """)
    for ks in range(4):
        a(f"v_xor_b32 v{vT+5}, {2*ks}, v{vT+4}\nv_lshl_add_u32 v{vAx+ks}, v{vT+5}, 4, v{vT+2}")
    a(f"""
    v_and_b32 v{vT+4}, 3, v{vT}
    v_lshl_add_u32 v{vT+4}, v{vT+3}, 3, v{vT+4}
    v_lshlrev_b32 v{vT+4}, 6, v{vT+4}
    v_bfe_u32 v{vT+5}, v{vL}, 4, 1
    v_lshl_add_u32 v{vT+5}, v{vT+5}, 2, v{vT+1}
    s_lshl_b32 s{sT0}, s{sG}, 12
    s_add_u32 s{sT0}, s{sT0}, 16384
    v_add_u32 v{vT+4}, s{sT0}, v{vT+4}
    v_lshl_add_u32 v{vAh}, v{vT+5}, 3, v{vT+4}
    v_add_u32 v{vAh}, 8192, v{vAh}
    v_min_u32 v{vT+6}, 4, v{vT+5}
    v_add_u32 v{vT+6}, s{sG}, v{vT+6}
    v_cmp_lt_u32 vcc, 5, v{vT+5}
    s_mov_b32 s{sOnes}, 0x3f803f80
    s_lshl_b32 s{sMx}, s{sW}, 11
    v_cndmask_b32 v{vT+6}, v{vT+6}, v{vT+5}, vcc
    v_lshl_add_u32 v{vAq}, v{vT+6}, 3, v{vT+4}
    s_lshl_b32 s{sMq}, s{sW}, 10
    s_add_u32 s{sMq}, s{sMq}, 16384
    s_lshl_b32 s{sM2}, s{sW}, 9
    s_add_u32 s{sM2}, s{sM2}, 32768
    """)
    a(f"""
    s_add_u32 s{sK}, s{sRB}, s{sCB}
    s_mul_i32 s{sT0}, s{sK}, 6554
    s_lshr_b32 s{sT0}, s{sT0}, 16
    s_mul_i32 s{sT0}, s{sT0}, 10
    s_sub_u32 s{sK}, s{sK}, s{sT0}
    s_mov_b32 s{sI}, 0
    s_mov_b32 s{sSlot}, 0
    s_mov_b32 s{sRd}, 0
    """)
    for i in range(48): a(f"v_mov_b32 v{aQ+i}, 0")
    for r in (vSx, vSxx, vCq, vCh, vC2): a(f"v_mov_b32 v{r}, 0")
    a("s_waitcnt lgkmcnt(0)")
    srd(a, X, 8, 2048*1280); srd(a, W1, 16, 640*3072); srd(a, WS, 18, WS_END)
    a(f"""
    s_mul_i32 s{sT0}, s{sCB}, 80
    s_lshl_b32 s{sT1}, s{sG}, 5
    s_add_u32 s{sT0}, s{sT0}, s{sT1}
    s_add_u32 s10, s10, s{sT0}
    s_addc_u32 s11, s11, 0
    s_cmp_lt_u32 s{sHD}, 3
    s_cselect_b32 s{sKVb}, s12, s14
    s_cselect_b32 s{sKVb+1}, s13, s15
    s_cselect_b32 s{sT1}, 0, 3
    s_sub_u32 s{sT1}, s{sHD}, s{sT1}
    s_lshl_b32 s{sT2}, s{sT1}, 4
    s_min_u32 s{sT2}, s{sT2}, 24
    s_add_u32 s{sKVb}, s{sKVb}, s{sT2}
    s_addc_u32 s{sKVb+1}, s{sKVb+1}, 0
    s_cmp_lt_u32 s{sHD}, 6
    s_cselect_b32 s{sKVb}, s{sKVb}, s10
    s_cselect_b32 s{sKVb+1}, s{sKVb+1}, s11
    s_cselect_b32 s{sKVs}, 40, 1280
    v_cmp_eq_u32 vcc, 3, v{vT+1}
    v_mov_b32 v{vT+2}, 1280
    v_mov_b32 v{vT+3}, s{sKVs}
    v_cndmask_b32 v{vT+2}, v{vT+2}, v{vT+3}, vcc
    v_mov_b32 v{vT+3}, s10
    v_mov_b32 v{vT+4}, s{sKVb}
    v_cndmask_b32 v{vQb}, v{vT+3}, v{vT+4}, vcc
    v_mov_b32 v{vT+3}, s11
    v_mov_b32 v{vT+4}, s{sKVb+1}
    v_cndmask_b32 v{vQb+1}, v{vT+3}, v{vT+4}, vcc
    v_lshlrev_b32 v{vT+3}, 4, v{vT+1}
    v_cndmask_b32 v{vT+3}, v{vT+3}, 0, vcc
    s_lshl_b32 s{sT0}, s{sR}, 4
    v_add_u32 v{vT}, s{sT0}, v{vT}
    v_mad_u32_u24 v{vT+4}, v{vT}, v{vT+2}, v{vT+3}
    v_mov_b32 v{vT+5}, 0
    v_lshl_add_u64 {vr(vQb,2)}, {vr(vT+4,2)}, 0, {vr(vQb,2)}
    v_lshlrev_b32 v{vQst}, 6, v{vT+2}
    """)
    a(f"""
    K1_loop:
    s_cmp_lt_u32 s{sI}, 3
    s_cbranch_scc1 K1_issue
    s_cmp_lt_u32 s{sI}, 11
    s_cbranch_scc1 K1_w10
    s_cmp_eq_u32 s{sI}, 11
    s_cbranch_scc1 K1_w5
    s_waitcnt vmcnt(0)
    K1_w5:
    s_waitcnt vmcnt(5)
    K1_w10:
    s_waitcnt vmcnt(10)
    s_barrier
    s_cmp_ge_u32 s{sI}, 10
    s_cbranch_scc1 K1_comp
    K1_issue:
    s_lshl_b32 s{sT0}, s{sK}, 7
    s_mul_i32 s{sT1}, s{sK}, 196608
    s_add_u32 m0, s{sSlot}, s{sMx}
    v_mad_u64_u32 {vr(vQa,2)}, s[56:57], v{vQst}, s{sK}, {vr(vQb,2)}
    buffer_load_dwordx4 v{vXs0}, {sr(X,4)}, s{sT0} offen lds
    buffer_load_dwordx4 v{vXs1}, {sr(X,4)}, s{sT0} offen offset:1024 lds
    s_add_u32 m0, s{sSlot}, s{sMq}
    s_add_u32 s{sK}, s{sK}, 1
    global_load_lds_dwordx4 {vr(vQa,2)}, off
    s_add_u32 m0, m0, 8192
    s_cmp_eq_u32 s{sK}, 10
    s_cselect_b32 s{sK}, 0, s{sK}
    buffer_load_dwordx4 v{vW1s}, {sr(W1,4)}, s{sT1} offen lds
    s_add_u32 m0, s{sSlot}, s{sM2}
    s_mov_b32 exec_hi, 0
    buffer_load_dwordx4 v{vW2s}, {sr(W1,4)}, s{sT1} offen lds
    s_mov_b32 exec_hi, -1
    s_add_u32 s{sSlot}, s{sSlot}, {SLOT}
    s_cmp_eq_u32 s{sSlot}, {4*SLOT}
    s_cselect_b32 s{sSlot}, 0, s{sSlot}
    s_cmp_lt_u32 s{sI}, 3
    s_cbranch_scc1 K1_next
    K1_comp:
    """)
    def reads(ks):
        a(f"ds_read_b128 {vr(fX+4*ks,4)}, v{vAx+ks}")
        for q in range(2): a(f"ds_read_b64_tr_b16 {vr(fQ+4*ks+2*q,2)}, v{vAq} offset:{1024*ks+256*q}")
        for q in range(2): a(f"ds_read_b64_tr_b16 {vr(fH+4*ks+2*q,2)}, v{vAh} offset:{1024*ks+256*q}")
    def comp(ks):
        a(f"v_mfma_f32_32x32x16_bf16 {vr(aQ,16)}, {vr(fQ+4*ks,4)}, {vr(fX+4*ks,4)}, {vr(aQ,16)}")
        for i in range(4):
            a(f"v_dot2c_f32_bf16 v{vSx}, s{sOnes}, v{fX+4*ks+i}\nv_dot2c_f32_bf16 v{vSxx}, v{fX+4*ks+i}, v{fX+4*ks+i}")
        a(f"v_mfma_f32_32x32x16_bf16 {vr(aH,16)}, {vr(fH+4*ks,4)}, {vr(fX+4*ks,4)}, {vr(aH,16)}")
        for i in range(4):
            a(f"v_dot2c_f32_bf16 v{vCq}, s{sOnes}, v{fQ+4*ks+i}\nv_dot2c_f32_bf16 v{vCh}, s{sOnes}, v{fH+4*ks+i}")
    reads(0); reads(1); reads(2)
    a("s_waitcnt lgkmcnt(10)"); comp(0); reads(3)
    a("s_waitcnt lgkmcnt(10)"); comp(1)
    a("s_waitcnt lgkmcnt(5)"); comp(2)
    a(f"s_waitcnt lgkmcnt(0)\ns_cmp_lg_u32 s{sG}, 0\ns_cbranch_scc1 K1_skip1")
    for ks in range(4):
        for q in range(2): a(f"ds_read_b64_tr_b16 {vr(f2+4*ks+2*q,2)}, v{vAh} offset:{8192+1024*ks+256*q}")
    a("K1_skip1:")
    comp(3)
    a(f"s_cbranch_scc1 K1_skip2\ns_waitcnt lgkmcnt(0)")
    for ks in range(4):
        a(f"v_mfma_f32_32x32x16_bf16 {vr(a2,16)}, {vr(f2+4*ks,4)}, {vr(fX+4*ks,4)}, {vr(a2,16)}")
        for i in range(4): a(f"v_dot2c_f32_bf16 v{vC2}, s{sOnes}, v{f2+4*ks+i}")
    a(f"""
    K1_skip2:
    s_add_u32 s{sRd}, s{sRd}, 1
    s_and_b32 s{sRd}, s{sRd}, 3
    s_cmp_eq_u32 s{sRd}, 0
    s_mov_b32 s{sDelta}, {SLOT}
    s_cselect_b32 s{sDelta}, {(-3*SLOT) & 0xffffffff}, s{sDelta}
    """)
    for r in (vAx, vAx+1, vAx+2, vAx+3, vAq, vAh): a(f"v_add_u32 v{r}, s{sDelta}, v{r}")
    a(f"""
    K1_next:
    s_add_u32 s{sI}, s{sI}, 1
    s_cmp_lt_u32 s{sI}, 13
    s_cbranch_scc1 K1_loop
    """)
    vM, vS, vRs, vNB, vCA = 24, 26, 28, 80, 84
    a(f"""
    v_mov_b32 v{vT}, v{vSx}
    v_mov_b32 v{vT+1}, v{vSxx}
    s_nop 1
    v_permlane32_swap_b32 v{vT}, v{vSx}
    v_permlane32_swap_b32 v{vT+1}, v{vSxx}
    s_mov_b32 s{sT0}, {f32(1.0/640)}
    v_add_f32 v{vSx}, v{vSx}, v{vT}
    v_add_f32 v{vSxx}, v{vSxx}, v{vT+1}
    v_mul_f32 v{vSx}, s{sT0}, v{vSx}
    v_mul_f32 v{vSxx}, s{sT0}, v{vSxx}
    v_fma_f32 v{vSxx}, -v{vSx}, v{vSx}, v{vSxx}
    v_max_f32 v{vSxx}, 0, v{vSxx}
    v_cvt_pk_bf16_f32 v{vNB}, -v{vSx}, -v{vSx}
    v_mov_b32 v{vNB+1}, 0
    """)
    round_bf16(a, vSxx, vSxx)
    a(f"v_add_f32 v{vSxx}, {f32(1e-5)}, v{vSxx}")
    round_bf16(a, vSxx, vSxx)
    a(f"v_sqrt_f32 v{vS}, v{vSxx}")
    for i, c in enumerate((vCq, vCh, vC2)):
        a(f"""
        v_and_b32 v{vT+6}, 0xffff0000, v{c}
        v_sub_f32 v{vT+7}, v{c}, v{vT+6}
        v_cvt_pk_bf16_f32 v{vCA+2*i}, v{vT+6}, v{vT+7}
        v_mov_b32 v{vCA+2*i+1}, 0
        """)
    round_bf16(a, vS, vS)
    a(f"""
    v_rcp_f32 v{vRs}, v{vS}
    v_mfma_f32_32x32x8_bf16 {vr(aQ,16)}, {vr(vCA,2)}, {vr(vNB,2)}, {vr(aQ,16)}
    v_mfma_f32_32x32x8_bf16 {vr(aH,16)}, {vr(vCA+2,2)}, {vr(vNB,2)}, {vr(aH,16)}
    s_lshl_b32 s{sT0}, s{sRB}, 2
    s_add_u32 s{sT0}, s{sT0}, s{sR}
    s_lshl_b32 s{sT1}, s{sT0}, 5
    s_add_u32 s{sT1}, s{sT1}, s{sHD}
    s_mul_i32 s{sT1}, s{sT1}, 1536
    s_mul_i32 s{sT2}, s{sT0}, 96
    s_mul_i32 s{sT3}, s{sCB}, 6
    s_add_u32 s{sT2}, s{sT2}, s{sT3}
    s_lshl_b32 s{sT3}, s{sG}, 1
    s_add_u32 s{sT2}, s{sT2}, s{sT3}
    s_lshl_b32 s{sT2}, s{sT2}, 10
    s_add_u32 s{sT2}, s{sT2}, {WS_H}
    v_mul_f32 v{vM}, {f32(20 ** -0.5 * LOG2E)}, v{vRs}
    v_mul_f32 v30, {f32(-LOG2E)}, v{vRs}
    v_lshlrev_b32 v1, 4, v{vL}
    v_lshlrev_b32 v2, 3, v{vL}
    """)
    for i in range(6): a(f"v_pk_mul_f32 {vr(aQ+2*i,2)}, {vr(aQ+2*i,2)}, {vr(vM,2)} op_sel_hi:[1,0]")
    for i in range(6, 8): a(f"v_pk_mul_f32 {vr(aQ+2*i,2)}, {vr(aQ+2*i,2)}, {vr(vRs,2)} op_sel_hi:[1,0]")
    for i in range(8): a(f"v_cvt_pk_bf16_f32 v{96+i}, v{aQ+2*i}, v{aQ+2*i+1}")
    a(f"""
    buffer_store_dwordx4 {vr(96,4)}, v1, {sr(WS,4)}, s{sT1} offen
    buffer_store_dwordx2 {vr(100,2)}, v2, {sr(WS,4)}, s{sT1} offen offset:1024
    s_cmp_ge_u32 s{sHD}, 6
    s_cbranch_scc1 K1_nokv
    s_mul_i32 s{sT0}, s{sRB}, 10240
    s_add_u32 s{sT0}, s{sT0}, {WS_KV}
    v_and_b32 v3, 31, v{vL}
    v_cmp_lt_u32 vcc, 31, v{vL}
    s_cmp_ge_u32 s{sHD}, 3
    s_cbranch_scc1 K1_vst
    s_lshl_b32 s{sT1}, s{sR}, 9
    s_lshl_b32 s{sT3}, s{sHD}, 3
    s_add_u32 s58, s{sT1}, s{sT3}
    s_add_u32 s59, s58, 5120
    s_cmp_lg_u32 s{sHD}, 2
    s_cbranch_scc1 K1_kst
    s_add_u32 s58, s{sT1}, 5128
    s_and_b32 s59, s{sR}, 1
    s_mul_i32 s59, s59, 5120
    s_lshr_b32 s{sT3}, s{sR}, 1
    s_lshl_b32 s{sT3}, s{sT3}, 3
    s_add_u32 s59, s59, s{sT3}
    s_add_u32 s59, s59, 2048
    K1_kst:
    v_mov_b32 v4, s58
    v_mov_b32 v5, s59
    v_cndmask_b32 v4, v4, v5, vcc
    v_lshl_add_u32 v4, v3, 4, v4
    buffer_store_dwordx2 {vr(102,2)}, v4, {sr(WS,4)}, s{sT0} offen
    s_branch K1_nokv
    K1_vst:
    s_sub_u32 s{sT1}, s{sHD}, 3
    s_lshl_b32 s{sT1}, s{sT1}, 7
    s_min_u32 s{sT1}, s{sT1}, 192
    s_mul_i32 s{sT3}, s{sR}, 640
    s_add_u32 s{sT0}, s{sT0}, s{sT1}
    s_add_u32 s{sT0}, s{sT0}, s{sT3}
    v_bfe_u32 v4, v3, 2, 1
    v_mul_u32_u24 v4, 5120, v4
    v_lshrrev_b32 v5, 4, v3
    v_mul_u32_u24 v5, 320, v5
    v_add_u32 v4, v4, v5
    v_bfe_u32 v5, v3, 3, 1
    v_lshl_add_u32 v4, v5, 3, v4
    v_and_b32 v5, 3, v3
    v_lshl_add_u32 v4, v5, 1, v4
    v_lshrrev_b32 v5, 5, v{vL}
    v_lshl_add_u32 v4, v5, 6, v4
    buffer_store_short v102, v4, {sr(WS,4)}, s{sT0} offen offset:2560
    buffer_store_short_d16_hi v102, v4, {sr(WS,4)}, s{sT0} offen offset:2576
    buffer_store_short v103, v4, {sr(WS,4)}, s{sT0} offen offset:2592
    buffer_store_short_d16_hi v103, v4, {sr(WS,4)}, s{sT0} offen offset:2608
    K1_nokv:
    K1_hloop:
    """)
    E = 112
    for i in range(8): a(f"v_pk_mul_f32 {vr(E+2*i,2)}, {vr(aH+2*i,2)}, {vr(30,2)} op_sel_hi:[1,0]")
    for i in range(16): a(f"v_exp_f32 v{E+i}, v{E+i}")
    for i in range(8): a(f"v_pk_fma_f32 {vr(E+2*i,2)}, {vr(E+2*i,2)}, {vr(vS,2)}, {vr(vS,2)} op_sel_hi:[1,0,0]")
    for i in range(16): a(f"v_rcp_f32 v{E+i}, v{E+i}")
    for i in range(8): a(f"v_pk_mul_f32 {vr(E+2*i,2)}, {vr(E+2*i,2)}, {vr(aH+2*i,2)}")
    a(f"v_mfma_f32_32x32x8_bf16 {vr(aH,16)}, {vr(vCA+4,2)}, {vr(vNB,2)}, {vr(a2,16)}")
    for i in range(8): a(f"v_cvt_pk_bf16_f32 v{104+i}, v{E+2*i}, v{E+2*i+1}")
    a(f"""
    buffer_store_dwordx4 {vr(104,4)}, v1, {sr(WS,4)}, s{sT2} offen
    buffer_store_dwordx4 {vr(108,4)}, v1, {sr(WS,4)}, s{sT2} offen offset:1024
    s_add_u32 s{sT2}, s{sT2}, 4096
    s_cmp_eq_u32 s{sG}, 0
    s_mov_b32 s{sG}, 1
    s_cbranch_scc1 K1_hloop
    K1_end:
    s_endpgm
    """)
    return 144

def gen_k2(a):
    khead(a, "k2_kernel")
    sW, sR, sG, sRB, sCB, sHD, sRT = 32, 33, 34, 35, 36, 37, 38
    sI, sT0, sT1, sT2, sSrc, sVm = 39, 40, 41, 42, 43, 44
    WS = 28
    vL, vA, vD = 0, 1, 2
    QM, QT, KM, KT, V, P, O, S = 4, 8, 12, 20, 24, 40, 56, 72
    a(f"""
    s_cmp_ge_u32 s2, 256
    s_cbranch_scc1 K2_end
    s_load_dwordx2 s[18:19], s[0:1], 80
    v_lshrrev_b32 v1, 6, v0
    v_and_b32 v{vL}, 63, v0
    v_readfirstlane_b32 s{sW}, v1
    s_and_b32 s{sT0}, s2, 3
    s_lshl_b32 s{sRB}, s{sT0}, 2
    s_bfe_u32 s{sT0}, s2, 0x20003
    s_add_u32 s{sRB}, s{sRB}, s{sT0}
    s_bfe_u32 s{sT0}, s2, 0x10002
    s_lshl_b32 s{sCB}, s{sT0}, 3
    s_lshr_b32 s{sT0}, s2, 5
    s_add_u32 s{sCB}, s{sCB}, s{sT0}
    s_and_b32 s{sR}, s{sW}, 3
    s_lshr_b32 s{sG}, s{sW}, 2
    s_lshl_b32 s{sHD}, s{sCB}, 1
    s_add_u32 s{sHD}, s{sHD}, s{sG}
    s_lshl_b32 s{sRT}, s{sRB}, 2
    s_add_u32 s{sRT}, s{sRT}, s{sR}
    s_lshl_b32 s{sT1}, s{sRT}, 5
    s_add_u32 s{sT1}, s{sT1}, s{sHD}
    s_mul_i32 s{sT1}, s{sT1}, 1536
    v_lshlrev_b32 v{vD}, 4, v{vL}
    v_lshlrev_b32 v3, 3, v{vL}
    s_lshl_b32 s{sT0}, s{sW}, 10
    s_add_u32 s{sSrc}, s{sT0}, {WS_KV}
    s_mov_b32 m0, s{sT0}
    s_mov_b32 s{sVm}, 0x000fffff
    s_mov_b32 s{sVm+1}, 0x000fffff
    s_waitcnt lgkmcnt(0)
    """)
    srd(a, WS, 18, WS_END)
    a(f"""
    buffer_load_dwordx4 {vr(QM,4)}, v{vD}, {sr(WS,4)}, s{sT1} offen
    buffer_load_dwordx2 {vr(QT,2)}, v3, {sr(WS,4)}, s{sT1} offen offset:1024
    """)
    def dma():
        a(f"""
        buffer_load_dwordx4 v{vD}, {sr(WS,4)}, s{sSrc} offen lds
        s_add_u32 s{sSrc}, s{sSrc}, 8192
        s_add_u32 m0, m0, 8192
        s_nop 0
        """)
    for i in range(4): dma()
    a(f"""
    v_and_b32 v{vA}, 31, v{vL}
    v_lshlrev_b32 v{vA}, 4, v{vA}
    v_lshrrev_b32 v3, 5, v{vL}
    v_mul_u32_u24 v3, 5120, v3
    v_add_u32 v{vA}, v{vA}, v3
    """)
    for i in range(16): a(f"v_mov_b32 v{O+i}, 0")
    for i in range(16): a(f"v_mov_b32 v{V+i}, 0x3f803f80")
    for i in range(4): a(f"v_mov_b32 v{P+12+i}, 0")
    a(f"""
    s_mov_b32 s{sI}, 0
    s_waitcnt vmcnt(1)
    s_barrier
    ds_read_b128 {vr(KT,4)}, v{vA} offset:2048
    ds_read_b128 {vr(KM,4)}, v{vA} offset:0
    ds_read_b128 {vr(KM+4,4)}, v{vA} offset:512
    s_waitcnt lgkmcnt(0)
    v_mfma_f32_32x32x4_2b_bf16 {vr(S,32)}, {vr(KT,2)}, {vr(QT,2)}, 0
    s_nop 15
    s_nop 3
    v_mfma_f32_32x32x16_bf16 {vr(S,16)}, {vr(KM,4)}, {vr(QM,4)}, {vr(S,16)}
    v_mfma_f32_32x32x16_bf16 {vr(S+16,16)}, {vr(KM+4,4)}, {vr(QM,4)}, {vr(S+16,16)}
    ds_read_b128 {vr(KM,4)}, v{vA} offset:1024
    ds_read_b128 {vr(KM+4,4)}, v{vA} offset:1536
    s_mov_b64 exec, {sr(sVm,2)}
    ds_read_b128 {vr(V,4)}, v{vA} offset:2560
    ds_read_b128 {vr(V+4,4)}, v{vA} offset:2880
    s_mov_b64 exec, -1
    s_nop 7
    s_branch K2_dma
    .p2align 6
    K2_loop:
    s_cmp_gt_u32 s{sI}, 9
    s_cbranch_scc1 K2_body
    s_cmp_lg_u32 s{sI}, 9
    s_cbranch_scc1 K2_w2
    s_waitcnt vmcnt(0)
    K2_w2:
    s_waitcnt vmcnt(2)
    s_barrier
    s_cmp_ge_u32 s{sI}, 8
    s_cbranch_scc1 K2_body
    K2_dma:
    """)
    dma(); dma()
    a("K2_body:")
    ops = []
    def rd(dst, off, tag, masked=False): ops.append(("rd", f"ds_read_b128 {vr(dst,4)}, v{vA} offset:{off}", tag))
    def x(t): ops.append(("x", t, None))
    def use(t, tag): ops.append(("use", t, tag))
    def softmax8(Sc, b, p):
        for i in range(4): x(f"v_exp_f32 v{Sc+b+i}, v{Sc+b+i}")
        for i in range(4, 6): x(f"v_exp_f32 v{Sc+b+i}, v{Sc+b+i}")
        x(f"v_cvt_pk_bf16_f32 v{P+4*p}, v{Sc+b}, v{Sc+b+1}")
        for i in range(6, 8): x(f"v_exp_f32 v{Sc+b+i}, v{Sc+b+i}")
        x(f"v_cvt_pk_bf16_f32 v{P+4*p+1}, v{Sc+b+2}, v{Sc+b+3}")
        x(f"v_cvt_pk_bf16_f32 v{P+4*p+2}, v{Sc+b+4}, v{Sc+b+5}")
        x(f"v_cvt_pk_bf16_f32 v{P+4*p+3}, v{Sc+b+6}, v{Sc+b+7}")
    def pv(f): use(f"v_mfma_f32_32x32x16_bf16 {vr(O,16)}, {vr(V+4*f,4)}, {vr(P+4*f,4)}, {vr(O,16)}", f"V{f}")
    for st in range(2):
        Sc = S + 32 * st; Sn = S + 32 * (1 - st)
        def koff(step, t): return (step // 2) * 10240 + ((step % 2) * 2 + t) * 512
        def voff(step, f): return (step // 2) * 10240 + 2560 + ((step % 2) * 4 + f) * 320
        use(f"v_mfma_f32_32x32x4_2b_bf16 {vr(Sn,32)}, {vr(KT+2*(1-st),2)}, {vr(QT,2)}, 0", "KT")
        if st == 0: rd(KT, 10240 + 2048, "KT")
        softmax8(Sc, 0, 0)
        pv(3)
        x(f"s_mov_b64 exec, {sr(sVm,2)}")
        rd(V+8, voff(st, 2), "V2"); rd(V+12, voff(st, 3), "V3")
        x("s_mov_b64 exec, -1")
        softmax8(Sc, 8, 1)
        use(f"v_mfma_f32_32x32x16_bf16 {vr(Sn,16)}, {vr(KM,4)}, {vr(QM,4)}, {vr(Sn,16)}", "K0")
        rd(KM, koff(st + 2, 0), "K0")
        for i in range(2): x(f"v_exp_f32 v{Sc+16+i}, v{Sc+16+i}")
        pv(0)
        for i in range(2, 6): x(f"v_exp_f32 v{Sc+16+i}, v{Sc+16+i}")
        x(f"v_cvt_pk_bf16_f32 v{P+8}, v{Sc+16}, v{Sc+17}")
        use(f"v_mfma_f32_32x32x16_bf16 {vr(Sn+16,16)}, {vr(KM+4,4)}, {vr(QM,4)}, {vr(Sn+16,16)}", "K1")
        rd(KM+4, koff(st + 2, 1), "K1")
        for i in range(6, 8): x(f"v_exp_f32 v{Sc+16+i}, v{Sc+16+i}")
        x(f"v_cvt_pk_bf16_f32 v{P+9}, v{Sc+18}, v{Sc+19}")
        x(f"v_cvt_pk_bf16_f32 v{P+10}, v{Sc+20}, v{Sc+21}")
        x(f"v_cvt_pk_bf16_f32 v{P+11}, v{Sc+22}, v{Sc+23}")
        pv(1)
        x(f"s_mov_b64 exec, {sr(sVm,2)}")
        rd(V, voff(st + 1, 0), "V0"); rd(V+4, voff(st + 1, 1), "V1")
        x("s_mov_b64 exec, -1")
        for i in range(4): x(f"v_exp_f32 v{Sc+24+i}, v{Sc+24+i}")
        pv(2)
        for i in range(4, 6): x(f"v_exp_f32 v{Sc+24+i}, v{Sc+24+i}")
        x(f"v_cvt_pk_bf16_f32 v{P+12}, v{Sc+24}, v{Sc+25}")
        for i in range(6, 8): x(f"v_exp_f32 v{Sc+24+i}, v{Sc+24+i}")
        x(f"v_cvt_pk_bf16_f32 v{P+13}, v{Sc+26}, v{Sc+27}")
        x(f"v_cvt_pk_bf16_f32 v{P+14}, v{Sc+28}, v{Sc+29}")
        x(f"v_cvt_pk_bf16_f32 v{P+15}, v{Sc+30}, v{Sc+31}")
    hist = []
    for pas in range(2):
        lastwait_done = None
        for kind, text, tag in ops:
            if kind == "rd": hist.append(tag)
            if kind == "use" and pas == 1:
                idx = max(i for i, t in enumerate(hist) if t == tag)
                n = len(hist) - 1 - idx
                if lastwait_done is None or idx > lastwait_done:
                    a(f"s_waitcnt lgkmcnt({n})"); lastwait_done = idx
            if pas == 1: a(text)
    a(f"""
    v_add_u32 v{vA}, 10240, v{vA}
    s_add_u32 s{sI}, s{sI}, 1
    s_cmp_lt_u32 s{sI}, 16
    s_cbranch_scc1 K2_loop
    s_waitcnt lgkmcnt(0)
    v_mfma_f32_32x32x16_bf16 {vr(O,16)}, {vr(V+12,4)}, {vr(P+12,4)}, {vr(O,16)}
    s_mov_b32 s{sT0}, {f32(2.0**-64)}
    s_mov_b32 s{sT1}, {f32(2.0**64)}
    s_nop 10
    v_cmp_nge_f32 vcc, v{O+12}, v{O+12}
    """)
    a.l.pop()
    a(f"""
    v_cmp_nle_f32 vcc, s{sT0}, v{O+12}
    v_cmp_nge_f32 s[46:47], s{sT1}, v{O+12}
    s_nop 1
    s_or_b64 vcc, vcc, s[46:47]
    s_cbranch_scc1 K2_slow
    K2_fin:
    v_rcp_f32 v{P}, v{O+12}
    s_lshr_b32 s{sT0}, s{sHD}, 2
    s_mul_i32 s{sT0}, s{sT0}, 5
    s_mul_i32 s{sT1}, s{sRT}, 40
    s_add_u32 s{sT0}, s{sT0}, s{sT1}
    s_lshl_b32 s{sT0}, s{sT0}, 10
    s_add_u32 s{sT0}, s{sT0}, {WS_O}
    s_and_b32 s{sT1}, s{sHD}, 3
    s_lshl_b32 s{sT1}, s{sT1}, 10
    s_add_u32 s{sT1}, s{sT1}, s{sT0}
    s_bfe_u32 s{sT2}, s{sHD}, 0x10001
    s_lshl_b32 s{sT2}, s{sT2}, 9
    s_add_u32 s{sT0}, s{sT0}, s{sT2}
    s_and_b32 s{sT2}, s{sHD}, 1
    s_lshl_b32 s{sT2}, s{sT2}, 3
    s_add_u32 s{sT0}, s{sT0}, s{sT2}
    s_add_u32 s{sT0}, s{sT0}, 4096
    """)
    for i in range(6): a(f"v_pk_mul_f32 {vr(O+2*i,2)}, {vr(O+2*i,2)}, {vr(P,2)} op_sel_hi:[1,0]")
    for i in range(6): a(f"v_cvt_pk_bf16_f32 v{S+i}, v{O+2*i}, v{O+2*i+1}")
    a(f"""
    buffer_store_dwordx4 {vr(S,4)}, v{vD}, {sr(WS,4)}, s{sT1} offen
    s_mov_b32 exec_hi, 0
    buffer_store_dwordx2 {vr(S+4,2)}, v{vD}, {sr(WS,4)}, s{sT0} offen
    K2_end:
    s_endpgm
    """)
    vMx = 3
    sP, sO1, sO2, sO3 = 48, 49, 50, 51
    a(f"""
    K2_slow:
    v_subrev_u32 v{vA}, {16*10240}, v{vA}
    v_mov_b32 v{vMx}, 0xff800000
    s_mov_b32 s{sP}, 0
    """)
    for i in range(16): a(f"v_mov_b32 v{O+i}, 0")
    a(f"""
    K2_sp:
    s_mov_b32 s{sI}, 0
    K2_sl:
    s_lshr_b32 s{sT0}, s{sI}, 1
    s_mul_i32 s{sT0}, s{sT0}, 10240
    s_add_u32 s{sT0}, s{sT0}, {WS_KV}
    s_and_b32 s{sT1}, s{sI}, 1
    s_lshl_b32 s{sO1}, s{sT1}, 10
    s_add_u32 s{sO1}, s{sO1}, s{sT0}
    s_lshl_b32 s{sO2}, s{sT1}, 3
    s_add_u32 s{sO2}, s{sO2}, s{sT0}
    s_mul_i32 s{sO3}, s{sT1}, 1280
    s_add_u32 s{sO3}, s{sO3}, s{sT0}
    buffer_load_dwordx4 {vr(KM,4)}, v{vA}, {sr(WS,4)}, s{sO1} offen
    buffer_load_dwordx4 {vr(KM+4,4)}, v{vA}, {sr(WS,4)}, s{sO1} offen offset:512
    buffer_load_dwordx2 {vr(KT,2)}, v{vA}, {sr(WS,4)}, s{sO2} offen offset:2048
    s_mov_b64 exec, {sr(sVm,2)}
    """)
    for f in range(4): a(f"buffer_load_dwordx4 {vr(V+4*f,4)}, v{vA}, {sr(WS,4)}, s{sO3} offen offset:{2560+320*f}")
    a(f"""
    s_mov_b64 exec, -1
    s_waitcnt vmcnt(0)
    v_mfma_f32_32x32x4_2b_bf16 {vr(S,32)}, {vr(KT,2)}, {vr(QT,2)}, 0
    s_nop 15
    s_nop 3
    v_mfma_f32_32x32x16_bf16 {vr(S,16)}, {vr(KM,4)}, {vr(QM,4)}, {vr(S,16)}
    v_mfma_f32_32x32x16_bf16 {vr(S+16,16)}, {vr(KM+4,4)}, {vr(QM,4)}, {vr(S+16,16)}
    s_cmp_lg_u32 s{sP}, 0
    s_nop 12
    s_cbranch_scc1 K2_sp2
    """)
    for i in range(16): a(f"v_max3_f32 v{vMx}, v{S+2*i}, v{S+2*i+1}, v{vMx}")
    a("s_branch K2_snext\nK2_sp2:")
    for i in range(32): a(f"v_sub_f32 v{S+i}, v{S+i}, v{vMx}")
    for i in range(32): a(f"v_exp_f32 v{S+i}, v{S+i}")
    a("s_nop 0")
    for i in range(16): a(f"v_cvt_pk_bf16_f32 v{P+i}, v{S+2*i}, v{S+2*i+1}")
    a("s_nop 1")
    for f in range(4): a(f"v_mfma_f32_32x32x16_bf16 {vr(O,16)}, {vr(V+4*f,4)}, {vr(P+4*f,4)}, {vr(O,16)}")
    a(f"""
    s_nop 15
    K2_snext:
    s_add_u32 s{sI}, s{sI}, 1
    s_cmp_lt_u32 s{sI}, 32
    s_cbranch_scc1 K2_sl
    s_cmp_lg_u32 s{sP}, 0
    s_cbranch_scc1 K2_fin
    v_mov_b32 v{P}, v{vMx}
    s_nop 1
    v_permlane32_swap_b32 v{P}, v{vMx}
    s_mov_b32 s{sP}, 1
    v_max_f32 v{vMx}, v{vMx}, v{P}
    s_branch K2_sp
    """)
    return 136

def gen_k3(a):
    khead(a, "k3_kernel")
    sW, sRB, sNB, sT0, sT1, sT2, sLb, sH, sW2 = 32, 33, 34, 35, 36, 37, 38, 39, 40
    X, WO, W2, WS, OUT = 20, 24, 44, 28, 48
    vL, vD, vA1, vA2, vT = 0, 1, 2, 3, 10
    vS = 4
    ACC = 16
    FW = 112
    FO = 136
    FH = 176
    XR = 224
    a(f"""
    s_cmp_ge_u32 s2, 256
    s_cbranch_scc1 K3_end
    s_load_dwordx2 s[8:9], s[0:1], 0
    s_load_dwordx2 s[10:11], s[0:1], 32
    s_load_dwordx4 s[12:15], s[0:1], 56
    s_load_dwordx2 s[18:19], s[0:1], 80
    v_lshrrev_b32 v1, 6, v0
    v_and_b32 v{vL}, 63, v0
    v_readfirstlane_b32 s{sW}, v1
    s_and_b32 s{sT0}, s2, 3
    s_lshl_b32 s{sRB}, s{sT0}, 3
    s_bfe_u32 s{sT0}, s2, 0x30003
    s_add_u32 s{sRB}, s{sRB}, s{sT0}
    s_bfe_u32 s{sT0}, s2, 0x10002
    s_lshl_b32 s{sNB}, s{sT0}, 2
    s_lshr_b32 s{sT0}, s2, 6
    s_add_u32 s{sNB}, s{sNB}, s{sT0}
    s_mul_i32 s{sLb}, s{sW}, 20480
    v_lshlrev_b32 v{vD}, 4, v{vL}
    s_mul_i32 s{sT0}, s{sNB}, 160
    """)
    for i in range(5):
        a(f"""
        v_add_u32 v{vT}, {64*i}, v{vL}
        v_mul_u32_u24 v{vT+1}, 6554, v{vT}
        v_lshrrev_b32 v{vT+1}, 16, v{vT+1}
        v_mul_u32_u24 v{vT+2}, {1280-160}, v{vT+1}
        v_lshl_add_u32 v{vT+2}, v{vT}, 4, v{vT+2}
        v_add_u32 v{vS+i}, s{sT0}, v{vT+2}
        """)
    a(f"""
    v_lshrrev_b32 v{vT}, 5, v{vL}
    v_bfe_u32 v{vT+1}, v{vL}, 2, 2
    v_bfe_u32 v{vT+2}, v{vL}, 4, 1
    v_and_b32 v{vT+3}, 3, v{vL}
    v_lshl_add_u32 v{vT+2}, v{vT+2}, 2, v{vT+3}
    v_lshlrev_b32 v{vT+2}, 3, v{vT+2}
    v_add_u32 v{vT+2}, s{sLb}, v{vT+2}
    v_lshl_add_u32 v{vT+3}, v{vT}, 2, v{vT+1}
    v_mul_u32_u24 v{vT+3}, 160, v{vT+3}
    v_add_u32 v{vA1}, v{vT+3}, v{vT+2}
    v_mul_u32_u24 v{vT+3}, 40, v{vT}
    v_add_u32 v{vT+3}, v{vT+3}, v{vT+1}
    v_mul_u32_u24 v{vT+3}, 160, v{vT+3}
    v_add_u32 v{vA2}, v{vT+3}, v{vT+2}
    s_waitcnt lgkmcnt(0)
    """)
    srd(a, X, 8, 2048*1280); srd(a, WO, 10, 640*1280); srd(a, W2, 12, 1536*1280); srd(a, OUT, 14, 2048*1280); srd(a, WS, 18, WS_END)
    def dma_unit(S_, soff, slot, n=5):
        for i in range(n):
            a(f"s_add_u32 m0, s{sLb}, {slot*5120 + i*1024}\ns_nop 0\nbuffer_load_dwordx4 v{vS+i}, {sr(S_,4)}, s{soff} offen lds")
    def hload(u):
        for r in range(2):
            for ks in range(2):
                a(f"buffer_load_dwordx4 {vr(FH+16*(u%3)+8*r+4*ks,4)}, v{vD}, {sr(WS,4)}, s{sH+0 if r==0 else sT2} offen offset:{1024*ks}")
        a(f"s_add_u32 s{sH}, s{sH}, 2048\ns_add_u32 s{sT2}, s{sT2}, 2048")
    a(f"""
    s_mul_i32 s{sT0}, s{sRB}, 80
    s_mul_i32 s{sT1}, s{sW}, 5
    s_add_u32 s{sT0}, s{sT0}, s{sT1}
    s_lshl_b32 s{sT0}, s{sT0}, 10
    s_add_u32 s{sT0}, s{sT0}, {WS_O}
    """)
    for r in range(2):
        for f in range(4): a(f"buffer_load_dwordx4 {vr(FO+20*r+4*f,4)}, v{vD}, {sr(WS,4)}, s{sT0} offen offset:{1024*f}")
        a(f"s_add_u32 s{sT0}, s{sT0}, 4096\nbuffer_load_dwordx4 {vr(FO+20*r+16,4)}, v{vD}, {sr(WS,4)}, s{sT0} offen\ns_add_u32 s{sT0}, s{sT0}, {40960-4096}")
    a(f"s_mul_i32 s{sT0}, s{sW}, {80*1280}")
    for u in range(3):
        dma_unit(WO, sT0, u, 5 if u < 2 else 3)
        a(f"s_add_u32 s{sT0}, s{sT0}, {32*1280}")
    a(f"""
    s_mul_i32 s{sW2}, s{sW}, {192*1280}
    s_mul_i32 s{sH}, s{sRB}, 192
    s_mul_i32 s{sT1}, s{sW}, 12
    s_add_u32 s{sH}, s{sH}, s{sT1}
    s_lshl_b32 s{sH}, s{sH}, 10
    s_add_u32 s{sH}, s{sH}, {WS_H}
    s_add_u32 s{sT2}, s{sH}, {96*1024}
    """)
    dma_unit(W2, sW2, 3); a(f"s_add_u32 s{sW2}, s{sW2}, {32*1280}")
    hload(0); hload(1); hload(2)
    for i in range(96): a(f"v_mov_b32 v{ACC+i}, 0")
    a("s_waitcnt vmcnt(17)")
    def mm(fb_of_r, wq):
        for t in range(3):
            for r in range(2):
                a(f"v_mfma_f32_32x32x16_bf16 {vr(ACC+48*r+16*t,16)}, {vr(FW+12*wq+4*t,4)}, {vr(fb_of_r(r),4)}, {vr(ACC+48*r+16*t,16)}")
    def wreads(va, rowoff0, rowoff1, wq):
        for t in range(3):
            for q, ro in enumerate((rowoff0, rowoff1)):
                a(f"ds_read_b64_tr_b16 {vr(FW+12*wq+4*t+2*q,2)}, v{va} offset:{ro+64*t}")
    def oread(f):
        if f < 4: wreads(vA1, 20*f*160, (20*f+8)*160, f % 2)
        else: wreads(vA2, 16*160, 36*160, f % 2)
    oread(0)
    for f in range(5):
        if f < 4: oread(f + 1); a("s_waitcnt lgkmcnt(6)")
        else: a("s_waitcnt lgkmcnt(0)")
        mm(lambda r: FO + 20*r + 4*f, f % 2)
    for u in range(1, 4):
        dma_unit(W2, sW2, u - 1); a(f"s_add_u32 s{sW2}, s{sW2}, {32*1280}")
    q = [("w", 0)] * 5 + [("h", 0)] * 4 + [("h", 1)] * 4 + [("h", 2)] * 4 + [("w", 1)] * 5 + [("w", 2)] * 5 + [("w", 3)] * 5
    for u in range(6):
        idx = max(i for i, t in enumerate(q) if t in (("w", u), ("h", u)))
        a(f"s_waitcnt vmcnt({len(q)-1-idx})")
        slot = (u + 3) % 4
        wreads(vA1, slot*5120, slot*5120 + 8*160, 0)
        wreads(vA1, slot*5120 + 16*160, slot*5120 + 24*160, 1)
        a("s_waitcnt lgkmcnt(6)")
        mm(lambda r: FH + 16*(u%3) + 8*r, 0)
        a("s_waitcnt lgkmcnt(0)")
        if u + 4 < 6:
            dma_unit(W2, sW2, slot); a(f"s_add_u32 s{sW2}, s{sW2}, {32*1280}"); q += [("w", u + 4)] * 5
        mm(lambda r: FH + 16*(u%3) + 8*r + 4, 1)
        if u + 3 < 6:
            hload(u + 3); q += [("h", u + 3)] * 4
    a(f"""
    s_lshl_b32 s{sT0}, s{sRB}, 6
    s_mul_i32 s{sT0}, s{sT0}, 1280
    s_mul_i32 s{sT1}, s{sNB}, 160
    s_add_u32 s{sT0}, s{sT0}, s{sT1}
    s_lshl_b32 s{sT1}, s{sW}, 5
    s_add_u32 s{sT0}, s{sT0}, s{sT1}
    v_mul_u32_u24 v{vT}, 1280, v{vL}
    v_add_u32 v{vT+1}, s{sLb}, v{vD}
    s_cmp_ge_u32 s{sW}, 5
    s_cbranch_scc1 K3_nox
    buffer_load_dwordx4 {vr(XR,4)}, v{vT}, {sr(X,4)}, s{sT0} offen
    buffer_load_dwordx4 {vr(XR+4,4)}, v{vT}, {sr(X,4)}, s{sT0} offen offset:16
    K3_nox:
    s_nop 7
    """)
    for r in range(2):
        for o in range(10):
            a(f"ds_write_b128 v{vT+1}, {vr(ACC+48*r+4*o,4)} offset:{(10*r+o)*1024}")
    a(f"""
    s_waitcnt lgkmcnt(0)
    s_barrier
    s_cmp_ge_u32 s{sW}, 5
    s_cbranch_scc1 K3_end
    v_lshrrev_b32 v{vT+2}, 5, v{vL}
    v_mul_u32_u24 v{vT+2}, 10240, v{vT+2}
    v_and_b32 v{vT+3}, 31, v{vL}
    v_lshl_add_u32 v{vT+2}, v{vT+3}, 4, v{vT+2}
    s_lshl_b32 s{sT1}, s{sW}, 11
    v_add_u32 v{vT+2}, s{sT1}, v{vT+2}
    v_add_u32 v{vT+3}, 61440, v{vT+2}
    v_add_u32 v{vT+4}, 61440, v{vT+3}
    """)
    for p in range(8):
        for i in range(4):
            a(f"ds_read_b128 {vr(ACC+16*p+4*i,4)}, v{vT+2+p//3} offset:{(p%3)*20480 + 512*i}")
        if p >= 2:
            a("s_waitcnt lgkmcnt(4)" if p < 7 else "s_waitcnt lgkmcnt(4)")
            for i in range(8): a(f"v_pk_add_f32 {vr(ACC+2*i,2)}, {vr(ACC+2*i,2)}, {vr(ACC+16*(p-1)+2*i,2)}")
    a("s_waitcnt lgkmcnt(0)")
    for i in range(8): a(f"v_pk_add_f32 {vr(ACC+2*i,2)}, {vr(ACC+2*i,2)}, {vr(ACC+16*7+2*i,2)}")
    a("s_waitcnt vmcnt(0)")
    for i in range(8):
        a(f"v_lshlrev_b32 v{ACC+16+2*i}, 16, v{XR+i}\nv_and_b32 v{ACC+17+2*i}, 0xffff0000, v{XR+i}")
    for i in range(8): a(f"v_pk_add_f32 {vr(ACC+2*i,2)}, {vr(ACC+2*i,2)}, {vr(ACC+16+2*i,2)}")
    for i in range(8): a(f"v_cvt_pk_bf16_f32 v{XR+i}, v{ACC+2*i}, v{ACC+2*i+1}")
    a(f"""
    buffer_store_dwordx4 {vr(XR,4)}, v{vT}, {sr(OUT,4)}, s{sT0} offen
    buffer_store_dwordx4 {vr(XR+4,4)}, v{vT}, {sr(OUT,4)}, s{sT0} offen offset:16
    K3_end:
    s_endpgm
    """)
    return 232

def main(out):
    a = Asm()
    n1 = gen_k1(a); n2 = gen_k2(a); n3 = gen_k3(a)
    head = f"""; LN + MQA attention + SiLU FFN, three launches (generated by work/gen1.py)
; @launch kernel=k1_kernel grid=(256,1,1) block=(512,1,1) lds=147456
; @launch kernel=k2_kernel grid=(256,1,1) block=(512,1,1) lds=163840
; @launch kernel=k3_kernel grid=(256,1,1) block=(512,1,1) lds=163840
.amdgcn_target "amdgcn-amd-amdhsa--gfx950"
.text
"""
    tail = '.section .rodata,"a"\n' + kdesc("k1_kernel", n1) + kdesc("k2_kernel", n2) + kdesc("k3_kernel", n3)
    open(out, "w").write(head + a.text() + tail)

if __name__ == "__main__":
    main(sys.argv[1] if len(sys.argv) > 1 else f"cdna_kernels/{NAME}.s")
```

```python
def vr(a, n): return "v[%d:%d]" % (a, a + n - 1)
def sr(a, n): return "s[%d:%d]" % (a, a + n - 1)
def body(R, variant=0, prio=(2, 1, 0), sVm=44):
    vA, QM, QT, KM, KT, V, P, O, S = (R[k] for k in ("vA", "QM", "QT", "KM", "KT", "V", "P", "O", "S"))
    ops = []
    def rd(dst, off, tag): ops.append(("rd", f"ds_read_b128 {vr(dst,4)}, v{vA} offset:{off}", tag))
    def x(t): ops.append(("x", t, None))
    def use(t, *tags): ops.append(("use", t, tags))
    def E(r): x(f"v_exp_f32 v{r}, v{r}")
    def C(d, r): x(f"v_cvt_pk_bf16_f32 v{d}, v{r}, v{r+1}")
    def pv(f, *tags): use(f"v_mfma_f32_32x32x16_bf16 {vr(O,16)}, {vr(V+4*f,4)}, {vr(P+4*f,4)}, {vr(O,16)}", *(tags or (f"V{f}",)))
    def koff(step, t): return (step // 2) * 10240 + ((step % 2) * 2 + t) * 512
    def voff(step, f): return (step // 2) * 10240 + 2560 + ((step % 2) * 4 + f) * 320
    mon = f"s_mov_b64 exec, {sr(sVm,2)}"; moff = "s_mov_b64 exec, -1"
    for st in range(2):
        Sc = S + 32 * st; Sn = S + 32 * (1 - st)
        qk2 = f"v_mfma_f32_32x32x4_2b_bf16 {vr(Sn,32)}, {vr(KT+2*(1-st),2)}, {vr(QT,2)}, 0"
        qk0 = f"v_mfma_f32_32x32x16_bf16 {vr(Sn,16)}, {vr(KM,4)}, {vr(QM,4)}, {vr(Sn,16)}"
        qk1 = f"v_mfma_f32_32x32x16_bf16 {vr(Sn+16,16)}, {vr(KM+4,4)}, {vr(QM,4)}, {vr(Sn+16,16)}"
        if variant == 0:
            use(qk2, "KT")
            if prio and st == 0: x(f"s_setprio {prio[0]}")
            for i in range(6): E(Sc+i)
            C(P, Sc); E(Sc+6); E(Sc+7); C(P+1, Sc+2)
            pv(3)
            x(mon); rd(V+8, voff(st, 2), "V2"); rd(V+12, voff(st, 3), "V3"); x(moff)
            if st == 0: rd(KT, 10240 + 2048, "KT")
            C(P+2, Sc+4); C(P+3, Sc+6)
            for i in range(8, 12): E(Sc+i)
            pv(0, "V0", "V1", "K0", "K1")
            for i in range(12, 14): E(Sc+i)
            C(P+4, Sc+8); E(Sc+14); E(Sc+15); C(P+5, Sc+10)
            use(qk0, "K0")
            if prio and st == 1: x(f"s_setprio {prio[1]}")
            C(P+6, Sc+12); C(P+7, Sc+14)
            for i in range(16, 20): E(Sc+i)
            pv(1)
            for i in range(20, 22): E(Sc+i)
            C(P+8, Sc+16); E(Sc+22); E(Sc+23); C(P+9, Sc+18)
            use(qk1, "K1")
            rd(KM, koff(st + 2, 0), "K0"); rd(KM+4, koff(st + 2, 1), "K1")
            x(mon); rd(V, voff(st + 1, 0), "V0"); rd(V+4, voff(st + 1, 1), "V1"); x(moff)
            if prio and st == 1: x(f"s_setprio {prio[2]}")
            C(P+10, Sc+20); C(P+11, Sc+22)
            for i in range(24, 28): E(Sc+i)
            pv(2, "V2", "V3", "KT")
            for i in range(28, 30): E(Sc+i)
            C(P+12, Sc+24); E(Sc+30); E(Sc+31); C(P+13, Sc+26); C(P+14, Sc+28); C(P+15, Sc+30)
    out = []
    hist = []; done = -1
    for pas in range(3):
        for kind, text, tag in ops:
            if kind == "rd": hist.append(tag)
            if kind == "use":
                idxs = [max([i for i, t in enumerate(hist) if t == tg], default=-1) for tg in tag]
                idx = max(idxs)
                if idx > done:
                    if pas == 2: out.append(f"s_waitcnt lgkmcnt({len(hist) - 1 - idx})")
                    done = idx
            if pas == 2: out.append(text)
    return out
```

```python
def vr(a, n): return "v[%d:%d]" % (a, a + n - 1)
def MF(d, A, B, C): return f"v_mfma_f32_32x32x16_bf16 {d}, {A}, {B}, {C}"
def halves(R, T, mode):
    fX, F, AC, CC, SX, SEL, vAx, vAw, t0, sDelta = (R[k] for k in ("fX", "F", "AC", "CC", "SX", "SEL", "vAx", "vAw", "t0", "sDelta"))
    n = 1 + 2 * T
    def reads(i):
        o = [f"ds_read_b128 {vr(fX+4*i,4)}, v{vAx+i}"]
        for u in range(T):
            for q in range(2): o.append(f"ds_read_b64_tr_b16 {vr(F[u]+4*i+2*q,2)}, v{vAw+i} offset:{8192*u+256*q}")
        return o
    def adv(i): return [f"v_add_u32 v{vAx+i}, s{sDelta}, v{vAx+i}", f"v_add_u32 v{vAw+i}, s{sDelta}, v{vAw+i}"]
    def xstat(i):
        o = []
        if mode == 'a': return o
        for r in range(fX+4*i, fX+4*i+4):
            o += [f"v_lshlrev_b32 v{t0}, 16, v{r}", f"v_and_b32 v{t0+1}, 0xffff0000, v{r}"]
            if mode == 'v': o += [f"v_add_f32 v{SX}, v{SX}, v{t0}", f"v_fmac_f32 v{SX+1}, v{t0}, v{t0}", f"v_add_f32 v{SX+2}, v{SX+2}, v{t0+1}", f"v_fmac_f32 v{SX+3}, v{t0+1}, v{t0+1}"]
            else: o += [f"v_fmac_f32 v{SX+4}, v{t0}, v{t0}", f"v_fmac_f32 v{SX+5}, v{t0+1}, v{t0+1}"]
        return o
    def m16(d, b): return f"v_mfma_f32_16x16x32_bf16 {vr(d,4)}, {vr(SEL,4)}, {vr(b,4)}, {vr(d,4)}"
    def m4(b): return f"v_mfma_f32_4x4x4_16b_bf16 {vr(SX+4,4)}, {vr(b,2)}, {vr(b,2)}, {vr(SX+4,4)}"
    def mm(i): return [MF(vr(AC[u],16), vr(F[u]+4*i,4), vr(fX+4*i,4), vr(AC[u],16)) for u in range(T)]
    def small(i, withc):
        o = []
        if mode == 'a': o.append(m4(fX+4*i))
        if mode != 'v': o.append(m16(SX, fX+4*i))
        if withc: o += [m16(CC[u], F[u]) for u in range(T)]
        elif mode == 'a': o.append("s_nop 0")
        if mode == 'a': o.append(m4(fX+4*i+2))
        return o
    def weave(ms, rd, va):
        out = []; k = len(ms)
        for j, m in enumerate(ms):
            out.append(m)
            out += rd[len(rd) * j // k: len(rd) * (j + 1) // k]
            out += va[len(va) * j // k: len(va) * (j + 1) // k]
        return out
    h1 = weave(mm(2) + mm(3), reads(0) + reads(1), xstat(2)) + small(2, False) + adv(0) + adv(1)
    h1r = reads(0) + reads(1) + adv(0) + adv(1)
    h2 = [f"s_waitcnt lgkmcnt({n})"] + weave(mm(0), reads(2), xstat(0)[:len(xstat(0))//2]) + small(0, True)
    h2 += [f"s_waitcnt lgkmcnt({n})"] + weave(mm(1), reads(3), xstat(0)[len(xstat(0))//2:]) + adv(2) + adv(3)
    tail = weave(mm(2) + mm(3), [], xstat(2)) + small(2, False)
    return h1, h1r, h2, tail

def stream(R, T, mode):
    fX, F, AC, CC, SX, SEL, vAx, vAw, t0, sDelta = (R[k] for k in ("fX", "F", "AC", "CC", "SX", "SEL", "vAx", "vAw", "t0", "sDelta"))
    n = 1 + 2 * T
    def reads(i):
        o = [f"ds_read_b128 {vr(fX+4*i,4)}, v{vAx+i}"]
        for u in range(T):
            for q in range(2): o.append(f"ds_read_b64_tr_b16 {vr(F[u]+4*i+2*q,2)}, v{vAw+i} offset:{8192*u+256*q}")
        return o
    def adv(i): return [f"v_add_u32 v{vAx+i}, s{sDelta}, v{vAx+i}", f"v_add_u32 v{vAw+i}, s{sDelta}, v{vAw+i}"]
    def xstat(i, half):
        o = []
        for r in range(fX+4*i+2*half, fX+4*i+2*half+2):
            o += [f"v_lshlrev_b32 v{t0}, 16, v{r}", f"v_and_b32 v{t0+1}, 0xffff0000, v{r}"]
            if mode == 'v': o += [f"v_add_f32 v{SX}, v{SX}, v{t0}", f"v_fmac_f32 v{SX+1}, v{t0}, v{t0}", f"v_add_f32 v{SX+2}, v{SX+2}, v{t0+1}", f"v_fmac_f32 v{SX+3}, v{t0+1}, v{t0+1}"]
            else: o += [f"v_fmac_f32 v{SX+4}, v{t0}, v{t0}", f"v_fmac_f32 v{SX+5}, v{t0+1}, v{t0+1}"]
        return o
    def m16(d, b): return f"v_mfma_f32_16x16x32_bf16 {vr(d,4)}, {vr(SEL,4)}, {vr(b,4)}, {vr(d,4)}"
    def mm(i): return [MF(vr(AC[u],16), vr(F[u]+4*i,4), vr(fX+4*i,4), vr(AC[u],16)) for u in range(T)]
    def sx(i): return [m16(SX, fX+4*i)] if mode == 'm' else []
    def weave(ms, rd, va):
        out = []; k = len(ms)
        for j, m in enumerate(ms):
            out.append(m)
            out += rd[len(rd) * j // k: len(rd) * (j + 1) // k]
            out += va[len(va) * j // k: len(va) * (j + 1) // k]
        return out
    def A(rd):
        r = (lambda i: reads(i)) if rd else (lambda i: [])
        ad = (lambda i: adv(i)) if rd else (lambda i: [])
        w2 = [f"s_waitcnt lgkmcnt({15-n})"] if (rd and 3 * n > 15) else []
        return weave(mm(1), r(0), xstat(1, 1)) + sx(1) + weave(mm(2), r(1), xstat(3, 0) + ad(0)) + w2 + weave(mm(3), r(2), xstat(3, 1) + ad(1)) + sx(3)
    first = reads(0) + reads(1) + ([f"s_waitcnt lgkmcnt({15-n})"] if 3 * n > 15 else []) + reads(2) + adv(0) + adv(1)
    bb = [f"s_waitcnt lgkmcnt({n})"] + weave([m16(CC[u], F[u]) for u in range(T)], reads(3), adv(2)) + weave(mm(0), [], xstat(1, 0) + adv(3)) + ["s_waitcnt lgkmcnt(0)"]
    return first, A(True), bb, A(False)
```

```python
import sys, math, os, struct
import abody, kbody
OPT = set(os.environ.get('OPT', '').split(','))
NAME = "parallel_sum__grouped_kv_mqa__dense_activation_silu__prompt"
WS_Q, WS_KV, WS_H, WS_O, WS_WP, WS_Y, WS_PROF, WS_END = 0, 0x300000, 0x340000, 0x940000, 0xD00000, 0x1000000, 0xC00000, 0x1500000
NJOB = 0 if 'nopack' in OPT else 1360
LOG2E = 1.4426950408889634
def f32(x): return "0x%08x" % struct.unpack("<I", struct.pack("<f", x))[0]

class Asm:
    def __init__(self): self.l = []
    def __call__(self, s):
        for x in s.strip("\n").split("\n"):
            x = x.strip()
            if x: self.l.append(("" if x.endswith(":") else "    ") + x)
    def text(self): return "\n".join(self.l) + "\n"
def vr(a, n): return "v[%d:%d]" % (a, a + n - 1)
def ar(a, n): return "a[%d:%d]" % (a, a + n - 1)
def sr(a, n): return "s[%d:%d]" % (a, a + n - 1)
def srd(a, d, base, nbytes):
    a(f"s_mov_b32 s{d}, s{base}\ns_mov_b32 s{d+1}, s{base+1}\ns_mov_b32 s{d+2}, {nbytes}\ns_mov_b32 s{d+3}, 0x00020000")
def kdesc(name, vgpr, agpr=0, sgpr=102):
    acc = (vgpr + 3) // 4 * 4
    return f""".p2align 6
.amdhsa_kernel {name}
  .amdhsa_next_free_vgpr {acc + agpr if agpr else vgpr}
  .amdhsa_next_free_sgpr {sgpr}
  .amdhsa_accum_offset {acc}
  .amdhsa_group_segment_fixed_size 0
  .amdhsa_kernarg_size 88
  .amdhsa_user_sgpr_count 2
  .amdhsa_user_sgpr_kernarg_segment_ptr 1
  .amdhsa_system_sgpr_workgroup_id_x 1
.end_amdhsa_kernel
"""
def khead(a, name): a.l.append(f".globl {name}\n.p2align 8\n.type {name},@function\n{name}:")
PROF = False
def stamp(a, i):
    if PROF:
        a(f"s_memtime s[{70+2*i}:{71+2*i}]")
        if i == 0: a("s_memrealtime s[84:85]")
def prof_end(a, kidx, WS, sW):
    if not PROF: return
    a(f"""
    s_waitcnt vmcnt(0)
    s_memtime s[82:83]
    s_memrealtime s[86:87]
    s_mov_b64 exec, -1
    s_waitcnt lgkmcnt(0)
    s_lshl_b32 s88, s2, 4
    s_add_u32 s88, s88, s{sW}
    s_lshl_b32 s88, s88, 6
    s_add_u32 s88, s88, {WS_PROF + kidx * 0x40000}
    v_mov_b32 v0, 0
    """)
    for i in range(7): a(f"v_mov_b32 v{4+i}, s{70+2*i}")
    a(f"""
    v_mov_b32 v11, s84
    v_mov_b32 v12, s86
    v_mov_b32 v13, 0
    v_mov_b32 v14, 0
    v_mov_b32 v15, 0
    s_mov_b64 exec, 1
    buffer_store_dwordx4 v[4:7], v0, {sr(WS,4)}, s88 offen
    buffer_store_dwordx4 v[8:11], v0, {sr(WS,4)}, s88 offen offset:16
    buffer_store_dwordx4 v[12:15], v0, {sr(WS,4)}, s88 offen offset:32
    """)
def round_bf16(a, d, s): a(f"v_cvt_pk_bf16_f32 v{d}, v{s}, v{s}\nv_lshlrev_b32 v{d}, 16, v{d}")
def MF(d, A, B, C): return f"v_mfma_f32_32x32x16_bf16 {d}, {A}, {B}, {C}"

def k1map(sRB, sCB, sT0):
    lr = 1 if 'map2' in OPT else 3 if 'map8' in OPT else 2
    xr = 4 - lr
    return f"""s_and_b32 s{sT0}, s2, {(1 << xr) - 1}
    s_lshl_b32 s{sRB}, s{sT0}, {lr}
    s_bfe_u32 s{sT0}, s2, {(lr << 16) | 3}
    s_add_u32 s{sRB}, s{sRB}, s{sT0}
    s_bfe_u32 s{sT0}, s2, {((3 - xr) << 16) | xr}
    s_lshl_b32 s{sCB}, s{sT0}, {5 - lr}
    s_lshr_b32 s{sT0}, s2, {3 + lr}
    s_add_u32 s{sCB}, s{sCB}, s{sT0}"""
def gen_k1(a):
    khead(a, "k1_kernel")
    SLOT = 40960
    sW, sR, sG, sRB, sCB, sT3f = 32, 33, 34, 35, 36, 37
    sI, sK, sSlot, sT0, sT1, sMx, sMw, sStr64, sDelta, sRd, sT2, sT3, sJob, sPst, sU, sTyp, sRT = 38, 39, 40, 41, 42, 43, 44, 45, 46, 47, 48, 49, 50, 51, 52, 53, 54
    sB3 = 58
    X, WA, WS, WP, PF = 20, 24, 28, 64, 20
    vL, vXs0, vXs1, vWs, vPs, vQb, vQa, vQst, vCom = 0, 1, 2, 3, 4, 6, 8, 10, 11
    vQb2, vQa2 = 12, 14
    vPf, vPd, sTrig = 5, 10, 44
    PLAN = eval(os.environ.get("PLAN", "[(0,2,11),(1,2,11),(0,4,11),(1,6,10),(0,6,10),(0,8,8),(0,0,0),(0,0,0)]"))
    planw = [sum(p[k] << (4 * i) for i, p in enumerate(PLAN)) for k in range(3)]
    vAx, vAw = 12, 16
    SEL = 20; vT = 24
    A0, A1, A2 = 32, 48, 64
    fX, f0, f1, f2 = 80, 96, 112, 128
    C0, C1, C2, SX, SXX = 144, 148, 152, 156, 160
    a(f"""
    s_cmp_ge_u32 s2, 256
    s_cbranch_scc1 K1_end
    """); stamp(a, 0); a(f"""
    s_load_dwordx8 s[8:15], s[0:1], 0
    s_load_dwordx2 s[16:17], s[0:1], 32
    s_load_dwordx4 s[60:63], s[0:1], 48
    s_load_dwordx2 s[18:19], s[0:1], 80
    v_lshrrev_b32 v1, 6, v0
    v_and_b32 v{vL}, 63, v0
    v_readfirstlane_b32 s{sW}, v1
    {k1map(sRB, sCB, sT0)}
    s_and_b32 s{sR}, s{sW}, 3
    s_cmp_lt_u32 s{sCB}, 3
    s_cselect_b32 s{sT3f}, 1, 0
    v_lshrrev_b32 v{vT}, 5, v{vL}
    v_and_b32 v{vT+1}, 3, v{vL}
    v_bfe_u32 v{vT+2}, v{vL}, 2, 3
    v_lshlrev_b32 v{vT+3}, 4, v{vT+1}
    v_lshl_add_u32 v{vT+3}, v{vT}, 6, v{vT+3}
    s_cmp_lt_u32 s{sW}, 8
    s_cbranch_scc1 K1_C
    """)
    a(f"""
    s_lshl_b32 s{sT0}, s{sRB}, 7
    s_lshl_b32 s{sT1}, s{sR}, 4
    s_add_u32 s{sT0}, s{sT0}, s{sT1}
    s_mul_i32 s{sT0}, s{sT0}, 1280
    v_lshrrev_b32 v{vT+4}, 3, v{vL}
    v_mul_u32_u24 v{vT+4}, 1280, v{vT+4}
    v_add_u32 v{vT+4}, s{sT0}, v{vT+4}
    v_and_b32 v{vT+5}, 7, v{vL}
    v_lshrrev_b32 v{vT+6}, 4, v{vL}
    v_xor_b32 v{vT+5}, v{vT+5}, v{vT+6}
    v_lshl_add_u32 v{vXs0}, v{vT+5}, 4, v{vT+4}
    v_xor_b32 v{vT+5}, 4, v{vT+5}
    v_lshl_add_u32 v{vXs1}, v{vT+5}, 4, v{vT+4}
    v_add_u32 v{vXs1}, {10240-1024}, v{vXs1}
    s_cmp_lt_u32 s{sCB}, 5
    s_movk_i32 s{sT0}, 3072
    s_cselect_b32 s{sT0}, 1280, s{sT0}
    s_cselect_b32 s{sT1}, 0, 5
    s_sub_u32 s{sT1}, s{sCB}, s{sT1}
    s_lshl_b32 s{sT1}, s{sT1}, 8
    s_lshl_b32 s{sStr64}, s{sT0}, 6
    s_lshl_b32 s{sU}, s{sT0}, 5
    s_lshl_b32 s{sT2}, s{sR}, 3
    v_add_u32 v{vT+4}, s{sT2}, v{vT+2}
    v_mad_u32_u24 v{vWs}, v{vT+4}, s{sT0}, v{vT+3}
    v_add_u32 v{vWs}, s{sT1}, v{vWs}
    s_lshl_b32 s{sMx}, s{sR}, 11
    s_lshl_b32 s{sMw}, s{sR}, 10
    s_add_u32 s{sMw}, s{sMw}, 16384
    s_add_u32 s{sK}, s{sRB}, s{sCB}
    s_mul_i32 s{sT0}, s{sK}, 6554
    s_lshr_b32 s{sT0}, s{sT0}, 16
    s_mul_i32 s{sT0}, s{sT0}, 10
    s_sub_u32 s{sK}, s{sK}, s{sT0}
    {f"s_mov_b32 s{sK}, 0" if 'norot' in OPT else ""}
    s_mov_b32 s{sI}, 0
    s_mov_b32 s{sSlot}, 0
    s_mov_b32 s{X+2}, {2048*1280}
    s_mov_b32 s{X+3}, 0x00020000
    s_mov_b32 s{WA+3}, 0x00020000
    s_mov_b32 s{WA+2}, {640*3072}
    v_lshlrev_b32 v{vT+5}, 4, v{vT+1}
    v_min_u32 v{vT+5}, 24, v{vT+5}
    v_cmp_eq_u32 vcc, 0, v{vT}
    v_mov_b32 v{vT+7}, 0
    s_cmp_eq_u32 s{sCB}, 0
    s_movk_i32 s{sT3}, 3072
    s_cselect_b32 s{sT3}, 40, s{sT3}
    s_cselect_b64 s[56:57], -1, 0
    v_cndmask_b32 v{vT+5}, v{vT+3}, v{vT+5}, s[56:57]
    v_mad_u32_u24 v{vT+6}, v{vT+4}, s{sT3}, v{vT+5}
    s_lshl_b32 s{sT0}, s{sT3}, 6
    v_mov_b32 v{vQst}, s{sT0}
    s_lshl_b32 s{sT0}, s{sCB}, 7
    s_add_u32 s{sT0}, s{sT0}, {21*128}
    s_waitcnt lgkmcnt(0)
    s_mov_b32 s{X}, s8
    s_mov_b32 s{X+1}, s9
    s_cmp_lt_u32 s{sCB}, 5
    s_cselect_b32 s{WA}, s10, s60
    s_cselect_b32 s{WA+1}, s11, s61
    s_cselect_b32 s{WA+2}, {640*1280}, s{WA+2}
    s_add_u32 s{sB3}, s60, s{sT0}
    s_addc_u32 s{sB3+1}, s61, 0
    s_cmp_eq_u32 s{sCB}, 0
    s_cselect_b32 s12, s12, s{sB3}
    s_cselect_b32 s13, s13, s{sB3+1}
    s_cselect_b32 s14, s14, s{sB3}
    s_cselect_b32 s15, s15, s{sB3+1}
    v_mov_b32 v16, s12
    v_mov_b32 v17, s14
    v_cndmask_b32 v{vQb}, v17, v16, vcc
    v_mov_b32 v16, s13
    v_mov_b32 v17, s15
    v_cndmask_b32 v{vQb+1}, v17, v16, vcc
    v_lshl_add_u64 {vr(vQb,2)}, {vr(vT+6,2)}, 0, {vr(vQb,2)}
    v_lshrrev_b32 v{vT+6}, 1, v{vQst}
    v_lshl_add_u64 {vr(vQb2,2)}, {vr(vT+6,2)}, 0, {vr(vQb,2)}
    """)
    if PROF: srd(a, WS, 18, WS_END)
    stamp(a, 1)
    a(f"""
    s_mov_b32 s{sRd}, 0
    s_branch K1_issue
    K1_loop:
    s_cmp_eq_u32 s{sRd}, 9
    s_cbranch_scc1 K1_w0
    s_cmp_eq_u32 s{sRd}, 0
    s_cselect_b32 s{sT0}, 8, s{sRd}
    s_lshl_b32 s{sT1}, s{sT3f}, 4
    s_add_u32 s{sT0}, s{sT0}, s{sT1}
    s_cmp_lt_u32 s{sT0}, 8
    s_cbranch_scc1 K1_w16
    s_cmp_eq_u32 s{sT0}, 8
    s_cbranch_scc1 K1_w8
    s_cmp_eq_u32 s{sT0}, 24
    s_cbranch_scc1 K1_w10
    s_branch K1_w20
    K1_w0:
    s_waitcnt vmcnt(0)
    K1_w8:
    s_waitcnt vmcnt(8)
    K1_w10:
    s_waitcnt vmcnt(10)
    K1_w16:
    s_waitcnt vmcnt(16)
    K1_w20:
    s_waitcnt vmcnt(20)
    s_barrier
    s_add_u32 s{sRd}, s{sRd}, 1
    s_cmp_eq_u32 s{sRd}, 10
    s_cbranch_scc1 {"K1_done" if PROF else "K1_end"}
    s_cmp_ge_u32 s{sI}, 10
    s_cbranch_scc1 K1_loop
    K1_issue:
    s_lshl_b32 s{sT0}, s{sK}, 7
    s_add_u32 m0, s{sSlot}, s{sMx}
    s_mul_i32 s{sT1}, s{sK}, s{sStr64}
    buffer_load_dwordx4 v{vXs0}, {sr(X,4)}, s{sT0} offen lds
    buffer_load_dwordx4 v{vXs1}, {sr(X,4)}, s{sT0} offen offset:1024 lds
    s_add_u32 m0, m0, 8192
    s_add_u32 s{sT0}, s{sT0}, {64*1280}
    buffer_load_dwordx4 v{vXs0}, {sr(X,4)}, s{sT0} offen lds
    buffer_load_dwordx4 v{vXs1}, {sr(X,4)}, s{sT0} offen offset:1024 lds
    s_add_u32 m0, s{sSlot}, s{sMw}
    s_add_u32 s{sT2}, s{sT1}, s{sU}
    buffer_load_dwordx4 v{vWs}, {sr(WA,4)}, s{sT1} offen lds
    s_add_u32 m0, m0, 4096
    v_mad_u64_u32 {vr(vQa,2)}, s[56:57], v{vQst}, s{sK}, {vr(vQb,2)}
    buffer_load_dwordx4 v{vWs}, {sr(WA,4)}, s{sT2} offen lds
    s_add_u32 m0, m0, {4096-128}
    v_mad_u64_u32 {vr(vQa2,2)}, s[56:57], v{vQst}, s{sK}, {vr(vQb2,2)}
    buffer_load_dwordx4 v{vWs}, {sr(WA,4)}, s{sT1} offen offset:128 lds
    s_add_u32 m0, m0, 4096
    s_add_u32 s{sK}, s{sK}, 1
    buffer_load_dwordx4 v{vWs}, {sr(WA,4)}, s{sT2} offen offset:128 lds
    s_add_u32 m0, m0, {4096+128}
    s_cmp_eq_u32 s{sT3f}, 0
    s_cbranch_scc1 K1_no3
    global_load_lds_dwordx4 {vr(vQa,2)}, off
    s_add_u32 m0, m0, 4096
    s_nop 0
    global_load_lds_dwordx4 {vr(vQa2,2)}, off
    K1_no3:
    s_cmp_eq_u32 s{sK}, 10
    s_cselect_b32 s{sK}, 0, s{sK}
    s_add_u32 s{sSlot}, s{sSlot}, {SLOT}
    s_cmp_eq_u32 s{sSlot}, {4*SLOT}
    s_cselect_b32 s{sSlot}, 0, s{sSlot}
    s_add_u32 s{sI}, s{sI}, 1
    s_or_b32 s{sT0}, s{sI}, 2
    s_cmp_eq_u32 s{sT0}, 3
    s_cbranch_scc1 K1_issue
    s_branch K1_loop
    """)
    a(f"""
    K1_C:
    s_lshr_b32 s{sG}, s{sW}, 2
    s_lshl_b32 s{sMx}, s{sW}, 11
    s_cmp_lt_u32 s{sCB}, 5
    s_cselect_b32 s{sTyp}, 0, 1
    s_lshl_b32 s{sJob}, s2, 3
    s_add_u32 s{sJob}, s{sJob}, s{sW}
    s_mul_i32 s{sT0}, s{sJob}, 6554
    s_lshr_b32 s{sT0}, s{sT0}, 16
    s_mul_i32 s{sT1}, s{sT0}, 10
    s_sub_u32 s{sT1}, s{sJob}, s{sT1}
    s_mul_i32 s{sPst}, s{sT0}, 20480
    s_lshl_b32 s{sT2}, s{sT1}, 11
    s_add_u32 s{sPst}, s{sPst}, s{sT2}
    s_add_u32 s{sPst}, s{sPst}, {WS_WP}
    s_lshl_b32 s{sT1}, s{sT1}, 7
    s_sub_u32 s{sT2}, s{sT0}, 96
    s_mul_i32 s{sT3}, s{sT2}, 205
    s_lshr_b32 s{sT3}, s{sT3}, 10
    s_mul_i32 s55, s{sT3}, 5
    s_sub_u32 s55, s{sT2}, s55
    s_mul_i32 s{sT3}, s{sT3}, 80
    s_mul_i32 s56, s55, 20
    s_cmp_eq_u32 s55, 4
    s_cselect_b32 s56, 16, s56
    s_cselect_b32 s55, 1, 0
    s_add_u32 s{sT3}, s{sT3}, s56
    s_lshl_b32 s{sT2}, s{sT0}, 4
    s_cmp_lt_u32 s{sT0}, 96
    s_cselect_b32 s{sT3}, s{sT2}, s{sT3}
    s_cselect_b32 s55, 0, s55
    s_mul_i32 s{sT3}, s{sT3}, 1280
    s_add_u32 s56, s{sT3}, s{sT1}
    s_cmp_eq_u32 s55, 0
    s_cselect_b32 s{sT2}, 4, 40
    s_movk_i32 s57, {20*1280}
    s_cselect_b32 s57, {8*1280}, s57
    s_add_u32 s57, s57, s56
    v_lshrrev_b32 v{vT+5}, 2, v{vT+2}
    v_and_b32 v{vT+6}, 3, v{vT+2}
    v_mad_u32_u24 v{vT+5}, v{vT+5}, s{sT2}, v{vT+6}
    v_mul_u32_u24 v{vT+5}, 1280, v{vT+5}
    v_add_u32 v{vPs}, v{vT+5}, v{vT+3}
    s_waitcnt lgkmcnt(0)
    """)
    srd(a, WS, 18, WS_END)
    a(f"""
    s_cmp_lt_u32 s{sT0}, 96
    s_cselect_b32 s{WP}, s62, s16
    s_cselect_b32 s{WP+1}, s63, s17
    s_mov_b32 s{WP+2}, {640*1280}
    s_cselect_b32 s{WP+2}, {1536*1280}, s{WP+2}
    s_mov_b32 s{WP+3}, 0x00020000
    s_cmp_ge_u32 s{sJob}, {NJOB}
    s_cbranch_scc1 K1_nojob
    s_add_u32 m0, s{sMx}, {3*SLOT}
    s_nop 0
    buffer_load_dwordx4 v{vPs}, {sr(WP,4)}, s56 offen lds
    s_add_u32 m0, m0, 1024
    s_nop 0
    buffer_load_dwordx4 v{vPs}, {sr(WP,4)}, s57 offen lds
    K1_nojob:
    s_lshl_b32 s{sT0}, s{sW}, 2
    s_lshr_b32 s{sT1}, {planw[0]}, s{sT0}
    s_and_b32 s{sT1}, s{sT1}, 15
    s_lshr_b32 s{sT2}, {planw[1]}, s{sT0}
    s_and_b32 s{sT2}, s{sT2}, 15
    s_lshr_b32 s{sTrig}, {planw[2]}, s{sT0}
    s_and_b32 s{sTrig}, s{sTrig}, 15
    s_mov_b32 s{PF+3}, 0x00020000
    s_cmp_eq_u32 s{sT1}, 1
    s_cbranch_scc1 K1_pfx
    s_cmp_lt_u32 s{sCB}, 5
    s_cselect_b32 s{PF}, s10, s60
    s_cselect_b32 s{PF+1}, s11, s61
    s_mov_b32 s{PF+2}, {640*3072}
    s_cselect_b32 s{PF+2}, {640*1280}, s{PF+2}
    s_movk_i32 s{sT0}, 3072
    s_cselect_b32 s{sT0}, 1280, s{sT0}
    s_cselect_b32 s{sT1}, 0, 5
    s_sub_u32 s{sT1}, s{sCB}, s{sT1}
    s_lshl_b32 s{sT1}, s{sT1}, 8
    s_lshl_b32 s{sT2}, s{sT2}, 2
    s_and_b32 s{sT3}, s{sRB}, 3
    s_add_u32 s{sT2}, s{sT2}, s{sT3}
    s_lshl_b32 s{sT2}, s{sT2}, 4
    v_bfe_u32 v{vT+4}, v{vL}, 1, 4
    v_lshl_add_u32 v{vT+4}, v{vT}, 6, v{vT+4}
    v_add_u32 v{vT+4}, s{sT2}, v{vT+4}
    v_and_b32 v{vT+5}, 1, v{vL}
    v_lshlrev_b32 v{vT+5}, 7, v{vT+5}
    v_mad_u32_u24 v{vPf}, v{vT+4}, s{sT0}, v{vT+5}
    v_add_u32 v{vPf}, s{sT1}, v{vPf}
    s_branch K1_pfd
    K1_pfx:
    s_mov_b32 s{PF}, s8
    s_mov_b32 s{PF+1}, s9
    s_mov_b32 s{PF+2}, {2048*1280}
    s_lshl_b32 s{sT0}, s{sRB}, 3
    s_and_b32 s{sT1}, s{sCB}, 7
    s_add_u32 s{sT0}, s{sT0}, s{sT1}
    s_mul_i32 s{sT0}, s{sT0}, {16*1280}
    s_lshl_b32 s{sT2}, s{sT2}, 7
    s_add_u32 s{sT0}, s{sT0}, s{sT2}
    v_lshrrev_b32 v{vT+4}, 2, v{vL}
    v_mul_u32_u24 v{vT+4}, 1280, v{vT+4}
    v_lshl_add_u32 v{vT+4}, v{vT+1}, 7, v{vT+4}
    v_add_u32 v{vPf}, s{sT0}, v{vT+4}
    K1_pfd:
    s_cmp_lg_u32 s{sTrig}, 11
    s_cbranch_scc1 K1_pfn
    buffer_load_dword v{vPd}, v{vPf}, {sr(PF,4)}, 0 offen
    K1_pfn:
    s_xor_b32 s{sT0}, s{sG}, s{sR}
    v_and_b32 v{vT+4}, 31, v{vL}
    v_bfe_u32 v{vT+5}, v{vL}, 1, 3
    v_xor_b32 v{vT+5}, v{vT+5}, v{vT}
    s_lshl_b32 s{sT1}, s{sT0}, 1
    v_xor_b32 v{vT+5}, s{sT1}, v{vT+5}
    s_lshl_b32 s{sT1}, s{sR}, 12
    v_lshlrev_b32 v{vT+4}, 7, v{vT+4}
    v_add_u32 v{vT+4}, s{sT1}, v{vT+4}
    """)
    for i in range(4):
        a(f"v_xor_b32 v{vT+6}, {2*i}, v{vT+5}\nv_lshl_add_u32 v{vAx+i}, v{vT+6}, 4, v{vT+4}")
    a(f"""
    v_bfe_u32 v{vT+4}, v{vL}, 2, 2
    v_bfe_u32 v{vT+5}, v{vL}, 4, 1
    v_lshl_add_u32 v{vT+4}, v{vT+4}, 1, v{vT+5}
    v_lshl_add_u32 v{vT+4}, v{vT+4}, 2, v{vT+1}
    v_lshlrev_b32 v{vCom}, 3, v{vT+4}
    v_lshl_add_u32 v{vT+4}, v{vT}, 10, v{vCom}
    s_lshl_b32 s{sT0}, s{sT0}, 11
    s_lshl_b32 s{sT1}, s{sG}, 9
    s_add_u32 s{sT0}, s{sT0}, s{sT1}
    s_add_u32 s{sT0}, s{sT0}, 16384
    v_add_u32 v{vAw}, s{sT0}, v{vT+4}
    v_xor_b32 v{vAw+1}, 2048, v{vAw}
    v_xor_b32 v{vAw+2}, 4096, v{vAw}
    v_xor_b32 v{vAw+3}, 6144, v{vAw}
    v_bfe_u32 v{vT+6}, v{vL}, 2, 1
    v_cmp_eq_u32 vcc, v{vT+5}, v{vT+6}
    v_mov_b32 v{vT+6}, 0x3f803f80
    s_mov_b32 s{sRd}, 0
    s_mov_b32 s{sI}, 10
    s_mov_b32 s{sDelta}, {SLOT}
    """)
    for i in range(48): a(f"v_mov_b32 v{A0+i}, 0")
    for i in range(18): a(f"v_mov_b32 v{C0+i}, 0")
    for i in range(4): a(f"v_cndmask_b32 v{SEL+i}, 0, v{vT+6}, vcc")
    a(f"""
    s_cmp_ge_u32 s{sJob}, {NJOB}
    s_cbranch_scc1 K1_comp0
    s_add_u32 s{sT0}, s{sMx}, {3*SLOT}
    v_lshl_add_u32 v{vT+4}, v{vT}, 8, v{vCom}
    v_add_u32 v{vT+4}, s{sT0}, v{vT+4}
    v_and_b32 v{vT+6}, 15, v{vL}
    v_lshlrev_b32 v{vT+6}, 4, v{vT+6}
    v_lshl_add_u32 v{vT+6}, v{vT}, 8, v{vT+6}
    v_lshl_add_u32 v{vT+6}, v{vT+5}, 9, v{vT+6}
    s_cmp_eq_u32 s{sTrig}, 11
    s_cbranch_scc1 K1_pw1
    s_waitcnt vmcnt(0)
    K1_pw1:
    s_waitcnt vmcnt(1)
    ds_read_b64_tr_b16 {vr(f2,2)}, v{vT+4}
    ds_read_b64_tr_b16 {vr(f2+2,2)}, v{vT+4} offset:1024
    ds_read_b64_tr_b16 {vr(f2+4,2)}, v{vT+4} offset:512
    ds_read_b64_tr_b16 {vr(f2+6,2)}, v{vT+4} offset:1536
    s_waitcnt lgkmcnt(0)
    buffer_store_dwordx4 {vr(f2,4)}, v{vT+6}, {sr(WS,4)}, s{sPst} offen
    buffer_store_dwordx4 {vr(f2+4,4)}, v{vT+6}, {sr(WS,4)}, s{sPst} offen offset:1024
    K1_comp0:
    """)
    stamp(a, 1)
    KR = dict(fX=fX, F=(f0, f1, f2), AC=(A0, A1, A2), CC=(C0, C1, C2), SX=SX, SEL=SEL, vAx=vAx, vAw=vAw, t0=vT+4, sDelta=sDelta)
    def delta():
        a(f"""
        s_add_u32 s{sRd}, s{sRd}, 1
        s_and_b32 s{sRd}, s{sRd}, 3
        s_cmp_eq_u32 s{sRd}, 3
        s_mov_b32 s{sDelta}, {SLOT}
        s_cselect_b32 s{sDelta}, {(-3*SLOT) & 0xffffffff}, s{sDelta}
        """)
    def cloop(T):
        first, ba, bb, tail = kbody.stream(KR, T, 'm')
        if 'k1nc' in OPT: first = ba = bb = tail = []
        a(f"K1_start{T}:\ns_barrier")
        if PROF: a("s_memtime s[78:79]")
        for l in first: a(l)
        a(f"s_branch K1_mid{T}\nK1_comp{T}:\ns_barrier\ns_setprio 1")
        for l in ba: a(l)
        a(f"K1_mid{T}:\ns_setprio 0\ns_cmp_eq_u32 s{sI}, s{sTrig}\ns_cbranch_scc1 K1_pf{T}\nK1_pfr{T}:")
        for l in bb[:-1]: a(l)
        delta()
        a(f"""
        s_sub_u32 s{sI}, s{sI}, 1
        s_cmp_lg_u32 s{sI}, 0
        s_waitcnt lgkmcnt(0)
        s_cbranch_scc1 K1_comp{T}
        """)
        for l in tail: a(l)
    def pfblock(T): a(f"K1_pf{T}:\nbuffer_load_dword v{vPd}, v{vPf}, {sr(PF,4)}, 0 offen\ns_branch K1_pfr{T}")
    a(f"s_cmp_lg_u32 s{sT3f}, 0\ns_cbranch_scc1 K1_start3")
    cloop(2)
    a("K1_cdone:")
    K1_T3 = lambda: (pfblock(2), cloop(3), a("s_branch K1_cdone"), pfblock(3))
    stamp(a, 2)
    XB = 2 * SLOT
    vS, vRs, vMq, vNe, vNB, vCA, WK = 26, 28, 24, 30, 80, 84, 96
    a(f"""
    s_lshl_b32 s{sT0}, s{sW}, 11
    s_add_u32 s{sT0}, s{sT0}, {XB}
    v_lshlrev_b32 v1, 4, v{vL}
    v_lshlrev_b32 v2, 3, v{vL}
    v_add_u32 v3, s{sT0}, v1
    v_xor_b32 v5, 2048, v3
    v_xor_b32 v6, 4096, v3
    s_nop 3
    v_add_f32 v{SX+1}, v{SX+4}, v{SX+5}
    v_mov_b32 v{C0+1}, v{C1}
    v_mov_b32 v{C0+2}, v{C2}
    v_xor_b32 v7, 6144, v3
    v_xor_b32 v8, 8192, v3
    ds_write_b128 v3, {vr(C0,4)}
    ds_write_b64 v3, {vr(SX,2)} offset:1024
    s_waitcnt lgkmcnt(0)
    s_barrier
    ds_read_b64 {vr(vT,2)}, v8 offset:1024
    ds_read_b128 {vr(f1,4)}, v5
    ds_read_b128 {vr(f1+4,4)}, v6
    ds_read_b128 {vr(f1+8,4)}, v7
    s_mov_b32 s{sT0}, {f32(1.0/640)}
    s_lshl_b32 s{sRT}, s{sRB}, 2
    s_add_u32 s{sRT}, s{sRT}, s{sR}
    v_cmp_gt_u32 vcc, 32, v{vL}
    s_waitcnt lgkmcnt(3)
    v_add_f32 v{SX}, v{SX}, v{vT}
    v_add_f32 v{SX+1}, v{SX+1}, v{vT+1}
    v_mov_b32 v{vT+1}, v{SX+1}
    v_mov_b32 v{vNB+1}, 0
    v_mul_f32 v{SX}, s{sT0}, v{SX}
    v_permlane32_swap_b32 v{vT+1}, v{SX+1}
    v_add_f32 v{SX+1}, v{SX+1}, v{vT+1}
    v_mul_f32 v{SX+1}, s{sT0}, v{SX+1}
    v_cvt_pk_bf16_f32 v{vNB}, -v{SX}, -v{SX}
    v_cndmask_b32 v{vNB}, 0, v{vNB}, vcc
    v_fma_f32 v{SX+1}, -v{SX}, v{SX}, v{SX+1}
    v_max_f32 v{SX+1}, 0, v{SX+1}
    """)
    round_bf16(a, SX+1, SX+1)
    a(f"v_add_f32 v{SX+1}, {f32(1e-5)}, v{SX+1}")
    round_bf16(a, SX+1, SX+1)
    a(f"v_sqrt_f32 v{vS}, v{SX+1}\ns_waitcnt lgkmcnt(0)")
    for i in range(3):
        a(f"""
        v_add_f32 v{C0+i}, v{C0+i}, v{f1+i}
        v_add_f32 v{f1+4+i}, v{f1+4+i}, v{f1+8+i}
        v_add_f32 v{C0+i}, v{C0+i}, v{f1+4+i}
        v_and_b32 v{vT+6}, 0xffff0000, v{C0+i}
        v_sub_f32 v{vT+7}, v{C0+i}, v{vT+6}
        v_cvt_pk_bf16_f32 v{vCA+2*i}, v{vT+6}, v{vT+7}
        v_mov_b32 v{vCA+2*i+1}, 0
        """)
    round_bf16(a, vS, vS)
    def corr(u, acc): a(f"v_mfma_f32_32x32x8_bf16 {vr(WK,16)}, {vr(vCA+2*u,2)}, {vr(vNB,2)}, {vr(acc,16)}")
    a(f"v_rcp_f32 v{vRs}, v{vS}")
    corr(0, A0)
    a(f"""
    s_mul_i32 s{sT2}, s{sRT}, 40960
    s_lshl_b32 s{sT0}, s{sCB}, 13
    s_add_u32 s{sT2}, s{sT2}, s{sT0}
    s_lshl_b32 s{sT1}, s{sG}, 11
    s_add_u32 s{sT2}, s{sT2}, s{sT1}
    s_mul_i32 s{sT3}, s{sRT}, {96*1024}
    s_add_u32 s{sT3}, s{sT3}, s{sT1}
    s_add_u32 s55, s{sT3}, {WS_H}
    s_add_u32 s{sT3}, s55, s{sT0}
    s_sub_u32 s{sT3}, s{sT3}, {5*8192}
    s_mov_b32 s{sU}, 0
    v_mul_f32 v{vMq}, {f32(20 ** -0.5 * LOG2E)}, v{vRs}
    v_mul_f32 v{vNe}, {f32(-LOG2E)}, v{vRs}
    K1_epi:
    s_cmp_eq_u32 s{sTyp}, 1
    s_cbranch_scc1 K1_epiH
    """)
    E = 112; PK = 128
    for i in range(8): a(f"v_pk_mul_f32 {vr(E+2*i,2)}, {vr(WK+2*i,2)}, {vr(vMq,2)} op_sel_hi:[1,0]")
    for i in range(8): a(f"v_cvt_pk_bf16_f32 v{PK+i}, v{E+2*i}, v{E+2*i+1}")
    a(f"s_cmp_eq_u32 s{sTyp}, 2\ns_cbranch_scc1 K1_epiKV")
    for j in range(4): a(f"buffer_store_dwordx2 {vr(PK+2*j,2)}, v2, {sr(WS,4)}, s{sT2} offen offset:{512*j}")
    a(f"s_add_u32 s{sT2}, s{sT2}, 4096\ns_branch K1_enext\nK1_epiH:")
    for i in range(8): a(f"v_pk_mul_f32 {vr(E+2*i,2)}, {vr(WK+2*i,2)}, {vr(vNe,2)} op_sel_hi:[1,0]")
    for i in range(16): a(f"v_exp_f32 v{E+i}, v{E+i}")
    for i in range(8): a(f"v_pk_fma_f32 {vr(E+2*i,2)}, {vr(E+2*i,2)}, {vr(vS,2)}, {vr(vS,2)} op_sel_hi:[1,0,0]")
    for i in range(16): a(f"v_rcp_f32 v{E+i}, v{E+i}")
    for i in range(8): a(f"v_pk_mul_f32 {vr(E+2*i,2)}, {vr(E+2*i,2)}, {vr(WK+2*i,2)}")
    for i in range(8): a(f"v_cvt_pk_bf16_f32 v{PK+i}, v{E+2*i}, v{E+2*i+1}")
    a(f"""
    buffer_store_dwordx4 {vr(PK,4)}, v1, {sr(WS,4)}, s{sT3} offen
    buffer_store_dwordx4 {vr(PK+4,4)}, v1, {sr(WS,4)}, s{sT3} offen offset:1024
    s_add_u32 s{sT3}, s{sT3}, 4096
    K1_enext:
    s_add_u32 s{sU}, s{sU}, 1
    s_cmp_eq_u32 s{sU}, 1
    s_cbranch_scc0 K1_e2
    """)
    corr(1, A1)
    a(f"""
    s_nop 9
    s_branch K1_epi
    K1_e2:
    s_add_u32 s{sT0}, s{sT3f}, 1
    s_cmp_eq_u32 s{sU}, s{sT0}
    s_cbranch_scc0 K1_done
    """)
    corr(2, A2)
    a(f"""
    s_lshl_b32 s{sT0}, s{sCB}, 12
    s_add_u32 s{sT3}, s55, s{sT0}
    s_add_u32 s{sT3}, s{sT3}, {21*4096}
    s_cmp_eq_u32 s{sCB}, 0
    s_cselect_b32 s{sTyp}, 2, 1
    v_mov_b32 v{vMq}, v{vRs}
    s_nop 5
    s_branch K1_epi
    K1_epiKV:
    s_mul_i32 s{sT0}, s{sRB}, 10240
    s_add_u32 s{sT0}, s{sT0}, {WS_KV}
    v_and_b32 v3, 31, v{vL}
    v_lshrrev_b32 v5, 5, v{vL}
    s_cmp_eq_u32 s{sG}, 1
    s_cbranch_scc1 K1_vst
    v_mul_u32_u24 v4, 5120, v5
    v_lshl_add_u32 v4, v3, 4, v4
    s_lshl_b32 s{sT1}, s{sR}, 9
    s_add_u32 s{sT1}, s{sT1}, s{sT0}
    buffer_store_dwordx4 {vr(PK,4)}, v4, {sr(WS,4)}, s{sT1} offen
    s_and_b32 s{sT1}, s{sR}, 1
    s_mul_i32 s{sT1}, s{sT1}, 5120
    s_add_u32 s{sT0}, s{sT0}, s{sT1}
    s_lshr_b32 s{sT1}, s{sR}, 1
    s_lshl_b32 s{sT1}, s{sT1}, 3
    s_add_u32 s{sT0}, s{sT0}, s{sT1}
    v_lshlrev_b32 v4, 4, v3
    s_mov_b32 exec_lo, 0
    buffer_store_dwordx2 {vr(PK+4,2)}, v4, {sr(WS,4)}, s{sT0} offen offset:2048
    s_branch K1_done
    K1_vst:
    s_mul_i32 s{sT1}, s{sR}, 640
    s_add_u32 s{sT0}, s{sT0}, s{sT1}
    v_bfe_u32 v4, v3, 2, 1
    v_mul_u32_u24 v4, 5120, v4
    v_lshl_add_u32 v4, v5, 6, v4
    v_lshrrev_b32 v5, 4, v3
    v_mul_u32_u24 v5, 320, v5
    v_add_u32 v4, v4, v5
    v_bfe_u32 v5, v3, 3, 1
    v_lshl_add_u32 v4, v5, 3, v4
    v_and_b32 v5, 3, v3
    v_lshl_add_u32 v4, v5, 1, v4
    """)
    for j in range(3):
        if j == 2: a("s_mov_b32 exec_lo, 0")
        o = 2560 + 128 * j - (64 if j == 2 else 0)
        a(f"""
        buffer_store_short v{PK+2*j}, v4, {sr(WS,4)}, s{sT0} offen offset:{o}
        buffer_store_short_d16_hi v{PK+2*j}, v4, {sr(WS,4)}, s{sT0} offen offset:{o+16}
        buffer_store_short v{PK+2*j+1}, v4, {sr(WS,4)}, s{sT0} offen offset:{o+32}
        buffer_store_short_d16_hi v{PK+2*j+1}, v4, {sr(WS,4)}, s{sT0} offen offset:{o+48}
        """)
    a("K1_done:")
    stamp(a, 3); prof_end(a, 0, WS, sW)
    a("K1_end:\ns_endpgm")
    K1_T3()
    return 164

def tile_ids(a, sRB, sNB, sT0):
    a(f"""
    s_and_b32 s{sT0}, s2, 3
    s_lshl_b32 s{sRB}, s{sT0}, 3
    s_bfe_u32 s{sT0}, s2, 0x30003
    s_add_u32 s{sRB}, s{sRB}, s{sT0}
    s_bfe_u32 s{sT0}, s2, 0x10002
    s_lshl_b32 s{sNB}, s{sT0}, 2
    s_lshr_b32 s{sT0}, s2, 6
    s_add_u32 s{sNB}, s{sNB}, s{sT0}
    """)
def wlane(a, vL, vW, vW2, t):
    a(f"""
    v_and_b32 v{vW2}, 15, v{vL}
    v_lshlrev_b32 v{vW2}, 4, v{vW2}
    v_lshrrev_b32 v{t}, 5, v{vL}
    v_lshl_add_u32 v{vW2}, v{t}, 8, v{vW2}
    v_bfe_u32 v{t}, v{vL}, 4, 1
    v_lshl_add_u32 v{vW}, v{t}, 9, v{vW2}
    """)

def gen_k2(a):
    khead(a, "k2_kernel")
    sW, sR, sG, sRB, sCB, sHD, sRT = 32, 33, 34, 35, 36, 37, 38
    sI, sT0, sT1, sT2, sSrc, sVm, sSeg = 39, 40, 41, 42, 43, 44, 52
    WS, X = 28, 20
    vL, vA, vD = 0, 1, 2
    QM, QT, KM, KT, V, P, O, S = 4, 8, 12, 20, 24, 40, 56, 72
    R = dict(vA=vA, QM=QM, QT=QT, KM=KM, KT=KT, V=V, P=P, O=O, S=S)
    a(f"""
    s_cmp_ge_u32 s2, 256
    s_cbranch_scc1 K2_end
    """); stamp(a, 0); a(f"""
    s_load_dwordx2 s[18:19], s[0:1], 80
    s_load_dwordx2 s[8:9], s[0:1], 0
    v_lshrrev_b32 v1, 6, v0
    v_and_b32 v{vL}, 63, v0
    v_readfirstlane_b32 s{sW}, v1
    v_lshlrev_b32 v{vD}, 4, v{vL}
    s_mov_b32 s{WS+2}, {WS_END}
    s_mov_b32 s{WS+3}, 0x00020000
    s_cmp_ge_u32 s{sW}, 8
    s_cbranch_scc1 K2_G
    s_and_b32 s{sT0}, s2, 3
    s_lshl_b32 s{sRB}, s{sT0}, 2
    s_bfe_u32 s{sT0}, s2, 0x20003
    s_add_u32 s{sRB}, s{sRB}, s{sT0}
    s_bfe_u32 s{sT0}, s2, 0x10002
    s_lshl_b32 s{sCB}, s{sT0}, 3
    s_lshr_b32 s{sT0}, s2, 5
    s_add_u32 s{sCB}, s{sCB}, s{sT0}
    s_and_b32 s{sR}, s{sW}, 3
    s_lshr_b32 s{sG}, s{sW}, 2
    s_lshl_b32 s{sHD}, s{sCB}, 1
    s_add_u32 s{sHD}, s{sHD}, s{sG}
    s_lshl_b32 s{sRT}, s{sRB}, 2
    s_add_u32 s{sRT}, s{sRT}, s{sR}
    s_lshl_b32 s{sT1}, s{sRT}, 5
    s_add_u32 s{sT1}, s{sT1}, s{sHD}
    s_mul_i32 s{sT1}, s{sT1}, 1280
    v_lshlrev_b32 v3, 3, v{vL}
    v_and_b32 v{vA}, 31, v{vL}
    v_lshlrev_b32 v10, 3, v{vA}
    s_mov_b32 s{sVm}, 0x000fffff
    s_mov_b32 s{sVm+1}, 0x000fffff
    s_waitcnt lgkmcnt(0)
    s_mov_b32 s{WS}, s18
    s_mov_b32 s{WS+1}, s19
    buffer_load_dwordx2 {vr(QM,2)}, v3, {sr(WS,4)}, s{sT1} offen
    buffer_load_dwordx2 {vr(QM+2,2)}, v3, {sr(WS,4)}, s{sT1} offen offset:512
    buffer_load_dwordx2 {vr(QT,2)}, v10, {sr(WS,4)}, s{sT1} offen offset:1024
    v_lshlrev_b32 v{vA}, 4, v{vA}
    v_lshrrev_b32 v3, 5, v{vL}
    v_mul_u32_u24 v3, 5120, v3
    v_add_u32 v{vA}, v{vA}, v3
    v_and_b32 v3, 27, v{vL}
    v_cmp_eq_u32 vcc, 24, v3
    v_mov_b32 v3, 0x3f803f80
    """)
    for i in range(16): a(f"v_mov_b32 v{O+i}, 0")
    for i in range(16): a(f"v_cndmask_b32 v{V+i}, 0, v3, vcc")
    for i in range(4): a(f"v_mov_b32 v{P+12+i}, 0")
    SEGS = [1, 2, 11, 1, 1]
    segw = sum(n << (4 * i) for i, n in enumerate(SEGS))
    a(f"""
    s_mov_b32 s{sSeg}, {segw >> 4}
    s_mov_b32 s{sI}, {SEGS[0]}
    """); stamp(a, 1); a(f"""
    s_waitcnt vmcnt(0)
    s_barrier
    """); stamp(a, 2); a(f"""
    ds_read_b128 {vr(KT,4)}, v{vA} offset:2048
    ds_read_b128 {vr(KM,4)}, v{vA} offset:0
    ds_read_b128 {vr(KM+4,4)}, v{vA} offset:512
    s_waitcnt lgkmcnt(2)
    v_mfma_f32_32x32x4_2b_bf16 {vr(S,32)}, {vr(KT,2)}, {vr(QT,2)}, 0
    s_waitcnt lgkmcnt(0)
    s_nop 15
    s_nop 2
    {MF(vr(S,16), vr(KM,4), vr(QM,4), vr(S,16))}
    {MF(vr(S+16,16), vr(KM+4,4), vr(QM,4), vr(S+16,16))}
    ds_read_b128 {vr(KM,4)}, v{vA} offset:1024
    ds_read_b128 {vr(KM+4,4)}, v{vA} offset:1536
    s_mov_b64 exec, {sr(sVm,2)}
    ds_read_b128 {vr(V,4)}, v{vA} offset:2560
    ds_read_b128 {vr(V+4,4)}, v{vA} offset:2880
    s_mov_b64 exec, -1
    s_nop 7
    .p2align 6
    K2_loop:
    """)
    for l in abody.body(R, 0, (2, 1, 0) if 'ghi' in OPT else (3, 2, 1), sVm): a(l)
    a(f"""
    v_add_u32 v{vA}, 10240, v{vA}
    s_sub_u32 s{sI}, s{sI}, 1
    s_cmp_lg_u32 s{sI}, 0
    s_cbranch_scc1 K2_loop
    s_and_b32 s{sI}, s{sSeg}, 15
    s_cbranch_scc0 K2_exit
    s_lshr_b32 s{sSeg}, s{sSeg}, 4
    s_barrier
    s_branch K2_loop
    K2_exit:
    """); stamp(a, 3); a(f"""
    s_waitcnt lgkmcnt(0)
    {MF(vr(O,16), vr(V+12,4), vr(P+12,4), vr(O,16))}
    s_mov_b32 s{sT0}, {f32(2.0**-64)}
    s_mov_b32 s{sT1}, {f32(2.0**64)}
    s_nop 10
    v_cmp_nle_f32 vcc, s{sT0}, v{O+12}
    v_cmp_nge_f32 s[46:47], s{sT1}, v{O+12}
    s_nop 1
    s_or_b64 vcc, vcc, s[46:47]
    s_cbranch_scc1 K2_slow
    K2_fin:
    v_rcp_f32 v{P}, v{O+12}
    s_lshr_b32 s{sT0}, s{sHD}, 2
    s_mul_i32 s{sT0}, s{sT0}, 5
    s_mul_i32 s{sT1}, s{sRT}, 40
    s_add_u32 s{sT0}, s{sT0}, s{sT1}
    s_lshl_b32 s{sT0}, s{sT0}, 10
    s_add_u32 s{sT0}, s{sT0}, {WS_O}
    s_and_b32 s{sT1}, s{sHD}, 3
    s_lshl_b32 s{sT1}, s{sT1}, 10
    s_add_u32 s{sT1}, s{sT1}, s{sT0}
    s_bfe_u32 s{sT2}, s{sHD}, 0x10001
    s_lshl_b32 s{sT2}, s{sT2}, 9
    s_add_u32 s{sT0}, s{sT0}, s{sT2}
    s_and_b32 s{sT2}, s{sHD}, 1
    s_lshl_b32 s{sT2}, s{sT2}, 3
    s_add_u32 s{sT0}, s{sT0}, s{sT2}
    s_add_u32 s{sT0}, s{sT0}, 4096
    """)
    for i in range(12): a(f"v_mul_f32 v{O+i}, v{O+i}, v{P}")
    for i in range(6): a(f"v_cvt_pk_bf16_f32 v{S+i}, v{O+2*i}, v{O+2*i+1}")
    a(f"""
    buffer_store_dwordx4 {vr(S,4)}, v{vD}, {sr(WS,4)}, s{sT1} offen
    s_mov_b32 exec_hi, 0
    buffer_store_dwordx2 {vr(S+4,2)}, v{vD}, {sr(WS,4)}, s{sT0} offen
    K2_pe:
    """); stamp(a, 4); prof_end(a, 1, WS, sW); a(f"""
    K2_end:
    s_endpgm
    """)
    sKQ, sRB2, sNB, sH0, sH1, sWp = 33, 35, 36, 46, 47, 48
    vW, vW2, vX = 1, 3, 4
    ACC, FR = 8, 104
    a(f"""
    K2_G:
    s_setprio 3
    s_sub_u32 s{sKQ}, s{sW}, 8
    s_lshl_b32 s{sT0}, s{sKQ}, 10
    s_add_u32 s{sSrc}, s{sT0}, {WS_KV}
    s_mov_b32 m0, s{sT0}
    s_mov_b32 s{sI}, 10
    s_mov_b32 s{sSeg}, 0
    s_waitcnt lgkmcnt(0)
    s_mov_b32 s{WS}, s18
    s_mov_b32 s{WS+1}, s19
    K2_Gf:
    buffer_load_dwordx4 v{vD}, {sr(WS,4)}, s{sSrc} offen lds
    s_add_u32 s{sSrc}, s{sSrc}, 4096
    s_add_u32 m0, m0, 4096
    s_sub_u32 s{sI}, s{sI}, 1
    s_cmp_lg_u32 s{sI}, 0
    s_cbranch_scc1 K2_Gf
    s_mov_b32 s{sI}, 15
    s_add_u32 s{sSeg}, s{sSeg}, 1
    s_cmp_eq_u32 s{sSeg}, 3
    s_cbranch_scc1 K2_Gs
    s_cmp_eq_u32 s{sSeg}, 2
    s_cbranch_scc1 K2_Gw
    s_waitcnt vmcnt(5)
    K2_Gw:
    s_waitcnt vmcnt(15)
    s_barrier
    s_branch K2_Gf
    K2_Gs:
    """)
    tile_ids(a, sRB2, sNB, sT0)
    wlane(a, vL, vW, vW2, 5)
    srd(a, X, 8, 2048*1280)
    a(f"""
    s_mul_i32 s{sH0}, s{sRB2}, 192
    s_mul_i32 s{sT0}, s{sKQ}, 24
    s_add_u32 s{sH0}, s{sH0}, s{sT0}
    s_lshl_b32 s{sH0}, s{sH0}, 10
    s_add_u32 s{sH0}, s{sH0}, {WS_H}
    s_add_u32 s{sH1}, s{sH0}, {96*1024}
    s_mul_i32 s{sWp}, s{sT0}, 20480
    s_mul_i32 s{sT0}, s{sNB}, 2560
    s_add_u32 s{sWp}, s{sWp}, s{sT0}
    s_add_u32 s{sWp}, s{sWp}, {WS_WP}
    """)
    def gload(j):
        b = FR + 20 * j
        a(f"""
        buffer_load_dwordx4 {vr(b,4)}, v{vD}, {sr(WS,4)}, s{sH0} offen offset:{1024*j}
        buffer_load_dwordx4 {vr(b+4,4)}, v{vD}, {sr(WS,4)}, s{sH1} offen offset:{1024*j}
        buffer_load_dwordx4 {vr(b+8,4)}, v{vW}, {sr(WS,4)}, s{sWp} offen
        buffer_load_dwordx4 {vr(b+12,4)}, v{vW}, {sr(WS,4)}, s{sWp} offen offset:1024
        buffer_load_dwordx4 {vr(b+16,4)}, v{vW2}, {sr(WS,4)}, s{sWp} offen offset:2048
        s_add_u32 s{sWp}, s{sWp}, 20480
        """)
    for j in range(3): gload(j)
    for i in range(96): a(f"v_mov_b32 v{ACC+i}, 0")
    a(f"""
    s_mov_b32 s{sI}, 8
    s_waitcnt vmcnt(15)
    s_barrier
    {"" if 'ghi' in OPT else "s_setprio 0"}
    """); stamp(a, 1); a(f"""
    K2_Gl:
    s_add_u32 s{sH0}, s{sH0}, 3072
    s_add_u32 s{sH1}, s{sH1}, 3072
    {"s_cmp_eq_u32 0, 0" if 'nogl' in OPT else f"s_cmp_eq_u32 s{sI}, 1"}
    s_cselect_b32 s{sH0}, {WS_END}, s{sH0}
    s_cselect_b32 s{sH1}, {WS_END}, s{sH1}
    s_cselect_b32 s{sWp}, {WS_END}, s{sWp}
    """)
    for j in range(3):
        b = FR + 20 * j
        a("s_waitcnt vmcnt(10)")
        for t in range(3):
            for r in range(2):
                if 'nogm' not in OPT: a(MF(vr(ACC+48*r+16*t,16), vr(b+8+4*t,4), vr(b+4*r,4), vr(ACC+48*r+16*t,16)))
        gload(j)
    a(f"""
    s_sub_u32 s{sI}, s{sI}, 1
    s_cmp_lg_u32 s{sI}, 0
    s_cbranch_scc1 K2_Gl
    """); stamp(a, 2)
    a("s_setprio 3")
    XR = FR
    a(f"""
    s_lshl_b32 s{sT0}, s{sRB2}, 1
    s_lshr_b32 s{sT1}, s{sKQ}, 1
    s_add_u32 s{sT0}, s{sT0}, s{sT1}
    s_mul_i32 s{sT0}, s{sT0}, {32*1280}
    s_mul_i32 s{sT1}, s{sNB}, 160
    s_add_u32 s{sT0}, s{sT0}, s{sT1}
    s_and_b32 s{sT1}, s{sKQ}, 1
    s_mul_i32 s{sT1}, s{sT1}, 80
    s_add_u32 s{sT0}, s{sT0}, s{sT1}
    v_and_b32 v{vX}, 31, v{vL}
    v_mul_u32_u24 v{vX}, 1280, v{vX}
    v_lshrrev_b32 v5, 5, v{vL}
    v_lshl_add_u32 v{vX}, v5, 3, v{vX}
    s_waitcnt vmcnt(0)
    """)
    for i in range(5): a(f"buffer_load_dwordx2 {vr(XR+2*i,2)}, v{vX}, {sr(X,4)}, s{sT0} offen offset:{16*i}")
    a(f"""
    s_mul_i32 s{sT1}, s{sKQ}, 20480
    v_add_u32 v5, s{sT1}, v{vD}
    s_mul_i32 s{sT1}, s{sKQ}, 5120
    v_add_u32 v6, s{sT1}, v{vD}
    v_add_u32 v7, 40960, v6
    s_mul_i32 s{sT2}, s2, 20480
    s_add_u32 s{sT2}, s{sT2}, s{sT1}
    s_add_u32 s{sT2}, s{sT2}, {WS_Y}
    s_barrier
    """)
    for r in range(2):
        for o in range(10): a(f"ds_write_b128 v5, {vr(ACC+48*r+4*o,4)} offset:{(10*r+o)*1024}")
    a("s_waitcnt lgkmcnt(0)\ns_barrier"); stamp(a, 3)
    for p in range(4):
        for i in range(5): a(f"ds_read_b128 {vr(ACC+20*p+4*i,4)}, v{6+p//2} offset:{(p%2)*20480+1024*i}")
        if p == 1:
            a("s_waitcnt vmcnt(0)")
            for i in range(10): a(f"v_lshlrev_b32 v{XR+10+2*i}, 16, v{XR+i}\nv_and_b32 v{XR+11+2*i}, 0xffff0000, v{XR+i}")
            a("s_waitcnt lgkmcnt(0)")
            for i in range(20): a(f"v_add_f32 v{ACC+i}, v{ACC+i}, v{XR+10+i}")
    for i in range(20): a(f"v_add_f32 v{ACC+i}, v{ACC+i}, v{ACC+20+i}")
    a("s_waitcnt lgkmcnt(0)")
    for i in range(20): a(f"v_add_f32 v{ACC+40+i}, v{ACC+40+i}, v{ACC+60+i}")
    for i in range(20): a(f"v_add_f32 v{ACC+i}, v{ACC+i}, v{ACC+40+i}")
    for i in range(4): a(f"buffer_store_dwordx4 {vr(ACC+4*i,4)}, v{vD}, {sr(WS,4)}, s{sT2} offen offset:{1024*i}")
    a(f"s_add_u32 s{sT2}, s{sT2}, 4096\nbuffer_store_dwordx4 {vr(ACC+16,4)}, v{vD}, {sr(WS,4)}, s{sT2} offen")
    a("s_branch K2_pe" if PROF else "s_endpgm")
    vMx = 3
    sP, sO1, sO2, sO3 = 48, 49, 50, 51
    a(f"""
    K2_slow:
    v_subrev_u32 v{vA}, {16*10240}, v{vA}
    v_mov_b32 v{vMx}, 0xff800000
    s_mov_b32 s{sP}, 0
    """)
    for i in range(16): a(f"v_mov_b32 v{O+i}, 0")
    a(f"""
    K2_sp:
    s_mov_b32 s{sI}, 0
    K2_sl:
    s_lshr_b32 s{sT0}, s{sI}, 1
    s_mul_i32 s{sT0}, s{sT0}, 10240
    s_add_u32 s{sT0}, s{sT0}, {WS_KV}
    s_and_b32 s{sT1}, s{sI}, 1
    s_lshl_b32 s{sO1}, s{sT1}, 10
    s_add_u32 s{sO1}, s{sO1}, s{sT0}
    s_lshl_b32 s{sO2}, s{sT1}, 3
    s_add_u32 s{sO2}, s{sO2}, s{sT0}
    s_mul_i32 s{sO3}, s{sT1}, 1280
    s_add_u32 s{sO3}, s{sO3}, s{sT0}
    buffer_load_dwordx4 {vr(KM,4)}, v{vA}, {sr(WS,4)}, s{sO1} offen
    buffer_load_dwordx4 {vr(KM+4,4)}, v{vA}, {sr(WS,4)}, s{sO1} offen offset:512
    buffer_load_dwordx2 {vr(KT,2)}, v{vA}, {sr(WS,4)}, s{sO2} offen offset:2048
    s_mov_b64 exec, {sr(sVm,2)}
    """)
    for f in range(4): a(f"buffer_load_dwordx4 {vr(V+4*f,4)}, v{vA}, {sr(WS,4)}, s{sO3} offen offset:{2560+320*f}")
    a(f"""
    s_mov_b64 exec, -1
    s_waitcnt vmcnt(0)
    v_mfma_f32_32x32x4_2b_bf16 {vr(S,32)}, {vr(KT,2)}, {vr(QT,2)}, 0
    s_nop 15
    s_nop 3
    {MF(vr(S,16), vr(KM,4), vr(QM,4), vr(S,16))}
    {MF(vr(S+16,16), vr(KM+4,4), vr(QM,4), vr(S+16,16))}
    s_cmp_lg_u32 s{sP}, 0
    s_nop 12
    s_cbranch_scc1 K2_sp2
    """)
    for i in range(16): a(f"v_max3_f32 v{vMx}, v{S+2*i}, v{S+2*i+1}, v{vMx}")
    a("s_branch K2_snext\nK2_sp2:")
    for i in range(32): a(f"v_sub_f32 v{S+i}, v{S+i}, v{vMx}")
    for i in range(32): a(f"v_exp_f32 v{S+i}, v{S+i}")
    a("s_nop 0")
    for i in range(16): a(f"v_cvt_pk_bf16_f32 v{P+i}, v{S+2*i}, v{S+2*i+1}")
    a("s_nop 1")
    for f in range(4): a(MF(vr(O,16), vr(V+4*f,4), vr(P+4*f,4), vr(O,16)))
    a(f"""
    s_nop 15
    K2_snext:
    s_add_u32 s{sI}, s{sI}, 1
    s_cmp_lt_u32 s{sI}, 32
    s_cbranch_scc1 K2_sl
    s_cmp_lg_u32 s{sP}, 0
    s_cbranch_scc1 K2_fin
    v_mov_b32 v{P}, v{vMx}
    s_nop 1
    v_permlane32_swap_b32 v{P}, v{vMx}
    s_mov_b32 s{sP}, 1
    v_max_f32 v{vMx}, v{vMx}, v{P}
    s_branch K2_sp
    """)
    return 164

def gen_k3(a):
    khead(a, "k3_kernel")
    sKQ, sRB2, sNB, sT0, sT1, sT2, sO0, sO1, sWp = 32, 33, 34, 35, 36, 37, 38, 39, 40
    WS, OUT = 28, 48
    vL, vD, vW, vW2, vX = 0, 1, 2, 3, 4
    FR = 8; YR = 208
    a(f"""
    s_cmp_ge_u32 s2, 256
    s_cbranch_scc1 K3_end
    """); stamp(a, 0); a(f"""
    s_load_dwordx2 s[14:15], s[0:1], 64
    s_load_dwordx2 s[18:19], s[0:1], 80
    v_lshrrev_b32 v1, 6, v0
    v_and_b32 v{vL}, 63, v0
    v_readfirstlane_b32 s{sKQ}, v1
    v_lshlrev_b32 v{vD}, 4, v{vL}
    """)
    tile_ids(a, sRB2, sNB, sT0)
    wlane(a, vL, vW, vW2, 5)
    a(f"""
    s_mul_i32 s{sO0}, s{sRB2}, 80
    s_mul_i32 s{sT0}, s{sKQ}, 10
    s_add_u32 s{sO0}, s{sO0}, s{sT0}
    s_lshl_b32 s{sO0}, s{sO0}, 10
    s_add_u32 s{sO0}, s{sO0}, {WS_O}
    s_add_u32 s{sO1}, s{sO0}, 40960
    s_mul_i32 s{sWp}, s{sT0}, 20480
    s_mul_i32 s{sT0}, s{sNB}, 2560
    s_add_u32 s{sWp}, s{sWp}, s{sT0}
    s_add_u32 s{sWp}, s{sWp}, {WS_WP + 96*20480}
    s_mul_i32 s{sT1}, s{sKQ}, 5120
    s_mul_i32 s{sT2}, s2, 20480
    s_add_u32 s{sT2}, s{sT2}, s{sT1}
    s_add_u32 s{sT2}, s{sT2}, {WS_Y}
    s_waitcnt lgkmcnt(0)
    """)
    srd(a, WS, 18, WS_END)
    for j in range(10):
        b = FR + 20 * j
        a(f"""
        buffer_load_dwordx4 {vr(b,4)}, v{vD}, {sr(WS,4)}, s{sO0} offen offset:{1024*(j%4)}
        buffer_load_dwordx4 {vr(b+4,4)}, v{vD}, {sr(WS,4)}, s{sO1} offen offset:{1024*(j%4)}
        buffer_load_dwordx4 {vr(b+8,4)}, v{vW}, {sr(WS,4)}, s{sWp} offen
        buffer_load_dwordx4 {vr(b+12,4)}, v{vW}, {sr(WS,4)}, s{sWp} offen offset:1024
        buffer_load_dwordx4 {vr(b+16,4)}, v{vW2}, {sr(WS,4)}, s{sWp} offen offset:2048
        s_add_u32 s{sWp}, s{sWp}, 20480
        """)
        if j % 4 == 3: a(f"s_add_u32 s{sO0}, s{sO0}, 4096\ns_add_u32 s{sO1}, s{sO1}, 4096")
    for i in range(4): a(f"buffer_load_dwordx4 {vr(YR+4*i,4)}, v{vD}, {sr(WS,4)}, s{sT2} offen offset:{1024*i}")
    a(f"s_add_u32 s{sT2}, s{sT2}, 4096\nbuffer_load_dwordx4 {vr(YR+16,4)}, v{vD}, {sr(WS,4)}, s{sT2} offen")
    stamp(a, 1)
    srd(a, OUT, 14, 2048*1280)
    a(f"""
    s_lshl_b32 s{sT0}, s{sRB2}, 1
    s_lshr_b32 s{sT2}, s{sKQ}, 1
    s_add_u32 s{sT0}, s{sT0}, s{sT2}
    s_mul_i32 s{sT0}, s{sT0}, {32*1280}
    s_mul_i32 s{sT2}, s{sNB}, 160
    s_add_u32 s{sT0}, s{sT0}, s{sT2}
    s_and_b32 s{sT2}, s{sKQ}, 1
    s_mul_i32 s{sT2}, s{sT2}, 80
    s_add_u32 s{sT0}, s{sT0}, s{sT2}
    v_and_b32 v{vX}, 31, v{vL}
    v_mul_u32_u24 v{vX}, 1280, v{vX}
    v_lshrrev_b32 v5, 5, v{vL}
    v_lshl_add_u32 v2, v5, 4, v{vX}
    v_lshl_add_u32 v{vX}, v5, 3, v{vX}
    v_add_u32 v6, s{sT1}, v{vD}
    v_add_u32 v7, 40960, v6
    s_mul_i32 s{sT1}, s{sKQ}, 20480
    v_add_u32 v5, s{sT1}, v{vD}
    """)
    for j in range(10):
        b = FR + 20 * j
        a(f"s_waitcnt vmcnt({5 + 5*(9-j)})")
        for t in range(3):
            for r in range(2):
                d = ar(48*r+16*t, 16)
                a(MF(d, vr(b+8+4*t,4), vr(b+4*r,4), d if j else "0"))
    stamp(a, 2)
    a("s_nop 7")
    order = [(r, o) for o in range(8) for r in range(2)]
    order = [(0, o) for o in range(4)] + [(1, o) for o in range(4)] + [(0, o) for o in range(4, 8)] + [(1, o) for o in range(4, 8)] + [(0, 8), (0, 9), (1, 8), (1, 9)]
    for r, o in order: a(f"ds_write_b128 v5, {ar(48*r+4*o,4)} offset:{(10*r+o)*1024}")
    a("s_waitcnt lgkmcnt(0)\ns_barrier"); stamp(a, 3)
    for p in range(4):
        for i in range(5): a(f"ds_read_b128 {vr(FR+20*p+4*i,4)}, v{6+p//2} offset:{(p%2)*20480+1024*i}")
        if p == 2:
            a("s_waitcnt vmcnt(0) lgkmcnt(10)")
            for i in range(10): a(f"v_pk_add_f32 {vr(YR+2*i,2)}, {vr(YR+2*i,2)}, {vr(FR+2*i,2)}")
    for p in range(1, 4):
        a(f"s_waitcnt lgkmcnt({5*(3-p)})")
        for i in range(10): a(f"v_pk_add_f32 {vr(YR+2*i,2)}, {vr(YR+2*i,2)}, {vr(FR+20*p+2*i,2)}")
    for i in range(10): a(f"v_cvt_pk_bf16_f32 v{FR+i}, v{YR+2*i}, v{YR+2*i+1}")
    a(f"""
    buffer_store_dwordx2 {vr(FR+8,2)}, v{vX}, {sr(OUT,4)}, s{sT0} offen offset:64
    v_permlane32_swap_b32 v{FR}, v{FR+2}
    v_permlane32_swap_b32 v{FR+1}, v{FR+3}
    v_permlane32_swap_b32 v{FR+4}, v{FR+6}
    v_permlane32_swap_b32 v{FR+5}, v{FR+7}
    buffer_store_dwordx4 {vr(FR,4)}, v2, {sr(OUT,4)}, s{sT0} offen
    buffer_store_dwordx4 {vr(FR+4,4)}, v2, {sr(OUT,4)}, s{sT0} offen offset:32
    """)
    stamp(a, 4); prof_end(a, 2, WS, sKQ)
    a("K3_end:\ns_endpgm")
    return 228

def main(out):
    a = Asm()
    n1 = gen_k1(a); n2 = gen_k2(a); n3 = gen_k3(a)
    head = f"""; LN + MQA attention + SiLU FFN, three launches (generated by work/gen2.py)
; @launch kernel=k1_kernel grid=(256,1,1) block=(768,1,1) lds=163840
; @launch kernel=k2_kernel grid=(256,1,1) block=(768,1,1) lds=163840
; @launch kernel=k3_kernel grid=(256,1,1) block=(256,1,1) lds=81920
.amdgcn_target "amdgcn-amd-amdhsa--gfx950"
.text
"""
    tail = '.section .rodata,"a"\n' + kdesc("k1_kernel", n1) + kdesc("k2_kernel", n2) + kdesc("k3_kernel", n3, 96)
    open(out, "w").write(head + a.text() + tail)

if __name__ == "__main__":
    if "--prof" in sys.argv:
        PROF = True; sys.argv.remove("--prof")
    main(sys.argv[1] if len(sys.argv) > 1 else f"cdna_kernels/{NAME}.s")
```

```python
def vr(a, n): return "v[%d:%d]" % (a, a + n - 1)
def MF(d, A, B, C): return f"v_mfma_f32_32x32x16_bf16 {d}, {A}, {B}, {C}"
def halves(R, T, mode):
    fX, F, AC, CC, SX, SEL, vAx, vAw, t0, sDelta = (R[k] for k in ("fX", "F", "AC", "CC", "SX", "SEL", "vAx", "vAw", "t0", "sDelta"))
    n = 1 + 2 * T
    def reads(i):
        o = [f"ds_read_b128 {vr(fX+4*i,4)}, v{vAx+i}"]
        for u in range(T):
            for q in range(2): o.append(f"ds_read_b64_tr_b16 {vr(F[u]+4*i+2*q,2)}, v{vAw+i} offset:{8192*u+256*q}")
        return o
    def adv(i): return [f"v_add_u32 v{vAx+i}, s{sDelta}, v{vAx+i}", f"v_add_u32 v{vAw+i}, s{sDelta}, v{vAw+i}"]
    def xstat(i):
        o = []
        if mode == 'a': return o
        for r in range(fX+4*i, fX+4*i+4):
            o += [f"v_lshlrev_b32 v{t0}, 16, v{r}", f"v_and_b32 v{t0+1}, 0xffff0000, v{r}"]
            if mode == 'v': o += [f"v_add_f32 v{SX}, v{SX}, v{t0}", f"v_fmac_f32 v{SX+1}, v{t0}, v{t0}", f"v_add_f32 v{SX+2}, v{SX+2}, v{t0+1}", f"v_fmac_f32 v{SX+3}, v{t0+1}, v{t0+1}"]
            else: o += [f"v_fmac_f32 v{SX+4}, v{t0}, v{t0}", f"v_fmac_f32 v{SX+5}, v{t0+1}, v{t0+1}"]
        return o
    def m16(d, b): return f"v_mfma_f32_16x16x32_bf16 {vr(d,4)}, {vr(SEL,4)}, {vr(b,4)}, {vr(d,4)}"
    def m4(b): return f"v_mfma_f32_4x4x4_16b_bf16 {vr(SX+4,4)}, {vr(b,2)}, {vr(b,2)}, {vr(SX+4,4)}"
    def mm(i): return [MF(vr(AC[u],16), vr(F[u]+4*i,4), vr(fX+4*i,4), vr(AC[u],16)) for u in range(T)]
    def small(i, withc):
        o = []
        if mode == 'a': o.append(m4(fX+4*i))
        if mode != 'v': o.append(m16(SX, fX+4*i))
        if withc: o += [m16(CC[u], F[u]) for u in range(T)]
        elif mode == 'a': o.append("s_nop 0")
        if mode == 'a': o.append(m4(fX+4*i+2))
        return o
    def weave(ms, rd, va):
        out = []; k = len(ms)
        for j, m in enumerate(ms):
            out.append(m)
            out += rd[len(rd) * j // k: len(rd) * (j + 1) // k]
            out += va[len(va) * j // k: len(va) * (j + 1) // k]
        return out
    h1 = weave(mm(2) + mm(3), reads(0) + reads(1), xstat(2)) + small(2, False) + adv(0) + adv(1)
    h1r = reads(0) + reads(1) + adv(0) + adv(1)
    h2 = [f"s_waitcnt lgkmcnt({n})"] + weave(mm(0), reads(2), xstat(0)[:len(xstat(0))//2]) + small(0, True)
    h2 += [f"s_waitcnt lgkmcnt({n})"] + weave(mm(1), reads(3), xstat(0)[len(xstat(0))//2:]) + adv(2) + adv(3)
    tail = weave(mm(2) + mm(3), [], xstat(2)) + small(2, False)
    return h1, h1r, h2, tail

def stream(R, T, mode):
    fX, F, AC, CC, SX, SEL, vAx, vAw, t0, sDelta = (R[k] for k in ("fX", "F", "AC", "CC", "SX", "SEL", "vAx", "vAw", "t0", "sDelta"))
    n = 1 + 2 * T
    def reads(i):
        o = [f"ds_read_b128 {vr(fX+4*i,4)}, v{vAx+i}"]
        for u in range(T):
            for q in range(2): o.append(f"ds_read_b64_tr_b16 {vr(F[u]+4*i+2*q,2)}, v{vAw+i} offset:{8192*u+256*q}")
        return o
    def adv(i): return [f"v_add_u32 v{vAx+i}, s{sDelta}, v{vAx+i}", f"v_add_u32 v{vAw+i}, s{sDelta}, v{vAw+i}"]
    def xstat(i, half):
        o = []
        for r in range(fX+4*i+2*half, fX+4*i+2*half+2):
            o += [f"v_lshlrev_b32 v{t0}, 16, v{r}", f"v_and_b32 v{t0+1}, 0xffff0000, v{r}"]
            if mode == 'v': o += [f"v_add_f32 v{SX}, v{SX}, v{t0}", f"v_fmac_f32 v{SX+1}, v{t0}, v{t0}", f"v_add_f32 v{SX+2}, v{SX+2}, v{t0+1}", f"v_fmac_f32 v{SX+3}, v{t0+1}, v{t0+1}"]
            else: o += [f"v_fmac_f32 v{SX+4}, v{t0}, v{t0}", f"v_fmac_f32 v{SX+5}, v{t0+1}, v{t0+1}"]
        return o
    def m16(d, b): return f"v_mfma_f32_16x16x32_bf16 {vr(d,4)}, {vr(SEL,4)}, {vr(b,4)}, {vr(d,4)}"
    def mm(i): return [MF(vr(AC[u],16), vr(F[u]+4*i,4), vr(fX+4*i,4), vr(AC[u],16)) for u in range(T)]
    def sx(i): return [m16(SX, fX+4*i)] if mode == 'm' else []
    def weave(ms, rd, va):
        out = []; k = len(ms)
        for j, m in enumerate(ms):
            out.append(m)
            out += rd[len(rd) * j // k: len(rd) * (j + 1) // k]
            out += va[len(va) * j // k: len(va) * (j + 1) // k]
        return out
    def A(rd):
        r = (lambda i: reads(i)) if rd else (lambda i: [])
        ad = (lambda i: adv(i)) if rd else (lambda i: [])
        w2 = [f"s_waitcnt lgkmcnt({15-n})"] if (rd and 3 * n > 15) else []
        return weave(mm(1), r(0), xstat(1, 1)) + sx(1) + weave(mm(2), r(1), xstat(3, 0) + ad(0)) + w2 + weave(mm(3), r(2), xstat(3, 1) + ad(1)) + sx(3)
    first = reads(0) + reads(1) + ([f"s_waitcnt lgkmcnt({15-n})"] if 3 * n > 15 else []) + reads(2) + adv(0) + adv(1)
    bb = [f"s_waitcnt lgkmcnt({n})"] + weave([m16(CC[u], F[u]) for u in range(T)], reads(3), adv(2)) + weave(mm(0), [], xstat(1, 0) + adv(3)) + ["s_waitcnt lgkmcnt(0)"]
    return first, A(True), bb, A(False)

def streamB(R, NR):
    fW, fX, AC, CC, SX, SXX, SEL, vAx, vAw, t0, sDelta = (R[k] for k in ("fW", "fX", "AC", "CC", "SX", "SXX", "SEL", "vAx", "vAw", "t0", "sDelta"))
    n = 2 + NR
    def reads(i):
        o = [f"ds_read_b64_tr_b16 {vr(fW+4*i+2*q,2)}, v{vAw+i} offset:{256*q}" for q in range(2)]
        o += [f"ds_read_b128 {vr(fX+12*i+4*j,4)}, v{vAx+i} offset:{4096*j}" for j in range(NR)]
        return o
    def adv(i): return [f"v_add_u32 v{vAx+i}, s{sDelta}, v{vAx+i}", f"v_add_u32 v{vAw+i}, s{sDelta}, v{vAw+i}"]
    def xsq(i):
        o = []
        for j in range(NR):
            for r in range(fX+12*i+4*j, fX+12*i+4*j+4):
                o += [f"v_lshlrev_b32 v{t0}, 16, v{r}", f"v_and_b32 v{t0+1}, 0xffff0000, v{r}",
                      f"v_fmac_f32 v{SXX+j}, v{t0}, v{t0}", f"v_fmac_f32 v{SXX+j}, v{t0+1}, v{t0+1}"]
        return o
    def m16(d, b): return f"v_mfma_f32_16x16x32_bf16 {vr(d,4)}, {vr(SEL,4)}, {vr(b,4)}, {vr(d,4)}"
    def mm(i): return [MF(vr(AC+16*j,16), vr(fW+4*i,4), vr(fX+12*i+4*j,4), vr(AC+16*j,16)) for j in range(NR)]
    def weave(ms, rd, va):
        out = []; k = len(ms)
        for j, m in enumerate(ms):
            out.append(m)
            out += rd[len(rd) * j // k: len(rd) * (j + 1) // k]
            out += va[len(va) * j // k: len(va) * (j + 1) // k]
        return out
    ST = R.get("statslot", 3)
    q = xsq(ST); th = len(q) // 3 // 4 * 4
    def A(rd):
        r = (lambda i: reads(i)) if rd else (lambda i: [])
        ad = (lambda i: adv(i)) if rd else (lambda i: [])
        return (weave(mm(1), r(0), q[:th]) + weave(mm(2), r(1), q[th:2*th] + ad(0)) + [m16(CC, fW+8)]
                + weave(mm(3), r(2), q[2*th:] + ad(1)) )
    sxs = [m16(SX+4*j, fX+12*ST+4*j) for j in range(NR)]
    first = reads(0) + reads(1) + reads(2) + adv(0) + adv(1)
    bb = [f"s_waitcnt lgkmcnt({2*n})", m16(CC, fW)] + weave(mm(0), reads(3), adv(2)) + adv(3) + ["s_waitcnt lgkmcnt(0)"]
    return first, A(True) + sxs, bb, A(False) + sxs

def streamC(R, NR):
    fW, fX, AC, vAx, vAw, sDelta = (R[k] for k in ("fW", "fX", "AC", "vAx", "vAw", "sDelta"))
    n = 2 + NR
    def reads(i):
        o = [f"ds_read_b64_tr_b16 {vr(fW+4*i+2*q,2)}, v{vAw} offset:{2048*i+256*q}" for q in range(2)]
        o += [f"ds_read_b128 {vr(fX+12*i+4*j,4)}, v{vAx+i} offset:{4096*j}" for j in range(NR)]
        return o
    def adv(i): return [f"v_add_u32 v{vAx+i}, s{sDelta}, v{vAx+i}"] + ([f"v_add_u32 v{vAw}, s{sDelta}, v{vAw}"] if i == 3 else [])
    def mm(i): return [MF(vr(AC+16*j,16), vr(fW+4*i,4), vr(fX+12*i+4*j,4), vr(AC+16*j,16)) for j in range(NR)]
    def weave(ms, rd, va):
        out = []; k = len(ms)
        for j, m in enumerate(ms):
            out.append(m)
            out += rd[len(rd) * j // k: len(rd) * (j + 1) // k]
            out += va[len(va) * j // k: len(va) * (j + 1) // k]
        return out
    first = reads(0) + reads(1) + reads(2) + adv(0) + adv(1)
    ba = weave(mm(1), reads(0), []) + weave(mm(2), reads(1), adv(0)) + weave(mm(3), reads(2), adv(1))
    bb = [f"s_waitcnt lgkmcnt({2*n})"] + reads(3)[:2] + weave(mm(0)[:1], reads(3)[2:], adv(2)) + mm(0)[1:] + adv(3)
    tail = mm(1) + mm(2) + mm(3)
    return first, ba, bb, tail
```

```python
import sys, math, os, struct
import abody, kbody
OPT = set(os.environ.get('OPT', '').split(','))
NAME = "parallel_sum__grouped_kv_mqa__dense_activation_silu__prompt"
WS_Q, WS_KV, WS_H, WS_O, WS_WP, WS_Y, WS_PROF, WS_END = 0, 0x300000, 0x340000, 0x940000, 0xD00000, 0x1000000, 0xC00000, 0x1500000
WS_SR, WS_SC = 0x280000, 0x2D2000
WS_F1, WS_F3, WS_FK = 0x1000000, 0x1080000, 0x1060000
SLP = int(os.environ.get('SLP', '4'))
XB = 147456; XFC, XN, XQ = XB + 2560, XB + 3072, XB + 4096
sN = 68
KN = NAME + '_kernel'
SPINMAX = 200000
ROTR, ROTC = (int(c) for c in os.environ.get('ROT', '3,3').split(','))
PRE = int(os.environ.get('PRE', '2'))
PRE_CTRL = """s_or_b32 s{sT0}, s{sI}, 2
    s_cmp_eq_u32 s{sT0}, 3
    s_cbranch_scc1 K1_issue
    s_cmp_lg_u32 s{sI}, 2
    s_cbranch_scc1 K1_w18""" if PRE == 2 else """s_cmp_lt_u32 s{sI}, %d
    s_cbranch_scc1 K1_issue
    s_cmp_lg_u32 s{sI}, %d
    s_cbranch_scc1 K1_w18""" % (PRE, PRE)
HOOK = int(os.environ.get('HOOK', '9'))
LOG2E = 1.4426950408889634
def f32(x): return "0x%08x" % struct.unpack("<I", struct.pack("<f", x))[0]

class Asm:
    def __init__(self): self.l = []
    def __call__(self, s):
        for x in s.strip("\n").split("\n"):
            x = x.strip()
            if x: self.l.append(("" if x.endswith(":") else "    ") + x)
    def text(self): return "\n".join(self.l) + "\n"
def vr(a, n): return "v[%d:%d]" % (a, a + n - 1)
def ar(a, n): return "a[%d:%d]" % (a, a + n - 1)
def sr(a, n): return "s[%d:%d]" % (a, a + n - 1)
def srd(a, d, base, nbytes):
    a(f"s_mov_b32 s{d}, s{base}\ns_mov_b32 s{d+1}, s{base+1}\ns_mov_b32 s{d+2}, {nbytes}\ns_mov_b32 s{d+3}, 0x00020000")
def kdesc(name, vgpr, agpr=0, sgpr=102):
    acc = (vgpr + 3) // 4 * 4
    return f""".p2align 6
.amdhsa_kernel {name}
  .amdhsa_next_free_vgpr {acc + agpr if agpr else vgpr}
  .amdhsa_next_free_sgpr {sgpr}
  .amdhsa_accum_offset {acc}
  .amdhsa_group_segment_fixed_size 0
  .amdhsa_kernarg_size 88
  .amdhsa_user_sgpr_count 2
  .amdhsa_user_sgpr_kernarg_segment_ptr 1
  .amdhsa_system_sgpr_workgroup_id_x 1
.end_amdhsa_kernel
"""
def khead(a, name): a.l.append(f".globl {name}\n.p2align 8\n.type {name},@function\n{name}:")
PROF = False
def stamp(a, i):
    if PROF:
        a(f"s_memtime s[{70+2*i}:{71+2*i}]")
        if i == 0: a("s_memrealtime s[84:85]")
def prof_end(a, kidx, WS, sW):
    if not PROF: return
    a(f"""
    s_waitcnt vmcnt(0)
    s_memtime s[82:83]
    s_memrealtime s[86:87]
    s_mov_b64 exec, -1
    s_waitcnt lgkmcnt(0)
    s_lshl_b32 s88, s2, 4
    s_add_u32 s88, s88, s{sW}
    s_lshl_b32 s88, s88, 6
    s_add_u32 s88, s88, {WS_PROF + kidx * 0x40000}
    v_mov_b32 v0, 0
    """)
    for i in range(7): a(f"v_mov_b32 v{4+i}, s{70+2*i}")
    a(f"""
    v_mov_b32 v11, s84
    v_mov_b32 v12, s86
    v_mov_b32 v13, 0
    v_mov_b32 v14, 0
    v_mov_b32 v15, 0
    s_mov_b64 exec, 1
    buffer_store_dwordx4 v[4:7], v0, {sr(WS,4)}, s88 offen
    buffer_store_dwordx4 v[8:11], v0, {sr(WS,4)}, s88 offen offset:16
    buffer_store_dwordx4 v[12:15], v0, {sr(WS,4)}, s88 offen offset:32
    """)
def poll(a, lab, vaddr, vtmp, WS, sCnt):
    a(f"""
    s_mov_b32 s{sCnt}, 0
    {lab}:
    buffer_load_dword v{vtmp}, v{vaddr}, {sr(WS,4)}, 0 offen sc1
    s_add_u32 s{sCnt}, s{sCnt}, 1
    s_waitcnt vmcnt(0)
    v_cmp_ne_u32 vcc, s{sN}, v{vtmp}
    s_cbranch_vccz {lab}x
    s_sleep {SLP}
    s_cmp_lt_u32 s{sCnt}, {SPINMAX}
    s_cbranch_scc1 {lab}
    {lab}x:
    """)
def setflag(a, soff, WS, v0, v1, emask="1"):
    a(f"""
    v_mov_b32 v{v0}, s{sN}
    v_lshlrev_b32 v{v1}, 8, v0
    s_mov_b64 exec, {emask}
    s_waitcnt vmcnt(0)
    buffer_store_dword v{v0}, v{v1}, {sr(WS,4)}, s{soff} offen sc1
    s_mov_b64 exec, -1
    """)
def rowidx(a, d, rt, t):
    a(f"""
    s_mul_i32 s{d}, s{rt}, 205
    s_lshr_b32 s{d}, s{d}, 10
    s_mul_i32 s{t}, s{d}, 5
    s_sub_u32 s{t}, s{rt}, s{t}
    s_lshl_b32 s{d}, s{d}, 1
    s_cmp_ge_u32 s{t}, 3
    s_addc_u32 s{d}, s{d}, 0
    """)
def round_bf16(a, d, s): a(f"v_cvt_pk_bf16_f32 v{d}, v{s}, v{s}\nv_lshlrev_b32 v{d}, 16, v{d}")
def MF(d, A, B, C): return f"v_mfma_f32_32x32x16_bf16 {d}, {A}, {B}, {C}"

def gen_k1(a):
    khead(a, KN)
    SLOT = 36864
    sW, sR, sG, sRB, sCB = 32, 33, 34, 35, 36
    sI, sK, sSlot, sT0, sT1, sMx, sMw, sStr64, sDelta, sRd, sT2, sT3, sK0, sMB, sU, sTyp, sRT, sS32, sOnes = 38, 39, 40, 41, 42, 43, 44, 45, 46, 47, 48, 49, 50, 51, 52, 53, 54, 55, 37
    sEA, sEB, sIdle = 56, 58, 69
    X, WA, WS, WB, DBG = 20, 24, 28, 64, 20
    vL, vXs, vWs, vCom = 0, 1, 2, 11
    vAx, vAw = 12, 16
    vT = 24
    AC = 32; fW, fX = 80, 96
    a(f"""
    s_cmp_ge_u32 s2, 256
    s_cbranch_scc1 K_end
    """); stamp(a, 0); a(f"""
    s_load_dwordx8 s[8:15], s[0:1], 0
    s_load_dwordx2 s[16:17], s[0:1], 32
    s_load_dwordx4 s[60:63], s[0:1], 48
    s_load_dwordx4 s[4:7], s[0:1], 72
    s_load_dwordx2 s[18:19], s[0:1], 64
    v_lshrrev_b32 v1, 6, v0
    v_and_b32 v{vL}, 63, v0
    v_readfirstlane_b32 s{sW}, v1
    s_and_b32 s{sT0}, s2, 7
    s_lshr_b32 s{sT1}, s2, 3
    s_mul_i32 s{sT2}, s{sT0}, 30
    s_add_u32 s{sT2}, s{sT2}, s{sT1}
    v_lshrrev_b32 v{vT}, 5, v{vL}
    v_and_b32 v{vT+1}, 3, v{vL}
    v_bfe_u32 v{vT+2}, v{vL}, 2, 3
    v_lshlrev_b32 v{vT+3}, 4, v{vT+1}
    v_bfe_u32 v{vT+4}, v{vL}, 2, 2
    v_bfe_u32 v{vT+5}, v{vL}, 4, 1
    v_lshl_add_u32 v{vT+4}, v{vT+4}, 1, v{vT+5}
    v_lshl_add_u32 v{vT+4}, v{vT+4}, 2, v{vT+1}
    v_lshlrev_b32 v{vCom}, 3, v{vT+4}
    s_mov_b32 s{WS+2}, {WS_END}
    s_mov_b32 s{WS+3}, 0x00020000
    s_cmp_ge_u32 s{sT1}, 30
    s_cbranch_scc1 K1_aux
    s_cmp_ge_u32 s{sT2}, 234
    s_cbranch_scc1 K1_aux
    s_cmp_lt_u32 s{sT2}, 126
    s_cselect_b32 s{sT0}, 0, 126
    s_cselect_b32 s{sT1}, 7, 6
    s_movk_i32 s{sT3}, 10923
    s_cselect_b32 s{sT3}, 9363, s{sT3}
    s_cselect_b32 s{sRB}, 0, 7
    s_sub_u32 s{sT2}, s{sT2}, s{sT0}
    s_mul_i32 s{sCB}, s{sT2}, s{sT3}
    s_lshr_b32 s{sCB}, s{sCB}, 16
    s_mul_i32 s{sT1}, s{sT1}, s{sCB}
    s_sub_u32 s{sT2}, s{sT2}, s{sT1}
    s_add_u32 s{sRB}, s{sRB}, s{sT2}
    s_and_b32 s{sR}, s{sW}, 3
    s_mul_i32 s{sK}, s{sRB}, {ROTR}
    s_mul_i32 s{sT0}, s{sCB}, {ROTC}
    s_add_u32 s{sK}, s{sK}, s{sT0}
    s_mul_i32 s{sT0}, s{sK}, 6554
    s_lshr_b32 s{sT0}, s{sT0}, 16
    s_mul_i32 s{sT0}, s{sT0}, 10
    s_sub_u32 s{sK}, s{sK}, s{sT0}
    s_mov_b32 s{sOnes}, 0x3f803f80
    s_cmp_eq_u32 s{sCB}, 17
    s_cselect_b32 s{sT0}, 1, 3
    s_and_b32 s{sT0}, s{sT0}, s{sR}
    s_lshr_b32 s{sT1}, s{sT0}, 1
    s_lshl_b32 s{sT1}, s{sT1}, 13
    s_and_b32 s{sT0}, s{sT0}, 1
    s_lshl_b32 s{sT0}, s{sT0}, 9
    s_add_u32 s{sT0}, s{sT0}, s{sT1}
    s_add_u32 s{sT0}, s{sT0}, 20480
    v_lshl_add_u32 v{vAw}, v{vT}, 10, v{vCom}
    v_add_u32 v{vAw}, s{sT0}, v{vAw}
    s_cmp_lt_u32 s{sW}, 8
    s_cbranch_scc1 K1_C
    """)
    a(f"""
    s_mul_i32 s{sT0}, s{sRB}, 160
    s_lshl_b32 s{sT1}, s{sR}, 3
    s_add_u32 s{sT0}, s{sT0}, s{sT1}
    s_mul_i32 s{sT0}, s{sT0}, 1280
    v_lshrrev_b32 v{vT+4}, 3, v{vL}
    v_mul_u32_u24 v{vT+4}, 1280, v{vT+4}
    v_add_u32 v{vT+4}, s{sT0}, v{vT+4}
    v_and_b32 v{vT+5}, 7, v{vL}
    v_lshrrev_b32 v{vT+6}, 4, v{vL}
    v_xor_b32 v{vT+5}, v{vT+5}, v{vT+6}
    s_and_b32 s{sT0}, s{sR}, 1
    s_lshl_b32 s{sT0}, s{sT0}, 2
    v_xor_b32 v{vT+5}, s{sT0}, v{vT+5}
    v_lshl_add_u32 v{vXs}, v{vT+5}, 4, v{vT+4}
    s_cmp_lt_u32 s{sCB}, 5
    s_movk_i32 s{sT0}, 3072
    s_cselect_b32 s{sT0}, 1280, s{sT0}
    s_cselect_b32 s{sT2}, 0, 5
    s_sub_u32 s{sT2}, s{sCB}, s{sT2}
    s_lshl_b32 s{sT2}, s{sT2}, 8
    v_lshl_add_u32 v{vT+4}, v{vT}, 6, v{vT+3}
    v_add_u32 v{vT+4}, s{sT2}, v{vT+4}
    v_min_u32 v{vT+5}, 24, v{vT+3}
    s_cmp_eq_u32 s{sCB}, 17
    s_cselect_b32 s{sT0}, 40, s{sT0}
    s_cselect_b64 vcc, -1, 0
    s_mov_b32 s{sEA}, -1
    s_cselect_b32 s{sEA+1}, 0, -1
    s_cselect_b32 s{sEB}, 0, -1
    s_mov_b32 s{sEB+1}, -1
    s_movk_i32 s{sMB}, 4096
    s_cselect_b32 s{sMB}, {(-4096) & 0xffffffff}, s{sMB}
    v_cndmask_b32 v{vT+4}, v{vT+4}, v{vT+5}, vcc
    v_add_u32 v{vT+5}, s{sT1}, v{vT+2}
    v_mad_u32_u24 v{vWs}, v{vT+5}, s{sT0}, v{vT+4}
    s_lshl_b32 s{sStr64}, s{sT0}, 6
    s_lshl_b32 s{sS32}, s{sT0}, 5
    s_mul_i32 s{WA+2}, s{sT0}, 640
    s_lshl_b32 s{sMx}, s{sR}, 10
    s_mov_b32 s{sI}, 0
    s_mov_b32 s{sSlot}, 0
    s_mov_b32 s{sRd}, 0
    s_mov_b32 s{X+2}, {2048*1280}
    s_mov_b32 s{X+3}, 0x00020000
    s_mov_b32 s{WA+3}, 0x00020000
    s_mov_b32 s{WB+3}, 0x00020000
    s_waitcnt lgkmcnt(0)
    s_mov_b32 s{X}, s8
    s_mov_b32 s{X+1}, s9
    s_mov_b32 s{WS}, s6
    s_mov_b32 s{WS+1}, s7
    s_cmp_lt_u32 s{sCB}, 5
    s_cselect_b32 s{WA}, s10, s60
    s_cselect_b32 s{WA+1}, s11, s61
    s_add_u32 s{WB}, s{WA}, 128
    s_addc_u32 s{WB+1}, s{WA+1}, 0
    s_sub_u32 s{WB+2}, s{WA+2}, 128
    s_cmp_eq_u32 s{sCB}, 17
    s_cselect_b32 s{WA}, s12, s{WA}
    s_cselect_b32 s{WA+1}, s13, s{WA+1}
    s_cselect_b32 s{WB}, s14, s{WB}
    s_cselect_b32 s{WB+1}, s15, s{WB+1}
    s_cselect_b32 s{WB+2}, s{WA+2}, s{WB+2}
    """)
    stamp(a, 1)
    a(f"""
    K1_issue:
    s_lshl_b32 s{sT0}, s{sK}, 7
    s_add_u32 m0, s{sSlot}, s{sMx}
    s_mul_i32 s{sT1}, s{sK}, s{sStr64}
    """)
    for i in range(5):
        a(f"buffer_load_dwordx4 v{vXs}, {sr(X,4)}, s{sT0} offen lds\ns_add_u32 m0, m0, 4096\ns_add_u32 s{sT0}, s{sT0}, {32*1280}")
    a(f"""
    s_mov_b64 exec, {sr(sEA,2)}
    s_add_u32 s{sT2}, s{sT1}, s{sS32}
    buffer_load_dwordx4 v{vWs}, {sr(WA,4)}, s{sT1} offen lds
    s_add_u32 m0, m0, 4096
    s_add_u32 s{sK}, s{sK}, 1
    buffer_load_dwordx4 v{vWs}, {sr(WA,4)}, s{sT2} offen lds
    s_add_u32 m0, m0, s{sMB}
    s_mov_b64 exec, {sr(sEB,2)}
    buffer_load_dwordx4 v{vWs}, {sr(WB,4)}, s{sT1} offen lds
    s_add_u32 m0, m0, 4096
    s_cmp_eq_u32 s{sK}, 10
    s_cselect_b32 s{sK}, 0, s{sK}
    buffer_load_dwordx4 v{vWs}, {sr(WB,4)}, s{sT2} offen lds
    s_mov_b64 exec, -1
    s_add_u32 s{sSlot}, s{sSlot}, {SLOT}
    s_cmp_eq_u32 s{sSlot}, {4*SLOT}
    s_cselect_b32 s{sSlot}, 0, s{sSlot}
    s_add_u32 s{sI}, s{sI}, 1
    {PRE_CTRL.format(sI=sI, sT0=sT0)}
    s_waitcnt vmcnt({9*(PRE-1)})
    s_barrier
    """)
    for k in range(4):
        for q in range(2): a(f"ds_read_b64_tr_b16 {vr(32+4*k+2*q,2)}, v{vAw} offset:{2048*k+256*q}")
    a(f"""
    v_mov_b32 v48, 0
    v_and_b32 v49, 31, v{vL}
    s_lshl_b32 s{sT0}, s{sR}, 7
    s_add_u32 s{sT0}, s{sT0}, {XQ+1280}
    v_lshl_add_u32 v49, v49, 2, s{sT0}
    s_waitcnt lgkmcnt(0)
    """)
    for i in range(16): a(f"v_dot2c_f32_bf16 v48, s{sOnes}, v{32+i}")
    a(f"""
    s_nop 2
    v_mov_b32 v50, v48
    s_nop 1
    v_permlane32_swap_b32 v50, v48
    v_add_f32 v48, v48, v50
    ds_write_b32 v49, v48
    {"" if PRE == 4 else "s_branch K1_issue"}
    K1_w18:
    s_cmp_eq_u32 s{sI}, 10
    s_cbranch_scc1 K1_g0
    s_waitcnt vmcnt(18) lgkmcnt(0)
    s_barrier
    s_branch K1_issue
    K1_g0:
    """)
    G = 32
    a(f"""
    v_mov_b32 v3, {XN}
    ds_read_b32 v4, v3
    s_cmp_eq_u32 s{sR}, 3
    s_mul_i32 s{sT0}, s{sRB}, 25600
    s_mul_i32 s{sT1}, s{sCB}, 10240
    s_movk_i32 s{sT3}, 2560
    s_cselect_b32 s{sT3}, 1024, s{sT3}
    s_cselect_b32 s{sT0}, s{sT1}, s{sT0}
    s_mov_b32 s{sT1}, {WS_SR}
    s_cselect_b32 s{sT1}, {WS_SC}, s{sT1}
    s_cselect_b32 s{sT2}, 0, s{sR}
    s_add_u32 s{sU}, s{sT0}, s{sT1}
    s_lshl_b32 s{sT2}, s{sT2}, 6
    v_add_u32 v5, s{sT2}, v{vL}
    v_min_u32 v5, 159, v5
    v_lshlrev_b32 v5, 4, v5
    s_mov_b32 s{sI}, 0
    K1_gat:
    s_mov_b32 s{sT0}, s{sU}
    """)
    for k in range(10):
        a(f"buffer_load_dwordx4 {vr(G+4*k,4)}, v5, {sr(WS,4)}, s{sT0} offen sc1\ns_add_u32 s{sT0}, s{sT0}, s{sT3}")
    a(f"""
    s_cmp_lg_u32 s{sI}, 0
    s_cbranch_scc1 K1_g2
    s_waitcnt vmcnt(28)
    s_barrier
    s_waitcnt vmcnt(19)
    s_barrier
    s_waitcnt vmcnt(10)
    s_barrier
    {"s_memtime s[78:79]" if PROF and 'st2' in OPT else ""}
    K1_g2:
    s_add_u32 s{sI}, s{sI}, 1
    s_waitcnt vmcnt(0) lgkmcnt(0)
    v_mov_b32 v6, 0
    """)
    for k in range(10):
        a(f"v_xor_b32 v{G+4*k+1}, v{G+4*k+1}, v4\nv_xor_b32 v{G+4*k+3}, v{G+4*k+3}, v4\nv_or3_b32 v6, v{G+4*k+1}, v{G+4*k+3}, v6")
    a(f"""
    v_cmp_ne_u32 vcc, 0, v6
    s_cmp_gt_u32 s{sI}, {SPINMAX}
    s_cbranch_scc1 K1_g3
    s_cbranch_vccnz K1_gat
    K1_g3:
    {"s_memtime s[80:81]" if PROF and 'st2' in OPT else ""}
    {f"s_add_u32 s72, s70, s{sI}" if PROF and 'st2' in OPT else ""}
    """)
    for k in range(1, 10):
        a(f"v_add_f32 v{G}, v{G}, v{G+4*k}\nv_add_f32 v{G+2}, v{G+2}, v{G+4*k+2}")
    a(f"""
    s_cmp_eq_u32 s{sR}, 3
    s_cbranch_scc1 K1_gc
    v_mul_f32 v{G}, {f32(1.0/640)}, v{G}
    v_mul_f32 v{G+2}, {f32(1.0/640)}, v{G+2}
    v_cvt_pk_bf16_f32 v{G+4}, -v{G}, -v{G}
    v_fma_f32 v{G+2}, -v{G}, v{G}, v{G+2}
    v_max_f32 v{G+2}, 0, v{G+2}
    """)
    round_bf16(a, G+2, G+2)
    a(f"v_add_f32 v{G+2}, {f32(1e-5)}, v{G+2}")
    round_bf16(a, G+2, G+2)
    a(f"v_sqrt_f32 v{G+5}, v{G+2}\ns_nop 0")
    round_bf16(a, G+5, G+5)
    a(f"""
    v_rcp_f32 v{G+6}, v{G+5}
    v_add_u32 v5, {XB+0}, v5
    v_mov_b32 v{G+7}, 0
    ds_write_b128 v5, {vr(G+4,4)}
    s_branch K1_gd
    K1_gc:
    v_and_b32 v{G+1}, 0xffff0000, v{G}
    v_and_b32 v{G+3}, 0xffff0000, v{G+2}
    v_sub_f32 v{G}, v{G}, v{G+1}
    v_sub_f32 v{G+2}, v{G+2}, v{G+3}
    v_cvt_pk_bf16_f32 v{G+4}, v{G+1}, v{G}
    v_cvt_pk_bf16_f32 v{G+5}, v{G+3}, v{G+2}
    v_lshlrev_b32 v5, 3, v{vL}
    v_add_u32 v5, {XFC}, v5
    ds_write_b64 v5, {vr(G+4,2)}
    K1_gd:
    v_readfirstlane_b32 s{sN}, v4
    s_waitcnt lgkmcnt(0)
    s_barrier
    s_branch K2_G
    """)
    vN = 2
    a(f"""
    K1_C:
    s_lshr_b32 s{sG}, s{sW}, 2
    s_mov_b32 s{sK0}, s{sK}
    s_mov_b32 s{DBG+2}, 256
    s_mov_b32 s{DBG+3}, 0x00020000
    v_mov_b32 v{vN+1}, 0
    v_and_b32 v{vT+4}, 31, v{vL}
    v_bfe_u32 v{vT+5}, v{vL}, 1, 3
    v_lshlrev_b32 v{vT+4}, 7, v{vT+4}
    s_waitcnt lgkmcnt(0)
    s_mov_b32 s{WS}, s6
    s_mov_b32 s{WS+1}, s7
    s_mov_b32 s{DBG}, s4
    s_mov_b32 s{DBG+1}, s5
    s_lshl_b32 s{sT1}, s{sW}, 12
    v_lshlrev_b32 v{vT+6}, 2, v{vT}
    v_xor_b32 v{vT+6}, v{vT+6}, v{vT+5}
    v_lshl_add_u32 v4, v{vT+6}, 4, v{vT+4}
    v_add_u32 v4, s{sT1}, v4
    v_xor_b32 v5, 16, v4
    v_xor_b32 v6, 32, v4
    v_xor_b32 v7, 48, v4
    v_xor_b32 v{vT+5}, v{vT+5}, v{vT}
    s_mul_i32 s{sT1}, s{sG}, {3*4096}
    v_add_u32 v{vT+4}, s{sT1}, v{vT+4}
    """)
    for i in range(4):
        a(f"v_xor_b32 v{vT+6}, {2*i}, v{vT+5}\nv_lshl_add_u32 v{vAx+i}, v{vT+6}, 4, v{vT+4}")
    a(f"""
    s_mov_b32 s{sRd}, 0
    s_mov_b32 s{sI}, 10
    s_mov_b32 s{sDelta}, {SLOT}
    s_cmp_eq_u32 s{sW}, 7
    s_cselect_b32 s{sMB}, {HOOK}, 0
    s_sub_u32 s{sT0}, s{sW}, 2
    s_cmp_lt_u32 s{sT0}, 4
    s_cselect_b32 s{sIdle}, 1, 0
    s_cmp_eq_u32 s{sCB}, 17
    s_cselect_b32 s{sIdle}, s{sIdle}, 0
    v_mov_b32 v8, 0
    v_mov_b32 v9, 0
    """)
    for i in range(48): a(f"v_mov_b32 v{AC+i}, 0")
    a("s_barrier")
    stamp(a, 1)
    a(f"s_cmp_lg_u32 s{sW}, 7\ns_cbranch_scc1 K1_non\nbuffer_load_dword v{vN}, v{vN+1}, {sr(DBG,4)}, 0 offen sc1\nK1_non:")
    a(f"s_cmp_ge_u32 s{sW}, 5\ns_cbranch_scc1 K1_nost")
    for i in range(4): a(f"ds_read_b128 {vr(144+4*i,4)}, v{4+i}")
    a(f"""
    v_and_b32 v4, 31, v{vL}
    s_lshl_b32 s{sT0}, s{sW}, 8
    s_add_u32 s{sT0}, s{sT0}, {XQ}
    v_lshl_add_u32 v4, v4, 3, s{sT0}
    s_waitcnt lgkmcnt(0)
    """)
    for i in range(16): a(f"v_dot2c_f32_bf16 v8, s{sOnes}, v{144+i}\nv_dot2c_f32_bf16 v9, v{144+i}, v{144+i}")
    a(f"""
    s_nop 2
    v_mov_b32 v6, v8
    v_mov_b32 v7, v9
    s_nop 1
    v_permlane32_swap_b32 v6, v8
    v_permlane32_swap_b32 v7, v9
    v_add_f32 v8, v8, v6
    v_add_f32 v9, v9, v7
    ds_write_b64 v4, {vr(8,2)}
    s_waitcnt lgkmcnt(0)
    K1_nost:
    """)
    KR = dict(fW=fW, fX=fX, AC=AC, vAx=vAx, vAw=vAw, sDelta=sDelta)
    def cloop(T):
        first, ba, bb, tail = kbody.streamC(KR, T)
        flt = lambda L: [l for l in L if not ('k1nm' in OPT and 'mfma' in l) and not ('k1nr' in OPT and 'ds_read' in l) and not ('k1nx' in OPT and 'ds_read_b128' in l)]
        first, ba, bb, tail = flt(first), flt(ba), flt(bb), flt(tail)
        a(f"K1_start{T}:")
        for l in first: a(l)
        a(f"s_branch K1_mid{T}\nK1_comp{T}:\ns_barrier")
        for l in ba: a(l)
        a(f"K1_mid{T}:")
        for l in bb: a(l)
        a(f"""
        s_add_u32 s{sRd}, s{sRd}, 1
        s_and_b32 s{sRd}, s{sRd}, 3
        s_cmp_eq_u32 s{sRd}, 3
        s_mov_b32 s{sDelta}, {SLOT}
        s_cselect_b32 s{sDelta}, {(-3*SLOT) & 0xffffffff}, s{sDelta}
        """)
        if T == 2: a(f"s_cmp_eq_u32 s{sI}, s{sMB}\ns_cbranch_scc1 K1_pub\nK1_pubr:")
        a(f"""
        s_sub_u32 s{sI}, s{sI}, 1
        s_cmp_lg_u32 s{sI}, 0
        s_waitcnt lgkmcnt(0)
        s_cbranch_scc1 K1_comp{T}
        """)
        for l in tail: a(l)
    a(f"s_cmp_lg_u32 s{sIdle}, 0\ns_cbranch_scc1 K1_idle\ns_cmp_lg_u32 s{sG}, 0\ns_cbranch_scc1 K1_start2")
    cloop(3)
    a("K1_cdone:")
    stamp(a, 2)
    ST, vCA, WK, E, PK = 144, 20, 96, 112, 128
    vS, vMq, vNe, vNB = 26, 24, 30, 22
    a(f"""
    v_and_b32 v3, 31, v{vL}
    s_mul_i32 s{sT0}, s{sG}, {96*16}
    s_add_u32 s{sT0}, s{sT0}, {XB+0}
    v_lshl_add_u32 v4, v3, 4, s{sT0}
    s_lshl_b32 s{sT0}, s{sR}, 7
    s_add_u32 s{sT0}, s{sT0}, {XFC}
    v_lshl_add_u32 v5, v3, 2, s{sT0}
    v_lshlrev_b32 v1, 4, v{vL}
    v_lshlrev_b32 v2, 3, v{vL}
    v_mov_b32 v{vCA+1}, 0
    v_mov_b32 v{vNB+1}, 0
    s_mul_i32 s{sRT}, s{sRB}, 5
    s_mul_i32 s{sT0}, s{sG}, 3
    s_add_u32 s{sRT}, s{sRT}, s{sT0}
    s_sub_u32 s{sU}, 3, s{sG}
    s_cmp_lt_u32 s{sCB}, 5
    s_cselect_b32 s{sTyp}, 0, 1
    s_cmp_eq_u32 s{sCB}, 17
    s_cselect_b32 s{sTyp}, 2, s{sTyp}
    s_mov_b32 s{sK}, {f32(20 ** -0.5 * LOG2E)}
    s_cselect_b32 s{sK}, 1.0, s{sK}
    s_lshl_b32 s{sT0}, s{sCB}, 13
    s_lshl_b32 s{sT1}, s{sR}, 11
    s_add_u32 s{sMx}, s{sT0}, s{sT1}
    v_cmp_gt_u32 vcc, 32, v{vL}
    v_mov_b32 v6, {XN}
    s_barrier
    {"s_memtime s[72:73]" if PROF and 'st2' in OPT else ""}
    ds_read_b32 v6, v6
    ds_read_b32 v{vCA}, v5
    ds_read_b128 {vr(ST,4)}, v4
    ds_read_b128 {vr(ST+4,4)}, v4 offset:512
    ds_read_b128 {vr(ST+8,4)}, v4 offset:1024
    s_mov_b32 s{sI}, 0
    s_waitcnt lgkmcnt(0)
    v_readfirstlane_b32 s{sN}, v6
    v_cndmask_b32 v{vCA}, 0, v{vCA}, vcc
    v_mov_b32 v{vNB}, v{ST}
    v_mov_b32 v{vNB+6}, v{ST+4}
    v_mov_b32 v{vNB+7}, 0
    v_mov_b32 v18, v{ST+8}
    v_mov_b32 v19, 0
    v_mfma_f32_32x32x8_bf16 {vr(AC,16)}, {vr(vCA,2)}, {vr(vNB,2)}, {vr(AC,16)}
    v_mfma_f32_32x32x8_bf16 {vr(AC+16,16)}, {vr(vCA,2)}, {vr(vNB+6,2)}, {vr(AC+16,16)}
    v_mfma_f32_32x32x8_bf16 {vr(AC+32,16)}, {vr(vCA,2)}, {vr(18,2)}, {vr(AC+32,16)}
    s_nop 7
    K1_epi:
    s_cmp_ge_u32 s{sRT}, 64
    s_cbranch_scc1 K1_done
    v_mov_b32 v{vS}, v{ST+1}
    s_cmp_eq_u32 s{sTyp}, 1
    s_cbranch_scc1 K1_epiH
    v_mul_f32 v{vMq}, s{sK}, v{ST+2}
    s_mul_i32 s{sT3}, s{sRT}, 40960
    s_add_u32 s{sT3}, s{sT3}, s{sMx}
    """)
    for i in range(8): a(f"v_pk_mul_f32 {vr(E+2*i,2)}, {vr(AC+2*i,2)}, {vr(vMq,2)} op_sel_hi:[1,0]")
    a(f"""
    s_branch K1_ecvt
    K1_epiH:
    v_mul_f32 v{vNe}, {f32(-LOG2E)}, v{ST+2}
    s_mul_i32 s{sT3}, s{sRT}, {96*1024}
    s_add_u32 s{sT3}, s{sT3}, s{sMx}
    s_add_u32 s{sT3}, s{sT3}, {WS_H - 5*8192}
    """)
    for i in range(8): a(f"v_pk_mul_f32 {vr(E+2*i,2)}, {vr(AC+2*i,2)}, {vr(vNe,2)} op_sel_hi:[1,0]")
    for i in range(16): a(f"v_exp_f32 v{E+i}, v{E+i}")
    for i in range(8): a(f"v_pk_fma_f32 {vr(E+2*i,2)}, {vr(E+2*i,2)}, {vr(vS,2)}, {vr(vS,2)} op_sel_hi:[1,0,0]")
    for i in range(16): a(f"v_rcp_f32 v{E+i}, v{E+i}")
    for i in range(8): a(f"v_pk_mul_f32 {vr(E+2*i,2)}, {vr(E+2*i,2)}, {vr(AC+2*i,2)}")
    a("K1_ecvt:")
    for i in range(8): a(f"v_cvt_pk_bf16_f32 v{PK+i}, v{E+2*i}, v{E+2*i+1}")
    a(f"""
    s_cmp_eq_u32 s{sTyp}, 2
    s_cbranch_scc1 K1_epiKV
    buffer_store_dwordx4 {vr(PK,4)}, v1, {sr(WS,4)}, s{sT3} offen sc1
    buffer_store_dwordx4 {vr(PK+4,4)}, v1, {sr(WS,4)}, s{sT3} offen offset:1024 sc1
    K1_enext:
    s_add_u32 s{sRT}, s{sRT}, 1
    s_add_u32 s{sI}, s{sI}, 1
    s_cmp_eq_u32 s{sI}, s{sU}
    s_cbranch_scc1 K1_done
    s_cmp_eq_u32 s{sI}, 2
    s_cbranch_scc1 K1_e2
    """)
    for i in range(8): a(f"v_pk_mov_b32 {vr(AC+2*i,2)}, {vr(AC+16+2*i,2)}, {vr(AC+16+2*i,2)} op_sel:[0,1]")
    a(f"v_mov_b32 v{ST+1}, v{ST+5}\nv_mov_b32 v{ST+2}, v{ST+6}\ns_branch K1_epi\nK1_e2:")
    for i in range(8): a(f"v_pk_mov_b32 {vr(AC+2*i,2)}, {vr(AC+32+2*i,2)}, {vr(AC+32+2*i,2)} op_sel:[0,1]")
    a(f"""
    v_mov_b32 v{ST+1}, v{ST+9}
    v_mov_b32 v{ST+2}, v{ST+10}
    s_branch K1_epi
    K1_epiKV:
    s_cmp_lg_u32 s{sIdle}, 0
    s_cbranch_scc1 K1_done
    s_lshr_b32 s{sT0}, s{sRT}, 2
    s_mul_i32 s{sT0}, s{sT0}, 10240
    s_add_u32 s{sT0}, s{sT0}, {WS_KV}
    s_and_b32 s{sT2}, s{sRT}, 3
    v_lshrrev_b32 v5, 5, v{vL}
    s_bitcmp1_b32 s{sR}, 0
    s_cbranch_scc1 K1_vst
    v_mul_u32_u24 v4, 5120, v5
    v_lshl_add_u32 v4, v3, 4, v4
    s_lshl_b32 s{sT1}, s{sT2}, 9
    s_add_u32 s{sT1}, s{sT1}, s{sT0}
    buffer_store_dwordx4 {vr(PK,4)}, v4, {sr(WS,4)}, s{sT1} offen sc1
    s_and_b32 s{sT1}, s{sT2}, 1
    s_mul_i32 s{sT1}, s{sT1}, 5120
    s_add_u32 s{sT0}, s{sT0}, s{sT1}
    s_lshr_b32 s{sT1}, s{sT2}, 1
    s_lshl_b32 s{sT1}, s{sT1}, 3
    s_add_u32 s{sT0}, s{sT0}, s{sT1}
    v_lshlrev_b32 v4, 4, v3
    s_mov_b32 exec_lo, 0
    buffer_store_dwordx2 {vr(PK+4,2)}, v4, {sr(WS,4)}, s{sT0} offen offset:2048 sc1
    s_mov_b32 exec_lo, -1
    s_branch K1_enext
    K1_vst:
    s_mul_i32 s{sT1}, s{sT2}, 640
    s_add_u32 s{sT0}, s{sT0}, s{sT1}
    s_add_u32 s{sT1}, s{sT0}, 5120
    s_lshl_b32 s{sT2}, s{sW}, 11
    v_bfe_u32 v4, v3, 2, 1
    v_mul_u32_u24 v4, 640, v4
    v_lshl_add_u32 v4, v5, 6, v4
    v_lshrrev_b32 v5, 4, v3
    v_mul_u32_u24 v5, 320, v5
    v_add_u32 v4, v4, v5
    v_bfe_u32 v5, v3, 3, 1
    v_lshl_add_u32 v4, v5, 3, v4
    v_and_b32 v5, 3, v3
    v_lshl_add_u32 v4, v5, 1, v4
    v_add_u32 v4, s{sT2}, v4
    v_add_u32 v5, s{sT2}, v1
    """)
    for j in range(3):
        if j == 2: a("s_mov_b32 exec_lo, 0")
        o = 128 * j - (64 if j == 2 else 0)
        a(f"""
        ds_write_b16 v4, v{PK+2*j} offset:{o}
        ds_write_b16_d16_hi v4, v{PK+2*j} offset:{o+16}
        ds_write_b16 v4, v{PK+2*j+1} offset:{o+32}
        ds_write_b16_d16_hi v4, v{PK+2*j+1} offset:{o+48}
        """)
    a(f"""
    s_mov_b32 exec_lo, -1
    s_mov_b32 exec_hi, 0xff
    s_waitcnt lgkmcnt(0)
    ds_read_b128 {vr(E,4)}, v5
    ds_read_b128 {vr(E+4,4)}, v5 offset:640
    s_waitcnt lgkmcnt(0)
    buffer_store_dwordx4 {vr(E,4)}, v1, {sr(WS,4)}, s{sT0} offen offset:2560 sc1
    buffer_store_dwordx4 {vr(E+4,4)}, v1, {sr(WS,4)}, s{sT1} offen offset:2560 sc1
    s_mov_b32 exec_hi, -1
    s_branch K1_enext
    """)
    cloop(2)
    a("s_branch K1_cdone")
    a(f"""
    K1_idle:
    s_barrier
    s_sub_u32 s{sI}, s{sI}, 1
    s_cmp_lg_u32 s{sI}, 1
    s_cbranch_scc1 K1_idle
    s_branch K1_cdone
    """)
    P0 = 144
    a(f"""
    K1_pub:
    v_lshlrev_b32 v4, 3, v{vL}
    v_add_u32 v4, {XQ}, v4
    ds_read_b64 {vr(P0,2)}, v4
    ds_read_b64 {vr(P0+2,2)}, v4 offset:512
    ds_read_b64 {vr(P0+4,2)}, v4 offset:1024
    ds_read_b64 {vr(P0+6,2)}, v4 offset:1280
    s_mul_i32 s{sT0}, s{sRB}, 10
    s_add_u32 s{sT0}, s{sT0}, s{sK0}
    s_mul_i32 s{sT0}, s{sT0}, 2560
    s_add_u32 s{sT0}, s{sT0}, {WS_SR}
    s_cmp_lt_u32 s{sCB}, 10
    s_cselect_b32 s{sT0}, s{sT0}, {WS_END}
    s_mul_i32 s{sT1}, s{sCB}, 10
    s_add_u32 s{sT1}, s{sT1}, s{sK0}
    s_lshl_b32 s{sT1}, s{sT1}, 10
    s_add_u32 s{sT1}, s{sT1}, {WS_SC}
    s_cmp_lt_u32 s{sRB}, 10
    s_cselect_b32 s{sT1}, s{sT1}, {WS_END}
    v_lshlrev_b32 v5, 4, v{vL}
    s_mov_b32 s{sT3}, 0
    K1_pub3:
    s_waitcnt vmcnt(0)
    v_readfirstlane_b32 s{sT2}, v{vN}
    v_mov_b32 v4, {XN}
    s_cmp_lg_u32 s{sT2}, 0
    s_cbranch_scc1 K1_pub4
    buffer_load_dword v{vN}, v{vN+1}, {sr(DBG,4)}, 0 offen sc1
    s_add_u32 s{sT3}, s{sT3}, 1
    s_cmp_lt_u32 s{sT3}, {SPINMAX}
    s_cbranch_scc1 K1_pub3
    K1_pub4:
    v_mov_b32 v7, s{sT2}
    v_mov_b32 v9, s{sT2}
    v_mov_b32 v{P0+9}, s{sT2}
    v_mov_b32 v{P0+11}, s{sT2}
    v_mov_b32 v{P0+13}, s{sT2}
    v_mov_b32 v{P0+15}, s{sT2}
    v_mov_b32 v{P0+17}, s{sT2}
    v_mov_b32 v{P0+19}, s{sT2}
    ds_write_b32 v4, v7
    s_waitcnt lgkmcnt(1)
    v_mov_b32 v6, v{P0}
    v_mov_b32 v8, v{P0+1}
    v_mov_b32 v{P0+8}, v{P0+2}
    v_mov_b32 v{P0+10}, v{P0+3}
    v_mov_b32 v{P0+12}, v{P0+4}
    v_mov_b32 v{P0+14}, v{P0+5}
    v_mov_b32 v{P0+16}, v{P0+6}
    v_mov_b32 v{P0+18}, v{P0+7}
    buffer_store_dwordx4 {vr(6,4)}, v5, {sr(WS,4)}, s{sT0} offen sc1
    buffer_store_dwordx4 {vr(P0+8,4)}, v5, {sr(WS,4)}, s{sT0} offen offset:1024 sc1
    buffer_store_dwordx4 {vr(P0+16,4)}, v5, {sr(WS,4)}, s{sT1} offen sc1
    s_mov_b32 exec_hi, 0
    buffer_store_dwordx4 {vr(P0+12,4)}, v5, {sr(WS,4)}, s{sT0} offen offset:2048 sc1
    s_mov_b32 exec_hi, -1
    s_branch K1_pubr
    """)
    sJ, sL, sPst = 34, 35, 36
    WP = 24; vPs = 2
    a(f"""
    K1_aux:
    s_memrealtime s[66:67]
    s_lshl_b32 s{sT0}, s{sT0}, 1
    s_add_u32 s{sT0}, s{sT0}, s{sT1}
    s_sub_u32 s{sT0}, s{sT0}, 30
    s_sub_u32 s{sT2}, s{sT2}, {234-16}
    s_cmp_ge_u32 s{sT1}, 30
    s_cselect_b32 s{sT0}, s{sT0}, s{sT2}
    s_mul_i32 s{sJ}, s{sT0}, 12
    s_add_u32 s{sJ}, s{sJ}, s{sW}
    s_mul_i32 s{sL}, s{sW}, 12288
    v_lshl_add_u32 v{vT+3}, v{vT}, 6, v{vT+3}
    v_lshrrev_b32 v{vT+6}, 2, v{vT+2}
    v_and_b32 v{vT+7}, 3, v{vT+2}
    s_mov_b32 m0, s{sL}
    s_mov_b32 s{WP+3}, 0x00020000
    s_mov_b32 s{sI}, s{sJ}
    s_waitcnt lgkmcnt(0)
    s_mov_b32 s{WS}, s6
    s_mov_b32 s{WS+1}, s7
    s_mov_b32 s{DBG}, s4
    s_mov_b32 s{DBG+1}, s5
    s_mov_b32 s{DBG+2}, 256
    s_mov_b32 s{DBG+3}, 0x00020000
    s_lshl_b32 s{sU}, s{sT0}, 7
    s_add_u32 s{sU}, s{sU}, {WS_F1 + 72*4096}
    s_mov_b64 s[58:59], 1
    s_cmp_lg_u32 s{sJ}, 0
    s_cbranch_scc1 K1_a1
    s_or_b32 s66, s66, 1
    v_mov_b32 v4, s66
    v_mov_b32 v5, 0
    s_mov_b64 exec, 1
    buffer_store_dword v4, v5, {sr(DBG,4)}, 0 offen sc1
    s_mov_b64 exec, -1
    K1_a1:
    s_mul_i32 s{sT0}, s{sI}, 6554
    s_lshr_b32 s{sT0}, s{sT0}, 16
    s_mul_i32 s{sT1}, s{sT0}, 10
    s_sub_u32 s{sT1}, s{sI}, s{sT1}
    s_lshl_b32 s{sT1}, s{sT1}, 7
    s_sub_u32 s{sT2}, s{sT0}, 96
    s_mul_i32 s{sT3}, s{sT2}, 205
    s_lshr_b32 s{sT3}, s{sT3}, 10
    s_mul_i32 s55, s{sT3}, 5
    s_sub_u32 s55, s{sT2}, s55
    s_mul_i32 s{sT3}, s{sT3}, 80
    s_mul_i32 s56, s55, 20
    s_cmp_eq_u32 s55, 4
    s_cselect_b32 s56, 16, s56
    s_cselect_b32 s55, 1, 0
    s_add_u32 s{sT3}, s{sT3}, s56
    s_lshl_b32 s{sT2}, s{sT0}, 4
    s_cmp_lt_u32 s{sT0}, 96
    s_cselect_b32 s{sT3}, s{sT2}, s{sT3}
    s_cselect_b32 s55, 0, s55
    s_cselect_b32 s{WP}, s62, s16
    s_cselect_b32 s{WP+1}, s63, s17
    s_mov_b32 s{WP+2}, {640*1280}
    s_cselect_b32 s{WP+2}, {1536*1280}, s{WP+2}
    s_mul_i32 s{sT3}, s{sT3}, 1280
    s_add_u32 s56, s{sT3}, s{sT1}
    s_cmp_eq_u32 s55, 0
    s_cselect_b32 s{sT2}, 4, 40
    s_movk_i32 s57, {20*1280}
    s_cselect_b32 s57, {8*1280}, s57
    s_add_u32 s57, s57, s56
    v_mad_u32_u24 v{vPs}, v{vT+6}, s{sT2}, v{vT+7}
    v_mul_u32_u24 v{vPs}, 1280, v{vPs}
    v_add_u32 v{vPs}, v{vPs}, v{vT+3}
    buffer_load_dwordx4 v{vPs}, {sr(WP,4)}, s56 offen lds
    s_add_u32 m0, m0, 1024
    s_add_u32 s{sI}, s{sI}, 264
    buffer_load_dwordx4 v{vPs}, {sr(WP,4)}, s57 offen lds
    s_add_u32 m0, m0, 1024
    s_cmp_lt_u32 s{sI}, 1360
    s_cbranch_scc1 K1_a1
    v_lshl_add_u32 v4, v{vT}, 8, v{vCom}
    v_add_u32 v4, s{sL}, v4
    v_and_b32 v5, 15, v{vL}
    v_lshlrev_b32 v5, 4, v5
    v_lshl_add_u32 v5, v{vT}, 8, v5
    v_lshl_add_u32 v5, v{vT+5}, 9, v5
    s_lshl_b32 s{sPst}, s{sJ}, 11
    s_add_u32 s{sPst}, s{sPst}, {WS_WP}
    s_waitcnt vmcnt(0)
    K1_a2:
    ds_read_b64_tr_b16 {vr(32,2)}, v4
    ds_read_b64_tr_b16 {vr(34,2)}, v4 offset:1024
    ds_read_b64_tr_b16 {vr(36,2)}, v4 offset:512
    ds_read_b64_tr_b16 {vr(38,2)}, v4 offset:1536
    v_add_u32 v4, 2048, v4
    s_add_u32 s{sJ}, s{sJ}, 264
    s_waitcnt lgkmcnt(0)
    buffer_store_dwordx4 {vr(32,4)}, v5, {sr(WS,4)}, s{sPst} offen sc1
    buffer_store_dwordx4 {vr(36,4)}, v5, {sr(WS,4)}, s{sPst} offen offset:1024 sc1
    s_add_u32 s{sPst}, s{sPst}, {264*2048}
    s_cmp_lt_u32 s{sJ}, 1360
    s_cbranch_scc1 K1_a2
    v_mov_b32 v5, 0
    s_mov_b32 s{sT3}, 0
    K1_a3:
    buffer_load_dword v4, v5, {sr(DBG,4)}, 0 offen sc1
    s_add_u32 s{sT3}, s{sT3}, 1
    s_waitcnt vmcnt(0)
    v_readfirstlane_b32 s{sN}, v4
    s_cmp_gt_u32 s{sT3}, {SPINMAX}
    s_cbranch_scc1 K1_a4
    s_cmp_eq_u32 s{sN}, 0
    s_cbranch_scc1 K1_a3
    K1_a4:
    s_barrier
    s_cmp_ge_u32 s{sW}, 8
    s_cbranch_scc1 K2_G
    s_cmp_lg_u32 s{sW}, 0
    s_cbranch_scc1 K2_A
    s_branch K1_flag
    K1_done:
    s_lshl_b32 s{sU}, s{sCB}, 2
    s_add_u32 s{sU}, s{sU}, s{sR}
    s_lshl_b32 s{sU}, s{sU}, 5
    s_lshl_b32 s{sT0}, s{sRB}, 1
    s_add_u32 s{sU}, s{sU}, s{sT0}
    s_add_u32 s{sU}, s{sU}, s{sG}
    s_lshl_b32 s{sU}, s{sU}, 7
    s_add_u32 s{sU}, s{sU}, {WS_F1}
    s_mov_b64 s[58:59], 1
    s_cmp_lg_u32 s{sCB}, 17
    s_cbranch_scc1 K1_flag
    s_cmp_lg_u32 s{sIdle}, 0
    s_cbranch_scc1 K2_A
    v_mov_b32 v4, 1
    v_mov_b32 v5, 0
    s_mov_b64 exec, 1
    s_waitcnt vmcnt(0)
    buffer_atomic_add v4, v5, {sr(DBG,4)}, 0 offen offset:128 sc0
    s_mov_b32 s{sU}, {WS_FK}
    s_mov_b64 s[58:59], -1
    s_waitcnt vmcnt(0)
    v_readfirstlane_b32 s{sT0}, v4
    s_mov_b64 exec, -1
    s_cmp_lg_u32 s{sT0}, 51
    s_cbranch_scc1 K2_A
    K1_flag:
    """)
    stamp(a, 3)
    setflag(a, sU, WS, 4, 5, 's[58:59]')
    if 'st1' in OPT: stamp(a, 1)

def tile_ids(a, sRB, sNB, sT0):
    a(f"""
    s_and_b32 s{sT0}, s2, 3
    s_lshl_b32 s{sRB}, s{sT0}, 3
    s_bfe_u32 s{sT0}, s2, 0x30003
    s_add_u32 s{sRB}, s{sRB}, s{sT0}
    s_bfe_u32 s{sT0}, s2, 0x10002
    s_lshl_b32 s{sNB}, s{sT0}, 2
    s_lshr_b32 s{sT0}, s2, 6
    s_add_u32 s{sNB}, s{sNB}, s{sT0}
    """)
def wlane(a, vL, vW, vW2, t):
    a(f"""
    v_and_b32 v{vW2}, 15, v{vL}
    v_lshlrev_b32 v{vW2}, 4, v{vW2}
    v_lshrrev_b32 v{t}, 5, v{vL}
    v_lshl_add_u32 v{vW2}, v{t}, 8, v{vW2}
    v_bfe_u32 v{t}, v{vL}, 4, 1
    v_lshl_add_u32 v{vW}, v{t}, 9, v{vW2}
    """)

def gen_k2(a):
    sW, sR, sG, sRB, sCB, sHD, sRT = 32, 33, 34, 35, 36, 37, 38
    sI, sT0, sT1, sT2, sSrc, sVm, sSeg, sT3 = 39, 40, 41, 42, 43, 44, 52, 53
    WS, X, OUT = 28, 20, 24
    vL, vA, vD = 0, 1, 2
    QM, QT, KM, KT, V, P, O, S = 4, 8, 12, 20, 24, 40, 56, 72
    R = dict(vA=vA, QM=QM, QT=QT, KM=KM, KT=KT, V=V, P=P, O=O, S=S)
    def aids():
        a(f"""
        s_and_b32 s{sT0}, s2, 3
        s_lshl_b32 s{sRB}, s{sT0}, 2
        s_bfe_u32 s{sT0}, s2, 0x20003
        s_add_u32 s{sRB}, s{sRB}, s{sT0}
        s_bfe_u32 s{sT0}, s2, 0x10002
        s_lshl_b32 s{sCB}, s{sT0}, 3
        s_lshr_b32 s{sT0}, s2, 5
        s_add_u32 s{sCB}, s{sCB}, s{sT0}
        s_and_b32 s{sR}, s{sW}, 3
        s_lshl_b32 s{sRT}, s{sRB}, 2
        s_add_u32 s{sRT}, s{sRT}, s{sR}
        v_lshlrev_b32 v{vD}, 4, v{vL}
        """)
    a("K2_A:"); aids()
    a(f"""
    s_lshr_b32 s{sG}, s{sW}, 2
    s_lshl_b32 s{sHD}, s{sCB}, 1
    s_and_b32 s{sT1}, s{sHD}, 2
    s_add_u32 s{sHD}, s{sHD}, s{sG}
    s_mul_i32 s{sT2}, s{sG}, 5
    s_add_u32 s{sT1}, s{sT1}, s{sT2}
    s_mul_i32 s{sT2}, s{sR}, 3072
    s_add_u32 s{sT2}, s{sT2}, {XQ}
    v_and_b32 v{vA}, 31, v{vL}
    v_lshlrev_b32 v{vA}, 4, v{vA}
    v_lshrrev_b32 v3, 5, v{vL}
    v_add_u32 v{P}, s{sT1}, v3
    v_add_u32 v{P+1}, 2, v{P}
    s_add_u32 s{sT1}, s{sT1}, 4
    v_mov_b32 v{P+2}, s{sT1}
    v_add_u32 v{P+3}, s{sT2}, v{vA}
    """)
    for i in range(3):
        a(f"""
        v_lshrrev_b32 v{P+4}, 2, v{P+i}
        v_lshl_add_u32 v{P+5}, v{P+4}, 10, v{P+3}
        v_and_b32 v{P+4}, 1, v{P+i}
        v_lshl_add_u32 v{P+5}, v{P+4}, 9, v{P+5}
        v_and_b32 v{P+4}, 2, v{P+i}
        v_lshl_add_u32 v{P+i}, v{P+4}, 2, v{P+5}
        """)
    a(f"""
    s_mov_b32 s{sVm}, 0x000fffff
    s_mov_b32 s{sVm+1}, 0x000fffff
    v_mul_u32_u24 v3, 5120, v3
    v_add_u32 v{vA}, v{vA}, v3
    v_and_b32 v3, 27, v{vL}
    v_cmp_eq_u32 vcc, 24, v3
    v_mov_b32 v3, 0x3f803f80
    """)
    for i in range(16): a(f"v_mov_b32 v{O+i}, 0")
    for i in range(16): a(f"v_cndmask_b32 v{V+i}, 0, v3, vcc")
    for i in range(4): a(f"v_mov_b32 v{P+12+i}, 0")
    SEGS = [3, 10, 3]
    segw = sum(n << (4 * i) for i, n in enumerate(SEGS))
    a(f"""
    s_mov_b32 s{sSeg}, {segw >> 4}
    s_mov_b32 s{sI}, {SEGS[0]}
    s_barrier
    """); stamp(a, 4); a(f"""
    ds_read_b64 {vr(QT,2)}, v{P+2}
    ds_read_b128 {vr(KT,4)}, v{vA} offset:2048
    ds_read_b64 {vr(QM,2)}, v{P}
    ds_read_b64 {vr(QM+2,2)}, v{P+1}
    ds_read_b128 {vr(KM,4)}, v{vA} offset:0
    ds_read_b128 {vr(KM+4,4)}, v{vA} offset:512
    s_waitcnt lgkmcnt({0 if PROF else 4})
    v_mfma_f32_32x32x4_2b_bf16 {vr(S,32)}, {vr(KT,2)}, {vr(QT,2)}, 0
    s_waitcnt lgkmcnt(0)
    s_nop 15
    s_nop 2
    {MF(vr(S,16), vr(KM,4), vr(QM,4), vr(S,16))}
    {MF(vr(S+16,16), vr(KM+4,4), vr(QM,4), vr(S+16,16))}
    ds_read_b128 {vr(KM,4)}, v{vA} offset:1024
    ds_read_b128 {vr(KM+4,4)}, v{vA} offset:1536
    s_mov_b64 exec, {sr(sVm,2)}
    ds_read_b128 {vr(V,4)}, v{vA} offset:2560
    ds_read_b128 {vr(V+4,4)}, v{vA} offset:2880
    s_mov_b64 exec, -1
    s_nop 7
    .p2align 6
    K2_loop:
    """)
    for l in abody.body(R, 0, (3, 2, 1), sVm): a(l)
    a(f"""
    v_add_u32 v{vA}, 10240, v{vA}
    s_sub_u32 s{sI}, s{sI}, 1
    s_cmp_lg_u32 s{sI}, 0
    s_cbranch_scc1 K2_loop
    s_and_b32 s{sI}, s{sSeg}, 15
    s_cbranch_scc0 K2_exit
    s_lshr_b32 s{sSeg}, s{sSeg}, 4
    s_barrier
    s_branch K2_loop
    K2_exit:
    """); stamp(a, 5); a(f"""
    {MF(vr(O,16), vr(V+12,4), vr(P+12,4), vr(O,16))}
    s_mov_b32 s46, {f32(2.0**-64)}
    s_mov_b32 s47, {f32(2.0**64)}
    s_lshr_b32 s54, s{sHD}, 2
    s_mul_i32 s54, s54, 5
    s_mul_i32 s55, s{sRT}, 40
    s_add_u32 s54, s54, s55
    s_lshl_b32 s54, s54, 10
    s_add_u32 s54, s54, {WS_O}
    s_and_b32 s55, s{sHD}, 3
    s_lshl_b32 s55, s55, 10
    s_add_u32 s55, s55, s54
    s_bfe_u32 s{sT2}, s{sHD}, 0x10001
    s_lshl_b32 s{sT2}, s{sT2}, 9
    s_add_u32 s54, s54, s{sT2}
    s_and_b32 s{sT2}, s{sHD}, 1
    s_lshl_b32 s{sT2}, s{sT2}, 3
    s_add_u32 s54, s54, s{sT2}
    s_add_u32 s54, s54, 4096
    v_cmp_nle_f32 vcc, s46, v{O+12}
    v_cmp_nge_f32 s[46:47], s47, v{O+12}
    s_waitcnt lgkmcnt(0)
    s_or_b64 vcc, vcc, s[46:47]
    s_cbranch_scc1 K2_slow
    K2_fin:
    v_rcp_f32 v{P}, v{O+12}
    s_lshl_b32 s{sT3}, s{sRT}, 5
    s_add_u32 s{sT3}, s{sT3}, s{sHD}
    s_lshl_b32 s{sT3}, s{sT3}, 7
    s_add_u32 s{sT3}, s{sT3}, {WS_F3}
    """)
    for i in range(12): a(f"v_mul_f32 v{O+i}, v{O+i}, v{P}")
    for i in range(6): a(f"v_cvt_pk_bf16_f32 v{S+i}, v{O+2*i}, v{O+2*i+1}")
    a(f"""
    buffer_store_dwordx4 {vr(S,4)}, v{vD}, {sr(WS,4)}, s55 offen sc1
    s_mov_b32 exec_hi, 0
    buffer_store_dwordx2 {vr(S+4,2)}, v{vD}, {sr(WS,4)}, s54 offen sc1
    s_mov_b32 exec_hi, -1
    """)
    setflag(a, sT3, WS, 4, 5)
    a("s_barrier")
    sKQ, sRB2, sNB, sH0, sH1, sWp = 33, 35, 36, 46, 47, 48
    XR = 104; RR = 108
    def fin_prep():
        tile_ids(a, sRB2, sNB, sT0)
        srd(a, X, 8, 2048*1280); srd(a, OUT, 18, 2048*1280)
        a(f"""
        s_lshl_b32 s{sT0}, s{sW}, 6
        v_add_u32 v4, s{sT0}, v{vL}
        v_mul_u32_u24 v5, 6554, v4
        v_lshrrev_b32 v5, 16, v5
        v_mul_u32_u24 v5, {1280-160}, v5
        v_lshlrev_b32 v4, 4, v4
        v_add_u32 v5, v5, v4
        s_mul_i32 s{sT3}, s{sRB2}, {64*1280}
        s_mul_i32 s{sT1}, s{sNB}, 160
        s_add_u32 s{sT3}, s{sT3}, s{sT1}
        v_add_u32 v6, 51200, v4
        buffer_load_dwordx4 {vr(XR,4)}, v5, {sr(X,4)}, s{sT3} offen
        """)
    fin_prep()
    a("K3_bar:\ns_barrier")
    for p in range(4):
        for h in range(2): a(f"ds_read_b128 {vr(RR+8*p+4*h,4)}, v{4 if p < 2 else 6} offset:{(p%2)*25600 + h*10240}")
    a("s_waitcnt vmcnt(0)")
    for i in range(4): a(f"v_lshlrev_b32 v{8+2*i}, 16, v{XR+i}\nv_and_b32 v{9+2*i}, 0xffff0000, v{XR+i}")
    for p in range(4):
        a(f"s_waitcnt lgkmcnt({6-2*p})")
        for i in range(4): a(f"v_pk_add_f32 {vr(8+2*i,2)}, {vr(8+2*i,2)}, {vr(RR+8*p+2*i,2)}")
    for i in range(4): a(f"v_cvt_pk_bf16_f32 v{XR+i}, v{8+2*i}, v{9+2*i}")
    a(f"buffer_store_dwordx4 {vr(XR,4)}, v5, {sr(OUT,4)}, s{sT3} offen\nK_pe:")
    prof_end(a, 0, WS, sW)
    a("K_end:\ns_endpgm")
    vW, vW2 = 1, 3
    ACC, FR = 8, 104
    a("K2_G:"); aids()
    a(f"""
    s_lshl_b32 s{sT0}, s{sR}, 10
    s_add_u32 s{sSrc}, s{sT0}, {WS_KV}
    s_mov_b32 m0, s{sT0}
    s_and_b32 s{sT0}, s2, 63
    s_lshl_b32 s{sT0}, s{sT0}, 8
    s_add_u32 s{sT0}, s{sT0}, {WS_FK}
    v_mov_b32 v4, s{sT0}
    """)
    poll(a, "K2_p1", 4, 5, WS, sT3)
    stamp(a, 2)
    def fill(n, lab):
        a(f"""
        s_mov_b32 s{sI}, {n}
        {lab}:
        buffer_load_dwordx4 v{vD}, {sr(WS,4)}, s{sSrc} offen sc1 lds
        s_add_u32 s{sSrc}, s{sSrc}, 4096
        s_add_u32 m0, m0, 4096
        s_sub_u32 s{sI}, s{sI}, 1
        s_cmp_lg_u32 s{sI}, 0
        s_cbranch_scc1 {lab}
        """)
    fill(10, "K2_f1")
    rowidx(a, sT1, sRT, sT0)
    a(f"""
    s_mul_i32 s{sT2}, s{sCB}, 10
    s_lshr_b32 s{sT2}, s{sT2}, 2
    v_and_b32 v4, 2, v{vL}
    v_add_u32 v4, s{sT2}, v4
    v_lshrrev_b32 v4, 1, v4
    v_lshl_add_u32 v4, v4, 5, s{sT1}
    v_lshlrev_b32 v4, 7, v4
    v_add_u32 v4, {WS_F1}, v4
    s_mul_i32 s{sT0}, s{sRT}, 40
    s_add_u32 s{sT0}, s{sT0}, s{sT2}
    s_lshl_b32 s{sT0}, s{sT0}, 10
    s_mov_b32 s{sSeg}, m0
    s_mul_i32 s{sT1}, s{sR}, 3072
    s_add_u32 m0, s{sT1}, {XQ}
    """)
    for i in range(96): a(f"v_mov_b32 v{ACC+i}, 0")
    poll(a, "K2_p2", 4, 5, WS, sT3)
    for i in range(3): a(f"buffer_load_dwordx4 v{vD}, {sr(WS,4)}, s{sT0} offen offset:{1024*i} sc1 lds")
    tile_ids(a, sRB2, sNB, sT0)
    wlane(a, vL, vW, vW2, 5)
    a(f"""
    s_mov_b32 m0, s{sSeg}
    s_waitcnt vmcnt(0)
    s_barrier
    """); stamp(a, 3)
    fill(26, "K2_f2")
    a(f"s_lshl_b32 s{sT2}, s{sRB2}, 1")
    rowidx(a, sH0, sT2, sT0)
    a(f"s_add_u32 s{sT2}, s{sT2}, 1")
    rowidx(a, sH1, sT2, sT0)
    a(f"""
    v_and_b32 v4, 1, v{vL}
    v_cmp_eq_u32 vcc, 0, v4
    v_mov_b32 v4, s{sH0}
    v_mov_b32 v5, s{sH1}
    v_cndmask_b32 v4, v5, v4, vcc
    v_lshrrev_b32 v5, 1, v{vL}
    v_min_u32 v5, 11, v5
    s_mul_i32 s{sT0}, s{sKQ}, 12
    s_add_u32 s{sT0}, s{sT0}, 20
    v_add_u32 v5, s{sT0}, v5
    v_lshl_add_u32 v4, v5, 5, v4
    v_cmp_gt_u32 vcc, 32, v{vL}
    v_min_u32 v5, 53, v{vL}
    v_add_u32 v5, {72*32 - 32}, v5
    v_cndmask_b32 v4, v5, v4, vcc
    v_lshlrev_b32 v4, 7, v4
    v_add_u32 v4, {WS_F1}, v4
    s_mul_i32 s{sH0}, s{sRB2}, 192
    s_mul_i32 s{sT0}, s{sKQ}, 24
    s_add_u32 s{sH0}, s{sH0}, s{sT0}
    s_lshl_b32 s{sH0}, s{sH0}, 10
    s_add_u32 s{sH0}, s{sH0}, {WS_H}
    s_add_u32 s{sH1}, s{sH0}, {96*1024}
    s_mul_i32 s{sWp}, s{sT0}, 20480
    s_mul_i32 s{sT0}, s{sNB}, 2560
    s_add_u32 s{sWp}, s{sWp}, s{sT0}
    s_add_u32 s{sWp}, s{sWp}, {WS_WP}
    """)
    poll(a, "K2_p3", 4, 5, WS, sT3)
    def gload(j):
        b = FR + 20 * j
        a(f"""
        buffer_load_dwordx4 {vr(b,4)}, v{vD}, {sr(WS,4)}, s{sH0} offen offset:{1024*j} sc1
        buffer_load_dwordx4 {vr(b+4,4)}, v{vD}, {sr(WS,4)}, s{sH1} offen offset:{1024*j} sc1
        buffer_load_dwordx4 {vr(b+8,4)}, v{vW}, {sr(WS,4)}, s{sWp} offen sc1
        buffer_load_dwordx4 {vr(b+12,4)}, v{vW}, {sr(WS,4)}, s{sWp} offen offset:1024 sc1
        buffer_load_dwordx4 {vr(b+16,4)}, v{vW2}, {sr(WS,4)}, s{sWp} offen offset:2048 sc1
        s_add_u32 s{sWp}, s{sWp}, 20480
        """)
    for j in range(3): gload(j)
    a("s_barrier")
    fill(4, "K2_f3")
    a(f"""
    s_mov_b32 s{sI}, 8
    K2_Gl:
    s_add_u32 s{sH0}, s{sH0}, 3072
    s_add_u32 s{sH1}, s{sH1}, 3072
    s_cmp_eq_u32 s{sI}, 1
    s_cselect_b32 s{sH0}, {WS_END}, s{sH0}
    s_cselect_b32 s{sH1}, {WS_END}, s{sH1}
    s_cselect_b32 s{sWp}, {WS_END}, s{sWp}
    """)
    def mm6(aw, bo):
        for t in range(3):
            for r in range(2):
                a(MF(vr(ACC+48*r+16*t,16), vr(aw+4*t,4), vr(bo+4*r,4), vr(ACC+48*r+16*t,16)))
    for j in range(3):
        b = FR + 20 * j
        a("s_waitcnt vmcnt(10)")
        mm6(b + 8, b)
        gload(j)
    a(f"""
    s_sub_u32 s{sI}, s{sI}, 1
    s_cmp_lg_u32 s{sI}, 0
    s_cbranch_scc1 K2_Gl
    """); 'st2' in OPT or stamp(a, 4)
    a(f"""
    s_mul_i32 s{sT2}, s{sKQ}, 25600
    s_mul_i32 s{sWp}, s{sKQ}, {10*20480}
    s_mul_i32 s{sT0}, s{sNB}, 2560
    s_add_u32 s{sWp}, s{sWp}, s{sT0}
    s_add_u32 s{sWp}, s{sWp}, {WS_WP + 96*20480}
    s_mov_b32 m0, s{sT2}
    v_add_u32 v{vW}, s{sT2}, v{vW}
    v_add_u32 v{vW2}, s{sT2}, v{vW2}
    s_lshl_b32 s{sT0}, s{sRB2}, 3
    s_add_u32 s{sT0}, s{sT0}, s{sKQ}
    s_lshl_b32 s{sT0}, s{sT0}, 10
    s_add_u32 s{sT0}, s{sT0}, {WS_F3}
    v_and_b32 v7, 39, v{vL}
    v_lshl_add_u32 v7, v7, 7, s{sT0}
    s_mul_i32 s{sH0}, s{sRB2}, 80
    s_mul_i32 s{sT0}, s{sKQ}, 10
    s_add_u32 s{sH0}, s{sH0}, s{sT0}
    s_lshl_b32 s{sH0}, s{sH0}, 10
    s_add_u32 s{sH0}, s{sH0}, {WS_O}
    s_add_u32 s{sH1}, s{sH0}, 40960
    s_mov_b32 s{sI}, 10
    s_waitcnt vmcnt(0)
    s_barrier
    K2_f4:
    buffer_load_dwordx4 v{vD}, {sr(WS,4)}, s{sWp} offen sc1 lds
    buffer_load_dwordx4 v{vD}, {sr(WS,4)}, s{sWp} offen offset:1024 sc1 lds
    s_mov_b32 exec_hi, 0
    buffer_load_dwordx4 v{vD}, {sr(WS,4)}, s{sWp} offen offset:2048 sc1 lds
    s_mov_b32 exec_hi, -1
    s_add_u32 s{sWp}, s{sWp}, 20480
    s_add_u32 m0, m0, 2560
    s_sub_u32 s{sI}, s{sI}, 1
    s_cmp_lg_u32 s{sI}, 0
    s_cbranch_scc1 K2_f4
    """)
    FO, FW = 104, 140
    def wread(j):
        b = FW + 12 * (j % 2)
        a(f"""
        ds_read_b128 {vr(b,4)}, v{vW} offset:{2560*j}
        ds_read_b128 {vr(b+4,4)}, v{vW} offset:{2560*j+1024}
        ds_read_b128 {vr(b+8,4)}, v{vW2} offset:{2560*j+2048}
        """)
    def oload(j):
        b = FO + 8 * (j % 4)
        a(f"""
        buffer_load_dwordx4 {vr(b,4)}, v{vD}, {sr(WS,4)}, s{sH0} offen offset:{1024*(j%4)} sc1
        buffer_load_dwordx4 {vr(b+4,4)}, v{vD}, {sr(WS,4)}, s{sH1} offen offset:{1024*(j%4)} sc1
        """)
        if j % 4 == 3: a(f"s_add_u32 s{sH0}, s{sH0}, 4096\ns_add_u32 s{sH1}, s{sH1}, 4096")
    a("s_waitcnt vmcnt(0)")
    wread(0); wread(1)
    a("s_setprio 3\ns_barrier")
    poll(a, "K2_p4", 7, 5, WS, sT3)
    'st2' in OPT or stamp(a, 5)
    for j in range(4): oload(j)
    for j in range(10):
        later = min(j + 3, 9) - j
        a(f"s_waitcnt vmcnt({2*later}) lgkmcnt({0 if (j == 9 or PROF) else 3})")
        mm6(FW + 12 * (j % 2), FO + 8 * (j % 4))
        if j + 4 < 10: oload(j + 4)
        if j + 2 < 10: wread(j + 2)
    fin_prep()
    a(f"""
    v_and_b32 v7, 31, v{vL}
    v_mul_u32_u24 v7, 160, v7
    v_lshrrev_b32 v{RR}, 5, v{vL}
    v_mul_u32_u24 v{RR}, 10240, v{RR}
    v_add3_u32 v7, v7, v{RR}, s{sT2}
    """)
    for r in range(2):
        for o in range(10): a(f"ds_write_b128 v7, {vr(ACC+48*r+4*o,4)} offset:{5120*r+16*o}")
    a(f"""
    s_waitcnt lgkmcnt(0)
    s_cmp_lt_u32 s{sW}, 10
    s_cbranch_scc1 K3_bar
    s_barrier
    {"s_branch K_pe" if PROF else "s_endpgm"}
    """)
    vMx = 3
    sP, sO1, sO2, sO3 = 48, 49, 50, 51
    a(f"""
    K2_slow:
    v_subrev_u32 v{vA}, {16*10240}, v{vA}
    v_mov_b32 v{vMx}, 0xff800000
    s_mov_b32 s{sP}, 0
    """)
    for i in range(16): a(f"v_mov_b32 v{O+i}, 0")
    a(f"""
    K2_sp:
    s_mov_b32 s{sI}, 0
    K2_sl:
    s_lshr_b32 s{sT0}, s{sI}, 1
    s_mul_i32 s{sT0}, s{sT0}, 10240
    s_add_u32 s{sT0}, s{sT0}, {WS_KV}
    s_and_b32 s{sT1}, s{sI}, 1
    s_lshl_b32 s{sO1}, s{sT1}, 10
    s_add_u32 s{sO1}, s{sO1}, s{sT0}
    s_lshl_b32 s{sO2}, s{sT1}, 3
    s_add_u32 s{sO2}, s{sO2}, s{sT0}
    s_mul_i32 s{sO3}, s{sT1}, 1280
    s_add_u32 s{sO3}, s{sO3}, s{sT0}
    buffer_load_dwordx4 {vr(KM,4)}, v{vA}, {sr(WS,4)}, s{sO1} offen sc1
    buffer_load_dwordx4 {vr(KM+4,4)}, v{vA}, {sr(WS,4)}, s{sO1} offen offset:512 sc1
    buffer_load_dwordx2 {vr(KT,2)}, v{vA}, {sr(WS,4)}, s{sO2} offen offset:2048 sc1
    s_mov_b64 exec, {sr(sVm,2)}
    """)
    for f in range(4): a(f"buffer_load_dwordx4 {vr(V+4*f,4)}, v{vA}, {sr(WS,4)}, s{sO3} offen offset:{2560+320*f} sc1")
    a(f"""
    s_mov_b64 exec, -1
    s_waitcnt vmcnt(0)
    v_mfma_f32_32x32x4_2b_bf16 {vr(S,32)}, {vr(KT,2)}, {vr(QT,2)}, 0
    s_nop 15
    s_nop 3
    {MF(vr(S,16), vr(KM,4), vr(QM,4), vr(S,16))}
    {MF(vr(S+16,16), vr(KM+4,4), vr(QM,4), vr(S+16,16))}
    s_cmp_lg_u32 s{sP}, 0
    s_nop 12
    s_cbranch_scc1 K2_sp2
    """)
    for i in range(16): a(f"v_max3_f32 v{vMx}, v{S+2*i}, v{S+2*i+1}, v{vMx}")
    a("s_branch K2_snext\nK2_sp2:")
    for i in range(32): a(f"v_sub_f32 v{S+i}, v{S+i}, v{vMx}")
    for i in range(32): a(f"v_exp_f32 v{S+i}, v{S+i}")
    a("s_nop 0")
    for i in range(16): a(f"v_cvt_pk_bf16_f32 v{P+i}, v{S+2*i}, v{S+2*i+1}")
    a("s_nop 1")
    for f in range(4): a(MF(vr(O,16), vr(V+4*f,4), vr(P+4*f,4), vr(O,16)))
    a(f"""
    s_nop 15
    K2_snext:
    s_add_u32 s{sI}, s{sI}, 1
    s_cmp_lt_u32 s{sI}, 32
    s_cbranch_scc1 K2_sl
    s_cmp_lg_u32 s{sP}, 0
    s_cbranch_scc1 K2_fin
    v_mov_b32 v{P}, v{vMx}
    s_nop 1
    v_permlane32_swap_b32 v{P}, v{vMx}
    s_mov_b32 s{sP}, 1
    v_max_f32 v{vMx}, v{vMx}, v{P}
    s_branch K2_sp
    """)
    return 164

def main(out):
    a = Asm()
    gen_k1(a); n = gen_k2(a)
    head = f"""; LayerNorm + MQA attention + SiLU FFN in one launch (generated by work/gen4.py)
; @launch grid=(256,1,1) block=(768,1,1) lds=163840
.amdgcn_target "amdgcn-amd-amdhsa--gfx950"
.text
"""
    tail = '.section .rodata,"a"\n' + kdesc(KN, n)
    open(out, "w").write(head + a.text() + tail)

if __name__ == "__main__":
    if "--prof" in sys.argv:
        PROF = True; sys.argv.remove("--prof")
    main(sys.argv[1] if len(sys.argv) > 1 else f"cdna_kernels/{NAME}.s")
```

```python
import sys, math, os, struct
import abody, kbody
OPT = set(os.environ.get('OPT', '').split(','))
NAME = "parallel_sum__grouped_kv_mqa__dense_activation_silu__prompt"
WS_Q, WS_KV, WS_H, WS_O, WS_WP, WS_Y, WS_PROF, WS_END = 0, 0x300000, 0x340000, 0x940000, 0xD00000, 0x1000000, 0xC00000, 0x1500000
WS_SR, WS_SC = 0x280000, 0x2D2000
WS_F1, WS_F3, WS_FK = 0x1000000, 0x1080000, 0x1060000
SLP = int(os.environ.get('SLP', '4'))
XB = 147456; XFC, XN, XQ = XB + 2560, XB + 3072, XB + 4096
sN = 68
KN = NAME + '_kernel'
SPINMAX = 20000
ROTR, ROTC = (int(c) for c in os.environ.get('ROT', '3,3').split(','))
PRE = int(os.environ.get('PRE', '2'))
PRE_CTRL = """s_or_b32 s{sT0}, s{sI}, 2
    s_cmp_eq_u32 s{sT0}, 3
    s_cbranch_scc1 K1_issue
    s_cmp_lg_u32 s{sI}, 2
    s_cbranch_scc1 K1_w18""" if PRE == 2 else """s_cmp_lt_u32 s{sI}, %d
    s_cbranch_scc1 K1_issue
    s_cmp_lg_u32 s{sI}, %d
    s_cbranch_scc1 K1_w18""" % (PRE, PRE)
HOOK = int(os.environ.get('HOOK', '9'))
LOG2E = 1.4426950408889634
def f32(x): return "0x%08x" % struct.unpack("<I", struct.pack("<f", x))[0]

class Asm:
    def __init__(self): self.l = []
    def __call__(self, s):
        for x in s.strip("\n").split("\n"):
            x = x.strip()
            if x: self.l.append(("" if x.endswith(":") else "    ") + x)
    def text(self): return "\n".join(self.l) + "\n"
def vr(a, n): return "v[%d:%d]" % (a, a + n - 1)
def ar(a, n): return "a[%d:%d]" % (a, a + n - 1)
def sr(a, n): return "s[%d:%d]" % (a, a + n - 1)
def srd(a, d, base, nbytes):
    a(f"s_mov_b32 s{d}, s{base}\ns_mov_b32 s{d+1}, s{base+1}\ns_mov_b32 s{d+2}, {nbytes}\ns_mov_b32 s{d+3}, 0x00020000")
def kdesc(name, vgpr, agpr=0, sgpr=102):
    acc = (vgpr + 3) // 4 * 4
    return f""".p2align 6
.amdhsa_kernel {name}
  .amdhsa_next_free_vgpr {acc + agpr if agpr else vgpr}
  .amdhsa_next_free_sgpr {sgpr}
  .amdhsa_accum_offset {acc}
  .amdhsa_group_segment_fixed_size 0
  .amdhsa_kernarg_size 88
  .amdhsa_user_sgpr_count 2
  .amdhsa_user_sgpr_kernarg_segment_ptr 1
  .amdhsa_system_sgpr_workgroup_id_x 1
.end_amdhsa_kernel
"""
def khead(a, name): a.l.append(f".globl {name}\n.p2align 8\n.type {name},@function\n{name}:")
PROF = False
def stamp(a, i):
    if 'dbgt' in OPT:
        a(f"s_memrealtime s[{70+2*i}:{71+2*i}]")
        if i == 0: a("s_mov_b32 s72, 0\ns_mov_b32 s74, 0\ns_mov_b32 s76, 0")
        return
    if PROF:
        a(f"s_memtime s[{70+2*i}:{71+2*i}]")
        if i == 0: a("s_memrealtime s[84:85]")
def prof_end(a, kidx, WS, sW):
    if 'dbgt' in OPT:
        a(f"""
        s_cmp_lg_u32 s{sW}, 0
        s_cbranch_scc1 K_end
        s_waitcnt vmcnt(0)
        s_memrealtime s[82:83]
        s_mov_b32 s20, s4
        s_mov_b32 s21, s5
        s_mov_b32 s22, 256
        s_mov_b32 s23, 0x00020000
        s_mov_b64 exec, 1
        v_mov_b32 v0, 0
        s_waitcnt lgkmcnt(0)
        s_not_b32 s84, s70
        v_mov_b32 v1, s84
        buffer_atomic_umax v1, v0, s[20:23], 0 offen offset:4
        """)
        for i in range(7):
            a(f"v_mov_b32 v{2+i}, s{70+2*i}\nbuffer_atomic_umax v{2+i}, v0, s[20:23], 0 offen offset:{8+4*i}")
        return
    if not PROF: return
    a(f"""
    s_waitcnt vmcnt(0)
    s_memtime s[82:83]
    s_memrealtime s[86:87]
    s_mov_b64 exec, -1
    s_waitcnt lgkmcnt(0)
    s_lshl_b32 s88, s2, 4
    s_add_u32 s88, s88, s{sW}
    s_lshl_b32 s88, s88, 6
    s_add_u32 s88, s88, {WS_PROF + kidx * 0x40000}
    v_mov_b32 v0, 0
    """)
    for i in range(7): a(f"v_mov_b32 v{4+i}, s{70+2*i}")
    a(f"""
    v_mov_b32 v11, s84
    v_mov_b32 v12, s86
    v_mov_b32 v13, 0
    v_mov_b32 v14, 0
    v_mov_b32 v15, 0
    s_mov_b64 exec, 1
    buffer_store_dwordx4 v[4:7], v0, {sr(WS,4)}, s88 offen
    buffer_store_dwordx4 v[8:11], v0, {sr(WS,4)}, s88 offen offset:16
    buffer_store_dwordx4 v[12:15], v0, {sr(WS,4)}, s88 offen offset:32
    """)
def poll(a, lab, vaddr, vtmp, WS, sCnt):
    a(f"""
    s_mov_b32 s{sCnt}, 0
    {lab}:
    buffer_load_dword v{vtmp}, v{vaddr}, {sr(WS,4)}, 0 offen sc1
    s_add_u32 s{sCnt}, s{sCnt}, 1
    s_waitcnt vmcnt(0)
    v_cmp_ne_u32 vcc, s{sN}, v{vtmp}
    s_cbranch_vccz {lab}x
    s_sleep {SLP}
    s_cmp_lt_u32 s{sCnt}, {SPINMAX}
    s_cbranch_scc1 {lab}
    {lab}x:
    """)
def setflag(a, soff, WS, v0, v1, emask="1"):
    a(f"""
    v_mov_b32 v{v0}, s{sN}
    v_lshlrev_b32 v{v1}, 8, v0
    s_mov_b64 exec, {emask}
    s_waitcnt vmcnt(0)
    buffer_store_dword v{v0}, v{v1}, {sr(WS,4)}, s{soff} offen sc1
    s_mov_b64 exec, -1
    """)
def rowidx(a, d, rt, t):
    a(f"""
    s_mul_i32 s{d}, s{rt}, 205
    s_lshr_b32 s{d}, s{d}, 10
    s_mul_i32 s{t}, s{d}, 5
    s_sub_u32 s{t}, s{rt}, s{t}
    s_lshl_b32 s{d}, s{d}, 1
    s_cmp_ge_u32 s{t}, 3
    s_addc_u32 s{d}, s{d}, 0
    """)
def round_bf16(a, d, s): a(f"v_cvt_pk_bf16_f32 v{d}, v{s}, v{s}\nv_lshlrev_b32 v{d}, 16, v{d}")
def MF(d, A, B, C): return f"v_mfma_f32_32x32x16_bf16 {d}, {A}, {B}, {C}"

def gen_k1(a):
    khead(a, KN)
    SLOT = 36864
    sW, sR, sG, sRB, sCB = 32, 33, 34, 35, 36
    sI, sK, sSlot, sT0, sT1, sMx, sMw, sStr64, sDelta, sRd, sT2, sT3, sK0, sMB, sU, sTyp, sRT, sS32, sOnes = 38, 39, 40, 41, 42, 43, 44, 45, 46, 47, 48, 49, 50, 51, 52, 53, 54, 55, 37
    sEA, sEB, sIdle = 56, 58, 69
    X, WA, WS, WB, DBG = 20, 24, 28, 64, 20
    vL, vXs, vWs, vCom = 0, 1, 2, 11
    vAx, vAw = 12, 16
    vT = 24
    AC = 32; fW, fX = 80, 96
    a(f"""
    s_cmp_ge_u32 s2, 256
    s_cbranch_scc1 K_end
    """); stamp(a, 0); a(f"""
    s_load_dwordx8 s[8:15], s[0:1], 0
    s_load_dwordx2 s[16:17], s[0:1], 32
    s_load_dwordx4 s[60:63], s[0:1], 48
    s_load_dwordx4 s[4:7], s[0:1], 72
    s_load_dwordx2 s[18:19], s[0:1], 64
    v_lshrrev_b32 v1, 6, v0
    v_and_b32 v{vL}, 63, v0
    v_readfirstlane_b32 s{sW}, v1
    s_and_b32 s{sT0}, s2, 7
    s_lshr_b32 s{sT1}, s2, 3
    s_mul_i32 s{sT2}, s{sT0}, 30
    s_add_u32 s{sT2}, s{sT2}, s{sT1}
    v_lshrrev_b32 v{vT}, 5, v{vL}
    v_and_b32 v{vT+1}, 3, v{vL}
    v_bfe_u32 v{vT+2}, v{vL}, 2, 3
    v_lshlrev_b32 v{vT+3}, 4, v{vT+1}
    v_bfe_u32 v{vT+4}, v{vL}, 2, 2
    v_bfe_u32 v{vT+5}, v{vL}, 4, 1
    v_lshl_add_u32 v{vT+4}, v{vT+4}, 1, v{vT+5}
    v_lshl_add_u32 v{vT+4}, v{vT+4}, 2, v{vT+1}
    v_lshlrev_b32 v{vCom}, 3, v{vT+4}
    s_mov_b32 s{WS+2}, {WS_END}
    s_mov_b32 s{WS+3}, 0x00020000
    s_cmp_ge_u32 s{sT1}, 30
    s_cbranch_scc1 K1_aux
    s_cmp_ge_u32 s{sT2}, 234
    s_cbranch_scc1 K1_aux
    s_cmp_lt_u32 s{sT2}, 126
    s_cselect_b32 s{sT0}, 0, 126
    s_cselect_b32 s{sT1}, 7, 6
    s_movk_i32 s{sT3}, 10923
    s_cselect_b32 s{sT3}, 9363, s{sT3}
    s_cselect_b32 s{sRB}, 0, 7
    s_sub_u32 s{sT2}, s{sT2}, s{sT0}
    s_mul_i32 s{sCB}, s{sT2}, s{sT3}
    s_lshr_b32 s{sCB}, s{sCB}, 16
    s_mul_i32 s{sT1}, s{sT1}, s{sCB}
    s_sub_u32 s{sT2}, s{sT2}, s{sT1}
    s_add_u32 s{sRB}, s{sRB}, s{sT2}
    s_and_b32 s{sR}, s{sW}, 3
    s_mul_i32 s{sK}, s{sRB}, {ROTR}
    s_mul_i32 s{sT0}, s{sCB}, {ROTC}
    s_add_u32 s{sK}, s{sK}, s{sT0}
    s_mul_i32 s{sT0}, s{sK}, 6554
    s_lshr_b32 s{sT0}, s{sT0}, 16
    s_mul_i32 s{sT0}, s{sT0}, 10
    s_sub_u32 s{sK}, s{sK}, s{sT0}
    s_mov_b32 s{sOnes}, 0x3f803f80
    s_cmp_eq_u32 s{sCB}, 17
    s_cselect_b32 s{sT0}, 1, 3
    s_and_b32 s{sT0}, s{sT0}, s{sR}
    s_lshr_b32 s{sT1}, s{sT0}, 1
    s_lshl_b32 s{sT1}, s{sT1}, 13
    s_and_b32 s{sT0}, s{sT0}, 1
    s_lshl_b32 s{sT0}, s{sT0}, 9
    s_add_u32 s{sT0}, s{sT0}, s{sT1}
    s_add_u32 s{sT0}, s{sT0}, 20480
    v_lshl_add_u32 v{vAw}, v{vT}, 10, v{vCom}
    v_add_u32 v{vAw}, s{sT0}, v{vAw}
    s_cmp_lt_u32 s{sW}, 8
    s_cbranch_scc1 K1_C
    """)
    a(f"""
    s_mul_i32 s{sT0}, s{sRB}, 160
    s_lshl_b32 s{sT1}, s{sR}, 3
    s_add_u32 s{sT0}, s{sT0}, s{sT1}
    s_mul_i32 s{sT0}, s{sT0}, 1280
    v_lshrrev_b32 v{vT+4}, 3, v{vL}
    v_mul_u32_u24 v{vT+4}, 1280, v{vT+4}
    v_add_u32 v{vT+4}, s{sT0}, v{vT+4}
    v_and_b32 v{vT+5}, 7, v{vL}
    v_lshrrev_b32 v{vT+6}, 4, v{vL}
    v_xor_b32 v{vT+5}, v{vT+5}, v{vT+6}
    s_and_b32 s{sT0}, s{sR}, 1
    s_lshl_b32 s{sT0}, s{sT0}, 2
    v_xor_b32 v{vT+5}, s{sT0}, v{vT+5}
    v_lshl_add_u32 v{vXs}, v{vT+5}, 4, v{vT+4}
    s_cmp_lt_u32 s{sCB}, 5
    s_movk_i32 s{sT0}, 3072
    s_cselect_b32 s{sT0}, 1280, s{sT0}
    s_cselect_b32 s{sT2}, 0, 5
    s_sub_u32 s{sT2}, s{sCB}, s{sT2}
    s_lshl_b32 s{sT2}, s{sT2}, 8
    v_lshl_add_u32 v{vT+4}, v{vT}, 6, v{vT+3}
    v_add_u32 v{vT+4}, s{sT2}, v{vT+4}
    v_min_u32 v{vT+5}, 24, v{vT+3}
    s_cmp_eq_u32 s{sCB}, 17
    s_cselect_b32 s{sT0}, 40, s{sT0}
    s_cselect_b64 vcc, -1, 0
    s_mov_b32 s{sEA}, -1
    s_cselect_b32 s{sEA+1}, 0, -1
    s_cselect_b32 s{sEB}, 0, -1
    s_mov_b32 s{sEB+1}, -1
    s_movk_i32 s{sMB}, 4096
    s_cselect_b32 s{sMB}, {(-4096) & 0xffffffff}, s{sMB}
    v_cndmask_b32 v{vT+4}, v{vT+4}, v{vT+5}, vcc
    v_add_u32 v{vT+5}, s{sT1}, v{vT+2}
    v_mad_u32_u24 v{vWs}, v{vT+5}, s{sT0}, v{vT+4}
    s_lshl_b32 s{sStr64}, s{sT0}, 6
    s_lshl_b32 s{sS32}, s{sT0}, 5
    s_mul_i32 s{WA+2}, s{sT0}, 640
    s_lshl_b32 s{sMx}, s{sR}, 10
    s_mov_b32 s{sI}, 0
    s_mov_b32 s{sSlot}, 0
    s_mov_b32 s{sRd}, 0
    s_mov_b32 s{X+2}, {2048*1280}
    s_mov_b32 s{X+3}, 0x00020000
    s_mov_b32 s{WA+3}, 0x00020000
    s_mov_b32 s{WB+3}, 0x00020000
    s_waitcnt lgkmcnt(0)
    s_mov_b32 s{X}, s8
    s_mov_b32 s{X+1}, s9
    s_mov_b32 s{WS}, s6
    s_mov_b32 s{WS+1}, s7
    s_cmp_lt_u32 s{sCB}, 5
    s_cselect_b32 s{WA}, s10, s60
    s_cselect_b32 s{WA+1}, s11, s61
    s_add_u32 s{WB}, s{WA}, 128
    s_addc_u32 s{WB+1}, s{WA+1}, 0
    s_sub_u32 s{WB+2}, s{WA+2}, 128
    s_cmp_eq_u32 s{sCB}, 17
    s_cselect_b32 s{WA}, s12, s{WA}
    s_cselect_b32 s{WA+1}, s13, s{WA+1}
    s_cselect_b32 s{WB}, s14, s{WB}
    s_cselect_b32 s{WB+1}, s15, s{WB+1}
    s_cselect_b32 s{WB+2}, s{WA+2}, s{WB+2}
    """)
    stamp(a, 1)
    a(f"""
    K1_issue:
    s_lshl_b32 s{sT0}, s{sK}, 7
    s_add_u32 m0, s{sSlot}, s{sMx}
    s_mul_i32 s{sT1}, s{sK}, s{sStr64}
    """)
    for i in range(5):
        a(f"buffer_load_dwordx4 v{vXs}, {sr(X,4)}, s{sT0} offen lds\ns_add_u32 m0, m0, 4096\ns_add_u32 s{sT0}, s{sT0}, {32*1280}")
    a(f"""
    s_mov_b64 exec, {sr(sEA,2)}
    s_add_u32 s{sT2}, s{sT1}, s{sS32}
    buffer_load_dwordx4 v{vWs}, {sr(WA,4)}, s{sT1} offen lds
    s_add_u32 m0, m0, 4096
    s_add_u32 s{sK}, s{sK}, 1
    buffer_load_dwordx4 v{vWs}, {sr(WA,4)}, s{sT2} offen lds
    s_add_u32 m0, m0, s{sMB}
    s_mov_b64 exec, {sr(sEB,2)}
    buffer_load_dwordx4 v{vWs}, {sr(WB,4)}, s{sT1} offen lds
    s_add_u32 m0, m0, 4096
    s_cmp_eq_u32 s{sK}, 10
    s_cselect_b32 s{sK}, 0, s{sK}
    buffer_load_dwordx4 v{vWs}, {sr(WB,4)}, s{sT2} offen lds
    s_mov_b64 exec, -1
    s_add_u32 s{sSlot}, s{sSlot}, {SLOT}
    s_cmp_eq_u32 s{sSlot}, {4*SLOT}
    s_cselect_b32 s{sSlot}, 0, s{sSlot}
    s_add_u32 s{sI}, s{sI}, 1
    {PRE_CTRL.format(sI=sI, sT0=sT0)}
    s_waitcnt vmcnt({9*(PRE-1)})
    s_barrier
    """)
    for k in range(4):
        for q in range(2): a(f"ds_read_b64_tr_b16 {vr(32+4*k+2*q,2)}, v{vAw} offset:{2048*k+256*q}")
    a(f"""
    v_mov_b32 v48, 0
    v_and_b32 v49, 31, v{vL}
    s_lshl_b32 s{sT0}, s{sR}, 7
    s_add_u32 s{sT0}, s{sT0}, {XQ+1280}
    v_lshl_add_u32 v49, v49, 2, s{sT0}
    s_waitcnt lgkmcnt(0)
    """)
    for i in range(16): a(f"v_dot2c_f32_bf16 v48, s{sOnes}, v{32+i}")
    a(f"""
    s_nop 2
    v_mov_b32 v50, v48
    s_nop 1
    v_permlane32_swap_b32 v50, v48
    v_add_f32 v48, v48, v50
    ds_write_b32 v49, v48
    {"" if PRE == 4 else "s_branch K1_issue"}
    K1_w18:
    s_cmp_eq_u32 s{sI}, 10
    s_cbranch_scc1 K1_g0
    s_waitcnt vmcnt(18) lgkmcnt(0)
    s_barrier
    s_branch K1_issue
    K1_g0:
    """)
    G = 32
    a(f"""
    v_mov_b32 v3, {XN}
    ds_read_b32 v4, v3
    s_cmp_eq_u32 s{sR}, 3
    s_mul_i32 s{sT0}, s{sRB}, 25600
    s_mul_i32 s{sT1}, s{sCB}, 10240
    s_movk_i32 s{sT3}, 2560
    s_cselect_b32 s{sT3}, 1024, s{sT3}
    s_cselect_b32 s{sT0}, s{sT1}, s{sT0}
    s_mov_b32 s{sT1}, {WS_SR}
    s_cselect_b32 s{sT1}, {WS_SC}, s{sT1}
    s_cselect_b32 s{sT2}, 0, s{sR}
    s_add_u32 s{sU}, s{sT0}, s{sT1}
    s_lshl_b32 s{sT2}, s{sT2}, 6
    v_add_u32 v5, s{sT2}, v{vL}
    v_min_u32 v5, 159, v5
    v_lshlrev_b32 v5, 4, v5
    s_mov_b32 s{sI}, 0
    K1_gat:
    s_mov_b32 s{sT0}, s{sU}
    """)
    for k in range(10):
        a(f"buffer_load_dwordx4 {vr(G+4*k,4)}, v5, {sr(WS,4)}, s{sT0} offen sc1\ns_add_u32 s{sT0}, s{sT0}, s{sT3}")
    a(f"""
    s_cmp_lg_u32 s{sI}, 0
    s_cbranch_scc1 K1_g2
    s_waitcnt vmcnt(28)
    s_barrier
    s_waitcnt vmcnt(19)
    s_barrier
    s_waitcnt vmcnt(10)
    s_barrier
    {"s_memtime s[78:79]" if PROF and 'st2' in OPT else ""}
    K1_g2:
    s_add_u32 s{sI}, s{sI}, 1
    s_waitcnt vmcnt(0) lgkmcnt(0)
    v_mov_b32 v6, 0
    """)
    for k in range(10):
        a(f"v_xor_b32 v{G+4*k+1}, v{G+4*k+1}, v4\nv_xor_b32 v{G+4*k+3}, v{G+4*k+3}, v4\nv_or3_b32 v6, v{G+4*k+1}, v{G+4*k+3}, v6")
    a(f"""
    v_cmp_ne_u32 vcc, 0, v6
    s_cmp_gt_u32 s{sI}, {SPINMAX}
    s_cbranch_scc1 K1_g3
    s_cbranch_vccnz K1_gat
    K1_g3:
    {"s_memtime s[80:81]" if PROF and 'st2' in OPT else ""}
    {f"s_add_u32 s72, s70, s{sI}" if PROF and 'st2' in OPT else ""}
    """)
    for k in range(1, 10):
        a(f"v_add_f32 v{G}, v{G}, v{G+4*k}\nv_add_f32 v{G+2}, v{G+2}, v{G+4*k+2}")
    a(f"""
    s_cmp_eq_u32 s{sR}, 3
    s_cbranch_scc1 K1_gc
    v_mul_f32 v{G}, {f32(1.0/640)}, v{G}
    v_mul_f32 v{G+2}, {f32(1.0/640)}, v{G+2}
    v_cvt_pk_bf16_f32 v{G+4}, -v{G}, -v{G}
    v_fma_f32 v{G+2}, -v{G}, v{G}, v{G+2}
    v_max_f32 v{G+2}, 0, v{G+2}
    """)
    round_bf16(a, G+2, G+2)
    a(f"v_add_f32 v{G+2}, {f32(1e-5)}, v{G+2}")
    round_bf16(a, G+2, G+2)
    a(f"v_sqrt_f32 v{G+5}, v{G+2}\ns_nop 0")
    round_bf16(a, G+5, G+5)
    a(f"""
    v_rcp_f32 v{G+6}, v{G+5}
    v_add_u32 v5, {XB+0}, v5
    v_mov_b32 v{G+7}, 0
    ds_write_b128 v5, {vr(G+4,4)}
    s_branch K1_gd
    K1_gc:
    v_and_b32 v{G+1}, 0xffff0000, v{G}
    v_and_b32 v{G+3}, 0xffff0000, v{G+2}
    v_sub_f32 v{G}, v{G}, v{G+1}
    v_sub_f32 v{G+2}, v{G+2}, v{G+3}
    v_cvt_pk_bf16_f32 v{G+4}, v{G+1}, v{G}
    v_cvt_pk_bf16_f32 v{G+5}, v{G+3}, v{G+2}
    v_lshlrev_b32 v5, 3, v{vL}
    v_add_u32 v5, {XFC}, v5
    ds_write_b64 v5, {vr(G+4,2)}
    K1_gd:
    v_readfirstlane_b32 s{sN}, v4
    s_waitcnt lgkmcnt(0)
    s_barrier
    s_branch K2_G
    """)
    vN = 2
    a(f"""
    K1_C:
    s_lshr_b32 s{sG}, s{sW}, 2
    s_mov_b32 s{sK0}, s{sK}
    s_mov_b32 s{DBG+2}, 256
    s_mov_b32 s{DBG+3}, 0x00020000
    v_mov_b32 v{vN+1}, 0
    v_and_b32 v{vT+4}, 31, v{vL}
    v_bfe_u32 v{vT+5}, v{vL}, 1, 3
    v_lshlrev_b32 v{vT+4}, 7, v{vT+4}
    s_waitcnt lgkmcnt(0)
    s_mov_b32 s{WS}, s6
    s_mov_b32 s{WS+1}, s7
    s_mov_b32 s{DBG}, s4
    s_mov_b32 s{DBG+1}, s5
    s_lshl_b32 s{sT1}, s{sW}, 12
    v_lshlrev_b32 v{vT+6}, 2, v{vT}
    v_xor_b32 v{vT+6}, v{vT+6}, v{vT+5}
    v_lshl_add_u32 v4, v{vT+6}, 4, v{vT+4}
    v_add_u32 v4, s{sT1}, v4
    v_xor_b32 v5, 16, v4
    v_xor_b32 v6, 32, v4
    v_xor_b32 v7, 48, v4
    v_xor_b32 v{vT+5}, v{vT+5}, v{vT}
    s_mul_i32 s{sT1}, s{sG}, {3*4096}
    v_add_u32 v{vT+4}, s{sT1}, v{vT+4}
    """)
    for i in range(4):
        a(f"v_xor_b32 v{vT+6}, {2*i}, v{vT+5}\nv_lshl_add_u32 v{vAx+i}, v{vT+6}, 4, v{vT+4}")
    a(f"""
    s_mov_b32 s{sRd}, 0
    s_mov_b32 s{sI}, 10
    s_mov_b32 s{sDelta}, {SLOT}
    s_cmp_eq_u32 s{sW}, 7
    s_cselect_b32 s{sMB}, {HOOK}, 0
    s_sub_u32 s{sT0}, s{sW}, 2
    s_cmp_lt_u32 s{sT0}, 4
    s_cselect_b32 s{sIdle}, 1, 0
    s_cmp_eq_u32 s{sCB}, 17
    s_cselect_b32 s{sIdle}, s{sIdle}, 0
    v_mov_b32 v8, 0
    v_mov_b32 v9, 0
    """)
    for i in range(48): a(f"v_mov_b32 v{AC+i}, 0")
    a("s_barrier")
    stamp(a, 1)
    a(f"s_cmp_lg_u32 s{sW}, 7\ns_cbranch_scc1 K1_non\nbuffer_load_dword v{vN}, v{vN+1}, {sr(DBG,4)}, 0 offen sc1\nK1_non:")
    a(f"s_cmp_ge_u32 s{sW}, 5\ns_cbranch_scc1 K1_nost")
    for i in range(4): a(f"ds_read_b128 {vr(144+4*i,4)}, v{4+i}")
    a(f"""
    v_and_b32 v4, 31, v{vL}
    s_lshl_b32 s{sT0}, s{sW}, 8
    s_add_u32 s{sT0}, s{sT0}, {XQ}
    v_lshl_add_u32 v4, v4, 3, s{sT0}
    s_waitcnt lgkmcnt(0)
    """)
    for i in range(16): a(f"v_dot2c_f32_bf16 v8, s{sOnes}, v{144+i}\nv_dot2c_f32_bf16 v9, v{144+i}, v{144+i}")
    a(f"""
    s_nop 2
    v_mov_b32 v6, v8
    v_mov_b32 v7, v9
    s_nop 1
    v_permlane32_swap_b32 v6, v8
    v_permlane32_swap_b32 v7, v9
    v_add_f32 v8, v8, v6
    v_add_f32 v9, v9, v7
    ds_write_b64 v4, {vr(8,2)}
    s_waitcnt lgkmcnt(0)
    K1_nost:
    """)
    KR = dict(fW=fW, fX=fX, AC=AC, vAx=vAx, vAw=vAw, sDelta=sDelta)
    def cloop(T):
        first, ba, bb, tail = kbody.streamC(KR, T)
        flt = lambda L: [l for l in L if not ('k1nm' in OPT and 'mfma' in l) and not ('k1nr' in OPT and 'ds_read' in l) and not ('k1nx' in OPT and 'ds_read_b128' in l)]
        first, ba, bb, tail = flt(first), flt(ba), flt(bb), flt(tail)
        a(f"K1_start{T}:")
        for l in first: a(l)
        a(f"s_branch K1_mid{T}\nK1_comp{T}:\ns_barrier")
        for l in ba: a(l)
        a(f"K1_mid{T}:")
        for l in bb: a(l)
        a(f"""
        s_add_u32 s{sRd}, s{sRd}, 1
        s_and_b32 s{sRd}, s{sRd}, 3
        s_cmp_eq_u32 s{sRd}, 3
        s_mov_b32 s{sDelta}, {SLOT}
        s_cselect_b32 s{sDelta}, {(-3*SLOT) & 0xffffffff}, s{sDelta}
        """)
        if T == 2: a(f"s_cmp_eq_u32 s{sI}, s{sMB}\ns_cbranch_scc1 K1_pub\nK1_pubr:")
        a(f"""
        s_sub_u32 s{sI}, s{sI}, 1
        s_cmp_lg_u32 s{sI}, 0
        s_waitcnt lgkmcnt(0)
        s_cbranch_scc1 K1_comp{T}
        """)
        for l in tail: a(l)
    a(f"s_cmp_lg_u32 s{sIdle}, 0\ns_cbranch_scc1 K1_idle\ns_cmp_lg_u32 s{sG}, 0\ns_cbranch_scc1 K1_start2")
    cloop(3)
    a("K1_cdone:")
    stamp(a, 2)
    ST, vCA, WK, E, PK = 144, 20, 96, 112, 128
    vS, vMq, vNe, vNB = 26, 24, 30, 22
    a(f"""
    v_and_b32 v3, 31, v{vL}
    s_mul_i32 s{sT0}, s{sG}, {96*16}
    s_add_u32 s{sT0}, s{sT0}, {XB+0}
    v_lshl_add_u32 v4, v3, 4, s{sT0}
    s_lshl_b32 s{sT0}, s{sR}, 7
    s_add_u32 s{sT0}, s{sT0}, {XFC}
    v_lshl_add_u32 v5, v3, 2, s{sT0}
    v_lshlrev_b32 v1, 4, v{vL}
    v_lshlrev_b32 v2, 3, v{vL}
    v_mov_b32 v{vCA+1}, 0
    v_mov_b32 v{vNB+1}, 0
    s_mul_i32 s{sRT}, s{sRB}, 5
    s_mul_i32 s{sT0}, s{sG}, 3
    s_add_u32 s{sRT}, s{sRT}, s{sT0}
    s_sub_u32 s{sU}, 3, s{sG}
    s_cmp_lt_u32 s{sCB}, 5
    s_cselect_b32 s{sTyp}, 0, 1
    s_cmp_eq_u32 s{sCB}, 17
    s_cselect_b32 s{sTyp}, 2, s{sTyp}
    s_mov_b32 s{sK}, {f32(20 ** -0.5 * LOG2E)}
    s_cselect_b32 s{sK}, 1.0, s{sK}
    s_lshl_b32 s{sT0}, s{sCB}, 13
    s_lshl_b32 s{sT1}, s{sR}, 11
    s_add_u32 s{sMx}, s{sT0}, s{sT1}
    v_cmp_gt_u32 vcc, 32, v{vL}
    v_mov_b32 v6, {XN}
    s_barrier
    {"s_memtime s[72:73]" if PROF and 'st2' in OPT else ""}
    ds_read_b32 v6, v6
    ds_read_b32 v{vCA}, v5
    ds_read_b128 {vr(ST,4)}, v4
    ds_read_b128 {vr(ST+4,4)}, v4 offset:512
    ds_read_b128 {vr(ST+8,4)}, v4 offset:1024
    s_mov_b32 s{sI}, 0
    s_waitcnt lgkmcnt(0)
    v_readfirstlane_b32 s{sN}, v6
    v_cndmask_b32 v{vCA}, 0, v{vCA}, vcc
    v_mov_b32 v{vNB}, v{ST}
    v_mov_b32 v{vNB+6}, v{ST+4}
    v_mov_b32 v{vNB+7}, 0
    v_mov_b32 v18, v{ST+8}
    v_mov_b32 v19, 0
    v_mfma_f32_32x32x8_bf16 {vr(AC,16)}, {vr(vCA,2)}, {vr(vNB,2)}, {vr(AC,16)}
    v_mfma_f32_32x32x8_bf16 {vr(AC+16,16)}, {vr(vCA,2)}, {vr(vNB+6,2)}, {vr(AC+16,16)}
    v_mfma_f32_32x32x8_bf16 {vr(AC+32,16)}, {vr(vCA,2)}, {vr(18,2)}, {vr(AC+32,16)}
    s_nop 7
    K1_epi:
    s_cmp_ge_u32 s{sRT}, 64
    s_cbranch_scc1 K1_done
    v_mov_b32 v{vS}, v{ST+1}
    s_cmp_eq_u32 s{sTyp}, 1
    s_cbranch_scc1 K1_epiH
    v_mul_f32 v{vMq}, s{sK}, v{ST+2}
    s_mul_i32 s{sT3}, s{sRT}, 40960
    s_add_u32 s{sT3}, s{sT3}, s{sMx}
    """)
    for i in range(8): a(f"v_pk_mul_f32 {vr(E+2*i,2)}, {vr(AC+2*i,2)}, {vr(vMq,2)} op_sel_hi:[1,0]")
    a(f"""
    s_branch K1_ecvt
    K1_epiH:
    v_mul_f32 v{vNe}, {f32(-LOG2E)}, v{ST+2}
    s_mul_i32 s{sT3}, s{sRT}, {96*1024}
    s_add_u32 s{sT3}, s{sT3}, s{sMx}
    s_add_u32 s{sT3}, s{sT3}, {WS_H - 5*8192}
    """)
    for i in range(8): a(f"v_pk_mul_f32 {vr(E+2*i,2)}, {vr(AC+2*i,2)}, {vr(vNe,2)} op_sel_hi:[1,0]")
    for i in range(16): a(f"v_exp_f32 v{E+i}, v{E+i}")
    for i in range(8): a(f"v_pk_fma_f32 {vr(E+2*i,2)}, {vr(E+2*i,2)}, {vr(vS,2)}, {vr(vS,2)} op_sel_hi:[1,0,0]")
    for i in range(16): a(f"v_rcp_f32 v{E+i}, v{E+i}")
    for i in range(8): a(f"v_pk_mul_f32 {vr(E+2*i,2)}, {vr(E+2*i,2)}, {vr(AC+2*i,2)}")
    a("K1_ecvt:")
    for i in range(8): a(f"v_cvt_pk_bf16_f32 v{PK+i}, v{E+2*i}, v{E+2*i+1}")
    a(f"""
    s_cmp_eq_u32 s{sTyp}, 2
    s_cbranch_scc1 K1_epiKV
    buffer_store_dwordx4 {vr(PK,4)}, v1, {sr(WS,4)}, s{sT3} offen sc1
    buffer_store_dwordx4 {vr(PK+4,4)}, v1, {sr(WS,4)}, s{sT3} offen offset:1024 sc1
    K1_enext:
    s_add_u32 s{sRT}, s{sRT}, 1
    s_add_u32 s{sI}, s{sI}, 1
    s_cmp_eq_u32 s{sI}, s{sU}
    s_cbranch_scc1 K1_done
    s_cmp_eq_u32 s{sI}, 2
    s_cbranch_scc1 K1_e2
    """)
    for i in range(8): a(f"v_pk_mov_b32 {vr(AC+2*i,2)}, {vr(AC+16+2*i,2)}, {vr(AC+16+2*i,2)} op_sel:[0,1]")
    a(f"v_mov_b32 v{ST+1}, v{ST+5}\nv_mov_b32 v{ST+2}, v{ST+6}\ns_branch K1_epi\nK1_e2:")
    for i in range(8): a(f"v_pk_mov_b32 {vr(AC+2*i,2)}, {vr(AC+32+2*i,2)}, {vr(AC+32+2*i,2)} op_sel:[0,1]")
    a(f"""
    v_mov_b32 v{ST+1}, v{ST+9}
    v_mov_b32 v{ST+2}, v{ST+10}
    s_branch K1_epi
    K1_epiKV:
    s_cmp_lg_u32 s{sIdle}, 0
    s_cbranch_scc1 K1_done
    s_lshr_b32 s{sT0}, s{sRT}, 2
    s_mul_i32 s{sT0}, s{sT0}, 10240
    s_add_u32 s{sT0}, s{sT0}, {WS_KV}
    s_and_b32 s{sT2}, s{sRT}, 3
    v_lshrrev_b32 v5, 5, v{vL}
    s_bitcmp1_b32 s{sR}, 0
    s_cbranch_scc1 K1_vst
    v_mul_u32_u24 v4, 5120, v5
    v_lshl_add_u32 v4, v3, 4, v4
    s_lshl_b32 s{sT1}, s{sT2}, 9
    s_add_u32 s{sT1}, s{sT1}, s{sT0}
    buffer_store_dwordx4 {vr(PK,4)}, v4, {sr(WS,4)}, s{sT1} offen sc1
    s_and_b32 s{sT1}, s{sT2}, 1
    s_mul_i32 s{sT1}, s{sT1}, 5120
    s_add_u32 s{sT0}, s{sT0}, s{sT1}
    s_lshr_b32 s{sT1}, s{sT2}, 1
    s_lshl_b32 s{sT1}, s{sT1}, 3
    s_add_u32 s{sT0}, s{sT0}, s{sT1}
    v_lshlrev_b32 v4, 4, v3
    s_mov_b32 exec_lo, 0
    buffer_store_dwordx2 {vr(PK+4,2)}, v4, {sr(WS,4)}, s{sT0} offen offset:2048 sc1
    s_mov_b32 exec_lo, -1
    s_branch K1_enext
    K1_vst:
    s_mul_i32 s{sT1}, s{sT2}, 640
    s_add_u32 s{sT0}, s{sT0}, s{sT1}
    s_add_u32 s{sT1}, s{sT0}, 5120
    s_lshl_b32 s{sT2}, s{sW}, 11
    v_bfe_u32 v4, v3, 2, 1
    v_mul_u32_u24 v4, 640, v4
    v_lshl_add_u32 v4, v5, 6, v4
    v_lshrrev_b32 v5, 4, v3
    v_mul_u32_u24 v5, 320, v5
    v_add_u32 v4, v4, v5
    v_bfe_u32 v5, v3, 3, 1
    v_lshl_add_u32 v4, v5, 3, v4
    v_and_b32 v5, 3, v3
    v_lshl_add_u32 v4, v5, 1, v4
    v_add_u32 v4, s{sT2}, v4
    v_add_u32 v5, s{sT2}, v1
    """)
    for j in range(3):
        if j == 2: a("s_mov_b32 exec_lo, 0")
        o = 128 * j - (64 if j == 2 else 0)
        a(f"""
        ds_write_b16 v4, v{PK+2*j} offset:{o}
        ds_write_b16_d16_hi v4, v{PK+2*j} offset:{o+16}
        ds_write_b16 v4, v{PK+2*j+1} offset:{o+32}
        ds_write_b16_d16_hi v4, v{PK+2*j+1} offset:{o+48}
        """)
    a(f"""
    s_mov_b32 exec_lo, -1
    s_mov_b32 exec_hi, 0xff
    s_waitcnt lgkmcnt(0)
    ds_read_b128 {vr(E,4)}, v5
    ds_read_b128 {vr(E+4,4)}, v5 offset:640
    s_waitcnt lgkmcnt(0)
    buffer_store_dwordx4 {vr(E,4)}, v1, {sr(WS,4)}, s{sT0} offen offset:2560 sc1
    buffer_store_dwordx4 {vr(E+4,4)}, v1, {sr(WS,4)}, s{sT1} offen offset:2560 sc1
    s_mov_b32 exec_hi, -1
    s_branch K1_enext
    """)
    cloop(2)
    a("s_branch K1_cdone")
    a(f"""
    K1_idle:
    s_barrier
    s_sub_u32 s{sI}, s{sI}, 1
    s_cmp_lg_u32 s{sI}, 1
    s_cbranch_scc1 K1_idle
    s_branch K1_cdone
    """)
    P0 = 144
    a(f"""
    K1_pub:
    v_lshlrev_b32 v4, 3, v{vL}
    v_add_u32 v4, {XQ}, v4
    ds_read_b64 {vr(P0,2)}, v4
    ds_read_b64 {vr(P0+2,2)}, v4 offset:512
    ds_read_b64 {vr(P0+4,2)}, v4 offset:1024
    ds_read_b64 {vr(P0+6,2)}, v4 offset:1280
    s_mul_i32 s{sT0}, s{sRB}, 10
    s_add_u32 s{sT0}, s{sT0}, s{sK0}
    s_mul_i32 s{sT0}, s{sT0}, 2560
    s_add_u32 s{sT0}, s{sT0}, {WS_SR}
    s_cmp_lt_u32 s{sCB}, 10
    s_cselect_b32 s{sT0}, s{sT0}, {WS_END}
    s_mul_i32 s{sT1}, s{sCB}, 10
    s_add_u32 s{sT1}, s{sT1}, s{sK0}
    s_lshl_b32 s{sT1}, s{sT1}, 10
    s_add_u32 s{sT1}, s{sT1}, {WS_SC}
    s_cmp_lt_u32 s{sRB}, 10
    s_cselect_b32 s{sT1}, s{sT1}, {WS_END}
    v_lshlrev_b32 v5, 4, v{vL}
    s_mov_b32 s{sT3}, 0
    K1_pub3:
    s_waitcnt vmcnt(0)
    v_readfirstlane_b32 s{sT2}, v{vN}
    v_mov_b32 v4, {XN}
    s_cmp_lg_u32 s{sT2}, 0
    s_cbranch_scc1 K1_pub4
    buffer_load_dword v{vN}, v{vN+1}, {sr(DBG,4)}, 0 offen sc1
    s_add_u32 s{sT3}, s{sT3}, 1
    s_cmp_lt_u32 s{sT3}, {SPINMAX}
    s_cbranch_scc1 K1_pub3
    K1_pub4:
    v_mov_b32 v7, s{sT2}
    v_mov_b32 v9, s{sT2}
    v_mov_b32 v{P0+9}, s{sT2}
    v_mov_b32 v{P0+11}, s{sT2}
    v_mov_b32 v{P0+13}, s{sT2}
    v_mov_b32 v{P0+15}, s{sT2}
    v_mov_b32 v{P0+17}, s{sT2}
    v_mov_b32 v{P0+19}, s{sT2}
    ds_write_b32 v4, v7
    s_waitcnt lgkmcnt(1)
    v_mov_b32 v6, v{P0}
    v_mov_b32 v8, v{P0+1}
    v_mov_b32 v{P0+8}, v{P0+2}
    v_mov_b32 v{P0+10}, v{P0+3}
    v_mov_b32 v{P0+12}, v{P0+4}
    v_mov_b32 v{P0+14}, v{P0+5}
    v_mov_b32 v{P0+16}, v{P0+6}
    v_mov_b32 v{P0+18}, v{P0+7}
    buffer_store_dwordx4 {vr(6,4)}, v5, {sr(WS,4)}, s{sT0} offen sc1
    buffer_store_dwordx4 {vr(P0+8,4)}, v5, {sr(WS,4)}, s{sT0} offen offset:1024 sc1
    buffer_store_dwordx4 {vr(P0+16,4)}, v5, {sr(WS,4)}, s{sT1} offen sc1
    s_mov_b32 exec_hi, 0
    buffer_store_dwordx4 {vr(P0+12,4)}, v5, {sr(WS,4)}, s{sT0} offen offset:2048 sc1
    s_mov_b32 exec_hi, -1
    s_branch K1_pubr
    """)
    sJ, sL, sPst = 34, 35, 36
    WP = 24; vPs = 2
    a(f"""
    K1_aux:
    s_memrealtime s[66:67]
    s_lshl_b32 s{sT0}, s{sT0}, 1
    s_add_u32 s{sT0}, s{sT0}, s{sT1}
    s_sub_u32 s{sT0}, s{sT0}, 30
    s_sub_u32 s{sT2}, s{sT2}, {234-16}
    s_cmp_ge_u32 s{sT1}, 30
    s_cselect_b32 s{sT0}, s{sT0}, s{sT2}
    s_mul_i32 s{sJ}, s{sT0}, 12
    s_add_u32 s{sJ}, s{sJ}, s{sW}
    s_mul_i32 s{sL}, s{sW}, 12288
    v_lshl_add_u32 v{vT+3}, v{vT}, 6, v{vT+3}
    v_lshrrev_b32 v{vT+6}, 2, v{vT+2}
    v_and_b32 v{vT+7}, 3, v{vT+2}
    s_mov_b32 m0, s{sL}
    s_mov_b32 s{WP+3}, 0x00020000
    s_mov_b32 s{sI}, s{sJ}
    s_waitcnt lgkmcnt(0)
    s_mov_b32 s{WS}, s6
    s_mov_b32 s{WS+1}, s7
    s_mov_b32 s{DBG}, s4
    s_mov_b32 s{DBG+1}, s5
    s_mov_b32 s{DBG+2}, 256
    s_mov_b32 s{DBG+3}, 0x00020000
    s_lshl_b32 s{sU}, s{sT0}, 7
    s_add_u32 s{sU}, s{sU}, {WS_F1 + 72*4096}
    s_mov_b64 s[58:59], 1
    s_cmp_lg_u32 s{sJ}, 0
    s_cbranch_scc1 K1_a1
    s_or_b32 s66, s66, 1
    v_mov_b32 v4, s66
    v_mov_b32 v5, 0
    s_mov_b64 exec, 1
    buffer_store_dword v4, v5, {sr(DBG,4)}, 0 offen sc1
    s_mov_b64 exec, -1
    K1_a1:
    s_mul_i32 s{sT0}, s{sI}, 6554
    s_lshr_b32 s{sT0}, s{sT0}, 16
    s_mul_i32 s{sT1}, s{sT0}, 10
    s_sub_u32 s{sT1}, s{sI}, s{sT1}
    s_lshl_b32 s{sT1}, s{sT1}, 7
    s_sub_u32 s{sT2}, s{sT0}, 96
    s_mul_i32 s{sT3}, s{sT2}, 205
    s_lshr_b32 s{sT3}, s{sT3}, 10
    s_mul_i32 s55, s{sT3}, 5
    s_sub_u32 s55, s{sT2}, s55
    s_mul_i32 s{sT3}, s{sT3}, 80
    s_mul_i32 s56, s55, 20
    s_cmp_eq_u32 s55, 4
    s_cselect_b32 s56, 16, s56
    s_cselect_b32 s55, 1, 0
    s_add_u32 s{sT3}, s{sT3}, s56
    s_lshl_b32 s{sT2}, s{sT0}, 4
    s_cmp_lt_u32 s{sT0}, 96
    s_cselect_b32 s{sT3}, s{sT2}, s{sT3}
    s_cselect_b32 s55, 0, s55
    s_cselect_b32 s{WP}, s62, s16
    s_cselect_b32 s{WP+1}, s63, s17
    s_mov_b32 s{WP+2}, {640*1280}
    s_cselect_b32 s{WP+2}, {1536*1280}, s{WP+2}
    s_mul_i32 s{sT3}, s{sT3}, 1280
    s_add_u32 s56, s{sT3}, s{sT1}
    s_cmp_eq_u32 s55, 0
    s_cselect_b32 s{sT2}, 4, 40
    s_movk_i32 s57, {20*1280}
    s_cselect_b32 s57, {8*1280}, s57
    s_add_u32 s57, s57, s56
    v_mad_u32_u24 v{vPs}, v{vT+6}, s{sT2}, v{vT+7}
    v_mul_u32_u24 v{vPs}, 1280, v{vPs}
    v_add_u32 v{vPs}, v{vPs}, v{vT+3}
    buffer_load_dwordx4 v{vPs}, {sr(WP,4)}, s56 offen lds
    s_add_u32 m0, m0, 1024
    s_add_u32 s{sI}, s{sI}, 264
    buffer_load_dwordx4 v{vPs}, {sr(WP,4)}, s57 offen lds
    s_add_u32 m0, m0, 1024
    s_cmp_lt_u32 s{sI}, 1360
    s_cbranch_scc1 K1_a1
    v_lshl_add_u32 v4, v{vT}, 8, v{vCom}
    v_add_u32 v4, s{sL}, v4
    v_and_b32 v5, 15, v{vL}
    v_lshlrev_b32 v5, 4, v5
    v_lshl_add_u32 v5, v{vT}, 8, v5
    v_lshl_add_u32 v5, v{vT+5}, 9, v5
    s_lshl_b32 s{sPst}, s{sJ}, 11
    s_add_u32 s{sPst}, s{sPst}, {WS_WP}
    s_waitcnt vmcnt(0)
    K1_a2:
    ds_read_b64_tr_b16 {vr(32,2)}, v4
    ds_read_b64_tr_b16 {vr(34,2)}, v4 offset:1024
    ds_read_b64_tr_b16 {vr(36,2)}, v4 offset:512
    ds_read_b64_tr_b16 {vr(38,2)}, v4 offset:1536
    v_add_u32 v4, 2048, v4
    s_add_u32 s{sJ}, s{sJ}, 264
    s_waitcnt lgkmcnt(0)
    buffer_store_dwordx4 {vr(32,4)}, v5, {sr(WS,4)}, s{sPst} offen sc1
    buffer_store_dwordx4 {vr(36,4)}, v5, {sr(WS,4)}, s{sPst} offen offset:1024 sc1
    s_add_u32 s{sPst}, s{sPst}, {264*2048}
    s_cmp_lt_u32 s{sJ}, 1360
    s_cbranch_scc1 K1_a2
    v_mov_b32 v5, 0
    s_mov_b32 s{sT3}, 0
    K1_a3:
    buffer_load_dword v4, v5, {sr(DBG,4)}, 0 offen sc1
    s_add_u32 s{sT3}, s{sT3}, 1
    s_waitcnt vmcnt(0)
    v_readfirstlane_b32 s{sN}, v4
    s_cmp_gt_u32 s{sT3}, {SPINMAX}
    s_cbranch_scc1 K1_a4
    s_cmp_eq_u32 s{sN}, 0
    s_cbranch_scc1 K1_a3
    K1_a4:
    s_barrier
    s_cmp_ge_u32 s{sW}, 8
    s_cbranch_scc1 K2_G
    s_cmp_lg_u32 s{sW}, 0
    s_cbranch_scc1 K2_A
    s_branch K1_flag
    K1_done:
    s_lshl_b32 s{sU}, s{sCB}, 2
    s_add_u32 s{sU}, s{sU}, s{sR}
    s_lshl_b32 s{sU}, s{sU}, 5
    s_lshl_b32 s{sT0}, s{sRB}, 1
    s_add_u32 s{sU}, s{sU}, s{sT0}
    s_add_u32 s{sU}, s{sU}, s{sG}
    s_lshl_b32 s{sU}, s{sU}, 7
    s_add_u32 s{sU}, s{sU}, {WS_F1}
    s_mov_b64 s[58:59], 1
    s_cmp_lg_u32 s{sCB}, 17
    s_cbranch_scc1 K1_flag
    s_cmp_lg_u32 s{sIdle}, 0
    s_cbranch_scc1 K2_A
    v_mov_b32 v4, 1
    v_mov_b32 v5, 0
    s_mov_b64 exec, 1
    s_waitcnt vmcnt(0)
    buffer_atomic_add v4, v5, {sr(DBG,4)}, 0 offen offset:128 sc0
    s_mov_b32 s{sU}, {WS_FK}
    s_mov_b64 s[58:59], -1
    s_waitcnt vmcnt(0)
    v_readfirstlane_b32 s{sT0}, v4
    s_mov_b64 exec, -1
    s_mul_hi_u32 s{sT1}, s{sT0}, {(1 << 32) // 52 + 1}
    s_mul_i32 s{sT1}, s{sT1}, 52
    s_sub_u32 s{sT0}, s{sT0}, s{sT1}
    s_cmp_lg_u32 s{sT0}, 51
    s_cbranch_scc1 K2_A
    K1_flag:
    """)
    stamp(a, 3)
    setflag(a, sU, WS, 4, 5, 's[58:59]')
    if 'st1' in OPT: stamp(a, 1)

def tile_ids(a, sRB, sNB, sT0):
    a(f"""
    s_and_b32 s{sT0}, s2, 3
    s_lshl_b32 s{sRB}, s{sT0}, 3
    s_bfe_u32 s{sT0}, s2, 0x30003
    s_add_u32 s{sRB}, s{sRB}, s{sT0}
    s_bfe_u32 s{sT0}, s2, 0x10002
    s_lshl_b32 s{sNB}, s{sT0}, 2
    s_lshr_b32 s{sT0}, s2, 6
    s_add_u32 s{sNB}, s{sNB}, s{sT0}
    """)
def wlane(a, vL, vW, vW2, t):
    a(f"""
    v_and_b32 v{vW2}, 15, v{vL}
    v_lshlrev_b32 v{vW2}, 4, v{vW2}
    v_lshrrev_b32 v{t}, 5, v{vL}
    v_lshl_add_u32 v{vW2}, v{t}, 8, v{vW2}
    v_bfe_u32 v{t}, v{vL}, 4, 1
    v_lshl_add_u32 v{vW}, v{t}, 9, v{vW2}
    """)

def gen_k2(a):
    sW, sR, sG, sRB, sCB, sHD, sRT = 32, 33, 34, 35, 36, 37, 38
    sI, sT0, sT1, sT2, sSrc, sVm, sSeg, sT3 = 39, 40, 41, 42, 43, 44, 52, 53
    WS, X, OUT = 28, 20, 24
    vL, vA, vD = 0, 1, 2
    QM, QT, KM, KT, V, P, O, S = 4, 8, 12, 20, 24, 40, 56, 72
    R = dict(vA=vA, QM=QM, QT=QT, KM=KM, KT=KT, V=V, P=P, O=O, S=S)
    def aids():
        a(f"""
        s_and_b32 s{sT0}, s2, 3
        s_lshl_b32 s{sRB}, s{sT0}, 2
        s_bfe_u32 s{sT0}, s2, 0x20003
        s_add_u32 s{sRB}, s{sRB}, s{sT0}
        s_bfe_u32 s{sT0}, s2, 0x10002
        s_lshl_b32 s{sCB}, s{sT0}, 3
        s_lshr_b32 s{sT0}, s2, 5
        s_add_u32 s{sCB}, s{sCB}, s{sT0}
        s_and_b32 s{sR}, s{sW}, 3
        s_lshl_b32 s{sRT}, s{sRB}, 2
        s_add_u32 s{sRT}, s{sRT}, s{sR}
        v_lshlrev_b32 v{vD}, 4, v{vL}
        """)
    a("K2_A:"); aids()
    a(f"""
    s_lshr_b32 s{sG}, s{sW}, 2
    s_lshl_b32 s{sHD}, s{sCB}, 1
    s_and_b32 s{sT1}, s{sHD}, 2
    s_add_u32 s{sHD}, s{sHD}, s{sG}
    s_mul_i32 s{sT2}, s{sG}, 5
    s_add_u32 s{sT1}, s{sT1}, s{sT2}
    s_mul_i32 s{sT2}, s{sR}, 3072
    s_add_u32 s{sT2}, s{sT2}, {XQ}
    v_and_b32 v{vA}, 31, v{vL}
    v_lshlrev_b32 v{vA}, 4, v{vA}
    v_lshrrev_b32 v3, 5, v{vL}
    v_add_u32 v{P}, s{sT1}, v3
    v_add_u32 v{P+1}, 2, v{P}
    s_add_u32 s{sT1}, s{sT1}, 4
    v_mov_b32 v{P+2}, s{sT1}
    v_add_u32 v{P+3}, s{sT2}, v{vA}
    """)
    for i in range(3):
        a(f"""
        v_lshrrev_b32 v{P+4}, 2, v{P+i}
        v_lshl_add_u32 v{P+5}, v{P+4}, 10, v{P+3}
        v_and_b32 v{P+4}, 1, v{P+i}
        v_lshl_add_u32 v{P+5}, v{P+4}, 9, v{P+5}
        v_and_b32 v{P+4}, 2, v{P+i}
        v_lshl_add_u32 v{P+i}, v{P+4}, 2, v{P+5}
        """)
    a(f"""
    s_mov_b32 s{sVm}, 0x000fffff
    s_mov_b32 s{sVm+1}, 0x000fffff
    v_mul_u32_u24 v3, 5120, v3
    v_add_u32 v{vA}, v{vA}, v3
    v_and_b32 v3, 27, v{vL}
    v_cmp_eq_u32 vcc, 24, v3
    v_mov_b32 v3, 0x3f803f80
    """)
    for i in range(16): a(f"v_mov_b32 v{O+i}, 0")
    for i in range(16): a(f"v_cndmask_b32 v{V+i}, 0, v3, vcc")
    for i in range(4): a(f"v_mov_b32 v{P+12+i}, 0")
    SEGS = [3, 10, 3]
    segw = sum(n << (4 * i) for i, n in enumerate(SEGS))
    a(f"""
    s_mov_b32 s{sSeg}, {segw >> 4}
    s_mov_b32 s{sI}, {SEGS[0]}
    s_barrier
    """); stamp(a, 4); a(f"""
    ds_read_b64 {vr(QT,2)}, v{P+2}
    ds_read_b128 {vr(KT,4)}, v{vA} offset:2048
    ds_read_b64 {vr(QM,2)}, v{P}
    ds_read_b64 {vr(QM+2,2)}, v{P+1}
    ds_read_b128 {vr(KM,4)}, v{vA} offset:0
    ds_read_b128 {vr(KM+4,4)}, v{vA} offset:512
    s_waitcnt lgkmcnt({0 if PROF else 4})
    v_mfma_f32_32x32x4_2b_bf16 {vr(S,32)}, {vr(KT,2)}, {vr(QT,2)}, 0
    s_waitcnt lgkmcnt(0)
    s_nop 15
    s_nop 2
    {MF(vr(S,16), vr(KM,4), vr(QM,4), vr(S,16))}
    {MF(vr(S+16,16), vr(KM+4,4), vr(QM,4), vr(S+16,16))}
    ds_read_b128 {vr(KM,4)}, v{vA} offset:1024
    ds_read_b128 {vr(KM+4,4)}, v{vA} offset:1536
    s_mov_b64 exec, {sr(sVm,2)}
    ds_read_b128 {vr(V,4)}, v{vA} offset:2560
    ds_read_b128 {vr(V+4,4)}, v{vA} offset:2880
    s_mov_b64 exec, -1
    s_nop 7
    .p2align 6
    K2_loop:
    """)
    for l in abody.body(R, 0, (3, 2, 1), sVm): a(l)
    a(f"""
    v_add_u32 v{vA}, 10240, v{vA}
    s_sub_u32 s{sI}, s{sI}, 1
    s_cmp_lg_u32 s{sI}, 0
    s_cbranch_scc1 K2_loop
    s_and_b32 s{sI}, s{sSeg}, 15
    s_cbranch_scc0 K2_exit
    s_lshr_b32 s{sSeg}, s{sSeg}, 4
    s_barrier
    s_branch K2_loop
    K2_exit:
    """); stamp(a, 5); a(f"""
    {MF(vr(O,16), vr(V+12,4), vr(P+12,4), vr(O,16))}
    s_mov_b32 s46, {f32(2.0**-64)}
    s_mov_b32 s47, {f32(2.0**64)}
    s_lshr_b32 s54, s{sHD}, 2
    s_mul_i32 s54, s54, 5
    s_mul_i32 s55, s{sRT}, 40
    s_add_u32 s54, s54, s55
    s_lshl_b32 s54, s54, 10
    s_add_u32 s54, s54, {WS_O}
    s_and_b32 s55, s{sHD}, 3
    s_lshl_b32 s55, s55, 10
    s_add_u32 s55, s55, s54
    s_bfe_u32 s{sT2}, s{sHD}, 0x10001
    s_lshl_b32 s{sT2}, s{sT2}, 9
    s_add_u32 s54, s54, s{sT2}
    s_and_b32 s{sT2}, s{sHD}, 1
    s_lshl_b32 s{sT2}, s{sT2}, 3
    s_add_u32 s54, s54, s{sT2}
    s_add_u32 s54, s54, 4096
    v_cmp_nle_f32 vcc, s46, v{O+12}
    v_cmp_nge_f32 s[46:47], s47, v{O+12}
    s_waitcnt lgkmcnt(0)
    s_or_b64 vcc, vcc, s[46:47]
    s_cbranch_scc1 K2_slow
    K2_fin:
    v_rcp_f32 v{P}, v{O+12}
    s_lshl_b32 s{sT3}, s{sRT}, 5
    s_add_u32 s{sT3}, s{sT3}, s{sHD}
    s_lshl_b32 s{sT3}, s{sT3}, 7
    s_add_u32 s{sT3}, s{sT3}, {WS_F3}
    """)
    for i in range(12): a(f"v_mul_f32 v{O+i}, v{O+i}, v{P}")
    for i in range(6): a(f"v_cvt_pk_bf16_f32 v{S+i}, v{O+2*i}, v{O+2*i+1}")
    a(f"""
    buffer_store_dwordx4 {vr(S,4)}, v{vD}, {sr(WS,4)}, s55 offen sc1
    s_mov_b32 exec_hi, 0
    buffer_store_dwordx2 {vr(S+4,2)}, v{vD}, {sr(WS,4)}, s54 offen sc1
    s_mov_b32 exec_hi, -1
    """)
    setflag(a, sT3, WS, 4, 5)
    a("s_barrier")
    sKQ, sRB2, sNB, sH0, sH1, sWp = 33, 35, 36, 46, 47, 48
    XR = 104; RR = 108
    def fin_prep():
        tile_ids(a, sRB2, sNB, sT0)
        srd(a, X, 8, 2048*1280); srd(a, OUT, 18, 2048*1280)
        a(f"""
        s_lshl_b32 s{sT0}, s{sW}, 6
        v_add_u32 v4, s{sT0}, v{vL}
        v_mul_u32_u24 v5, 6554, v4
        v_lshrrev_b32 v5, 16, v5
        v_mul_u32_u24 v5, {1280-160}, v5
        v_lshlrev_b32 v4, 4, v4
        v_add_u32 v5, v5, v4
        s_mul_i32 s{sT3}, s{sRB2}, {64*1280}
        s_mul_i32 s{sT1}, s{sNB}, 160
        s_add_u32 s{sT3}, s{sT3}, s{sT1}
        v_add_u32 v6, 51200, v4
        buffer_load_dwordx4 {vr(XR,4)}, v5, {sr(X,4)}, s{sT3} offen
        """)
    fin_prep()
    a("K3_bar:\ns_barrier")
    for p in range(4):
        for h in range(2): a(f"ds_read_b128 {vr(RR+8*p+4*h,4)}, v{4 if p < 2 else 6} offset:{(p%2)*25600 + h*10240}")
    a("s_waitcnt vmcnt(0)")
    for i in range(4): a(f"v_lshlrev_b32 v{8+2*i}, 16, v{XR+i}\nv_and_b32 v{9+2*i}, 0xffff0000, v{XR+i}")
    for p in range(4):
        a(f"s_waitcnt lgkmcnt({6-2*p})")
        for i in range(4): a(f"v_pk_add_f32 {vr(8+2*i,2)}, {vr(8+2*i,2)}, {vr(RR+8*p+2*i,2)}")
    for i in range(4): a(f"v_cvt_pk_bf16_f32 v{XR+i}, v{8+2*i}, v{9+2*i}")
    a(f"buffer_store_dwordx4 {vr(XR,4)}, v5, {sr(OUT,4)}, s{sT3} offen\nK_pe:")
    prof_end(a, 0, WS, sW)
    a("K_end:\ns_endpgm")
    vW, vW2 = 1, 3
    ACC, FR = 8, 104
    a("K2_G:"); aids()
    a(f"""
    s_lshl_b32 s{sT0}, s{sR}, 10
    s_add_u32 s{sSrc}, s{sT0}, {WS_KV}
    s_mov_b32 m0, s{sT0}
    s_and_b32 s{sT0}, s2, 63
    s_lshl_b32 s{sT0}, s{sT0}, 8
    s_add_u32 s{sT0}, s{sT0}, {WS_FK}
    v_mov_b32 v4, s{sT0}
    """)
    poll(a, "K2_p1", 4, 5, WS, sT3)
    stamp(a, 2)
    def fill(n, lab):
        a(f"""
        s_mov_b32 s{sI}, {n}
        {lab}:
        buffer_load_dwordx4 v{vD}, {sr(WS,4)}, s{sSrc} offen sc1 lds
        s_add_u32 s{sSrc}, s{sSrc}, 4096
        s_add_u32 m0, m0, 4096
        s_sub_u32 s{sI}, s{sI}, 1
        s_cmp_lg_u32 s{sI}, 0
        s_cbranch_scc1 {lab}
        """)
    fill(10, "K2_f1")
    rowidx(a, sT1, sRT, sT0)
    a(f"""
    s_mul_i32 s{sT2}, s{sCB}, 10
    s_lshr_b32 s{sT2}, s{sT2}, 2
    v_and_b32 v4, 2, v{vL}
    v_add_u32 v4, s{sT2}, v4
    v_lshrrev_b32 v4, 1, v4
    v_lshl_add_u32 v4, v4, 5, s{sT1}
    v_lshlrev_b32 v4, 7, v4
    v_add_u32 v4, {WS_F1}, v4
    s_mul_i32 s{sT0}, s{sRT}, 40
    s_add_u32 s{sT0}, s{sT0}, s{sT2}
    s_lshl_b32 s{sT0}, s{sT0}, 10
    s_mov_b32 s{sSeg}, m0
    s_mul_i32 s{sT1}, s{sR}, 3072
    s_add_u32 m0, s{sT1}, {XQ}
    """)
    for i in range(96): a(f"v_mov_b32 v{ACC+i}, 0")
    poll(a, "K2_p2", 4, 5, WS, sT3)
    for i in range(3): a(f"buffer_load_dwordx4 v{vD}, {sr(WS,4)}, s{sT0} offen offset:{1024*i} sc1 lds")
    tile_ids(a, sRB2, sNB, sT0)
    wlane(a, vL, vW, vW2, 5)
    a(f"""
    s_mov_b32 m0, s{sSeg}
    s_waitcnt vmcnt(0)
    s_barrier
    """); stamp(a, 3)
    fill(26, "K2_f2")
    a(f"s_lshl_b32 s{sT2}, s{sRB2}, 1")
    rowidx(a, sH0, sT2, sT0)
    a(f"s_add_u32 s{sT2}, s{sT2}, 1")
    rowidx(a, sH1, sT2, sT0)
    a(f"""
    v_and_b32 v4, 1, v{vL}
    v_cmp_eq_u32 vcc, 0, v4
    v_mov_b32 v4, s{sH0}
    v_mov_b32 v5, s{sH1}
    v_cndmask_b32 v4, v5, v4, vcc
    v_lshrrev_b32 v5, 1, v{vL}
    v_min_u32 v5, 11, v5
    s_mul_i32 s{sT0}, s{sKQ}, 12
    s_add_u32 s{sT0}, s{sT0}, 20
    v_add_u32 v5, s{sT0}, v5
    v_lshl_add_u32 v4, v5, 5, v4
    v_cmp_gt_u32 vcc, 32, v{vL}
    v_min_u32 v5, 53, v{vL}
    v_add_u32 v5, {72*32 - 32}, v5
    v_cndmask_b32 v4, v5, v4, vcc
    v_lshlrev_b32 v4, 7, v4
    v_add_u32 v4, {WS_F1}, v4
    s_mul_i32 s{sH0}, s{sRB2}, 192
    s_mul_i32 s{sT0}, s{sKQ}, 24
    s_add_u32 s{sH0}, s{sH0}, s{sT0}
    s_lshl_b32 s{sH0}, s{sH0}, 10
    s_add_u32 s{sH0}, s{sH0}, {WS_H}
    s_add_u32 s{sH1}, s{sH0}, {96*1024}
    s_mul_i32 s{sWp}, s{sT0}, 20480
    s_mul_i32 s{sT0}, s{sNB}, 2560
    s_add_u32 s{sWp}, s{sWp}, s{sT0}
    s_add_u32 s{sWp}, s{sWp}, {WS_WP}
    """)
    poll(a, "K2_p3", 4, 5, WS, sT3)
    def gload(j):
        b = FR + 20 * j
        a(f"""
        buffer_load_dwordx4 {vr(b,4)}, v{vD}, {sr(WS,4)}, s{sH0} offen offset:{1024*j} sc1
        buffer_load_dwordx4 {vr(b+4,4)}, v{vD}, {sr(WS,4)}, s{sH1} offen offset:{1024*j} sc1
        buffer_load_dwordx4 {vr(b+8,4)}, v{vW}, {sr(WS,4)}, s{sWp} offen sc1
        buffer_load_dwordx4 {vr(b+12,4)}, v{vW}, {sr(WS,4)}, s{sWp} offen offset:1024 sc1
        buffer_load_dwordx4 {vr(b+16,4)}, v{vW2}, {sr(WS,4)}, s{sWp} offen offset:2048 sc1
        s_add_u32 s{sWp}, s{sWp}, 20480
        """)
    for j in range(3): gload(j)
    a("s_barrier")
    fill(4, "K2_f3")
    a(f"""
    s_mov_b32 s{sI}, 8
    K2_Gl:
    s_add_u32 s{sH0}, s{sH0}, 3072
    s_add_u32 s{sH1}, s{sH1}, 3072
    s_cmp_eq_u32 s{sI}, 1
    s_cselect_b32 s{sH0}, {WS_END}, s{sH0}
    s_cselect_b32 s{sH1}, {WS_END}, s{sH1}
    s_cselect_b32 s{sWp}, {WS_END}, s{sWp}
    """)
    def mm6(aw, bo):
        for t in range(3):
            for r in range(2):
                a(MF(vr(ACC+48*r+16*t,16), vr(aw+4*t,4), vr(bo+4*r,4), vr(ACC+48*r+16*t,16)))
    for j in range(3):
        b = FR + 20 * j
        a("s_waitcnt vmcnt(10)")
        mm6(b + 8, b)
        gload(j)
    a(f"""
    s_sub_u32 s{sI}, s{sI}, 1
    s_cmp_lg_u32 s{sI}, 0
    s_cbranch_scc1 K2_Gl
    """); 'st2' in OPT or stamp(a, 4)
    a(f"""
    s_mul_i32 s{sT2}, s{sKQ}, 25600
    s_mul_i32 s{sWp}, s{sKQ}, {10*20480}
    s_mul_i32 s{sT0}, s{sNB}, 2560
    s_add_u32 s{sWp}, s{sWp}, s{sT0}
    s_add_u32 s{sWp}, s{sWp}, {WS_WP + 96*20480}
    s_mov_b32 m0, s{sT2}
    v_add_u32 v{vW}, s{sT2}, v{vW}
    v_add_u32 v{vW2}, s{sT2}, v{vW2}
    s_lshl_b32 s{sT0}, s{sRB2}, 3
    s_add_u32 s{sT0}, s{sT0}, s{sKQ}
    s_lshl_b32 s{sT0}, s{sT0}, 10
    s_add_u32 s{sT0}, s{sT0}, {WS_F3}
    v_and_b32 v7, 39, v{vL}
    v_lshl_add_u32 v7, v7, 7, s{sT0}
    s_mul_i32 s{sH0}, s{sRB2}, 80
    s_mul_i32 s{sT0}, s{sKQ}, 10
    s_add_u32 s{sH0}, s{sH0}, s{sT0}
    s_lshl_b32 s{sH0}, s{sH0}, 10
    s_add_u32 s{sH0}, s{sH0}, {WS_O}
    s_add_u32 s{sH1}, s{sH0}, 40960
    s_mov_b32 s{sI}, 10
    s_waitcnt vmcnt(0)
    s_barrier
    K2_f4:
    buffer_load_dwordx4 v{vD}, {sr(WS,4)}, s{sWp} offen sc1 lds
    buffer_load_dwordx4 v{vD}, {sr(WS,4)}, s{sWp} offen offset:1024 sc1 lds
    s_mov_b32 exec_hi, 0
    buffer_load_dwordx4 v{vD}, {sr(WS,4)}, s{sWp} offen offset:2048 sc1 lds
    s_mov_b32 exec_hi, -1
    s_add_u32 s{sWp}, s{sWp}, 20480
    s_add_u32 m0, m0, 2560
    s_sub_u32 s{sI}, s{sI}, 1
    s_cmp_lg_u32 s{sI}, 0
    s_cbranch_scc1 K2_f4
    """)
    FO, FW = 104, 140
    def wread(j):
        b = FW + 12 * (j % 2)
        a(f"""
        ds_read_b128 {vr(b,4)}, v{vW} offset:{2560*j}
        ds_read_b128 {vr(b+4,4)}, v{vW} offset:{2560*j+1024}
        ds_read_b128 {vr(b+8,4)}, v{vW2} offset:{2560*j+2048}
        """)
    def oload(j):
        b = FO + 8 * (j % 4)
        a(f"""
        buffer_load_dwordx4 {vr(b,4)}, v{vD}, {sr(WS,4)}, s{sH0} offen offset:{1024*(j%4)} sc1
        buffer_load_dwordx4 {vr(b+4,4)}, v{vD}, {sr(WS,4)}, s{sH1} offen offset:{1024*(j%4)} sc1
        """)
        if j % 4 == 3: a(f"s_add_u32 s{sH0}, s{sH0}, 4096\ns_add_u32 s{sH1}, s{sH1}, 4096")
    a("s_waitcnt vmcnt(0)")
    wread(0); wread(1)
    a("s_setprio 3\ns_barrier")
    poll(a, "K2_p4", 7, 5, WS, sT3)
    'st2' in OPT or stamp(a, 5)
    for j in range(4): oload(j)
    for j in range(10):
        later = min(j + 3, 9) - j
        a(f"s_waitcnt vmcnt({2*later}) lgkmcnt({0 if (j == 9 or PROF) else 3})")
        mm6(FW + 12 * (j % 2), FO + 8 * (j % 4))
        if j + 4 < 10: oload(j + 4)
        if j + 2 < 10: wread(j + 2)
    fin_prep()
    a(f"""
    v_and_b32 v7, 31, v{vL}
    v_mul_u32_u24 v7, 160, v7
    v_lshrrev_b32 v{RR}, 5, v{vL}
    v_mul_u32_u24 v{RR}, 10240, v{RR}
    v_add3_u32 v7, v7, v{RR}, s{sT2}
    """)
    for r in range(2):
        for o in range(10): a(f"ds_write_b128 v7, {vr(ACC+48*r+4*o,4)} offset:{5120*r+16*o}")
    a(f"""
    s_waitcnt lgkmcnt(0)
    s_cmp_lt_u32 s{sW}, 10
    s_cbranch_scc1 K3_bar
    s_barrier
    {"s_branch K_pe" if PROF else "s_endpgm"}
    """)
    vMx = 3
    sP, sO1, sO2, sO3 = 48, 49, 50, 51
    a(f"""
    K2_slow:
    v_subrev_u32 v{vA}, {16*10240}, v{vA}
    v_mov_b32 v{vMx}, 0xff800000
    s_mov_b32 s{sP}, 0
    """)
    for i in range(16): a(f"v_mov_b32 v{O+i}, 0")
    a(f"""
    K2_sp:
    s_mov_b32 s{sI}, 0
    K2_sl:
    s_lshr_b32 s{sT0}, s{sI}, 1
    s_mul_i32 s{sT0}, s{sT0}, 10240
    s_add_u32 s{sT0}, s{sT0}, {WS_KV}
    s_and_b32 s{sT1}, s{sI}, 1
    s_lshl_b32 s{sO1}, s{sT1}, 10
    s_add_u32 s{sO1}, s{sO1}, s{sT0}
    s_lshl_b32 s{sO2}, s{sT1}, 3
    s_add_u32 s{sO2}, s{sO2}, s{sT0}
    s_mul_i32 s{sO3}, s{sT1}, 1280
    s_add_u32 s{sO3}, s{sO3}, s{sT0}
    buffer_load_dwordx4 {vr(KM,4)}, v{vA}, {sr(WS,4)}, s{sO1} offen sc1
    buffer_load_dwordx4 {vr(KM+4,4)}, v{vA}, {sr(WS,4)}, s{sO1} offen offset:512 sc1
    buffer_load_dwordx2 {vr(KT,2)}, v{vA}, {sr(WS,4)}, s{sO2} offen offset:2048 sc1
    s_mov_b64 exec, {sr(sVm,2)}
    """)
    for f in range(4): a(f"buffer_load_dwordx4 {vr(V+4*f,4)}, v{vA}, {sr(WS,4)}, s{sO3} offen offset:{2560+320*f} sc1")
    a(f"""
    s_mov_b64 exec, -1
    s_waitcnt vmcnt(0)
    v_mfma_f32_32x32x4_2b_bf16 {vr(S,32)}, {vr(KT,2)}, {vr(QT,2)}, 0
    s_nop 15
    s_nop 3
    {MF(vr(S,16), vr(KM,4), vr(QM,4), vr(S,16))}
    {MF(vr(S+16,16), vr(KM+4,4), vr(QM,4), vr(S+16,16))}
    s_cmp_lg_u32 s{sP}, 0
    s_nop 12
    s_cbranch_scc1 K2_sp2
    """)
    for i in range(16): a(f"v_max3_f32 v{vMx}, v{S+2*i}, v{S+2*i+1}, v{vMx}")
    a("s_branch K2_snext\nK2_sp2:")
    for i in range(32): a(f"v_sub_f32 v{S+i}, v{S+i}, v{vMx}")
    for i in range(32): a(f"v_exp_f32 v{S+i}, v{S+i}")
    a("s_nop 0")
    for i in range(16): a(f"v_cvt_pk_bf16_f32 v{P+i}, v{S+2*i}, v{S+2*i+1}")
    a("s_nop 1")
    for f in range(4): a(MF(vr(O,16), vr(V+4*f,4), vr(P+4*f,4), vr(O,16)))
    a(f"""
    s_nop 15
    K2_snext:
    s_add_u32 s{sI}, s{sI}, 1
    s_cmp_lt_u32 s{sI}, 32
    s_cbranch_scc1 K2_sl
    s_cmp_lg_u32 s{sP}, 0
    s_cbranch_scc1 K2_fin
    v_mov_b32 v{P}, v{vMx}
    s_nop 1
    v_permlane32_swap_b32 v{P}, v{vMx}
    s_mov_b32 s{sP}, 1
    v_max_f32 v{vMx}, v{vMx}, v{P}
    s_branch K2_sp
    """)
    return 164

def main(out):
    a = Asm()
    gen_k1(a); n = gen_k2(a)
    head = f"""; LayerNorm + MQA attention + SiLU FFN in one launch (generated by work/gen4.py)
; @launch grid=(256,1,1) block=(768,1,1) lds=163840
.amdgcn_target "amdgcn-amd-amdhsa--gfx950"
.text
"""
    tail = '.section .rodata,"a"\n' + kdesc(KN, n)
    open(out, "w").write(head + a.text() + tail)

if __name__ == "__main__":
    if "--prof" in sys.argv:
        PROF = True; sys.argv.remove("--prof")
    main(sys.argv[1] if len(sys.argv) > 1 else f"cdna_kernels/{NAME}.s")
```

```python
import sys, math, os, struct
import abody, kbody
OPT = set(os.environ.get('OPT', '').split(','))
NAME = "parallel_sum__grouped_kv_mqa__dense_activation_silu__prompt"
WS_Q, WS_KV, WS_H, WS_O, WS_WP, WS_Y, WS_PROF, WS_END = 0, 0x300000, 0x340000, 0x940000, 0xD00000, 0x1000000, 0xC00000, 0x1500000
WS_SR, WS_SC = 0x280000, 0x2D2000
WS_F1, WS_F3, WS_FK = 0x1000000, 0x1080000, 0x1060000
SLP = int(os.environ.get('SLP', '4'))
XB = 147456; XFC, XN, XQ = XB + 2560, XB + 3072, XB + 4096
sN = 68
KN = NAME + '_kernel'
SPINMAX = 20000
ROTR, ROTC = (int(c) for c in os.environ.get('ROT', '3,3').split(','))
PRE = int(os.environ.get('PRE', '2'))
PRE_CTRL = """s_or_b32 s{sT0}, s{sI}, 2
    s_cmp_eq_u32 s{sT0}, 3
    s_cbranch_scc1 K1_issue
    s_cmp_lg_u32 s{sI}, 2
    s_cbranch_scc1 K1_w18""" if PRE == 2 else """s_cmp_lt_u32 s{sI}, %d
    s_cbranch_scc1 K1_issue
    s_cmp_lg_u32 s{sI}, %d
    s_cbranch_scc1 K1_w18""" % (PRE, PRE)
HOOK = int(os.environ.get('HOOK', '9'))
LOG2E = 1.4426950408889634
def f32(x): return "0x%08x" % struct.unpack("<I", struct.pack("<f", x))[0]

class Asm:
    def __init__(self): self.l = []
    def __call__(self, s):
        for x in s.strip("\n").split("\n"):
            x = x.strip()
            if x: self.l.append(("" if x.endswith(":") else "    ") + x)
    def text(self): return "\n".join(self.l) + "\n"
def vr(a, n): return "v[%d:%d]" % (a, a + n - 1)
def ar(a, n): return "a[%d:%d]" % (a, a + n - 1)
def sr(a, n): return "s[%d:%d]" % (a, a + n - 1)
def srd(a, d, base, nbytes):
    a(f"s_mov_b32 s{d}, s{base}\ns_mov_b32 s{d+1}, s{base+1}\ns_mov_b32 s{d+2}, {nbytes}\ns_mov_b32 s{d+3}, 0x00020000")
def kdesc(name, vgpr, agpr=0, sgpr=102):
    acc = (vgpr + 3) // 4 * 4
    return f""".p2align 6
.amdhsa_kernel {name}
  .amdhsa_next_free_vgpr {acc + agpr if agpr else vgpr}
  .amdhsa_next_free_sgpr {sgpr}
  .amdhsa_accum_offset {acc}
  .amdhsa_group_segment_fixed_size 0
  .amdhsa_kernarg_size 88
  .amdhsa_user_sgpr_count 2
  .amdhsa_user_sgpr_kernarg_segment_ptr 1
  .amdhsa_system_sgpr_workgroup_id_x 1
.end_amdhsa_kernel
"""
def khead(a, name): a.l.append(f".globl {name}\n.p2align 8\n.type {name},@function\n{name}:")
PROF = False
DIAGX = int(os.environ.get('DIAGX', '0'))
def stamp(a, i):
    if DIAGX:
        a(f"s_memrealtime s[{70+2*i}:{71+2*i}]")
        return
    if 'dbgt' in OPT:
        a(f"s_memrealtime s[{70+2*i}:{71+2*i}]")
        if i == 0: a("s_mov_b32 s72, 0\ns_mov_b32 s74, 0\ns_mov_b32 s76, 0")
        return
    if PROF:
        a(f"s_memtime s[{70+2*i}:{71+2*i}]")
        if i == 0: a("s_memrealtime s[84:85]")
def prof_end(a, kidx, WS, sW):
    if DIAGX:
        a(f"""
        s_cmp_lg_u32 s{sW}, 0
        s_cbranch_scc1 K_end
        s_cmp_lg_u32 s2, {int(os.environ.get('DIAGWG', '40'))}
        s_cbranch_scc1 K_end
        s_waitcnt vmcnt(0)
        s_memrealtime s[82:83]
        s_waitcnt lgkmcnt(0)
        {f"s_sub_u32 s84, s{70+2*DIAGX}, s70" if DIAGX < 7 else f"s_sub_u32 s84, s70, s{sN}"}
        {"s_add_u32 s84, s84, 1500" if DIAGX == 7 else ""}
        s_lshl_b32 s84, s84, 2
        K_dl:
        s_memrealtime s[86:87]
        s_waitcnt lgkmcnt(0)
        s_sub_u32 s86, s86, s82
        s_cmp_lt_u32 s86, s84
        s_cbranch_scc1 K_dl
        """)
        return
    if 'dbgt' in OPT:
        a(f"""
        s_cmp_lg_u32 s{sW}, 0
        s_cbranch_scc1 K_end
        s_waitcnt vmcnt(0)
        s_memrealtime s[82:83]
        s_mov_b32 s20, s4
        s_mov_b32 s21, s5
        s_mov_b32 s22, 256
        s_mov_b32 s23, 0x00020000
        s_mov_b64 exec, 1
        v_mov_b32 v0, 0
        s_waitcnt lgkmcnt(0)
        s_not_b32 s84, s70
        v_mov_b32 v1, s84
        buffer_atomic_umax v1, v0, s[20:23], 0 offen offset:4
        """)
        for i in range(7):
            a(f"v_mov_b32 v{2+i}, s{70+2*i}\nbuffer_atomic_umax v{2+i}, v0, s[20:23], 0 offen offset:{8+4*i}")
        return
    if not PROF: return
    a(f"""
    s_waitcnt vmcnt(0)
    s_memtime s[82:83]
    s_memrealtime s[86:87]
    s_mov_b64 exec, -1
    s_waitcnt lgkmcnt(0)
    s_lshl_b32 s88, s2, 4
    s_add_u32 s88, s88, s{sW}
    s_lshl_b32 s88, s88, 6
    s_add_u32 s88, s88, {WS_PROF + kidx * 0x40000}
    v_mov_b32 v0, 0
    """)
    for i in range(7): a(f"v_mov_b32 v{4+i}, s{70+2*i}")
    a(f"""
    v_mov_b32 v11, s84
    v_mov_b32 v12, s86
    v_mov_b32 v13, 0
    v_mov_b32 v14, 0
    v_mov_b32 v15, 0
    s_mov_b64 exec, 1
    buffer_store_dwordx4 v[4:7], v0, {sr(WS,4)}, s88 offen
    buffer_store_dwordx4 v[8:11], v0, {sr(WS,4)}, s88 offen offset:16
    buffer_store_dwordx4 v[12:15], v0, {sr(WS,4)}, s88 offen offset:32
    """)
def poll(a, lab, vaddr, vtmp, WS, sCnt):
    a(f"""
    s_mov_b32 s{sCnt}, 0
    {lab}:
    buffer_load_dword v{vtmp}, v{vaddr}, {sr(WS,4)}, 0 offen sc1
    s_add_u32 s{sCnt}, s{sCnt}, 1
    s_waitcnt vmcnt(0)
    v_cmp_ne_u32 vcc, s{sN}, v{vtmp}
    s_cbranch_vccz {lab}x
    s_sleep {SLP}
    s_cmp_lt_u32 s{sCnt}, {SPINMAX}
    s_cbranch_scc1 {lab}
    {lab}x:
    """)
def setflag(a, soff, WS, v0, v1, emask="1"):
    a(f"""
    v_mov_b32 v{v0}, s{sN}
    v_lshlrev_b32 v{v1}, 8, v0
    s_mov_b64 exec, {emask}
    s_waitcnt vmcnt(0)
    buffer_store_dword v{v0}, v{v1}, {sr(WS,4)}, s{soff} offen sc1
    s_mov_b64 exec, -1
    """)
def rowidx(a, d, rt, t):
    a(f"""
    s_mul_i32 s{d}, s{rt}, 205
    s_lshr_b32 s{d}, s{d}, 10
    s_mul_i32 s{t}, s{d}, 5
    s_sub_u32 s{t}, s{rt}, s{t}
    s_lshl_b32 s{d}, s{d}, 1
    s_cmp_ge_u32 s{t}, 3
    s_addc_u32 s{d}, s{d}, 0
    """)
def round_bf16(a, d, s): a(f"v_cvt_pk_bf16_f32 v{d}, v{s}, v{s}\nv_lshlrev_b32 v{d}, 16, v{d}")
def MF(d, A, B, C): return f"v_mfma_f32_32x32x16_bf16 {d}, {A}, {B}, {C}"

def gen_k1(a):
    khead(a, KN)
    SLOT = 36864
    sW, sR, sG, sRB, sCB = 32, 33, 34, 35, 36
    sI, sK, sSlot, sT0, sT1, sMx, sMw, sStr64, sDelta, sRd, sT2, sT3, sK0, sMB, sU, sTyp, sRT, sS32, sOnes = 38, 39, 40, 41, 42, 43, 44, 45, 46, 47, 48, 49, 50, 51, 52, 53, 54, 55, 37
    sEA, sEB, sIdle = 56, 58, 69
    X, WA, WS, WB, DBG = 20, 24, 28, 64, 20
    vL, vXs, vWs, vCom = 0, 1, 2, 11
    vAx, vAw = 12, 16
    vT = 24
    AC = 32; fW, fX = 80, 96
    a(f"""
    s_cmp_ge_u32 s2, 256
    s_cbranch_scc1 K_end
    """); stamp(a, 0); a(f"""
    s_load_dwordx8 s[8:15], s[0:1], 0
    s_load_dwordx2 s[16:17], s[0:1], 32
    s_load_dwordx4 s[60:63], s[0:1], 48
    s_load_dwordx4 s[4:7], s[0:1], 72
    s_load_dwordx2 s[18:19], s[0:1], 64
    v_lshrrev_b32 v1, 6, v0
    v_and_b32 v{vL}, 63, v0
    v_readfirstlane_b32 s{sW}, v1
    s_and_b32 s{sT0}, s2, 7
    s_lshr_b32 s{sT1}, s2, 3
    s_mul_i32 s{sT2}, s{sT0}, 30
    s_add_u32 s{sT2}, s{sT2}, s{sT1}
    v_lshrrev_b32 v{vT}, 5, v{vL}
    v_and_b32 v{vT+1}, 3, v{vL}
    v_bfe_u32 v{vT+2}, v{vL}, 2, 3
    v_lshlrev_b32 v{vT+3}, 4, v{vT+1}
    v_bfe_u32 v{vT+4}, v{vL}, 2, 2
    v_bfe_u32 v{vT+5}, v{vL}, 4, 1
    v_lshl_add_u32 v{vT+4}, v{vT+4}, 1, v{vT+5}
    v_lshl_add_u32 v{vT+4}, v{vT+4}, 2, v{vT+1}
    v_lshlrev_b32 v{vCom}, 3, v{vT+4}
    s_mov_b32 s{WS+2}, {WS_END}
    s_mov_b32 s{WS+3}, 0x00020000
    s_cmp_ge_u32 s{sT1}, 30
    s_cbranch_scc1 K1_aux
    s_cmp_ge_u32 s{sT2}, 234
    s_cbranch_scc1 K1_aux
    s_cmp_lt_u32 s{sT2}, 126
    s_cselect_b32 s{sT0}, 0, 126
    s_cselect_b32 s{sT1}, 7, 6
    s_movk_i32 s{sT3}, 10923
    s_cselect_b32 s{sT3}, 9363, s{sT3}
    s_cselect_b32 s{sRB}, 0, 7
    s_sub_u32 s{sT2}, s{sT2}, s{sT0}
    s_mul_i32 s{sCB}, s{sT2}, s{sT3}
    s_lshr_b32 s{sCB}, s{sCB}, 16
    s_mul_i32 s{sT1}, s{sT1}, s{sCB}
    s_sub_u32 s{sT2}, s{sT2}, s{sT1}
    s_add_u32 s{sRB}, s{sRB}, s{sT2}
    s_and_b32 s{sR}, s{sW}, 3
    s_mul_i32 s{sK}, s{sRB}, {ROTR}
    s_mul_i32 s{sT0}, s{sCB}, {ROTC}
    s_add_u32 s{sK}, s{sK}, s{sT0}
    s_mul_i32 s{sT0}, s{sK}, 6554
    s_lshr_b32 s{sT0}, s{sT0}, 16
    s_mul_i32 s{sT0}, s{sT0}, 10
    s_sub_u32 s{sK}, s{sK}, s{sT0}
    s_mov_b32 s{sOnes}, 0x3f803f80
    s_cmp_eq_u32 s{sCB}, 17
    s_cselect_b32 s{sT0}, 1, 3
    s_and_b32 s{sT0}, s{sT0}, s{sR}
    s_lshr_b32 s{sT1}, s{sT0}, 1
    s_lshl_b32 s{sT1}, s{sT1}, 13
    s_and_b32 s{sT0}, s{sT0}, 1
    s_lshl_b32 s{sT0}, s{sT0}, 9
    s_add_u32 s{sT0}, s{sT0}, s{sT1}
    s_add_u32 s{sT0}, s{sT0}, 20480
    v_lshl_add_u32 v{vAw}, v{vT}, 10, v{vCom}
    v_add_u32 v{vAw}, s{sT0}, v{vAw}
    s_cmp_lt_u32 s{sW}, 8
    s_cbranch_scc1 K1_C
    """)
    a(f"""
    s_mul_i32 s{sT0}, s{sRB}, 160
    s_lshl_b32 s{sT1}, s{sR}, 3
    s_add_u32 s{sT0}, s{sT0}, s{sT1}
    s_mul_i32 s{sT0}, s{sT0}, 1280
    v_lshrrev_b32 v{vT+4}, 3, v{vL}
    v_mul_u32_u24 v{vT+4}, 1280, v{vT+4}
    v_add_u32 v{vT+4}, s{sT0}, v{vT+4}
    v_and_b32 v{vT+5}, 7, v{vL}
    v_lshrrev_b32 v{vT+6}, 4, v{vL}
    v_xor_b32 v{vT+5}, v{vT+5}, v{vT+6}
    s_and_b32 s{sT0}, s{sR}, 1
    s_lshl_b32 s{sT0}, s{sT0}, 2
    v_xor_b32 v{vT+5}, s{sT0}, v{vT+5}
    v_lshl_add_u32 v{vXs}, v{vT+5}, 4, v{vT+4}
    s_cmp_lt_u32 s{sCB}, 5
    s_movk_i32 s{sT0}, 3072
    s_cselect_b32 s{sT0}, 1280, s{sT0}
    s_cselect_b32 s{sT2}, 0, 5
    s_sub_u32 s{sT2}, s{sCB}, s{sT2}
    s_lshl_b32 s{sT2}, s{sT2}, 8
    v_lshl_add_u32 v{vT+4}, v{vT}, 6, v{vT+3}
    v_add_u32 v{vT+4}, s{sT2}, v{vT+4}
    v_min_u32 v{vT+5}, 24, v{vT+3}
    s_cmp_eq_u32 s{sCB}, 17
    s_cselect_b32 s{sT0}, 40, s{sT0}
    s_cselect_b64 vcc, -1, 0
    s_mov_b32 s{sEA}, -1
    s_cselect_b32 s{sEA+1}, 0, -1
    s_cselect_b32 s{sEB}, 0, -1
    s_mov_b32 s{sEB+1}, -1
    s_movk_i32 s{sMB}, 4096
    s_cselect_b32 s{sMB}, {(-4096) & 0xffffffff}, s{sMB}
    v_cndmask_b32 v{vT+4}, v{vT+4}, v{vT+5}, vcc
    v_add_u32 v{vT+5}, s{sT1}, v{vT+2}
    v_mad_u32_u24 v{vWs}, v{vT+5}, s{sT0}, v{vT+4}
    s_lshl_b32 s{sStr64}, s{sT0}, 6
    s_lshl_b32 s{sS32}, s{sT0}, 5
    s_mul_i32 s{WA+2}, s{sT0}, 640
    s_lshl_b32 s{sMx}, s{sR}, 10
    s_mov_b32 s{sI}, 0
    s_mov_b32 s{sSlot}, 0
    s_mov_b32 s{sRd}, 0
    s_mov_b32 s{X+2}, {2048*1280}
    s_mov_b32 s{X+3}, 0x00020000
    s_mov_b32 s{WA+3}, 0x00020000
    s_mov_b32 s{WB+3}, 0x00020000
    s_waitcnt lgkmcnt(0)
    s_mov_b32 s{X}, s8
    s_mov_b32 s{X+1}, s9
    s_mov_b32 s{WS}, s6
    s_mov_b32 s{WS+1}, s7
    s_cmp_lt_u32 s{sCB}, 5
    s_cselect_b32 s{WA}, s10, s60
    s_cselect_b32 s{WA+1}, s11, s61
    s_add_u32 s{WB}, s{WA}, 128
    s_addc_u32 s{WB+1}, s{WA+1}, 0
    s_sub_u32 s{WB+2}, s{WA+2}, 128
    s_cmp_eq_u32 s{sCB}, 17
    s_cselect_b32 s{WA}, s12, s{WA}
    s_cselect_b32 s{WA+1}, s13, s{WA+1}
    s_cselect_b32 s{WB}, s14, s{WB}
    s_cselect_b32 s{WB+1}, s15, s{WB+1}
    s_cselect_b32 s{WB+2}, s{WA+2}, s{WB+2}
    """)
    stamp(a, 1)
    a(f"""
    K1_issue:
    s_lshl_b32 s{sT0}, s{sK}, 7
    s_add_u32 m0, s{sSlot}, s{sMx}
    s_mul_i32 s{sT1}, s{sK}, s{sStr64}
    """)
    for i in range(5):
        a(f"buffer_load_dwordx4 v{vXs}, {sr(X,4)}, s{sT0} offen lds\ns_add_u32 m0, m0, 4096\ns_add_u32 s{sT0}, s{sT0}, {32*1280}")
    a(f"""
    s_mov_b64 exec, {sr(sEA,2)}
    s_add_u32 s{sT2}, s{sT1}, s{sS32}
    buffer_load_dwordx4 v{vWs}, {sr(WA,4)}, s{sT1} offen lds
    s_add_u32 m0, m0, 4096
    s_add_u32 s{sK}, s{sK}, 1
    buffer_load_dwordx4 v{vWs}, {sr(WA,4)}, s{sT2} offen lds
    s_add_u32 m0, m0, s{sMB}
    s_mov_b64 exec, {sr(sEB,2)}
    buffer_load_dwordx4 v{vWs}, {sr(WB,4)}, s{sT1} offen lds
    s_add_u32 m0, m0, 4096
    s_cmp_eq_u32 s{sK}, 10
    s_cselect_b32 s{sK}, 0, s{sK}
    buffer_load_dwordx4 v{vWs}, {sr(WB,4)}, s{sT2} offen lds
    s_mov_b64 exec, -1
    s_add_u32 s{sSlot}, s{sSlot}, {SLOT}
    s_cmp_eq_u32 s{sSlot}, {4*SLOT}
    s_cselect_b32 s{sSlot}, 0, s{sSlot}
    s_add_u32 s{sI}, s{sI}, 1
    {PRE_CTRL.format(sI=sI, sT0=sT0)}
    s_waitcnt vmcnt({9*(PRE-1)})
    s_barrier
    """)
    for k in range(4):
        for q in range(2): a(f"ds_read_b64_tr_b16 {vr(32+4*k+2*q,2)}, v{vAw} offset:{2048*k+256*q}")
    a(f"""
    v_mov_b32 v48, 0
    v_and_b32 v49, 31, v{vL}
    s_lshl_b32 s{sT0}, s{sR}, 7
    s_add_u32 s{sT0}, s{sT0}, {XQ+1280}
    v_lshl_add_u32 v49, v49, 2, s{sT0}
    s_waitcnt lgkmcnt(0)
    """)
    for i in range(16): a(f"v_dot2c_f32_bf16 v48, s{sOnes}, v{32+i}")
    a(f"""
    s_nop 2
    v_mov_b32 v50, v48
    s_nop 1
    v_permlane32_swap_b32 v50, v48
    v_add_f32 v48, v48, v50
    ds_write_b32 v49, v48
    {"" if PRE == 4 else "s_branch K1_issue"}
    K1_w18:
    s_cmp_eq_u32 s{sI}, 10
    s_cbranch_scc1 K1_g0
    s_waitcnt vmcnt(18) lgkmcnt(0)
    s_barrier
    s_branch K1_issue
    K1_g0:
    """)
    G = 32
    a(f"""
    v_mov_b32 v3, {XN}
    ds_read_b32 v4, v3
    s_cmp_eq_u32 s{sR}, 3
    s_mul_i32 s{sT0}, s{sRB}, 25600
    s_mul_i32 s{sT1}, s{sCB}, 10240
    s_movk_i32 s{sT3}, 2560
    s_cselect_b32 s{sT3}, 1024, s{sT3}
    s_cselect_b32 s{sT0}, s{sT1}, s{sT0}
    s_mov_b32 s{sT1}, {WS_SR}
    s_cselect_b32 s{sT1}, {WS_SC}, s{sT1}
    s_cselect_b32 s{sT2}, 0, s{sR}
    s_add_u32 s{sU}, s{sT0}, s{sT1}
    s_lshl_b32 s{sT2}, s{sT2}, 6
    v_add_u32 v5, s{sT2}, v{vL}
    v_min_u32 v5, 159, v5
    v_lshlrev_b32 v5, 4, v5
    s_mov_b32 s{sI}, 0
    K1_gat:
    s_mov_b32 s{sT0}, s{sU}
    """)
    for k in range(10):
        a(f"buffer_load_dwordx4 {vr(G+4*k,4)}, v5, {sr(WS,4)}, s{sT0} offen sc1\ns_add_u32 s{sT0}, s{sT0}, s{sT3}")
    a(f"""
    s_cmp_lg_u32 s{sI}, 0
    s_cbranch_scc1 K1_g2
    s_waitcnt vmcnt(28)
    s_barrier
    s_waitcnt vmcnt(19)
    s_barrier
    s_waitcnt vmcnt(10)
    s_barrier
    {"s_memtime s[78:79]" if PROF and 'st2' in OPT else ""}
    K1_g2:
    s_add_u32 s{sI}, s{sI}, 1
    s_waitcnt vmcnt(0) lgkmcnt(0)
    v_mov_b32 v6, 0
    """)
    for k in range(10):
        a(f"v_xor_b32 v{G+4*k+1}, v{G+4*k+1}, v4\nv_xor_b32 v{G+4*k+3}, v{G+4*k+3}, v4\nv_or3_b32 v6, v{G+4*k+1}, v{G+4*k+3}, v6")
    a(f"""
    v_cmp_ne_u32 vcc, 0, v6
    s_cmp_gt_u32 s{sI}, {SPINMAX}
    s_cbranch_scc1 K1_g3
    s_cbranch_vccnz K1_gat
    K1_g3:
    {"s_memtime s[80:81]" if PROF and 'st2' in OPT else ""}
    {f"s_add_u32 s72, s70, s{sI}" if PROF and 'st2' in OPT else ""}
    """)
    for k in range(1, 10):
        a(f"v_add_f32 v{G}, v{G}, v{G+4*k}\nv_add_f32 v{G+2}, v{G+2}, v{G+4*k+2}")
    a(f"""
    s_cmp_eq_u32 s{sR}, 3
    s_cbranch_scc1 K1_gc
    v_mul_f32 v{G}, {f32(1.0/640)}, v{G}
    v_mul_f32 v{G+2}, {f32(1.0/640)}, v{G+2}
    v_cvt_pk_bf16_f32 v{G+4}, -v{G}, -v{G}
    v_fma_f32 v{G+2}, -v{G}, v{G}, v{G+2}
    v_max_f32 v{G+2}, 0, v{G+2}
    """)
    round_bf16(a, G+2, G+2)
    a(f"v_add_f32 v{G+2}, {f32(1e-5)}, v{G+2}")
    round_bf16(a, G+2, G+2)
    a(f"v_sqrt_f32 v{G+5}, v{G+2}\ns_nop 0")
    round_bf16(a, G+5, G+5)
    a(f"""
    v_rcp_f32 v{G+6}, v{G+5}
    v_add_u32 v5, {XB+0}, v5
    v_mov_b32 v{G+7}, 0
    ds_write_b128 v5, {vr(G+4,4)}
    s_branch K1_gd
    K1_gc:
    v_and_b32 v{G+1}, 0xffff0000, v{G}
    v_and_b32 v{G+3}, 0xffff0000, v{G+2}
    v_sub_f32 v{G}, v{G}, v{G+1}
    v_sub_f32 v{G+2}, v{G+2}, v{G+3}
    v_cvt_pk_bf16_f32 v{G+4}, v{G+1}, v{G}
    v_cvt_pk_bf16_f32 v{G+5}, v{G+3}, v{G+2}
    v_lshlrev_b32 v5, 3, v{vL}
    v_add_u32 v5, {XFC}, v5
    ds_write_b64 v5, {vr(G+4,2)}
    K1_gd:
    v_readfirstlane_b32 s{sN}, v4
    s_waitcnt lgkmcnt(0)
    s_barrier
    s_branch K2_G
    """)
    vN = 2
    a(f"""
    K1_C:
    s_lshr_b32 s{sG}, s{sW}, 2
    s_mov_b32 s{sK0}, s{sK}
    s_mov_b32 s{DBG+2}, 256
    s_mov_b32 s{DBG+3}, 0x00020000
    v_mov_b32 v{vN+1}, 0
    v_and_b32 v{vT+4}, 31, v{vL}
    v_bfe_u32 v{vT+5}, v{vL}, 1, 3
    v_lshlrev_b32 v{vT+4}, 7, v{vT+4}
    s_waitcnt lgkmcnt(0)
    s_mov_b32 s{WS}, s6
    s_mov_b32 s{WS+1}, s7
    s_mov_b32 s{DBG}, s4
    s_mov_b32 s{DBG+1}, s5
    s_lshl_b32 s{sT1}, s{sW}, 12
    v_lshlrev_b32 v{vT+6}, 2, v{vT}
    v_xor_b32 v{vT+6}, v{vT+6}, v{vT+5}
    v_lshl_add_u32 v4, v{vT+6}, 4, v{vT+4}
    v_add_u32 v4, s{sT1}, v4
    v_xor_b32 v5, 16, v4
    v_xor_b32 v6, 32, v4
    v_xor_b32 v7, 48, v4
    v_xor_b32 v{vT+5}, v{vT+5}, v{vT}
    s_mul_i32 s{sT1}, s{sG}, {3*4096}
    v_add_u32 v{vT+4}, s{sT1}, v{vT+4}
    """)
    for i in range(4):
        a(f"v_xor_b32 v{vT+6}, {2*i}, v{vT+5}\nv_lshl_add_u32 v{vAx+i}, v{vT+6}, 4, v{vT+4}")
    a(f"""
    s_mov_b32 s{sRd}, 0
    s_mov_b32 s{sI}, 10
    s_mov_b32 s{sDelta}, {SLOT}
    s_cmp_eq_u32 s{sW}, 7
    s_cselect_b32 s{sMB}, {HOOK}, 0
    s_sub_u32 s{sT0}, s{sW}, 2
    s_cmp_lt_u32 s{sT0}, 4
    s_cselect_b32 s{sIdle}, 1, 0
    s_cmp_eq_u32 s{sCB}, 17
    s_cselect_b32 s{sIdle}, s{sIdle}, 0
    v_mov_b32 v8, 0
    v_mov_b32 v9, 0
    """)
    for i in range(48): a(f"v_mov_b32 v{AC+i}, 0")
    a("s_barrier")
    stamp(a, 1)
    a(f"s_cmp_lg_u32 s{sW}, 7\ns_cbranch_scc1 K1_non\nbuffer_load_dword v{vN}, v{vN+1}, {sr(DBG,4)}, 0 offen sc1\nK1_non:")
    a(f"s_cmp_ge_u32 s{sW}, 5\ns_cbranch_scc1 K1_nost")
    for i in range(4): a(f"ds_read_b128 {vr(144+4*i,4)}, v{4+i}")
    a(f"""
    v_and_b32 v4, 31, v{vL}
    s_lshl_b32 s{sT0}, s{sW}, 8
    s_add_u32 s{sT0}, s{sT0}, {XQ}
    v_lshl_add_u32 v4, v4, 3, s{sT0}
    s_waitcnt lgkmcnt(0)
    """)
    for i in range(16): a(f"v_dot2c_f32_bf16 v8, s{sOnes}, v{144+i}\nv_dot2c_f32_bf16 v9, v{144+i}, v{144+i}")
    a(f"""
    s_nop 2
    v_mov_b32 v6, v8
    v_mov_b32 v7, v9
    s_nop 1
    v_permlane32_swap_b32 v6, v8
    v_permlane32_swap_b32 v7, v9
    v_add_f32 v8, v8, v6
    v_add_f32 v9, v9, v7
    ds_write_b64 v4, {vr(8,2)}
    s_waitcnt lgkmcnt(0)
    K1_nost:
    """)
    KR = dict(fW=fW, fX=fX, AC=AC, vAx=vAx, vAw=vAw, sDelta=sDelta)
    def cloop(T):
        first, ba, bb, tail = kbody.streamC(KR, T)
        flt = lambda L: [l for l in L if not ('k1nm' in OPT and 'mfma' in l) and not ('k1nr' in OPT and 'ds_read' in l) and not ('k1nx' in OPT and 'ds_read_b128' in l)]
        first, ba, bb, tail = flt(first), flt(ba), flt(bb), flt(tail)
        a(f"K1_start{T}:")
        for l in first: a(l)
        a(f"s_branch K1_mid{T}\nK1_comp{T}:\ns_barrier")
        for l in ba: a(l)
        a(f"K1_mid{T}:")
        for l in bb: a(l)
        a(f"""
        s_add_u32 s{sRd}, s{sRd}, 1
        s_and_b32 s{sRd}, s{sRd}, 3
        s_cmp_eq_u32 s{sRd}, 3
        s_mov_b32 s{sDelta}, {SLOT}
        s_cselect_b32 s{sDelta}, {(-3*SLOT) & 0xffffffff}, s{sDelta}
        """)
        if T == 2: a(f"s_cmp_eq_u32 s{sI}, s{sMB}\ns_cbranch_scc1 K1_pub\nK1_pubr:")
        a(f"""
        s_sub_u32 s{sI}, s{sI}, 1
        s_cmp_lg_u32 s{sI}, 0
        s_waitcnt lgkmcnt(0)
        s_cbranch_scc1 K1_comp{T}
        """)
        for l in tail: a(l)
    a(f"s_cmp_lg_u32 s{sIdle}, 0\ns_cbranch_scc1 K1_idle\ns_cmp_lg_u32 s{sG}, 0\ns_cbranch_scc1 K1_start2")
    cloop(3)
    a("K1_cdone:")
    stamp(a, 2)
    ST, vCA, WK, E, PK = 144, 20, 96, 112, 128
    vS, vMq, vNe, vNB = 26, 24, 30, 22
    a(f"""
    v_and_b32 v3, 31, v{vL}
    s_mul_i32 s{sT0}, s{sG}, {96*16}
    s_add_u32 s{sT0}, s{sT0}, {XB+0}
    v_lshl_add_u32 v4, v3, 4, s{sT0}
    s_lshl_b32 s{sT0}, s{sR}, 7
    s_add_u32 s{sT0}, s{sT0}, {XFC}
    v_lshl_add_u32 v5, v3, 2, s{sT0}
    v_lshlrev_b32 v1, 4, v{vL}
    v_lshlrev_b32 v2, 3, v{vL}
    v_mov_b32 v{vCA+1}, 0
    v_mov_b32 v{vNB+1}, 0
    s_mul_i32 s{sRT}, s{sRB}, 5
    s_mul_i32 s{sT0}, s{sG}, 3
    s_add_u32 s{sRT}, s{sRT}, s{sT0}
    s_sub_u32 s{sU}, 3, s{sG}
    s_cmp_lt_u32 s{sCB}, 5
    s_cselect_b32 s{sTyp}, 0, 1
    s_cmp_eq_u32 s{sCB}, 17
    s_cselect_b32 s{sTyp}, 2, s{sTyp}
    s_mov_b32 s{sK}, {f32(20 ** -0.5 * LOG2E)}
    s_cselect_b32 s{sK}, 1.0, s{sK}
    s_lshl_b32 s{sT0}, s{sCB}, 13
    s_lshl_b32 s{sT1}, s{sR}, 11
    s_add_u32 s{sMx}, s{sT0}, s{sT1}
    v_cmp_gt_u32 vcc, 32, v{vL}
    v_mov_b32 v6, {XN}
    s_barrier
    {"s_memtime s[72:73]" if PROF and 'st2' in OPT else ""}
    ds_read_b32 v6, v6
    ds_read_b32 v{vCA}, v5
    ds_read_b128 {vr(ST,4)}, v4
    ds_read_b128 {vr(ST+4,4)}, v4 offset:512
    ds_read_b128 {vr(ST+8,4)}, v4 offset:1024
    s_mov_b32 s{sI}, 0
    s_waitcnt lgkmcnt(0)
    v_readfirstlane_b32 s{sN}, v6
    v_cndmask_b32 v{vCA}, 0, v{vCA}, vcc
    v_mov_b32 v{vNB}, v{ST}
    v_mov_b32 v{vNB+6}, v{ST+4}
    v_mov_b32 v{vNB+7}, 0
    v_mov_b32 v18, v{ST+8}
    v_mov_b32 v19, 0
    v_mfma_f32_32x32x8_bf16 {vr(AC,16)}, {vr(vCA,2)}, {vr(vNB,2)}, {vr(AC,16)}
    v_mfma_f32_32x32x8_bf16 {vr(AC+16,16)}, {vr(vCA,2)}, {vr(vNB+6,2)}, {vr(AC+16,16)}
    v_mfma_f32_32x32x8_bf16 {vr(AC+32,16)}, {vr(vCA,2)}, {vr(18,2)}, {vr(AC+32,16)}
    s_nop 7
    K1_epi:
    s_cmp_ge_u32 s{sRT}, 64
    s_cbranch_scc1 K1_done
    v_mov_b32 v{vS}, v{ST+1}
    s_cmp_eq_u32 s{sTyp}, 1
    s_cbranch_scc1 K1_epiH
    v_mul_f32 v{vMq}, s{sK}, v{ST+2}
    s_mul_i32 s{sT3}, s{sRT}, 40960
    s_add_u32 s{sT3}, s{sT3}, s{sMx}
    """)
    for i in range(8): a(f"v_pk_mul_f32 {vr(E+2*i,2)}, {vr(AC+2*i,2)}, {vr(vMq,2)} op_sel_hi:[1,0]")
    a(f"""
    s_branch K1_ecvt
    K1_epiH:
    v_mul_f32 v{vNe}, {f32(-LOG2E)}, v{ST+2}
    s_mul_i32 s{sT3}, s{sRT}, {96*1024}
    s_add_u32 s{sT3}, s{sT3}, s{sMx}
    s_add_u32 s{sT3}, s{sT3}, {WS_H - 5*8192}
    """)
    for i in range(8): a(f"v_pk_mul_f32 {vr(E+2*i,2)}, {vr(AC+2*i,2)}, {vr(vNe,2)} op_sel_hi:[1,0]")
    for i in range(16): a(f"v_exp_f32 v{E+i}, v{E+i}")
    for i in range(8): a(f"v_pk_fma_f32 {vr(E+2*i,2)}, {vr(E+2*i,2)}, {vr(vS,2)}, {vr(vS,2)} op_sel_hi:[1,0,0]")
    for i in range(16): a(f"v_rcp_f32 v{E+i}, v{E+i}")
    for i in range(8): a(f"v_pk_mul_f32 {vr(E+2*i,2)}, {vr(E+2*i,2)}, {vr(AC+2*i,2)}")
    a("K1_ecvt:")
    for i in range(8): a(f"v_cvt_pk_bf16_f32 v{PK+i}, v{E+2*i}, v{E+2*i+1}")
    a(f"""
    s_cmp_eq_u32 s{sTyp}, 2
    s_cbranch_scc1 K1_epiKV
    buffer_store_dwordx4 {vr(PK,4)}, v1, {sr(WS,4)}, s{sT3} offen sc1
    buffer_store_dwordx4 {vr(PK+4,4)}, v1, {sr(WS,4)}, s{sT3} offen offset:1024 sc1
    K1_enext:
    s_add_u32 s{sRT}, s{sRT}, 1
    s_add_u32 s{sI}, s{sI}, 1
    s_cmp_eq_u32 s{sI}, s{sU}
    s_cbranch_scc1 K1_done
    s_cmp_eq_u32 s{sI}, 2
    s_cbranch_scc1 K1_e2
    """)
    for i in range(8): a(f"v_pk_mov_b32 {vr(AC+2*i,2)}, {vr(AC+16+2*i,2)}, {vr(AC+16+2*i,2)} op_sel:[0,1]")
    a(f"v_mov_b32 v{ST+1}, v{ST+5}\nv_mov_b32 v{ST+2}, v{ST+6}\ns_branch K1_epi\nK1_e2:")
    for i in range(8): a(f"v_pk_mov_b32 {vr(AC+2*i,2)}, {vr(AC+32+2*i,2)}, {vr(AC+32+2*i,2)} op_sel:[0,1]")
    a(f"""
    v_mov_b32 v{ST+1}, v{ST+9}
    v_mov_b32 v{ST+2}, v{ST+10}
    s_branch K1_epi
    K1_epiKV:
    s_cmp_lg_u32 s{sIdle}, 0
    s_cbranch_scc1 K1_done
    s_lshr_b32 s{sT0}, s{sRT}, 2
    s_mul_i32 s{sT0}, s{sT0}, 10240
    s_add_u32 s{sT0}, s{sT0}, {WS_KV}
    s_and_b32 s{sT2}, s{sRT}, 3
    v_lshrrev_b32 v5, 5, v{vL}
    s_bitcmp1_b32 s{sR}, 0
    s_cbranch_scc1 K1_vst
    v_mul_u32_u24 v4, 5120, v5
    v_lshl_add_u32 v4, v3, 4, v4
    s_lshl_b32 s{sT1}, s{sT2}, 9
    s_add_u32 s{sT1}, s{sT1}, s{sT0}
    buffer_store_dwordx4 {vr(PK,4)}, v4, {sr(WS,4)}, s{sT1} offen sc1
    s_and_b32 s{sT1}, s{sT2}, 1
    s_mul_i32 s{sT1}, s{sT1}, 5120
    s_add_u32 s{sT0}, s{sT0}, s{sT1}
    s_lshr_b32 s{sT1}, s{sT2}, 1
    s_lshl_b32 s{sT1}, s{sT1}, 3
    s_add_u32 s{sT0}, s{sT0}, s{sT1}
    v_lshlrev_b32 v4, 4, v3
    s_mov_b32 exec_lo, 0
    buffer_store_dwordx2 {vr(PK+4,2)}, v4, {sr(WS,4)}, s{sT0} offen offset:2048 sc1
    s_mov_b32 exec_lo, -1
    s_branch K1_enext
    K1_vst:
    s_mul_i32 s{sT1}, s{sT2}, 640
    s_add_u32 s{sT0}, s{sT0}, s{sT1}
    s_add_u32 s{sT1}, s{sT0}, 5120
    s_lshl_b32 s{sT2}, s{sW}, 11
    v_bfe_u32 v4, v3, 2, 1
    v_mul_u32_u24 v4, 640, v4
    v_lshl_add_u32 v4, v5, 6, v4
    v_lshrrev_b32 v5, 4, v3
    v_mul_u32_u24 v5, 320, v5
    v_add_u32 v4, v4, v5
    v_bfe_u32 v5, v3, 3, 1
    v_lshl_add_u32 v4, v5, 3, v4
    v_and_b32 v5, 3, v3
    v_lshl_add_u32 v4, v5, 1, v4
    v_add_u32 v4, s{sT2}, v4
    v_add_u32 v5, s{sT2}, v1
    """)
    for j in range(3):
        if j == 2: a("s_mov_b32 exec_lo, 0")
        o = 128 * j - (64 if j == 2 else 0)
        a(f"""
        ds_write_b16 v4, v{PK+2*j} offset:{o}
        ds_write_b16_d16_hi v4, v{PK+2*j} offset:{o+16}
        ds_write_b16 v4, v{PK+2*j+1} offset:{o+32}
        ds_write_b16_d16_hi v4, v{PK+2*j+1} offset:{o+48}
        """)
    a(f"""
    s_mov_b32 exec_lo, -1
    s_mov_b32 exec_hi, 0xff
    s_waitcnt lgkmcnt(0)
    ds_read_b128 {vr(E,4)}, v5
    ds_read_b128 {vr(E+4,4)}, v5 offset:640
    s_waitcnt lgkmcnt(0)
    buffer_store_dwordx4 {vr(E,4)}, v1, {sr(WS,4)}, s{sT0} offen offset:2560 sc1
    buffer_store_dwordx4 {vr(E+4,4)}, v1, {sr(WS,4)}, s{sT1} offen offset:2560 sc1
    s_mov_b32 exec_hi, -1
    s_branch K1_enext
    """)
    cloop(2)
    a("s_branch K1_cdone")
    a(f"""
    K1_idle:
    s_barrier
    s_sub_u32 s{sI}, s{sI}, 1
    s_cmp_lg_u32 s{sI}, 1
    s_cbranch_scc1 K1_idle
    s_branch K1_cdone
    """)
    P0 = 144
    a(f"""
    K1_pub:
    v_lshlrev_b32 v4, 3, v{vL}
    v_add_u32 v4, {XQ}, v4
    ds_read_b64 {vr(P0,2)}, v4
    ds_read_b64 {vr(P0+2,2)}, v4 offset:512
    ds_read_b64 {vr(P0+4,2)}, v4 offset:1024
    ds_read_b64 {vr(P0+6,2)}, v4 offset:1280
    s_mul_i32 s{sT0}, s{sRB}, 10
    s_add_u32 s{sT0}, s{sT0}, s{sK0}
    s_mul_i32 s{sT0}, s{sT0}, 2560
    s_add_u32 s{sT0}, s{sT0}, {WS_SR}
    s_cmp_lt_u32 s{sCB}, 10
    s_cselect_b32 s{sT0}, s{sT0}, {WS_END}
    s_mul_i32 s{sT1}, s{sCB}, 10
    s_add_u32 s{sT1}, s{sT1}, s{sK0}
    s_lshl_b32 s{sT1}, s{sT1}, 10
    s_add_u32 s{sT1}, s{sT1}, {WS_SC}
    s_cmp_lt_u32 s{sRB}, 10
    s_cselect_b32 s{sT1}, s{sT1}, {WS_END}
    v_lshlrev_b32 v5, 4, v{vL}
    s_mov_b32 s{sT3}, 0
    K1_pub3:
    s_waitcnt vmcnt(0)
    v_readfirstlane_b32 s{sT2}, v{vN}
    v_mov_b32 v4, {XN}
    s_cmp_lg_u32 s{sT2}, 0
    s_cbranch_scc1 K1_pub4
    buffer_load_dword v{vN}, v{vN+1}, {sr(DBG,4)}, 0 offen sc1
    s_add_u32 s{sT3}, s{sT3}, 1
    s_cmp_lt_u32 s{sT3}, {SPINMAX}
    s_cbranch_scc1 K1_pub3
    K1_pub4:
    v_mov_b32 v7, s{sT2}
    v_mov_b32 v9, s{sT2}
    v_mov_b32 v{P0+9}, s{sT2}
    v_mov_b32 v{P0+11}, s{sT2}
    v_mov_b32 v{P0+13}, s{sT2}
    v_mov_b32 v{P0+15}, s{sT2}
    v_mov_b32 v{P0+17}, s{sT2}
    v_mov_b32 v{P0+19}, s{sT2}
    ds_write_b32 v4, v7
    s_waitcnt lgkmcnt(1)
    v_mov_b32 v6, v{P0}
    v_mov_b32 v8, v{P0+1}
    v_mov_b32 v{P0+8}, v{P0+2}
    v_mov_b32 v{P0+10}, v{P0+3}
    v_mov_b32 v{P0+12}, v{P0+4}
    v_mov_b32 v{P0+14}, v{P0+5}
    v_mov_b32 v{P0+16}, v{P0+6}
    v_mov_b32 v{P0+18}, v{P0+7}
    buffer_store_dwordx4 {vr(6,4)}, v5, {sr(WS,4)}, s{sT0} offen sc1
    buffer_store_dwordx4 {vr(P0+8,4)}, v5, {sr(WS,4)}, s{sT0} offen offset:1024 sc1
    buffer_store_dwordx4 {vr(P0+16,4)}, v5, {sr(WS,4)}, s{sT1} offen sc1
    s_mov_b32 exec_hi, 0
    buffer_store_dwordx4 {vr(P0+12,4)}, v5, {sr(WS,4)}, s{sT0} offen offset:2048 sc1
    s_mov_b32 exec_hi, -1
    s_branch K1_pubr
    """)
    sJ, sL, sPst = 34, 35, 36
    WP = 24; vPs = 2
    a(f"""
    K1_aux:
    s_memrealtime s[66:67]
    s_lshl_b32 s{sT0}, s{sT0}, 1
    s_add_u32 s{sT0}, s{sT0}, s{sT1}
    s_sub_u32 s{sT0}, s{sT0}, 30
    s_sub_u32 s{sT2}, s{sT2}, {234-16}
    s_cmp_ge_u32 s{sT1}, 30
    s_cselect_b32 s{sT0}, s{sT0}, s{sT2}
    s_mul_i32 s{sJ}, s{sT0}, 12
    s_add_u32 s{sJ}, s{sJ}, s{sW}
    s_mul_i32 s{sL}, s{sW}, 12288
    v_lshl_add_u32 v{vT+3}, v{vT}, 6, v{vT+3}
    v_lshrrev_b32 v{vT+6}, 2, v{vT+2}
    v_and_b32 v{vT+7}, 3, v{vT+2}
    s_mov_b32 m0, s{sL}
    s_mov_b32 s{WP+3}, 0x00020000
    s_mov_b32 s{sI}, s{sJ}
    s_waitcnt lgkmcnt(0)
    s_mov_b32 s{WS}, s6
    s_mov_b32 s{WS+1}, s7
    s_mov_b32 s{DBG}, s4
    s_mov_b32 s{DBG+1}, s5
    s_mov_b32 s{DBG+2}, 256
    s_mov_b32 s{DBG+3}, 0x00020000
    s_lshl_b32 s{sU}, s{sT0}, 7
    s_add_u32 s{sU}, s{sU}, {WS_F1 + 72*4096}
    s_mov_b64 s[58:59], 1
    s_cmp_lg_u32 s{sJ}, 0
    s_cbranch_scc1 K1_a1
    s_or_b32 s66, s66, 1
    v_mov_b32 v4, s66
    v_mov_b32 v5, 0
    s_mov_b64 exec, 1
    buffer_store_dword v4, v5, {sr(DBG,4)}, 0 offen sc1
    s_mov_b64 exec, -1
    K1_a1:
    s_mul_i32 s{sT0}, s{sI}, 6554
    s_lshr_b32 s{sT0}, s{sT0}, 16
    s_mul_i32 s{sT1}, s{sT0}, 10
    s_sub_u32 s{sT1}, s{sI}, s{sT1}
    s_lshl_b32 s{sT1}, s{sT1}, 7
    s_sub_u32 s{sT2}, s{sT0}, 96
    s_mul_i32 s{sT3}, s{sT2}, 205
    s_lshr_b32 s{sT3}, s{sT3}, 10
    s_mul_i32 s55, s{sT3}, 5
    s_sub_u32 s55, s{sT2}, s55
    s_mul_i32 s{sT3}, s{sT3}, 80
    s_mul_i32 s56, s55, 20
    s_cmp_eq_u32 s55, 4
    s_cselect_b32 s56, 16, s56
    s_cselect_b32 s55, 1, 0
    s_add_u32 s{sT3}, s{sT3}, s56
    s_lshl_b32 s{sT2}, s{sT0}, 4
    s_cmp_lt_u32 s{sT0}, 96
    s_cselect_b32 s{sT3}, s{sT2}, s{sT3}
    s_cselect_b32 s55, 0, s55
    s_cselect_b32 s{WP}, s62, s16
    s_cselect_b32 s{WP+1}, s63, s17
    s_mov_b32 s{WP+2}, {640*1280}
    s_cselect_b32 s{WP+2}, {1536*1280}, s{WP+2}
    s_mul_i32 s{sT3}, s{sT3}, 1280
    s_add_u32 s56, s{sT3}, s{sT1}
    s_cmp_eq_u32 s55, 0
    s_cselect_b32 s{sT2}, 4, 40
    s_movk_i32 s57, {20*1280}
    s_cselect_b32 s57, {8*1280}, s57
    s_add_u32 s57, s57, s56
    v_mad_u32_u24 v{vPs}, v{vT+6}, s{sT2}, v{vT+7}
    v_mul_u32_u24 v{vPs}, 1280, v{vPs}
    v_add_u32 v{vPs}, v{vPs}, v{vT+3}
    buffer_load_dwordx4 v{vPs}, {sr(WP,4)}, s56 offen lds
    s_add_u32 m0, m0, 1024
    s_add_u32 s{sI}, s{sI}, 264
    buffer_load_dwordx4 v{vPs}, {sr(WP,4)}, s57 offen lds
    s_add_u32 m0, m0, 1024
    s_cmp_lt_u32 s{sI}, 1360
    s_cbranch_scc1 K1_a1
    v_lshl_add_u32 v4, v{vT}, 8, v{vCom}
    v_add_u32 v4, s{sL}, v4
    v_and_b32 v5, 15, v{vL}
    v_lshlrev_b32 v5, 4, v5
    v_lshl_add_u32 v5, v{vT}, 8, v5
    v_lshl_add_u32 v5, v{vT+5}, 9, v5
    s_lshl_b32 s{sPst}, s{sJ}, 11
    s_add_u32 s{sPst}, s{sPst}, {WS_WP}
    s_waitcnt vmcnt(0)
    K1_a2:
    ds_read_b64_tr_b16 {vr(32,2)}, v4
    ds_read_b64_tr_b16 {vr(34,2)}, v4 offset:1024
    ds_read_b64_tr_b16 {vr(36,2)}, v4 offset:512
    ds_read_b64_tr_b16 {vr(38,2)}, v4 offset:1536
    v_add_u32 v4, 2048, v4
    s_add_u32 s{sJ}, s{sJ}, 264
    s_waitcnt lgkmcnt(0)
    buffer_store_dwordx4 {vr(32,4)}, v5, {sr(WS,4)}, s{sPst} offen sc1
    buffer_store_dwordx4 {vr(36,4)}, v5, {sr(WS,4)}, s{sPst} offen offset:1024 sc1
    s_add_u32 s{sPst}, s{sPst}, {264*2048}
    s_cmp_lt_u32 s{sJ}, 1360
    s_cbranch_scc1 K1_a2
    v_mov_b32 v5, 0
    s_mov_b32 s{sT3}, 0
    K1_a3:
    buffer_load_dword v4, v5, {sr(DBG,4)}, 0 offen sc1
    s_add_u32 s{sT3}, s{sT3}, 1
    s_waitcnt vmcnt(0)
    v_readfirstlane_b32 s{sN}, v4
    s_cmp_gt_u32 s{sT3}, {SPINMAX}
    s_cbranch_scc1 K1_a4
    s_cmp_eq_u32 s{sN}, 0
    s_cbranch_scc1 K1_a3
    K1_a4:
    s_barrier
    s_cmp_ge_u32 s{sW}, 8
    s_cbranch_scc1 K2_G
    s_cmp_lg_u32 s{sW}, 0
    s_cbranch_scc1 K2_A
    s_branch K1_flag
    K1_done:
    s_lshl_b32 s{sU}, s{sCB}, 2
    s_add_u32 s{sU}, s{sU}, s{sR}
    s_lshl_b32 s{sU}, s{sU}, 5
    s_lshl_b32 s{sT0}, s{sRB}, 1
    s_add_u32 s{sU}, s{sU}, s{sT0}
    s_add_u32 s{sU}, s{sU}, s{sG}
    s_lshl_b32 s{sU}, s{sU}, 7
    s_add_u32 s{sU}, s{sU}, {WS_F1}
    s_mov_b64 s[58:59], 1
    s_cmp_lg_u32 s{sCB}, 17
    s_cbranch_scc1 K1_flag
    s_cmp_lg_u32 s{sIdle}, 0
    s_cbranch_scc1 K2_A
    v_mov_b32 v4, 1
    v_mov_b32 v5, 0
    s_mov_b64 exec, 1
    s_waitcnt vmcnt(0)
    buffer_atomic_add v4, v5, {sr(DBG,4)}, 0 offen offset:128 sc0
    s_mov_b32 s{sU}, {WS_FK}
    s_mov_b64 s[58:59], -1
    s_waitcnt vmcnt(0)
    v_readfirstlane_b32 s{sT0}, v4
    s_mov_b64 exec, -1
    s_mul_hi_u32 s{sT1}, s{sT0}, {(1 << 32) // 52 + 1}
    s_mul_i32 s{sT1}, s{sT1}, 52
    s_sub_u32 s{sT0}, s{sT0}, s{sT1}
    s_cmp_lg_u32 s{sT0}, 51
    s_cbranch_scc1 K2_A
    K1_flag:
    """)
    stamp(a, 3)
    setflag(a, sU, WS, 4, 5, 's[58:59]')
    if 'st1' in OPT: stamp(a, 1)

def tile_ids(a, sRB, sNB, sT0):
    a(f"""
    s_and_b32 s{sT0}, s2, 3
    s_lshl_b32 s{sRB}, s{sT0}, 3
    s_bfe_u32 s{sT0}, s2, 0x30003
    s_add_u32 s{sRB}, s{sRB}, s{sT0}
    s_bfe_u32 s{sT0}, s2, 0x10002
    s_lshl_b32 s{sNB}, s{sT0}, 2
    s_lshr_b32 s{sT0}, s2, 6
    s_add_u32 s{sNB}, s{sNB}, s{sT0}
    """)
def wlane(a, vL, vW, vW2, t):
    a(f"""
    v_and_b32 v{vW2}, 15, v{vL}
    v_lshlrev_b32 v{vW2}, 4, v{vW2}
    v_lshrrev_b32 v{t}, 5, v{vL}
    v_lshl_add_u32 v{vW2}, v{t}, 8, v{vW2}
    v_bfe_u32 v{t}, v{vL}, 4, 1
    v_lshl_add_u32 v{vW}, v{t}, 9, v{vW2}
    """)

def gen_k2(a):
    sW, sR, sG, sRB, sCB, sHD, sRT = 32, 33, 34, 35, 36, 37, 38
    sI, sT0, sT1, sT2, sSrc, sVm, sSeg, sT3 = 39, 40, 41, 42, 43, 44, 52, 53
    WS, X, OUT = 28, 20, 24
    vL, vA, vD = 0, 1, 2
    QM, QT, KM, KT, V, P, O, S = 4, 8, 12, 20, 24, 40, 56, 72
    R = dict(vA=vA, QM=QM, QT=QT, KM=KM, KT=KT, V=V, P=P, O=O, S=S)
    def aids():
        a(f"""
        s_and_b32 s{sT0}, s2, 3
        s_lshl_b32 s{sRB}, s{sT0}, 2
        s_bfe_u32 s{sT0}, s2, 0x20003
        s_add_u32 s{sRB}, s{sRB}, s{sT0}
        s_bfe_u32 s{sT0}, s2, 0x10002
        s_lshl_b32 s{sCB}, s{sT0}, 3
        s_lshr_b32 s{sT0}, s2, 5
        s_add_u32 s{sCB}, s{sCB}, s{sT0}
        s_and_b32 s{sR}, s{sW}, 3
        s_lshl_b32 s{sRT}, s{sRB}, 2
        s_add_u32 s{sRT}, s{sRT}, s{sR}
        v_lshlrev_b32 v{vD}, 4, v{vL}
        """)
    a("K2_A:"); aids()
    a(f"""
    s_lshr_b32 s{sG}, s{sW}, 2
    s_lshl_b32 s{sHD}, s{sCB}, 1
    s_and_b32 s{sT1}, s{sHD}, 2
    s_add_u32 s{sHD}, s{sHD}, s{sG}
    s_mul_i32 s{sT2}, s{sG}, 5
    s_add_u32 s{sT1}, s{sT1}, s{sT2}
    s_mul_i32 s{sT2}, s{sR}, 3072
    s_add_u32 s{sT2}, s{sT2}, {XQ}
    v_and_b32 v{vA}, 31, v{vL}
    v_lshlrev_b32 v{vA}, 4, v{vA}
    v_lshrrev_b32 v3, 5, v{vL}
    v_add_u32 v{P}, s{sT1}, v3
    v_add_u32 v{P+1}, 2, v{P}
    s_add_u32 s{sT1}, s{sT1}, 4
    v_mov_b32 v{P+2}, s{sT1}
    v_add_u32 v{P+3}, s{sT2}, v{vA}
    """)
    for i in range(3):
        a(f"""
        v_lshrrev_b32 v{P+4}, 2, v{P+i}
        v_lshl_add_u32 v{P+5}, v{P+4}, 10, v{P+3}
        v_and_b32 v{P+4}, 1, v{P+i}
        v_lshl_add_u32 v{P+5}, v{P+4}, 9, v{P+5}
        v_and_b32 v{P+4}, 2, v{P+i}
        v_lshl_add_u32 v{P+i}, v{P+4}, 2, v{P+5}
        """)
    a(f"""
    s_mov_b32 s{sVm}, 0x000fffff
    s_mov_b32 s{sVm+1}, 0x000fffff
    v_mul_u32_u24 v3, 5120, v3
    v_add_u32 v{vA}, v{vA}, v3
    v_and_b32 v3, 27, v{vL}
    v_cmp_eq_u32 vcc, 24, v3
    v_mov_b32 v3, 0x3f803f80
    """)
    for i in range(16): a(f"v_mov_b32 v{O+i}, 0")
    for i in range(16): a(f"v_cndmask_b32 v{V+i}, 0, v3, vcc")
    for i in range(4): a(f"v_mov_b32 v{P+12+i}, 0")
    SEGS = [3, 10, 3]
    segw = sum(n << (4 * i) for i, n in enumerate(SEGS))
    a(f"""
    s_mov_b32 s{sSeg}, {segw >> 4}
    s_mov_b32 s{sI}, {SEGS[0]}
    s_barrier
    """); stamp(a, 4); a(f"""
    ds_read_b64 {vr(QT,2)}, v{P+2}
    ds_read_b128 {vr(KT,4)}, v{vA} offset:2048
    ds_read_b64 {vr(QM,2)}, v{P}
    ds_read_b64 {vr(QM+2,2)}, v{P+1}
    ds_read_b128 {vr(KM,4)}, v{vA} offset:0
    ds_read_b128 {vr(KM+4,4)}, v{vA} offset:512
    s_waitcnt lgkmcnt({0 if PROF else 4})
    v_mfma_f32_32x32x4_2b_bf16 {vr(S,32)}, {vr(KT,2)}, {vr(QT,2)}, 0
    s_waitcnt lgkmcnt(0)
    s_nop 15
    s_nop 2
    {MF(vr(S,16), vr(KM,4), vr(QM,4), vr(S,16))}
    {MF(vr(S+16,16), vr(KM+4,4), vr(QM,4), vr(S+16,16))}
    ds_read_b128 {vr(KM,4)}, v{vA} offset:1024
    ds_read_b128 {vr(KM+4,4)}, v{vA} offset:1536
    s_mov_b64 exec, {sr(sVm,2)}
    ds_read_b128 {vr(V,4)}, v{vA} offset:2560
    ds_read_b128 {vr(V+4,4)}, v{vA} offset:2880
    s_mov_b64 exec, -1
    s_nop 7
    .p2align 6
    K2_loop:
    """)
    for l in abody.body(R, 0, (3, 2, 1), sVm): a(l)
    a(f"""
    v_add_u32 v{vA}, 10240, v{vA}
    s_sub_u32 s{sI}, s{sI}, 1
    s_cmp_lg_u32 s{sI}, 0
    s_cbranch_scc1 K2_loop
    s_and_b32 s{sI}, s{sSeg}, 15
    s_cbranch_scc0 K2_exit
    s_lshr_b32 s{sSeg}, s{sSeg}, 4
    s_barrier
    s_branch K2_loop
    K2_exit:
    """); stamp(a, 5); a(f"""
    {MF(vr(O,16), vr(V+12,4), vr(P+12,4), vr(O,16))}
    s_mov_b32 s46, {f32(2.0**-64)}
    s_mov_b32 s47, {f32(2.0**64)}
    s_lshr_b32 s54, s{sHD}, 2
    s_mul_i32 s54, s54, 5
    s_mul_i32 s55, s{sRT}, 40
    s_add_u32 s54, s54, s55
    s_lshl_b32 s54, s54, 10
    s_add_u32 s54, s54, {WS_O}
    s_and_b32 s55, s{sHD}, 3
    s_lshl_b32 s55, s55, 10
    s_add_u32 s55, s55, s54
    s_bfe_u32 s{sT2}, s{sHD}, 0x10001
    s_lshl_b32 s{sT2}, s{sT2}, 9
    s_add_u32 s54, s54, s{sT2}
    s_and_b32 s{sT2}, s{sHD}, 1
    s_lshl_b32 s{sT2}, s{sT2}, 3
    s_add_u32 s54, s54, s{sT2}
    s_add_u32 s54, s54, 4096
    v_cmp_nle_f32 vcc, s46, v{O+12}
    v_cmp_nge_f32 s[46:47], s47, v{O+12}
    s_waitcnt lgkmcnt(0)
    s_or_b64 vcc, vcc, s[46:47]
    s_cbranch_scc1 K2_slow
    K2_fin:
    v_rcp_f32 v{P}, v{O+12}
    s_lshl_b32 s{sT3}, s{sRT}, 5
    s_add_u32 s{sT3}, s{sT3}, s{sHD}
    s_lshl_b32 s{sT3}, s{sT3}, 7
    s_add_u32 s{sT3}, s{sT3}, {WS_F3}
    """)
    for i in range(12): a(f"v_mul_f32 v{O+i}, v{O+i}, v{P}")
    for i in range(6): a(f"v_cvt_pk_bf16_f32 v{S+i}, v{O+2*i}, v{O+2*i+1}")
    a(f"""
    buffer_store_dwordx4 {vr(S,4)}, v{vD}, {sr(WS,4)}, s55 offen sc1
    s_mov_b32 exec_hi, 0
    buffer_store_dwordx2 {vr(S+4,2)}, v{vD}, {sr(WS,4)}, s54 offen sc1
    s_mov_b32 exec_hi, -1
    """)
    setflag(a, sT3, WS, 4, 5)
    a("s_barrier")
    sKQ, sRB2, sNB, sH0, sH1, sWp = 33, 35, 36, 46, 47, 48
    XR = 104; RR = 108
    def fin_prep():
        tile_ids(a, sRB2, sNB, sT0)
        srd(a, X, 8, 2048*1280); srd(a, OUT, 18, 2048*1280)
        a(f"""
        s_lshl_b32 s{sT0}, s{sW}, 6
        v_add_u32 v4, s{sT0}, v{vL}
        v_mul_u32_u24 v5, 6554, v4
        v_lshrrev_b32 v5, 16, v5
        v_mul_u32_u24 v5, {1280-160}, v5
        v_lshlrev_b32 v4, 4, v4
        v_add_u32 v5, v5, v4
        s_mul_i32 s{sT3}, s{sRB2}, {64*1280}
        s_mul_i32 s{sT1}, s{sNB}, 160
        s_add_u32 s{sT3}, s{sT3}, s{sT1}
        v_add_u32 v6, 51200, v4
        buffer_load_dwordx4 {vr(XR,4)}, v5, {sr(X,4)}, s{sT3} offen
        """)
    fin_prep()
    a("K3_bar:\ns_barrier")
    for p in range(4):
        for h in range(2): a(f"ds_read_b128 {vr(RR+8*p+4*h,4)}, v{4 if p < 2 else 6} offset:{(p%2)*25600 + h*10240}")
    a("s_waitcnt vmcnt(0)")
    for i in range(4): a(f"v_lshlrev_b32 v{8+2*i}, 16, v{XR+i}\nv_and_b32 v{9+2*i}, 0xffff0000, v{XR+i}")
    for p in range(4):
        a(f"s_waitcnt lgkmcnt({6-2*p})")
        for i in range(4): a(f"v_pk_add_f32 {vr(8+2*i,2)}, {vr(8+2*i,2)}, {vr(RR+8*p+2*i,2)}")
    for i in range(4): a(f"v_cvt_pk_bf16_f32 v{XR+i}, v{8+2*i}, v{9+2*i}")
    a(f"buffer_store_dwordx4 {vr(XR,4)}, v5, {sr(OUT,4)}, s{sT3} offen\nK_pe:")
    prof_end(a, 0, WS, sW)
    a("K_end:\ns_endpgm")
    vW, vW2 = 1, 3
    ACC, FR = 8, 104
    a("K2_G:"); aids()
    a(f"""
    s_lshl_b32 s{sT0}, s{sR}, 10
    s_add_u32 s{sSrc}, s{sT0}, {WS_KV}
    s_mov_b32 m0, s{sT0}
    s_and_b32 s{sT0}, s2, 63
    s_lshl_b32 s{sT0}, s{sT0}, 8
    s_add_u32 s{sT0}, s{sT0}, {WS_FK}
    v_mov_b32 v4, s{sT0}
    """)
    poll(a, "K2_p1", 4, 5, WS, sT3)
    stamp(a, 2)
    def fill(n, lab):
        a(f"""
        s_mov_b32 s{sI}, {n}
        {lab}:
        buffer_load_dwordx4 v{vD}, {sr(WS,4)}, s{sSrc} offen sc1 lds
        s_add_u32 s{sSrc}, s{sSrc}, 4096
        s_add_u32 m0, m0, 4096
        s_sub_u32 s{sI}, s{sI}, 1
        s_cmp_lg_u32 s{sI}, 0
        s_cbranch_scc1 {lab}
        """)
    fill(10, "K2_f1")
    rowidx(a, sT1, sRT, sT0)
    a(f"""
    s_mul_i32 s{sT2}, s{sCB}, 10
    s_lshr_b32 s{sT2}, s{sT2}, 2
    v_and_b32 v4, 2, v{vL}
    v_add_u32 v4, s{sT2}, v4
    v_lshrrev_b32 v4, 1, v4
    v_lshl_add_u32 v4, v4, 5, s{sT1}
    v_lshlrev_b32 v4, 7, v4
    v_add_u32 v4, {WS_F1}, v4
    s_mul_i32 s{sT0}, s{sRT}, 40
    s_add_u32 s{sT0}, s{sT0}, s{sT2}
    s_lshl_b32 s{sT0}, s{sT0}, 10
    s_mov_b32 s{sSeg}, m0
    s_mul_i32 s{sT1}, s{sR}, 3072
    s_add_u32 m0, s{sT1}, {XQ}
    """)
    for i in range(96): a(f"v_mov_b32 v{ACC+i}, 0")
    poll(a, "K2_p2", 4, 5, WS, sT3)
    for i in range(3): a(f"buffer_load_dwordx4 v{vD}, {sr(WS,4)}, s{sT0} offen offset:{1024*i} sc1 lds")
    tile_ids(a, sRB2, sNB, sT0)
    wlane(a, vL, vW, vW2, 5)
    a(f"""
    s_mov_b32 m0, s{sSeg}
    s_waitcnt vmcnt(0)
    s_barrier
    """); stamp(a, 3)
    fill(26, "K2_f2")
    a(f"s_lshl_b32 s{sT2}, s{sRB2}, 1")
    rowidx(a, sH0, sT2, sT0)
    a(f"s_add_u32 s{sT2}, s{sT2}, 1")
    rowidx(a, sH1, sT2, sT0)
    a(f"""
    v_and_b32 v4, 1, v{vL}
    v_cmp_eq_u32 vcc, 0, v4
    v_mov_b32 v4, s{sH0}
    v_mov_b32 v5, s{sH1}
    v_cndmask_b32 v4, v5, v4, vcc
    v_lshrrev_b32 v5, 1, v{vL}
    v_min_u32 v5, 11, v5
    s_mul_i32 s{sT0}, s{sKQ}, 12
    s_add_u32 s{sT0}, s{sT0}, 20
    v_add_u32 v5, s{sT0}, v5
    v_lshl_add_u32 v4, v5, 5, v4
    v_cmp_gt_u32 vcc, 32, v{vL}
    v_min_u32 v5, 53, v{vL}
    v_add_u32 v5, {72*32 - 32}, v5
    v_cndmask_b32 v4, v5, v4, vcc
    v_lshlrev_b32 v4, 7, v4
    v_add_u32 v4, {WS_F1}, v4
    s_mul_i32 s{sH0}, s{sRB2}, 192
    s_mul_i32 s{sT0}, s{sKQ}, 24
    s_add_u32 s{sH0}, s{sH0}, s{sT0}
    s_lshl_b32 s{sH0}, s{sH0}, 10
    s_add_u32 s{sH0}, s{sH0}, {WS_H}
    s_add_u32 s{sH1}, s{sH0}, {96*1024}
    s_mul_i32 s{sWp}, s{sT0}, 20480
    s_mul_i32 s{sT0}, s{sNB}, 2560
    s_add_u32 s{sWp}, s{sWp}, s{sT0}
    s_add_u32 s{sWp}, s{sWp}, {WS_WP}
    """)
    poll(a, "K2_p3", 4, 5, WS, sT3)
    def gload(j):
        b = FR + 20 * j
        a(f"""
        buffer_load_dwordx4 {vr(b,4)}, v{vD}, {sr(WS,4)}, s{sH0} offen offset:{1024*j} sc1
        buffer_load_dwordx4 {vr(b+4,4)}, v{vD}, {sr(WS,4)}, s{sH1} offen offset:{1024*j} sc1
        buffer_load_dwordx4 {vr(b+8,4)}, v{vW}, {sr(WS,4)}, s{sWp} offen sc1
        buffer_load_dwordx4 {vr(b+12,4)}, v{vW}, {sr(WS,4)}, s{sWp} offen offset:1024 sc1
        buffer_load_dwordx4 {vr(b+16,4)}, v{vW2}, {sr(WS,4)}, s{sWp} offen offset:2048 sc1
        s_add_u32 s{sWp}, s{sWp}, 20480
        """)
    for j in range(3): gload(j)
    a("s_barrier")
    fill(4, "K2_f3")
    a(f"""
    s_mov_b32 s{sI}, 8
    K2_Gl:
    s_add_u32 s{sH0}, s{sH0}, 3072
    s_add_u32 s{sH1}, s{sH1}, 3072
    s_cmp_eq_u32 s{sI}, 1
    s_cselect_b32 s{sH0}, {WS_END}, s{sH0}
    s_cselect_b32 s{sH1}, {WS_END}, s{sH1}
    s_cselect_b32 s{sWp}, {WS_END}, s{sWp}
    """)
    def mm6(aw, bo):
        for t in range(3):
            for r in range(2):
                a(MF(vr(ACC+48*r+16*t,16), vr(aw+4*t,4), vr(bo+4*r,4), vr(ACC+48*r+16*t,16)))
    for j in range(3):
        b = FR + 20 * j
        a("s_waitcnt vmcnt(10)")
        mm6(b + 8, b)
        gload(j)
    a(f"""
    s_sub_u32 s{sI}, s{sI}, 1
    s_cmp_lg_u32 s{sI}, 0
    s_cbranch_scc1 K2_Gl
    """); 'st2' in OPT or stamp(a, 4)
    a(f"""
    s_mul_i32 s{sT2}, s{sKQ}, 25600
    s_mul_i32 s{sWp}, s{sKQ}, {10*20480}
    s_mul_i32 s{sT0}, s{sNB}, 2560
    s_add_u32 s{sWp}, s{sWp}, s{sT0}
    s_add_u32 s{sWp}, s{sWp}, {WS_WP + 96*20480}
    s_mov_b32 m0, s{sT2}
    v_add_u32 v{vW}, s{sT2}, v{vW}
    v_add_u32 v{vW2}, s{sT2}, v{vW2}
    s_lshl_b32 s{sT0}, s{sRB2}, 3
    s_add_u32 s{sT0}, s{sT0}, s{sKQ}
    s_lshl_b32 s{sT0}, s{sT0}, 10
    s_add_u32 s{sT0}, s{sT0}, {WS_F3}
    v_and_b32 v7, 39, v{vL}
    v_lshl_add_u32 v7, v7, 7, s{sT0}
    s_mul_i32 s{sH0}, s{sRB2}, 80
    s_mul_i32 s{sT0}, s{sKQ}, 10
    s_add_u32 s{sH0}, s{sH0}, s{sT0}
    s_lshl_b32 s{sH0}, s{sH0}, 10
    s_add_u32 s{sH0}, s{sH0}, {WS_O}
    s_add_u32 s{sH1}, s{sH0}, 40960
    s_mov_b32 s{sI}, 10
    s_waitcnt vmcnt(0)
    s_barrier
    K2_f4:
    buffer_load_dwordx4 v{vD}, {sr(WS,4)}, s{sWp} offen sc1 lds
    buffer_load_dwordx4 v{vD}, {sr(WS,4)}, s{sWp} offen offset:1024 sc1 lds
    s_mov_b32 exec_hi, 0
    buffer_load_dwordx4 v{vD}, {sr(WS,4)}, s{sWp} offen offset:2048 sc1 lds
    s_mov_b32 exec_hi, -1
    s_add_u32 s{sWp}, s{sWp}, 20480
    s_add_u32 m0, m0, 2560
    s_sub_u32 s{sI}, s{sI}, 1
    s_cmp_lg_u32 s{sI}, 0
    s_cbranch_scc1 K2_f4
    """)
    FO, FW = 104, 140
    def wread(j):
        b = FW + 12 * (j % 2)
        a(f"""
        ds_read_b128 {vr(b,4)}, v{vW} offset:{2560*j}
        ds_read_b128 {vr(b+4,4)}, v{vW} offset:{2560*j+1024}
        ds_read_b128 {vr(b+8,4)}, v{vW2} offset:{2560*j+2048}
        """)
    def oload(j):
        b = FO + 8 * (j % 4)
        a(f"""
        buffer_load_dwordx4 {vr(b,4)}, v{vD}, {sr(WS,4)}, s{sH0} offen offset:{1024*(j%4)} sc1
        buffer_load_dwordx4 {vr(b+4,4)}, v{vD}, {sr(WS,4)}, s{sH1} offen offset:{1024*(j%4)} sc1
        """)
        if j % 4 == 3: a(f"s_add_u32 s{sH0}, s{sH0}, 4096\ns_add_u32 s{sH1}, s{sH1}, 4096")
    a("s_waitcnt vmcnt(0)")
    wread(0); wread(1)
    a("s_setprio 3\ns_barrier")
    poll(a, "K2_p4", 7, 5, WS, sT3)
    'st2' in OPT or stamp(a, 5)
    for j in range(4): oload(j)
    for j in range(10):
        later = min(j + 3, 9) - j
        a(f"s_waitcnt vmcnt({2*later}) lgkmcnt({0 if (j == 9 or PROF) else 3})")
        mm6(FW + 12 * (j % 2), FO + 8 * (j % 4))
        if j + 4 < 10: oload(j + 4)
        if j + 2 < 10: wread(j + 2)
    fin_prep()
    a(f"""
    v_and_b32 v7, 31, v{vL}
    v_mul_u32_u24 v7, 160, v7
    v_lshrrev_b32 v{RR}, 5, v{vL}
    v_mul_u32_u24 v{RR}, 10240, v{RR}
    v_add3_u32 v7, v7, v{RR}, s{sT2}
    """)
    for r in range(2):
        for o in range(10): a(f"ds_write_b128 v7, {vr(ACC+48*r+4*o,4)} offset:{5120*r+16*o}")
    a(f"""
    s_waitcnt lgkmcnt(0)
    s_cmp_lt_u32 s{sW}, 10
    s_cbranch_scc1 K3_bar
    s_barrier
    {"s_branch K_pe" if PROF else "s_endpgm"}
    """)
    vMx = 3
    sP, sO1, sO2, sO3 = 48, 49, 50, 51
    a(f"""
    K2_slow:
    v_subrev_u32 v{vA}, {16*10240}, v{vA}
    v_mov_b32 v{vMx}, 0xff800000
    s_mov_b32 s{sP}, 0
    """)
    for i in range(16): a(f"v_mov_b32 v{O+i}, 0")
    a(f"""
    K2_sp:
    s_mov_b32 s{sI}, 0
    K2_sl:
    s_lshr_b32 s{sT0}, s{sI}, 1
    s_mul_i32 s{sT0}, s{sT0}, 10240
    s_add_u32 s{sT0}, s{sT0}, {WS_KV}
    s_and_b32 s{sT1}, s{sI}, 1
    s_lshl_b32 s{sO1}, s{sT1}, 10
    s_add_u32 s{sO1}, s{sO1}, s{sT0}
    s_lshl_b32 s{sO2}, s{sT1}, 3
    s_add_u32 s{sO2}, s{sO2}, s{sT0}
    s_mul_i32 s{sO3}, s{sT1}, 1280
    s_add_u32 s{sO3}, s{sO3}, s{sT0}
    buffer_load_dwordx4 {vr(KM,4)}, v{vA}, {sr(WS,4)}, s{sO1} offen sc1
    buffer_load_dwordx4 {vr(KM+4,4)}, v{vA}, {sr(WS,4)}, s{sO1} offen offset:512 sc1
    buffer_load_dwordx2 {vr(KT,2)}, v{vA}, {sr(WS,4)}, s{sO2} offen offset:2048 sc1
    s_mov_b64 exec, {sr(sVm,2)}
    """)
    for f in range(4): a(f"buffer_load_dwordx4 {vr(V+4*f,4)}, v{vA}, {sr(WS,4)}, s{sO3} offen offset:{2560+320*f} sc1")
    a(f"""
    s_mov_b64 exec, -1
    s_waitcnt vmcnt(0)
    v_mfma_f32_32x32x4_2b_bf16 {vr(S,32)}, {vr(KT,2)}, {vr(QT,2)}, 0
    s_nop 15
    s_nop 3
    {MF(vr(S,16), vr(KM,4), vr(QM,4), vr(S,16))}
    {MF(vr(S+16,16), vr(KM+4,4), vr(QM,4), vr(S+16,16))}
    s_cmp_lg_u32 s{sP}, 0
    s_nop 12
    s_cbranch_scc1 K2_sp2
    """)
    for i in range(16): a(f"v_max3_f32 v{vMx}, v{S+2*i}, v{S+2*i+1}, v{vMx}")
    a("s_branch K2_snext\nK2_sp2:")
    for i in range(32): a(f"v_sub_f32 v{S+i}, v{S+i}, v{vMx}")
    for i in range(32): a(f"v_exp_f32 v{S+i}, v{S+i}")
    a("s_nop 0")
    for i in range(16): a(f"v_cvt_pk_bf16_f32 v{P+i}, v{S+2*i}, v{S+2*i+1}")
    a("s_nop 1")
    for f in range(4): a(MF(vr(O,16), vr(V+4*f,4), vr(P+4*f,4), vr(O,16)))
    a(f"""
    s_nop 15
    K2_snext:
    s_add_u32 s{sI}, s{sI}, 1
    s_cmp_lt_u32 s{sI}, 32
    s_cbranch_scc1 K2_sl
    s_cmp_lg_u32 s{sP}, 0
    s_cbranch_scc1 K2_fin
    v_mov_b32 v{P}, v{vMx}
    s_nop 1
    v_permlane32_swap_b32 v{P}, v{vMx}
    s_mov_b32 s{sP}, 1
    v_max_f32 v{vMx}, v{vMx}, v{P}
    s_branch K2_sp
    """)
    return 164

def main(out):
    a = Asm()
    gen_k1(a); n = gen_k2(a)
    head = f"""; LayerNorm + MQA attention + SiLU FFN in one launch (generated by work/gen4.py)
; @launch grid=(256,1,1) block=(768,1,1) lds=163840
.amdgcn_target "amdgcn-amd-amdhsa--gfx950"
.text
"""
    tail = '.section .rodata,"a"\n' + kdesc(KN, n)
    open(out, "w").write(head + a.text() + tail)

if __name__ == "__main__":
    if "--prof" in sys.argv:
        PROF = True; sys.argv.remove("--prof")
    main(sys.argv[1] if len(sys.argv) > 1 else f"cdna_kernels/{NAME}.s")
```

```python
import sys, math, os, struct
import abody, kbody
OPT = set(os.environ.get('OPT', '').split(','))
NAME = "parallel_sum__grouped_kv_mqa__dense_activation_silu__prompt"
WS_Q, WS_KV, WS_H, WS_O, WS_WP, WS_Y, WS_PROF, WS_END = 0, 0x300000, 0x340000, 0x940000, 0xD00000, 0x1000000, 0xC00000, 0x1500000
WS_SR, WS_SC = 0x280000, 0x2D2000
WS_F1, WS_F3, WS_FK = 0x1000000, 0x1080000, 0x1060000
SLP = int(os.environ.get('SLP', '4'))
XB = 147456; XFC, XN, XQ = XB + 2560, XB + 3072, XB + 4096
sN = 68
KN = NAME + '_kernel'
SPINMAX = 20000
ROTR, ROTC = (int(c) for c in os.environ.get('ROT', '3,3').split(','))
PRE = int(os.environ.get('PRE', '2'))
PRE_CTRL = """s_or_b32 s{sT0}, s{sI}, 2
    s_cmp_eq_u32 s{sT0}, 3
    s_cbranch_scc1 K1_issue
    s_cmp_lg_u32 s{sI}, 2
    s_cbranch_scc1 K1_w18""" if PRE == 2 else """s_cmp_lt_u32 s{sI}, %d
    s_cbranch_scc1 K1_issue
    s_cmp_lg_u32 s{sI}, %d
    s_cbranch_scc1 K1_w18""" % (PRE, PRE)
CSAT = int(os.environ.get('CSAT', '2'))
NF1 = 10
DEEP = int(os.environ.get('DEEP', '99'))
HOOK = int(os.environ.get('HOOK', '2'))
LOG2E = 1.4426950408889634
def f32(x): return "0x%08x" % struct.unpack("<I", struct.pack("<f", x))[0]

class Asm:
    def __init__(self): self.l = []
    def __call__(self, s):
        for x in s.strip("\n").split("\n"):
            x = x.strip()
            if x: self.l.append(("" if x.endswith(":") else "    ") + x)
    def text(self): return "\n".join(self.l) + "\n"
def vr(a, n): return "v[%d:%d]" % (a, a + n - 1)
def ar(a, n): return "a[%d:%d]" % (a, a + n - 1)
def sr(a, n): return "s[%d:%d]" % (a, a + n - 1)
def srd(a, d, base, nbytes):
    a(f"s_mov_b32 s{d}, s{base}\ns_mov_b32 s{d+1}, s{base+1}\ns_mov_b32 s{d+2}, {nbytes}\ns_mov_b32 s{d+3}, 0x00020000")
def kdesc(name, vgpr, agpr=0, sgpr=102):
    acc = (vgpr + 3) // 4 * 4
    return f""".p2align 6
.amdhsa_kernel {name}
  .amdhsa_next_free_vgpr {acc + agpr if agpr else vgpr}
  .amdhsa_next_free_sgpr {sgpr}
  .amdhsa_accum_offset {acc}
  .amdhsa_group_segment_fixed_size 0
  .amdhsa_kernarg_size 88
  .amdhsa_user_sgpr_count 2
  .amdhsa_user_sgpr_kernarg_segment_ptr 1
  .amdhsa_system_sgpr_workgroup_id_x 1
.end_amdhsa_kernel
"""
def khead(a, name): a.l.append(f".globl {name}\n.p2align 8\n.type {name},@function\n{name}:")
PROF = False
DIAGX = int(os.environ.get('DIAGX', '0'))
def stamp(a, i):
    if DIAGX:
        a(f"s_memrealtime s[{70+2*i}:{71+2*i}]")
        return
    if 'dbgt' in OPT:
        a(f"s_memrealtime s[{70+2*i}:{71+2*i}]")
        if i == 0: a("s_mov_b32 s72, 0\ns_mov_b32 s74, 0\ns_mov_b32 s76, 0")
        return
    if PROF:
        a(f"s_memtime s[{70+2*i}:{71+2*i}]")
        if i == 0: a("s_memrealtime s[84:85]")
def prof_end(a, kidx, WS, sW):
    if DIAGX:
        a(f"""
        s_cmp_lg_u32 s{sW}, 0
        s_cbranch_scc1 K_end
        s_cmp_lg_u32 s2, {int(os.environ.get('DIAGWG', '40'))}
        s_cbranch_scc1 K_end
        s_waitcnt vmcnt(0)
        s_memrealtime s[82:83]
        s_waitcnt lgkmcnt(0)
        {f"s_sub_u32 s84, s{70+2*DIAGX}, s70" if DIAGX < 7 else f"s_sub_u32 s84, s70, s{sN}"}
        {"s_add_u32 s84, s84, 1500" if DIAGX == 7 else ""}
        s_lshl_b32 s84, s84, 2
        K_dl:
        s_memrealtime s[86:87]
        s_waitcnt lgkmcnt(0)
        s_sub_u32 s86, s86, s82
        s_cmp_lt_u32 s86, s84
        s_cbranch_scc1 K_dl
        """)
        return
    if 'dbgt' in OPT:
        a(f"""
        s_cmp_lg_u32 s{sW}, 0
        s_cbranch_scc1 K_end
        s_waitcnt vmcnt(0)
        s_memrealtime s[82:83]
        s_mov_b32 s20, s4
        s_mov_b32 s21, s5
        s_mov_b32 s22, 256
        s_mov_b32 s23, 0x00020000
        s_mov_b64 exec, 1
        v_mov_b32 v0, 0
        s_waitcnt lgkmcnt(0)
        s_not_b32 s84, s70
        v_mov_b32 v1, s84
        buffer_atomic_umax v1, v0, s[20:23], 0 offen offset:4
        """)
        for i in range(7):
            a(f"v_mov_b32 v{2+i}, s{70+2*i}\nbuffer_atomic_umax v{2+i}, v0, s[20:23], 0 offen offset:{8+4*i}")
        return
    if not PROF: return
    a(f"""
    s_waitcnt vmcnt(0)
    s_memtime s[82:83]
    s_memrealtime s[86:87]
    s_mov_b64 exec, -1
    s_waitcnt lgkmcnt(0)
    s_lshl_b32 s88, s2, 4
    s_add_u32 s88, s88, s{sW}
    s_lshl_b32 s88, s88, 6
    s_add_u32 s88, s88, {WS_PROF + kidx * 0x40000}
    v_mov_b32 v0, 0
    """)
    if 'lacc' in OPT: a(f"s_cmp_lt_u32 s{sW}, 8\ns_cbranch_scc1 K_pe2\ns_add_u32 s76, s70, s95\ns_add_u32 s78, s70, s96\ns_add_u32 s80, s70, s97\nK_pe2:")
    for i in range(7): a(f"v_mov_b32 v{4+i}, s{70+2*i}")
    a(f"""
    v_mov_b32 v11, s84
    v_mov_b32 v12, s86
    v_mov_b32 v13, 0
    v_mov_b32 v14, 0
    v_mov_b32 v15, 0
    s_mov_b64 exec, 1
    buffer_store_dwordx4 v[4:7], v0, {sr(WS,4)}, s88 offen
    buffer_store_dwordx4 v[8:11], v0, {sr(WS,4)}, s88 offen offset:16
    buffer_store_dwordx4 v[12:15], v0, {sr(WS,4)}, s88 offen offset:32
    """)
def poll(a, lab, vaddr, vtmp, WS, sCnt):
    a(f"""
    s_mov_b32 s{sCnt}, 0
    {lab}:
    buffer_load_dword v{vtmp}, v{vaddr}, {sr(WS,4)}, 0 offen sc1
    s_add_u32 s{sCnt}, s{sCnt}, 1
    s_waitcnt vmcnt(0)
    v_cmp_ne_u32 vcc, s{sN}, v{vtmp}
    s_cbranch_vccz {lab}x
    s_sleep {SLP}
    s_cmp_lt_u32 s{sCnt}, {SPINMAX}
    s_cbranch_scc1 {lab}
    {lab}x:
    """)
def setflag(a, soff, WS, v0, v1, emask="1"):
    a(f"""
    v_mov_b32 v{v0}, s{sN}
    v_lshlrev_b32 v{v1}, 8, v0
    s_mov_b64 exec, {emask}
    s_waitcnt vmcnt(0)
    buffer_store_dword v{v0}, v{v1}, {sr(WS,4)}, s{soff} offen sc1
    s_mov_b64 exec, -1
    """)
def rowidx(a, d, rt, t):
    a(f"""
    s_mul_i32 s{d}, s{rt}, 205
    s_lshr_b32 s{d}, s{d}, 10
    s_mul_i32 s{t}, s{d}, 5
    s_sub_u32 s{t}, s{rt}, s{t}
    s_lshl_b32 s{d}, s{d}, 1
    s_cmp_ge_u32 s{t}, 3
    s_addc_u32 s{d}, s{d}, 0
    """)
def round_bf16(a, d, s): a(f"v_cvt_pk_bf16_f32 v{d}, v{s}, v{s}\nv_lshlrev_b32 v{d}, 16, v{d}")
def MF(d, A, B, C): return f"v_mfma_f32_32x32x16_bf16 {d}, {A}, {B}, {C}"

def ldswait(a, lab, vaddr, vtmp, sTmp, sNeed, off=0):
    a(f"""
    {lab}:
    ds_read_b32 v{vtmp}, v{vaddr} offset:{off}
    s_waitcnt lgkmcnt(0)
    v_readfirstlane_b32 s{sTmp}, v{vtmp}
    s_cmp_ge_u32 s{sTmp}, {sNeed}
    s_cbranch_scc1 {lab}x
    {'s_sleep 1' if 'nosl' not in OPT else ''}
    s_sub_u32 s65, s65, 1
    s_cbranch_scc0 {lab}
    s_mov_b32 s65, 0
    {lab}x:
    """)
def ldsadd(a, vaddr, vone, off=0):
    a(f"s_mov_b64 exec, 1\nds_add_u32 v{vaddr}, v{vone} offset:{off}\ns_mov_b64 exec, -1")

def acc(a, i):
    if PROF and 'lacc' in OPT:
        a(f"s_memtime s[92:93]\ns_waitcnt lgkmcnt(0)\ns_sub_u32 s94, s92, s91\ns_mov_b32 s91, s92\ns_add_u32 s{95+i}, s{95+i}, s94")
def gen_k1(a):
    khead(a, KN)
    SLOT = 36864
    CNT = XN + 16
    sW, sR, sG, sRB, sCB = 32, 33, 34, 35, 36
    sI, sK, sSlot, sT0, sT1, sMx, sNeed, sStr64, sDelta, sRd, sT2, sT3, sK0, sMB, sU, sTyp, sRT, sS32, sOnes = 38, 39, 40, 41, 42, 43, 44, 45, 46, 47, 48, 49, 50, 51, 52, 53, 54, 55, 37
    sHr, sIdle, sGs, DB2, sHc = 56, 69, 57, 12, 57
    X, WA, WS, DBG = 20, 24, 28, 20
    vL, vXs, vWs, vCom, vOne, vC, vF = 0, 1, 2, 11, 10, 17, 18
    vAx, vAw = 12, 16
    vT = 24
    AC = 32; fW, fX = 80, 96
    a(f"""
    s_cmp_ge_u32 s2, 256
    s_cbranch_scc1 K_end
    """); stamp(a, 0); a(f"""
    s_load_dwordx8 s[8:15], s[0:1], 0
    s_load_dwordx4 s[60:63], s[0:1], 48
    s_load_dwordx4 s[4:7], s[0:1], 72
    s_load_dwordx2 s[16:17], s[0:1], 32
    s_load_dwordx2 s[18:19], s[0:1], 64
    v_lshrrev_b32 v1, 6, v0
    v_and_b32 v{vL}, 63, v0
    v_readfirstlane_b32 s{sW}, v1
    s_and_b32 s{sT0}, s2, 7
    s_lshr_b32 s{sT1}, s2, 3
    s_mul_i32 s{sT2}, s{sT0}, 30
    s_add_u32 s{sT2}, s{sT2}, s{sT1}
    v_lshrrev_b32 v{vT}, 5, v{vL}
    v_and_b32 v{vT+1}, 3, v{vL}
    v_bfe_u32 v{vT+2}, v{vL}, 2, 3
    v_lshlrev_b32 v{vT+3}, 4, v{vT+1}
    s_mov_b32 s{WS+2}, {WS_END}
    s_mov_b32 s{WS+3}, 0x00020000
    s_lshl_b32 s{sT3}, s{sW}, 8
    s_add_u32 s{sT3}, s{sT3}, s{sT1}
    s_cmp_lg_u32 s{sT3}, {(1 << 8) + 30}
    s_cbranch_scc1 K1_npf
    s_getpc_b64 s[66:67]
    K1_pc:
    v_lshlrev_b32 v2, 7, v{vL}
    v_add_u32 v3, 8192, v2
    v_min_u32 v3, K_last-K1_pc, v3
    {"" if 'nocpf' in OPT else "global_load_dword v60, v2, s[66:67]"}
    {"" if 'nocpf' in OPT else "global_load_dword v61, v3, s[66:67]"}
    K1_npf:
    s_cmp_ge_u32 s{sT1}, 30
    s_cbranch_scc1 K1_aux
    s_cmp_ge_u32 s{sT2}, 234
    s_cbranch_scc1 K1_aux
    s_cmp_lt_u32 s{sT2}, 126
    s_cselect_b32 s{sT0}, 0, 126
    s_cselect_b32 s{sT1}, 7, 6
    s_movk_i32 s{sT3}, 10923
    s_cselect_b32 s{sT3}, 9363, s{sT3}
    s_cselect_b32 s{sRB}, 0, 7
    s_sub_u32 s{sT2}, s{sT2}, s{sT0}
    s_mul_i32 s{sCB}, s{sT2}, s{sT3}
    s_lshr_b32 s{sCB}, s{sCB}, 16
    s_mul_i32 s{sT1}, s{sT1}, s{sCB}
    s_sub_u32 s{sT2}, s{sT2}, s{sT1}
    s_add_u32 s{sRB}, s{sRB}, s{sT2}
    s_and_b32 s{sR}, s{sW}, 3
    s_add_u32 s{sK}, s{sRB}, s{sCB}
    s_and_b32 s{sK}, s{sK}, 1
    s_mul_i32 s{sK}, s{sK}, 5
    s_cmp_lt_u32 s{sW}, 8
    s_cbranch_scc1 K1_C
    """)
    def common2():
        a(f"""
        v_bfe_u32 v{vT+4}, v{vL}, 2, 2
        v_bfe_u32 v{vT+5}, v{vL}, 4, 1
        v_lshl_add_u32 v{vT+4}, v{vT+4}, 1, v{vT+5}
        v_lshl_add_u32 v{vT+4}, v{vT+4}, 2, v{vT+1}
        v_lshlrev_b32 v{vCom}, 3, v{vT+4}
        s_mov_b32 s{sOnes}, 0x3f803f80
        s_cmp_eq_u32 s{sCB}, 17
        s_cselect_b32 s{sT0}, 1, 3
        s_and_b32 s{sT0}, s{sT0}, s{sR}
        s_lshr_b32 s{sT1}, s{sT0}, 1
        s_lshl_b32 s{sT1}, s{sT1}, 13
        s_and_b32 s{sT0}, s{sT0}, 1
        s_lshl_b32 s{sT0}, s{sT0}, 9
        s_add_u32 s{sT0}, s{sT0}, s{sT1}
        s_add_u32 s{sT0}, s{sT0}, 20480
        v_lshl_add_u32 v{vAw}, v{vT}, 10, v{vCom}
        v_add_u32 v{vAw}, s{sT0}, v{vAw}
        """)
    vQb, vQa = 4, 6
    a(f"""
    s_mul_i32 s{sT0}, s{sRB}, 160
    s_lshl_b32 s{sT1}, s{sR}, 3
    s_add_u32 s{sT0}, s{sT0}, s{sT1}
    s_mul_i32 s{sT0}, s{sT0}, 1280
    v_lshrrev_b32 v{vT+4}, 3, v{vL}
    v_mul_u32_u24 v{vT+4}, 1280, v{vT+4}
    v_add_u32 v{vT+4}, s{sT0}, v{vT+4}
    v_and_b32 v{vT+5}, 7, v{vL}
    v_lshrrev_b32 v{vT+6}, 4, v{vL}
    v_xor_b32 v{vT+5}, v{vT+5}, v{vT+6}
    s_and_b32 s{sT0}, s{sR}, 1
    s_lshl_b32 s{sT0}, s{sT0}, 2
    v_xor_b32 v{vT+5}, s{sT0}, v{vT+5}
    v_lshl_add_u32 v{vXs}, v{vT+5}, 4, v{vT+4}
    s_cmp_lt_u32 s{sCB}, 5
    s_movk_i32 s{sT0}, 3072
    s_cselect_b32 s{sT0}, 1280, s{sT0}
    s_cselect_b32 s{sT2}, 0, 5
    s_sub_u32 s{sT2}, s{sCB}, s{sT2}
    s_lshl_b32 s{sT2}, s{sT2}, 8
    v_lshl_add_u32 v{vT+4}, v{vT}, 6, v{vT+3}
    v_add_u32 v{vT+4}, s{sT2}, v{vT+4}
    v_add_u32 v{vT+5}, s{sT1}, v{vT+2}
    v_mad_u32_u24 v{vWs}, v{vT+5}, s{sT0}, v{vT+4}
    v_min_u32 v{vT+4}, 24, v{vT+3}
    v_mad_u32_u24 v{vT+6}, v{vT+5}, 40, v{vT+4}
    v_mov_b32 v{vT+7}, 0
    v_cmp_eq_u32 vcc, 0, v{vT}
    s_lshl_b32 s{sStr64}, s{sT0}, 6
    s_lshl_b32 s{sS32}, s{sT0}, 5
    s_mul_i32 s{WA+2}, s{sT0}, 640
    s_lshl_b32 s{sMx}, s{sR}, 10
    s_mov_b32 s{sI}, 0
    s_mov_b32 s{sSlot}, 0
    s_mov_b32 s{X+2}, {2048*1280}
    s_mov_b32 s{X+3}, 0x00020000
    s_mov_b32 s{WA+3}, 0x00020000
    s_cmp_lt_u32 s{sCB}, 5
    s_waitcnt lgkmcnt(0)
    s_mov_b32 s{X}, s8
    s_mov_b32 s{X+1}, s9
    s_cselect_b32 s{WA}, s10, s60
    s_cselect_b32 s{WA+1}, s11, s61
    v_mov_b32 v{vQb}, s14
    v_mov_b32 v{vQb+1}, s15
    v_mov_b32 v{vQa}, s12
    v_mov_b32 v{vQa+1}, s13
    v_cndmask_b32 v{vQb}, v{vQb}, v{vQa}, vcc
    v_cndmask_b32 v{vQb+1}, v{vQb+1}, v{vQa+1}, vcc
    v_lshl_add_u64 {vr(vQb,2)}, {vr(vT+6,2)}, 0, {vr(vQb,2)}
    v_mov_b32 v8, 2560
    """)
    stamp(a, 1)
    if PROF and 'lacc' in OPT: a("s_waitcnt lgkmcnt(0)\ns_mov_b32 s91, s72\ns_mov_b32 s95, 0\ns_mov_b32 s96, 0\ns_mov_b32 s97, 0")
    a("K1_issue:"); acc(a, 2)
    a(f"""
    s_lshl_b32 s{sT0}, s{sK}, 7
    s_add_u32 m0, s{sSlot}, s{sMx}
    s_mul_i32 s{sT1}, s{sK}, s{sStr64}
    """)
    for i in range(5):
        a(f"buffer_load_dwordx4 v{vXs}, {sr(X,4)}, s{sT0} offen lds\ns_add_u32 m0, m0, 4096\ns_add_u32 s{sT0}, s{sT0}, {32*1280}")
    a(f"""
    s_add_u32 s{sT2}, s{sT1}, s{sS32}
    s_cmp_eq_u32 s{sCB}, 17
    s_cbranch_scc1 K1_ikv
    buffer_load_dwordx4 v{vWs}, {sr(WA,4)}, s{sT1} offen lds
    s_add_u32 m0, m0, 4096
    s_nop 0
    buffer_load_dwordx4 v{vWs}, {sr(WA,4)}, s{sT2} offen lds
    s_add_u32 m0, m0, {4096-128}
    s_nop 0
    buffer_load_dwordx4 v{vWs}, {sr(WA,4)}, s{sT1} offen offset:128 lds
    s_add_u32 m0, m0, 4096
    s_nop 0
    buffer_load_dwordx4 v{vWs}, {sr(WA,4)}, s{sT2} offen offset:128 lds
    K1_i2:
    """); acc(a, 0); a(f"""
    s_add_u32 s{sK}, s{sK}, 1
    s_cmp_eq_u32 s{sK}, 10
    s_cselect_b32 s{sK}, 0, s{sK}
    s_add_u32 s{sSlot}, s{sSlot}, {SLOT}
    s_cmp_eq_u32 s{sSlot}, {4*SLOT}
    s_cselect_b32 s{sSlot}, 0, s{sSlot}
    s_add_u32 s{sI}, s{sI}, 1
    s_cmp_eq_u32 s{sI}, 1
    s_cbranch_scc1 K1_l1
    s_waitcnt vmcnt(9)
    s_barrier
    s_cmp_lg_u32 s{sI}, 10
    s_cbranch_scc1 K1_issue
    s_branch K1_g0
    K1_ikv:
    v_mad_u64_u32 {vr(vQa,2)}, s[58:59], v8, s{sK}, {vr(vQb,2)}
    global_load_lds_dwordx4 {vr(vQa,2)}, off
    s_add_u32 m0, m0, {4096-1280}
    s_nop 0
    global_load_lds_dwordx4 {vr(vQa,2)}, off offset:1280
    s_waitcnt vmcnt(7)
    s_branch K1_i2
    K1_l1:
    s_mov_b32 s{WS}, s6
    s_mov_b32 s{WS+1}, s7
    """)
    a(f"""
    s_cmp_eq_u32 s{sR}, 3
    s_mul_i32 s{sT0}, s{sRB}, 25600
    s_mul_i32 s{sT1}, s{sCB}, 10240
    s_movk_i32 s{sGs}, 2560
    s_cselect_b32 s{sGs}, 1024, s{sGs}
    s_cselect_b32 s{sT0}, s{sT1}, s{sT0}
    s_mov_b32 s{sT1}, {WS_SR}
    s_cselect_b32 s{sT1}, {WS_SC}, s{sT1}
    s_cselect_b32 s{sT2}, 0, s{sR}
    s_add_u32 s{sU}, s{sT0}, s{sT1}
    s_lshl_b32 s{sT2}, s{sT2}, 6
    v_add_u32 v20, s{sT2}, v{vL}
    v_min_u32 v20, 159, v20
    v_lshlrev_b32 v20, 4, v20
    s_mov_b32 s{DB2}, s4
    s_mov_b32 s{DB2+1}, s5
    s_mov_b32 s{DB2+2}, 256
    s_mov_b32 s{DB2+3}, 0x00020000
    v_mov_b32 v22, 0
    s_branch K1_issue
    K1_g0:
    """)
    G = 32
    a(f"""
    s_mov_b32 s{sI}, 0
    """)
    a(f"K1_gat:\ns_mov_b32 s{sT0}, s{sU}\nbuffer_load_dword v21, v22, {sr(DB2,4)}, 0 offen sc1")
    for k in range(10):
        a(f"buffer_load_dwordx4 {vr(G+4*k,4)}, v20, {sr(WS,4)}, s{sT0} offen sc1\ns_add_u32 s{sT0}, s{sT0}, s{sGs}")
    a(f"""
    s_cmp_lg_u32 s{sI}, 0
    s_cbranch_scc1 K1_g2
    s_waitcnt vmcnt(11)
    s_barrier
    """)
    a(f"""
    K1_g2:
    s_add_u32 s{sI}, s{sI}, 1
    s_waitcnt vmcnt(0)
    v_cmp_eq_u32 vcc, 0, v21
    v_readfirstlane_b32 s{sN}, v21
    s_nop 0
    v_cndmask_b32 v6, 0, 1, vcc
    """)
    for k in range(10):
        a(f"v_xor_b32 v{G+4*k+1}, v{G+4*k+1}, v21\nv_xor_b32 v{G+4*k+3}, v{G+4*k+3}, v21\nv_or3_b32 v6, v{G+4*k+1}, v{G+4*k+3}, v6")
    a(f"""
    v_cmp_ne_u32 vcc, 0, v6
    s_cbranch_vccz K1_g3
    s_sleep {SLP}
    s_cmp_lt_u32 s{sI}, {SPINMAX}
    s_cbranch_scc1 K1_gat
    K1_g3:
    """)
    for k in range(1, 10):
        a(f"v_add_f32 v{G}, v{G}, v{G+4*k}\nv_add_f32 v{G+2}, v{G+2}, v{G+4*k+2}")
    a(f"""
    s_cmp_eq_u32 s{sR}, 3
    s_cbranch_scc1 K1_gc
    v_mul_f32 v{G}, {f32(1.0/640)}, v{G}
    v_mul_f32 v{G+2}, {f32(1.0/640)}, v{G+2}
    v_cvt_pk_bf16_f32 v{G+4}, -v{G}, -v{G}
    v_fma_f32 v{G+2}, -v{G}, v{G}, v{G+2}
    v_max_f32 v{G+2}, 0, v{G+2}
    """)
    round_bf16(a, G+2, G+2)
    a(f"v_add_f32 v{G+2}, {f32(1e-5)}, v{G+2}")
    round_bf16(a, G+2, G+2)
    a(f"v_sqrt_f32 v{G+6}, v{G+2}\nv_mov_b32 v{G+5}, 0")
    round_bf16(a, G+6, G+6)
    a(f"""
    v_rcp_f32 v{G+7}, v{G+6}
    v_add_u32 v5, {XB}, v20
    s_nop 0
    ds_write_b128 v5, {vr(G+4,4)}
    s_branch K1_gd
    K1_gc:
    v_and_b32 v{G+1}, 0xffff0000, v{G}
    v_and_b32 v{G+3}, 0xffff0000, v{G+2}
    v_sub_f32 v{G}, v{G}, v{G+1}
    v_sub_f32 v{G+2}, v{G+2}, v{G+3}
    v_cvt_pk_bf16_f32 v{G+4}, v{G+1}, v{G}
    v_cvt_pk_bf16_f32 v{G+5}, v{G+3}, v{G+2}
    v_lshlrev_b32 v5, 3, v{vL}
    v_add_u32 v5, {XFC}, v5
    ds_write_b64 v5, {vr(G+4,2)}
    v_mov_b32 v5, {XN}
    ds_write_b32 v5, v21
    K1_gd:
    """)
    a("s_waitcnt lgkmcnt(0)\ns_barrier\ns_branch K2_G")
    vN = 2
    a(f"""
    K1_C:
    """)
    common2()
    a(f"""
    s_lshr_b32 s{sG}, s{sW}, 2
    s_mov_b32 s{sK0}, s{sK}
    s_mov_b32 s{DBG+2}, 256
    s_mov_b32 s{DBG+3}, 0x00020000
    v_mov_b32 v{vN+1}, 0
    v_and_b32 v{vT+4}, 31, v{vL}
    v_bfe_u32 v{vT+5}, v{vL}, 1, 3
    v_lshlrev_b32 v{vT+4}, 7, v{vT+4}
    s_waitcnt lgkmcnt(0)
    s_mov_b32 s{WS}, s6
    s_mov_b32 s{WS+1}, s7
    s_mov_b32 s{DBG}, s4
    s_mov_b32 s{DBG+1}, s5
    s_lshl_b32 s{sT1}, s{sW}, 12
    v_lshlrev_b32 v{vT+6}, 2, v{vT}
    v_xor_b32 v{vT+6}, v{vT+6}, v{vT+5}
    v_lshl_add_u32 v4, v{vT+6}, 4, v{vT+4}
    v_add_u32 v4, s{sT1}, v4
    v_xor_b32 v5, 16, v4
    v_xor_b32 v6, 32, v4
    v_xor_b32 v7, 48, v4
    v_xor_b32 v{vT+5}, v{vT+5}, v{vT}
    s_mul_i32 s{sT1}, s{sG}, {3*4096}
    v_add_u32 v{vT+4}, s{sT1}, v{vT+4}
    """)
    for i in range(4):
        a(f"v_xor_b32 v{vT+6}, {2*i}, v{vT+5}\nv_lshl_add_u32 v{vAx+i}, v{vT+6}, 4, v{vT+4}")
    a(f"""
    s_mov_b32 s{sI}, 1
    s_mov_b32 s{sDelta}, {SLOT}
    s_sub_u32 s{sT0}, s{sW}, 2
    s_cmp_lt_u32 s{sT0}, 4
    s_cselect_b32 s{sIdle}, 1, 0
    s_cmp_eq_u32 s{sCB}, 17
    s_cselect_b32 s{sIdle}, s{sIdle}, 0
    s_lshr_b32 s{sHr}, s{sCB}, 1
    s_add_u32 s{sHr}, s{sHr}, 2
    s_cmp_lt_u32 s{sCB}, 10
    s_cselect_b32 s{sHr}, s{sHr}, 0
    s_cmp_lt_u32 s{sW}, 5
    s_cselect_b32 s{sHr}, s{sHr}, 0
    s_lshr_b32 s{sHc}, s{sRB}, 1
    s_add_u32 s{sHc}, s{sHc}, 2
    s_cmp_lt_u32 s{sRB}, 10
    s_cselect_b32 s{sHc}, s{sHc}, 0
    """)
    for i in range(48): a(f"v_mov_b32 v{AC+i}, 0")
    a(f"s_cmp_lg_u32 s{sIdle}, 0\ns_cbranch_scc1 K1_idle\ns_barrier")
    stamp(a, 1)
    a(f"buffer_load_dword v{vN}, v{vN+1}, {sr(DBG,4)}, 0 offen sc1")
    KR = dict(fW=fW, fX=fX, AC=AC, vAx=vAx, vAw=vAw, sDelta=sDelta)
    vFl = vT + 7
    def cloop(T):
        first, ba, bb, tail = kbody.streamC(KR, T)
        a(f"K1_start{T}:")
        for l in first: a(l)
        a(f"s_branch K1_mid{T}\nK1_comp{T}:\ns_barrier")
        if 'bt' in OPT: a(f"s_memtime s[92:93]\ns_waitcnt lgkmcnt(0)\ns_sub_u32 s92, s92, s70\nv_mov_b32 v22, s92\nv_cmp_eq_u32 vcc, s{sI}, v0\ns_nop 1\nv_cndmask_b32 v23, v23, v22, vcc")
        a(f"s_cmp_eq_u32 s{sI}, s{sHr}\ns_cbranch_scc1 K1_hr\nK1_hr{T}:")
        if T == 2: a(f"s_cmp_eq_u32 s{sI}, s{sHc}\ns_cbranch_scc1 K1_hc\nK1_hc2:")
        for l in ba: a(l)
        a(f"K1_mid{T}:")
        for l in bb: a(l)
        a(f"""
        s_and_b32 s{sT0}, s{sI}, 3
        s_cmp_eq_u32 s{sT0}, 3
        s_mov_b32 s{sDelta}, {SLOT}
        s_cselect_b32 s{sDelta}, {(-3*SLOT) & 0xffffffff}, s{sDelta}
        s_add_u32 s{sI}, s{sI}, 1
        s_cmp_lg_u32 s{sI}, 11
        s_waitcnt lgkmcnt(0)
        s_cbranch_scc1 K1_comp{T}
        """)
        a("s_barrier")
        for l in tail: a(l)
    a(f"s_cmp_lg_u32 s{sG}, 0\ns_cbranch_scc0 K1_start3")
    cloop(2)
    a(f"""
    s_branch K1_cdone
    K1_idle:
    s_barrier
    s_add_u32 s{sI}, s{sI}, 1
    s_cmp_lg_u32 s{sI}, 12
    s_cbranch_scc1 K1_idle
    s_branch K1_cdone
    """)
    cloop(3)
    a("K1_cdone:")
    stamp(a, 2)
    if 'bt' in OPT:
        a(f"""
        s_lshl_b32 s92, s2, 4
        s_add_u32 s92, s92, s{sW}
        s_lshl_b32 s92, s92, 6
        s_add_u32 s92, s92, {WS_PROF + 0x40000}
        v_lshlrev_b32 v22, 2, v0
        s_mov_b64 exec, 0xffff
        buffer_store_dword v23, v22, {sr(WS,4)}, s92 offen
        s_mov_b64 exec, -1
        """)
    ST, vCA, E, PK = 144, 20, 112, 128
    vMq, vNe = 24, 30
    a(f"""
    v_and_b32 v3, 31, v{vL}
    s_mul_i32 s{sT0}, s{sG}, {96*16}
    s_add_u32 s{sT0}, s{sT0}, {XB}
    v_lshl_add_u32 v4, v3, 4, s{sT0}
    s_lshl_b32 s{sT0}, s{sR}, 7
    s_add_u32 s{sT0}, s{sT0}, {XFC}
    v_lshl_add_u32 v5, v3, 2, s{sT0}
    v_lshlrev_b32 v1, 4, v{vL}
    v_mov_b32 v{vCA+1}, 0
    s_mul_i32 s{sRT}, s{sRB}, 5
    s_mul_i32 s{sT0}, s{sG}, 3
    s_add_u32 s{sRT}, s{sRT}, s{sT0}
    s_sub_u32 s{sU}, 3, s{sG}
    s_add_u32 s{sU}, s{sU}, s{sRT}
    s_min_u32 s{sU}, s{sU}, 64
    s_lshl_b32 s{sT0}, s{sCB}, 13
    s_lshl_b32 s{sT1}, s{sR}, 11
    s_add_u32 s{sMx}, s{sT0}, s{sT1}
    v_cmp_gt_u32 vcc, 32, v{vL}
    v_mov_b32 v6, {XN}
    """)
    a(f"""
    ds_read_b32 v6, v6
    ds_read_b32 v{vCA}, v5
    ds_read_b128 {vr(ST,4)}, v4
    ds_read_b128 {vr(ST+4,4)}, v4 offset:512
    ds_read_b128 {vr(ST+8,4)}, v4 offset:1024
    s_mov_b32 s{sI}, 0
    s_waitcnt lgkmcnt(3)
    v_cndmask_b32 v{vCA}, 0, v{vCA}, vcc
    v_readfirstlane_b32 s{sN}, v6
    s_sub_u32 s{sT0}, s{sCB}, 5
    s_cmp_lt_u32 s{sT0}, 12
    s_waitcnt lgkmcnt(0)
    v_mfma_f32_32x32x8_bf16 {vr(AC,16)}, {vr(vCA,2)}, {vr(ST,2)}, {vr(AC,16)}
    v_mfma_f32_32x32x8_bf16 {vr(AC+16,16)}, {vr(vCA,2)}, {vr(ST+4,2)}, {vr(AC+16,16)}
    v_mfma_f32_32x32x8_bf16 {vr(AC+32,16)}, {vr(vCA,2)}, {vr(ST+8,2)}, {vr(AC+32,16)}
    s_cbranch_scc0 K1_lin
    s_mul_i32 s{sT3}, s{sRT}, {96*1024}
    s_add_u32 s{sT3}, s{sT3}, s{sMx}
    s_add_u32 s{sT3}, s{sT3}, {WS_H - 5*8192}
    s_nop 5
    K1_epiH:
    v_mul_f32 v{vNe}, {f32(-LOG2E)}, v{ST+3}
    """)
    for i in range(8): a(f"v_pk_mul_f32 {vr(E+2*i,2)}, {vr(AC+2*i,2)}, {vr(vNe,2)} op_sel_hi:[1,0]")
    for i in range(16): a(f"v_exp_f32 v{E+i}, v{E+i}")
    for i in range(8): a(f"v_pk_fma_f32 {vr(E+2*i,2)}, {vr(E+2*i,2)}, {vr(ST+2,2)}, {vr(ST+2,2)} op_sel_hi:[1,0,0]")
    for i in range(16): a(f"v_rcp_f32 v{E+i}, v{E+i}")
    for i in range(8): a(f"v_pk_mul_f32 {vr(E+2*i,2)}, {vr(E+2*i,2)}, {vr(AC+2*i,2)}")
    for i in range(8): a(f"v_cvt_pk_bf16_f32 v{PK+i}, v{E+2*i}, v{E+2*i+1}")
    a(f"""
    buffer_store_dwordx4 {vr(PK,4)}, v1, {sr(WS,4)}, s{sT3} offen sc1
    buffer_store_dwordx4 {vr(PK+4,4)}, v1, {sr(WS,4)}, s{sT3} offen offset:1024 sc1
    s_add_u32 s{sT3}, s{sT3}, {96*1024}
    s_add_u32 s{sRT}, s{sRT}, 1
    s_cmp_eq_u32 s{sRT}, s{sU}
    s_cbranch_scc1 K1_done
    s_add_u32 s{sI}, s{sI}, 1
    s_cmp_eq_u32 s{sI}, 2
    s_cbranch_scc1 K1_e2
    """)
    for i in range(8): a(f"v_pk_mov_b32 {vr(AC+2*i,2)}, {vr(AC+16+2*i,2)}, {vr(AC+16+2*i,2)} op_sel:[0,1]")
    a(f"v_pk_mov_b32 {vr(ST+2,2)}, {vr(ST+6,2)}, {vr(ST+6,2)} op_sel:[0,1]\ns_branch K1_epiH\nK1_e2:")
    for i in range(8): a(f"v_pk_mov_b32 {vr(AC+2*i,2)}, {vr(AC+32+2*i,2)}, {vr(AC+32+2*i,2)} op_sel:[0,1]")
    a(f"v_pk_mov_b32 {vr(ST+2,2)}, {vr(ST+10,2)}, {vr(ST+10,2)} op_sel:[0,1]\ns_branch K1_epiH")
    PQ = 96
    a(f"""
    K1_lin:
    s_cmp_lg_u32 s{sIdle}, 0
    s_cbranch_scc1 K2_A
    s_cmp_eq_u32 s{sCB}, 17
    s_mov_b32 s{sK}, {f32(20 ** -0.5 * LOG2E)}
    s_cselect_b32 s{sK}, 1.0, s{sK}
    v_mul_f32 v{vMq}, s{sK}, v{ST+3}
    v_mul_f32 v{vMq+2}, s{sK}, v{ST+7}
    v_mul_f32 v{vMq+4}, s{sK}, v{ST+11}
    s_mul_i32 s{sT3}, s{sRT}, 40960
    s_add_u32 s{sT3}, s{sT3}, s{sMx}
    s_cmp_eq_u32 s{sCB}, 17
    s_cselect_b32 s{sT3}, {WS_END}, s{sT3}
    """)
    for j in range(3):
        for i in range(16): a(f"v_mul_f32 v{AC+16*j+i}, v{AC+16*j+i}, v{vMq+2*j}")
        for i in range(8): a(f"v_cvt_pk_bf16_f32 v{PQ+8*j+i}, v{AC+16*j+2*i}, v{AC+16*j+2*i+1}")
        a(f"""
        buffer_store_dwordx4 {vr(PQ+8*j,4)}, v1, {sr(WS,4)}, s{sT3} offen sc1
        buffer_store_dwordx4 {vr(PQ+8*j+4,4)}, v1, {sr(WS,4)}, s{sT3} offen offset:1024 sc1
        """)
        if j < 2:
            a(f"""
            s_add_u32 s{sT3}, s{sT3}, 40960
            s_add_u32 s{sT0}, s{sRT}, {j+1}
            s_cmp_lt_u32 s{sT0}, s{sU}
            s_cselect_b32 s{sT3}, s{sT3}, {WS_END}
            """)
    a(f"""
    s_cmp_lg_u32 s{sCB}, 17
    s_cbranch_scc1 K1_done
    v_lshrrev_b32 v5, 5, v{vL}
    s_bitcmp1_b32 s{sR}, 0
    s_cbranch_scc1 K1_vst
    v_mul_u32_u24 v4, 5120, v5
    v_lshl_add_u32 v4, v3, 4, v4
    v_lshlrev_b32 v5, 4, v3
    """)
    def kvbase(j):
        a(f"""
        s_add_u32 s{sT2}, s{sRT}, {j}
        s_lshr_b32 s{sT0}, s{sT2}, 2
        s_mul_i32 s{sT0}, s{sT0}, 10240
        s_add_u32 s{sT0}, s{sT0}, {WS_KV}
        s_cmp_lt_u32 s{sT2}, s{sU}
        s_cselect_b32 s{sT0}, s{sT0}, {WS_END}
        s_and_b32 s{sT2}, s{sT2}, 3
        """)
    for j in range(3):
        kvbase(j)
        a(f"""
        s_lshl_b32 s{sT1}, s{sT2}, 9
        s_add_u32 s{sT1}, s{sT1}, s{sT0}
        buffer_store_dwordx4 {vr(PQ+8*j,4)}, v4, {sr(WS,4)}, s{sT1} offen sc1
        s_and_b32 s{sT1}, s{sT2}, 1
        s_mul_i32 s{sT1}, s{sT1}, 5120
        s_add_u32 s{sT0}, s{sT0}, s{sT1}
        s_lshr_b32 s{sT1}, s{sT2}, 1
        s_lshl_b32 s{sT1}, s{sT1}, 3
        s_add_u32 s{sT0}, s{sT0}, s{sT1}
        s_mov_b32 exec_lo, 0
        buffer_store_dwordx2 {vr(PQ+8*j+4,2)}, v5, {sr(WS,4)}, s{sT0} offen offset:2048 sc1
        s_mov_b32 exec_lo, -1
        """)
    a(f"""
    s_branch K1_done
    K1_vst:
    s_lshl_b32 s{sT3}, s{sG}, 12
    s_add_u32 s{sT3}, s{sT3}, {XQ+2048}
    v_bfe_u32 v4, v3, 2, 1
    v_mul_u32_u24 v4, 640, v4
    v_lshl_add_u32 v4, v5, 6, v4
    v_lshrrev_b32 v5, 4, v3
    v_mul_u32_u24 v5, 320, v5
    v_add_u32 v4, v4, v5
    v_bfe_u32 v5, v3, 3, 1
    v_lshl_add_u32 v4, v5, 3, v4
    v_and_b32 v5, 3, v3
    v_lshl_add_u32 v4, v5, 1, v4
    v_add_u32 v4, s{sT3}, v4
    v_add_u32 v5, s{sT3}, v1
    """)
    for jj in range(3):
        if jj == 2: a("s_mov_b32 exec_lo, 0")
        for j in range(3):
            o = 1280 * j + 128 * jj - (64 if jj == 2 else 0); p = PQ + 8 * j + 2 * jj
            a(f"""
            ds_write_b16 v4, v{p} offset:{o}
            ds_write_b16_d16_hi v4, v{p} offset:{o+16}
            ds_write_b16 v4, v{p+1} offset:{o+32}
            ds_write_b16_d16_hi v4, v{p+1} offset:{o+48}
            """)
        a("s_waitcnt lgkmcnt(0)")
    a("s_mov_b32 exec_lo, -1\ns_mov_b32 exec_hi, 0xff")
    for j in range(6): a(f"ds_read_b128 {vr(AC+4*j,4)}, v5 offset:{640*j}")
    for j in range(3):
        kvbase(j)
        a(f"""
        s_mul_i32 s{sT1}, s{sT2}, 640
        s_add_u32 s{sT0}, s{sT0}, s{sT1}
        s_add_u32 s{sT1}, s{sT0}, 5120
        s_waitcnt lgkmcnt({4-2*j})
        buffer_store_dwordx4 {vr(AC+8*j,4)}, v1, {sr(WS,4)}, s{sT0} offen offset:2560 sc1
        buffer_store_dwordx4 {vr(AC+8*j+4,4)}, v1, {sr(WS,4)}, s{sT1} offen offset:2560 sc1
        """)
    a("s_mov_b32 exec_hi, -1\ns_branch K1_done")
    def hook_head():
        a(f"""
        s_sub_u32 s{sT0}, s{sI}, 1
        s_add_u32 s{sT1}, s{sT0}, s{sK0}
        s_cmp_eq_u32 s{sT1}, 10
        s_cselect_b32 s{sT1}, 0, s{sT1}
        """)
    def nonce(lab):
        a(f"""
        s_mov_b32 s{sT2}, 0
        {lab}:
        s_waitcnt vmcnt(0)
        v_readfirstlane_b32 s{sN}, v{vN}
        s_add_u32 s{sT2}, s{sT2}, 1
        s_cmp_lg_u32 s{sN}, 0
        s_cbranch_scc1 {lab}x
        buffer_load_dword v{vN}, v{vN+1}, {sr(DBG,4)}, 0 offen sc1
        s_cmp_lt_u32 s{sT2}, {SPINMAX}
        s_cbranch_scc1 {lab}
        {lab}x:
        """)
    a("K1_hr:"); hook_head()
    a(f"s_and_b32 s{sT0}, s{sT0}, 3\ns_mul_i32 s{sT0}, s{sT0}, {SLOT}")
    for i in range(4): a(f"v_add_u32 v{4+i}, s{sT0}, v{4+i}\nds_read_b128 {vr(144+4*i,4)}, v{4+i}")
    a(f"""
    v_mov_b32 v4, 0
    v_mov_b32 v6, 0
    s_mul_i32 s{sT0}, s{sRB}, 10
    s_add_u32 s{sT0}, s{sT0}, s{sT1}
    s_mul_i32 s{sT0}, s{sT0}, 2560
    s_lshl_b32 s{sT1}, s{sW}, 9
    s_add_u32 s{sT0}, s{sT0}, s{sT1}
    s_add_u32 s{sT0}, s{sT0}, {WS_SR}
    """)
    nonce("K1_n1")
    a("s_waitcnt lgkmcnt(0)")
    for i in range(16): a(f"v_dot2c_f32_bf16 v4, s{sOnes}, v{144+i}\nv_dot2c_f32_bf16 v6, v{144+i}, v{144+i}")
    a(f"""
    v_mov_b32 v5, v{vN}
    v_mov_b32 v7, v{vN}
    v_lshlrev_b32 v144, 4, v{vL}
    v_mov_b32 v8, v4
    v_mov_b32 v9, v6
    s_cmp_eq_u32 s{sG}, 0
    s_nop 0
    v_permlane32_swap_b32 v8, v4
    v_permlane32_swap_b32 v9, v6
    v_add_f32 v4, v4, v8
    v_add_f32 v6, v6, v9
    s_mov_b32 exec_hi, 0
    buffer_store_dwordx4 {vr(4,4)}, v144, {sr(WS,4)}, s{sT0} offen sc1
    s_mov_b32 exec_hi, -1
    s_cbranch_scc1 K1_hr3
    s_branch K1_hr2
    K1_hc:
    """)
    for k in range(4):
        for q in range(2): a(f"ds_read_b64_tr_b16 {vr(144+4*k+2*q,2)}, v{vAw} offset:{2048*k+256*q}")
    hook_head()
    a(f"""
    v_mov_b32 v160, 0
    s_mul_i32 s{sT0}, s{sCB}, 10
    s_add_u32 s{sT0}, s{sT0}, s{sT1}
    s_lshl_b32 s{sT0}, s{sT0}, 10
    s_add_u32 s{sT0}, s{sT0}, {WS_SC}
    s_lshl_b32 s{sT1}, s{sR}, 8
    s_add_u32 s{sT0}, s{sT0}, s{sT1}
    s_xor_b32 s{sT3}, s{sT0}, 512
    s_cmp_eq_u32 s{sCB}, 17
    s_cselect_b32 s{sT3}, s{sT3}, {WS_END}
    """)
    nonce("K1_n2")
    a("s_waitcnt lgkmcnt(0)")
    for i in range(16): a(f"v_dot2c_f32_bf16 v160, s{sOnes}, v{144+i}")
    a(f"""
    v_mov_b32 v161, v{vN}
    v_lshlrev_b32 v144, 3, v{vL}
    s_nop 0
    v_mov_b32 v162, v160
    s_nop 1
    v_permlane32_swap_b32 v162, v160
    v_add_f32 v160, v160, v162
    s_mov_b32 exec_hi, 0
    buffer_store_dwordx2 {vr(160,2)}, v144, {sr(WS,4)}, s{sT0} offen sc1
    buffer_store_dwordx2 {vr(160,2)}, v144, {sr(WS,4)}, s{sT3} offen sc1
    s_mov_b32 exec_hi, -1
    s_branch K1_hc2
    """)
    sJ, sL, sPst = 34, 35, 36
    WP = 24; vPs = 2
    a(f"""
    K1_aux:
    s_memrealtime s[66:67]
    v_bfe_u32 v{vT+4}, v{vL}, 2, 2
    v_bfe_u32 v{vT+5}, v{vL}, 4, 1
    v_lshl_add_u32 v{vT+4}, v{vT+4}, 1, v{vT+5}
    v_lshl_add_u32 v{vT+4}, v{vT+4}, 2, v{vT+1}
    v_lshlrev_b32 v{vCom}, 3, v{vT+4}
    s_lshl_b32 s{sT0}, s{sT0}, 1
    s_add_u32 s{sT0}, s{sT0}, s{sT1}
    s_sub_u32 s{sT0}, s{sT0}, 30
    s_sub_u32 s{sT2}, s{sT2}, {234-16}
    s_cmp_ge_u32 s{sT1}, 30
    s_cselect_b32 s{sT0}, s{sT0}, s{sT2}
    s_mul_i32 s{sJ}, s{sT0}, 12
    s_add_u32 s{sJ}, s{sJ}, s{sW}
    s_mul_i32 s{sL}, s{sW}, 12288
    v_lshl_add_u32 v{vT+3}, v{vT}, 6, v{vT+3}
    v_lshrrev_b32 v{vT+6}, 2, v{vT+2}
    v_and_b32 v{vT+7}, 3, v{vT+2}
    s_mov_b32 m0, s{sL}
    s_mov_b32 s{WP+3}, 0x00020000
    s_mov_b32 s{sI}, s{sJ}
    s_waitcnt lgkmcnt(0)
    s_mov_b32 s{WS}, s6
    s_mov_b32 s{WS+1}, s7
    s_mov_b32 s{DBG}, s4
    s_mov_b32 s{DBG+1}, s5
    s_mov_b32 s{DBG+2}, 256
    s_mov_b32 s{DBG+3}, 0x00020000
    s_lshl_b32 s{sU}, s{sT0}, 7
    s_add_u32 s{sU}, s{sU}, {WS_F1 + 72*4096}
    s_mov_b64 s[58:59], 1
    s_cmp_lg_u32 s{sJ}, 0
    s_cbranch_scc1 K1_a1
    s_or_b32 s66, s66, 1
    v_mov_b32 v4, s66
    v_mov_b32 v5, 0
    s_mov_b64 exec, 1
    buffer_store_dword v4, v5, {sr(DBG,4)}, 0 offen sc1
    s_mov_b64 exec, -1
    K1_a1:
    s_mul_i32 s{sT0}, s{sI}, 6554
    s_lshr_b32 s{sT0}, s{sT0}, 16
    s_mul_i32 s{sT1}, s{sT0}, 10
    s_sub_u32 s{sT1}, s{sI}, s{sT1}
    s_lshl_b32 s{sT1}, s{sT1}, 7
    s_sub_u32 s{sT2}, s{sT0}, 96
    s_mul_i32 s{sT3}, s{sT2}, 205
    s_lshr_b32 s{sT3}, s{sT3}, 10
    s_mul_i32 s55, s{sT3}, 5
    s_sub_u32 s55, s{sT2}, s55
    s_mul_i32 s{sT3}, s{sT3}, 80
    s_mul_i32 s56, s55, 20
    s_cmp_eq_u32 s55, 4
    s_cselect_b32 s56, 16, s56
    s_cselect_b32 s55, 1, 0
    s_add_u32 s{sT3}, s{sT3}, s56
    s_lshl_b32 s{sT2}, s{sT0}, 4
    s_cmp_lt_u32 s{sT0}, 96
    s_cselect_b32 s{sT3}, s{sT2}, s{sT3}
    s_cselect_b32 s55, 0, s55
    s_cselect_b32 s{WP}, s62, s16
    s_cselect_b32 s{WP+1}, s63, s17
    s_mov_b32 s{WP+2}, {640*1280}
    s_cselect_b32 s{WP+2}, {1536*1280}, s{WP+2}
    s_mul_i32 s{sT3}, s{sT3}, 1280
    s_add_u32 s56, s{sT3}, s{sT1}
    s_cmp_eq_u32 s55, 0
    s_cselect_b32 s{sT2}, 4, 40
    s_movk_i32 s57, {20*1280}
    s_cselect_b32 s57, {8*1280}, s57
    s_add_u32 s57, s57, s56
    v_mad_u32_u24 v{vPs}, v{vT+6}, s{sT2}, v{vT+7}
    v_mul_u32_u24 v{vPs}, 1280, v{vPs}
    v_add_u32 v{vPs}, v{vPs}, v{vT+3}
    buffer_load_dwordx4 v{vPs}, {sr(WP,4)}, s56 offen lds
    s_add_u32 m0, m0, 1024
    s_add_u32 s{sI}, s{sI}, 264
    buffer_load_dwordx4 v{vPs}, {sr(WP,4)}, s57 offen lds
    s_add_u32 m0, m0, 1024
    s_cmp_lt_u32 s{sI}, 1360
    s_cbranch_scc1 K1_a1
    v_lshl_add_u32 v4, v{vT}, 8, v{vCom}
    v_add_u32 v4, s{sL}, v4
    v_and_b32 v5, 15, v{vL}
    v_lshlrev_b32 v5, 4, v5
    v_lshl_add_u32 v5, v{vT}, 8, v5
    v_lshl_add_u32 v5, v{vT+5}, 9, v5
    s_lshl_b32 s{sPst}, s{sJ}, 11
    s_add_u32 s{sPst}, s{sPst}, {WS_WP}
    s_waitcnt vmcnt(0)
    K1_a2:
    ds_read_b64_tr_b16 {vr(32,2)}, v4
    ds_read_b64_tr_b16 {vr(34,2)}, v4 offset:1024
    ds_read_b64_tr_b16 {vr(36,2)}, v4 offset:512
    ds_read_b64_tr_b16 {vr(38,2)}, v4 offset:1536
    v_add_u32 v4, 2048, v4
    s_add_u32 s{sJ}, s{sJ}, 264
    s_waitcnt lgkmcnt(0)
    buffer_store_dwordx4 {vr(32,4)}, v5, {sr(WS,4)}, s{sPst} offen sc1
    buffer_store_dwordx4 {vr(36,4)}, v5, {sr(WS,4)}, s{sPst} offen offset:1024 sc1
    s_add_u32 s{sPst}, s{sPst}, {264*2048}
    s_cmp_lt_u32 s{sJ}, 1360
    s_cbranch_scc1 K1_a2
    v_mov_b32 v5, 0
    s_mov_b32 s{sT3}, 0
    K1_a3:
    buffer_load_dword v4, v5, {sr(DBG,4)}, 0 offen sc1
    s_add_u32 s{sT3}, s{sT3}, 1
    s_waitcnt vmcnt(0)
    v_readfirstlane_b32 s{sN}, v4
    s_cmp_gt_u32 s{sT3}, {SPINMAX}
    s_cbranch_scc1 K1_a4
    s_cmp_eq_u32 s{sN}, 0
    s_cbranch_scc1 K1_a3
    K1_a4:
    s_barrier
    s_cmp_ge_u32 s{sW}, 8
    s_cbranch_scc1 K2_G
    s_cmp_lg_u32 s{sW}, 0
    s_cbranch_scc1 K2_A
    s_branch K1_flag
    K1_done:
    s_lshl_b32 s{sU}, s{sCB}, 2
    s_add_u32 s{sU}, s{sU}, s{sR}
    s_lshl_b32 s{sU}, s{sU}, 5
    s_lshl_b32 s{sT0}, s{sRB}, 1
    s_add_u32 s{sU}, s{sU}, s{sT0}
    s_add_u32 s{sU}, s{sU}, s{sG}
    s_lshl_b32 s{sU}, s{sU}, 7
    s_add_u32 s{sU}, s{sU}, {WS_F1}
    s_mov_b64 s[58:59], 1
    s_cmp_lg_u32 s{sCB}, 17
    s_cbranch_scc1 K1_flag
    v_mov_b32 v4, 1
    v_mov_b32 v5, 0
    s_mov_b64 exec, 1
    s_waitcnt vmcnt(0)
    buffer_atomic_add v4, v5, {sr(DBG,4)}, 0 offen offset:128 sc0
    s_mov_b32 s{sU}, {WS_FK}
    s_mov_b64 s[58:59], -1
    s_waitcnt vmcnt(0)
    v_readfirstlane_b32 s{sT0}, v4
    s_mov_b64 exec, -1
    s_mul_hi_u32 s{sT1}, s{sT0}, {(1 << 32) // 52 + 1}
    s_mul_i32 s{sT1}, s{sT1}, 52
    s_sub_u32 s{sT0}, s{sT0}, s{sT1}
    s_cmp_lg_u32 s{sT0}, 51
    s_cbranch_scc1 K2_A
    """)
    stamp(a, 3)
    setflag(a, sU, WS, 4, 5, '-1')
    a("s_branch K2_A\nK1_flag:")
    stamp(a, 3)
    a(f"s_mov_b32 s64, s{sU}\ns_branch K2_A2")

def tile_ids(a, sRB, sNB, sT0):
    a(f"""
    s_and_b32 s{sT0}, s2, 3
    s_lshl_b32 s{sRB}, s{sT0}, 3
    s_bfe_u32 s{sT0}, s2, 0x30003
    s_add_u32 s{sRB}, s{sRB}, s{sT0}
    s_bfe_u32 s{sT0}, s2, 0x10002
    s_lshl_b32 s{sNB}, s{sT0}, 2
    s_lshr_b32 s{sT0}, s2, 6
    s_add_u32 s{sNB}, s{sNB}, s{sT0}
    """)
def wlane(a, vL, vW, vW2, t):
    a(f"""
    v_and_b32 v{vW2}, 15, v{vL}
    v_lshlrev_b32 v{vW2}, 4, v{vW2}
    v_lshrrev_b32 v{t}, 5, v{vL}
    v_lshl_add_u32 v{vW2}, v{t}, 8, v{vW2}
    v_bfe_u32 v{t}, v{vL}, 4, 1
    v_lshl_add_u32 v{vW}, v{t}, 9, v{vW2}
    """)

def gen_k2(a):
    sW, sR, sG, sRB, sCB, sHD, sRT = 32, 33, 34, 35, 36, 37, 38
    sI, sT0, sT1, sT2, sSrc, sVm, sSeg, sT3 = 39, 40, 41, 42, 43, 44, 52, 53
    WS, X, OUT = 28, 20, 24
    vL, vA, vD = 0, 1, 2
    QM, QT, KM, KT, V, P, O, S = 4, 8, 12, 20, 24, 40, 56, 72
    R = dict(vA=vA, QM=QM, QT=QT, KM=KM, KT=KT, V=V, P=P, O=O, S=S)
    def aids():
        a(f"""
        s_and_b32 s{sT0}, s2, 3
        s_lshl_b32 s{sRB}, s{sT0}, 2
        s_bfe_u32 s{sT0}, s2, 0x20003
        s_add_u32 s{sRB}, s{sRB}, s{sT0}
        s_bfe_u32 s{sT0}, s2, 0x10002
        s_lshl_b32 s{sCB}, s{sT0}, 3
        s_lshr_b32 s{sT0}, s2, 5
        s_add_u32 s{sCB}, s{sCB}, s{sT0}
        s_and_b32 s{sR}, s{sW}, 3
        s_lshl_b32 s{sRT}, s{sRB}, 2
        s_add_u32 s{sRT}, s{sRT}, s{sR}
        v_lshlrev_b32 v{vD}, 4, v{vL}
        """)
    a(f"K2_A:\ns_mov_b32 s64, {WS_END}\ns_mov_b64 s[58:59], 1\nK2_A2:"); aids()
    a(f"""
    s_lshr_b32 s{sG}, s{sW}, 2
    s_lshl_b32 s{sHD}, s{sCB}, 1
    s_and_b32 s{sT1}, s{sHD}, 2
    s_add_u32 s{sHD}, s{sHD}, s{sG}
    s_mul_i32 s{sT2}, s{sG}, 5
    s_add_u32 s{sT1}, s{sT1}, s{sT2}
    s_mul_i32 s{sT2}, s{sR}, 3072
    s_add_u32 s{sT2}, s{sT2}, {XQ}
    v_and_b32 v{vA}, 31, v{vL}
    v_lshlrev_b32 v{vA}, 4, v{vA}
    v_lshrrev_b32 v3, 5, v{vL}
    v_add_u32 v{P}, s{sT1}, v3
    v_add_u32 v{P+1}, 2, v{P}
    s_add_u32 s{sT1}, s{sT1}, 4
    v_mov_b32 v{P+2}, s{sT1}
    v_add_u32 v{P+3}, s{sT2}, v{vA}
    """)
    for i in range(3):
        a(f"""
        v_lshrrev_b32 v{P+4}, 2, v{P+i}
        v_lshl_add_u32 v{P+5}, v{P+4}, 10, v{P+3}
        v_and_b32 v{P+4}, 1, v{P+i}
        v_lshl_add_u32 v{P+5}, v{P+4}, 9, v{P+5}
        v_and_b32 v{P+4}, 2, v{P+i}
        v_lshl_add_u32 v{P+i}, v{P+4}, 2, v{P+5}
        """)
    a(f"""
    s_mov_b32 s{sVm}, 0x000fffff
    s_mov_b32 s{sVm+1}, 0x000fffff
    v_mul_u32_u24 v3, 5120, v3
    v_add_u32 v{vA}, v{vA}, v3
    v_and_b32 v3, 27, v{vL}
    v_cmp_eq_u32 vcc, 24, v3
    v_mov_b32 v3, 0x3f803f80
    """)
    for i in range(16): a(f"v_mov_b32 v{O+i}, 0")
    for i in range(16): a(f"v_cndmask_b32 v{V+i}, 0, v3, vcc")
    for i in range(4): a(f"v_mov_b32 v{P+12+i}, 0")
    SEGS = [3, 10, 3]
    segw = sum(n << (4 * i) for i, n in enumerate(SEGS))
    a(f"""
    s_mov_b32 s{sSeg}, {segw >> 4}
    s_mov_b32 s{sI}, {SEGS[0]}
    """)
    setflag(a, 64, WS, 10, 11, 's[58:59]')
    if 'st1' in OPT: stamp(a, 1)
    a("s_barrier"); stamp(a, 4); a(f"""
    ds_read_b64 {vr(QT,2)}, v{P+2}
    ds_read_b128 {vr(KT,4)}, v{vA} offset:2048
    ds_read_b64 {vr(QM,2)}, v{P}
    ds_read_b64 {vr(QM+2,2)}, v{P+1}
    ds_read_b128 {vr(KM,4)}, v{vA} offset:0
    ds_read_b128 {vr(KM+4,4)}, v{vA} offset:512
    s_waitcnt lgkmcnt({0 if PROF else 4})
    v_mfma_f32_32x32x4_2b_bf16 {vr(S,32)}, {vr(KT,2)}, {vr(QT,2)}, 0
    s_waitcnt lgkmcnt(0)
    s_nop 15
    s_nop 2
    {MF(vr(S,16), vr(KM,4), vr(QM,4), vr(S,16))}
    {MF(vr(S+16,16), vr(KM+4,4), vr(QM,4), vr(S+16,16))}
    ds_read_b128 {vr(KM,4)}, v{vA} offset:1024
    ds_read_b128 {vr(KM+4,4)}, v{vA} offset:1536
    s_mov_b64 exec, {sr(sVm,2)}
    ds_read_b128 {vr(V,4)}, v{vA} offset:2560
    ds_read_b128 {vr(V+4,4)}, v{vA} offset:2880
    s_mov_b64 exec, -1
    s_nop 7
    .p2align 6
    K2_loop:
    """)
    for l in abody.body(R, 0, (3, 2, 1), sVm): a(l)
    a(f"""
    v_add_u32 v{vA}, 10240, v{vA}
    s_sub_u32 s{sI}, s{sI}, 1
    s_cmp_lg_u32 s{sI}, 0
    s_cbranch_scc1 K2_loop
    s_and_b32 s{sI}, s{sSeg}, 15
    s_cbranch_scc0 K2_exit
    s_lshr_b32 s{sSeg}, s{sSeg}, 4
    s_barrier
    s_branch K2_loop
    K2_exit:
    """); stamp(a, 5); a(f"""
    {MF(vr(O,16), vr(V+12,4), vr(P+12,4), vr(O,16))}
    s_mov_b32 s46, {f32(2.0**-64)}
    s_mov_b32 s47, {f32(2.0**64)}
    s_lshr_b32 s54, s{sHD}, 2
    s_mul_i32 s54, s54, 5
    s_mul_i32 s55, s{sRT}, 40
    s_add_u32 s54, s54, s55
    s_lshl_b32 s54, s54, 10
    s_add_u32 s54, s54, {WS_O}
    s_and_b32 s55, s{sHD}, 3
    s_lshl_b32 s55, s55, 10
    s_add_u32 s55, s55, s54
    s_bfe_u32 s{sT2}, s{sHD}, 0x10001
    s_lshl_b32 s{sT2}, s{sT2}, 9
    s_add_u32 s54, s54, s{sT2}
    s_and_b32 s{sT2}, s{sHD}, 1
    s_lshl_b32 s{sT2}, s{sT2}, 3
    s_add_u32 s54, s54, s{sT2}
    s_add_u32 s54, s54, 4096
    v_cmp_nle_f32 vcc, s46, v{O+12}
    v_cmp_nge_f32 s[46:47], s47, v{O+12}
    s_waitcnt lgkmcnt(0)
    s_or_b64 vcc, vcc, s[46:47]
    s_cbranch_scc1 K2_slow
    K2_fin:
    v_rcp_f32 v{P}, v{O+12}
    s_lshl_b32 s{sT3}, s{sRT}, 5
    s_add_u32 s{sT3}, s{sT3}, s{sHD}
    s_lshl_b32 s{sT3}, s{sT3}, 7
    s_add_u32 s{sT3}, s{sT3}, {WS_F3}
    """)
    for i in range(12): a(f"v_mul_f32 v{O+i}, v{O+i}, v{P}")
    for i in range(6): a(f"v_cvt_pk_bf16_f32 v{S+i}, v{O+2*i}, v{O+2*i+1}")
    a(f"""
    buffer_store_dwordx4 {vr(S,4)}, v{vD}, {sr(WS,4)}, s55 offen sc1
    s_mov_b32 exec_hi, 0
    buffer_store_dwordx2 {vr(S+4,2)}, v{vD}, {sr(WS,4)}, s54 offen sc1
    s_mov_b32 exec_hi, -1
    """)
    setflag(a, sT3, WS, 4, 5)
    a("s_barrier")
    sKQ, sRB2, sNB, sH0, sH1, sWp = 33, 35, 36, 46, 47, 48
    XR = 104; RR = 108
    def fin_prep():
        tile_ids(a, sRB2, sNB, sT0)
        srd(a, X, 8, 2048*1280); srd(a, OUT, 18, 2048*1280)
        a(f"""
        s_lshl_b32 s{sT0}, s{sW}, 6
        v_add_u32 v4, s{sT0}, v{vL}
        v_mul_u32_u24 v5, 6554, v4
        v_lshrrev_b32 v5, 16, v5
        v_mul_u32_u24 v5, {1280-160}, v5
        v_lshlrev_b32 v4, 4, v4
        v_add_u32 v5, v5, v4
        s_mul_i32 s{sT3}, s{sRB2}, {64*1280}
        s_mul_i32 s{sT1}, s{sNB}, 160
        s_add_u32 s{sT3}, s{sT3}, s{sT1}
        v_add_u32 v6, 51200, v4
        buffer_load_dwordx4 {vr(XR,4)}, v5, {sr(X,4)}, s{sT3} offen
        """)
    fin_prep()
    a("K3_bar:\ns_barrier")
    for p in range(4):
        for h in range(2): a(f"ds_read_b128 {vr(RR+8*p+4*h,4)}, v{4 if p < 2 else 6} offset:{(p%2)*25600 + h*10240}")
    a("s_waitcnt vmcnt(0)")
    for i in range(4): a(f"v_lshlrev_b32 v{8+2*i}, 16, v{XR+i}\nv_and_b32 v{9+2*i}, 0xffff0000, v{XR+i}")
    for p in range(4):
        a(f"s_waitcnt lgkmcnt({6-2*p})")
        for i in range(4): a(f"v_pk_add_f32 {vr(8+2*i,2)}, {vr(8+2*i,2)}, {vr(RR+8*p+2*i,2)}")
    for i in range(4): a(f"v_cvt_pk_bf16_f32 v{XR+i}, v{8+2*i}, v{9+2*i}")
    a(f"buffer_store_dwordx4 {vr(XR,4)}, v5, {sr(OUT,4)}, s{sT3} offen\nK_pe:")
    prof_end(a, 0, WS, sW)
    a("K_end:\ns_endpgm")
    vW, vW2 = 1, 3
    ACC, FR = 8, 104
    a("K2_G:"); aids()
    def fill(n, lab):
        a(f"""
        s_mov_b32 s{sI}, {n}
        {lab}:
        buffer_load_dwordx4 v{vD}, {sr(WS,4)}, s{sSrc} offen sc1 lds
        s_add_u32 s{sSrc}, s{sSrc}, 4096
        s_add_u32 m0, m0, 4096
        s_sub_u32 s{sI}, s{sI}, 1
        s_cmp_lg_u32 s{sI}, 0
        s_cbranch_scc1 {lab}
        """)
    rowidx(a, sT1, sRT, sT0)
    a(f"""
    s_lshl_b32 s{sT0}, s{sR}, 10
    s_add_u32 s{sSrc}, s{sT0}, {WS_KV}
    s_mov_b32 m0, s{sT0}
    s_mul_i32 s{sT2}, s{sCB}, 10
    s_lshr_b32 s{sT2}, s{sT2}, 2
    v_and_b32 v4, 2, v{vL}
    v_add_u32 v4, s{sT2}, v4
    v_lshrrev_b32 v4, 1, v4
    v_lshl_add_u32 v4, v4, 5, s{sT1}
    v_lshlrev_b32 v4, 7, v4
    v_add_u32 v4, {WS_F1}, v4
    s_and_b32 s{sT0}, s2, 63
    s_lshl_b32 s{sT0}, s{sT0}, 8
    s_add_u32 s{sT0}, s{sT0}, {WS_FK}
    v_writelane_b32 v4, s{sT0}, 0
    s_mul_i32 s54, s{sRT}, 40
    s_add_u32 s54, s54, s{sT2}
    s_lshl_b32 s54, s54, 10
    s_mov_b32 s{sT3}, 0
    s_mov_b32 s{sSeg}, 1
    buffer_load_dword v5, v4, {sr(WS,4)}, 0 offen sc1
    """)
    for i in range(96): a(f"v_mov_b32 v{ACC+i}, 0")
    tile_ids(a, sRB2, sNB, sT0)
    wlane(a, vL, vW, vW2, 6)
    a(f"""
    K2_p1:
    s_waitcnt vmcnt(0)
    v_cmp_ne_u32 vcc, s{sN}, v5
    s_add_u32 s{sT3}, s{sT3}, 1
    s_cmp_ge_u32 s{sT3}, {SPINMAX}
    s_cselect_b64 vcc, 0, vcc
    s_andn2_b32 s{sT0}, s{sSeg}, vcc_lo
    s_cbranch_scc0 K2_p1b
    s_mov_b32 s{sSeg}, 0
    """)
    stamp(a, 2)
    fill(NF1, "K2_f1")
    a(f"""
    K2_p1b:
    s_cmp_eq_u64 vcc, 0
    s_cbranch_scc1 K2_p1x
    s_sleep {SLP}
    buffer_load_dword v5, v4, {sr(WS,4)}, 0 offen sc1
    s_branch K2_p1
    K2_p1x:
    s_mov_b32 s{sSeg}, m0
    s_mul_i32 s{sT1}, s{sR}, 3072
    s_add_u32 m0, s{sT1}, {XQ}
    s_nop 0
    """)
    for i in range(3): a(f"buffer_load_dwordx4 v{vD}, {sr(WS,4)}, s54 offen offset:{1024*i} sc1 lds")
    a(f"""
    s_mov_b32 m0, s{sSeg}
    s_waitcnt vmcnt(0)
    s_barrier
    """); stamp(a, 3)
    fill(36 - NF1, "K2_f2")
    a(f"s_lshl_b32 s{sT2}, s{sRB2}, 1")
    rowidx(a, sH0, sT2, sT0)
    a(f"s_add_u32 s{sT2}, s{sT2}, 1")
    rowidx(a, sH1, sT2, sT0)
    a(f"""
    v_and_b32 v4, 1, v{vL}
    v_cmp_eq_u32 vcc, 0, v4
    v_mov_b32 v4, s{sH0}
    v_mov_b32 v5, s{sH1}
    v_cndmask_b32 v4, v5, v4, vcc
    v_lshrrev_b32 v5, 1, v{vL}
    v_min_u32 v5, 11, v5
    s_mul_i32 s{sT0}, s{sKQ}, 12
    s_add_u32 s{sT0}, s{sT0}, 20
    v_add_u32 v5, s{sT0}, v5
    v_lshl_add_u32 v4, v5, 5, v4
    v_cmp_gt_u32 vcc, 32, v{vL}
    v_min_u32 v5, 53, v{vL}
    v_add_u32 v5, {72*32 - 32}, v5
    v_cndmask_b32 v4, v5, v4, vcc
    v_lshlrev_b32 v4, 7, v4
    v_add_u32 v4, {WS_F1}, v4
    s_mul_i32 s{sH0}, s{sRB2}, 192
    s_mul_i32 s{sT0}, s{sKQ}, 24
    s_add_u32 s{sH0}, s{sH0}, s{sT0}
    s_lshl_b32 s{sH0}, s{sH0}, 10
    s_add_u32 s{sH0}, s{sH0}, {WS_H}
    s_add_u32 s{sH1}, s{sH0}, {96*1024}
    s_mul_i32 s{sWp}, s{sT0}, 20480
    s_mul_i32 s{sT0}, s{sNB}, 2560
    s_add_u32 s{sWp}, s{sWp}, s{sT0}
    s_add_u32 s{sWp}, s{sWp}, {WS_WP}
    """)
    poll(a, "K2_p3", 4, 5, WS, sT3)
    def gload(j):
        b = FR + 20 * j
        a(f"""
        buffer_load_dwordx4 {vr(b,4)}, v{vD}, {sr(WS,4)}, s{sH0} offen offset:{1024*j} sc1
        buffer_load_dwordx4 {vr(b+4,4)}, v{vD}, {sr(WS,4)}, s{sH1} offen offset:{1024*j} sc1
        buffer_load_dwordx4 {vr(b+8,4)}, v{vW}, {sr(WS,4)}, s{sWp} offen sc1
        buffer_load_dwordx4 {vr(b+12,4)}, v{vW}, {sr(WS,4)}, s{sWp} offen offset:1024 sc1
        buffer_load_dwordx4 {vr(b+16,4)}, v{vW2}, {sr(WS,4)}, s{sWp} offen offset:2048 sc1
        s_add_u32 s{sWp}, s{sWp}, 20480
        """)
    for j in range(3): gload(j)
    a("s_barrier")
    fill(4, "K2_f3")
    a(f"""
    s_mov_b32 s{sI}, 8
    K2_Gl:
    s_add_u32 s{sH0}, s{sH0}, 3072
    s_add_u32 s{sH1}, s{sH1}, 3072
    s_cmp_eq_u32 s{sI}, 1
    s_cselect_b32 s{sH0}, {WS_END}, s{sH0}
    s_cselect_b32 s{sH1}, {WS_END}, s{sH1}
    s_cselect_b32 s{sWp}, {WS_END}, s{sWp}
    """)
    def mm6(aw, bo):
        for t in range(3):
            for r in range(2):
                a(MF(vr(ACC+48*r+16*t,16), vr(aw+4*t,4), vr(bo+4*r,4), vr(ACC+48*r+16*t,16)))
    for j in range(3):
        b = FR + 20 * j
        a("s_waitcnt vmcnt(10)")
        mm6(b + 8, b)
        gload(j)
    a(f"""
    s_sub_u32 s{sI}, s{sI}, 1
    s_cmp_lg_u32 s{sI}, 0
    s_cbranch_scc1 K2_Gl
    """); 'st2' in OPT or stamp(a, 4)
    a(f"""
    s_mul_i32 s{sT2}, s{sKQ}, 25600
    s_mul_i32 s{sWp}, s{sKQ}, {10*20480}
    s_mul_i32 s{sT0}, s{sNB}, 2560
    s_add_u32 s{sWp}, s{sWp}, s{sT0}
    s_add_u32 s{sWp}, s{sWp}, {WS_WP + 96*20480}
    s_mov_b32 m0, s{sT2}
    v_add_u32 v{vW}, s{sT2}, v{vW}
    v_add_u32 v{vW2}, s{sT2}, v{vW2}
    s_lshl_b32 s{sT0}, s{sRB2}, 3
    s_add_u32 s{sT0}, s{sT0}, s{sKQ}
    s_lshl_b32 s{sT0}, s{sT0}, 10
    s_add_u32 s{sT0}, s{sT0}, {WS_F3}
    v_and_b32 v7, 39, v{vL}
    v_lshl_add_u32 v7, v7, 7, s{sT0}
    s_mul_i32 s{sH0}, s{sRB2}, 80
    s_mul_i32 s{sT0}, s{sKQ}, 10
    s_add_u32 s{sH0}, s{sH0}, s{sT0}
    s_lshl_b32 s{sH0}, s{sH0}, 10
    s_add_u32 s{sH0}, s{sH0}, {WS_O}
    s_add_u32 s{sH1}, s{sH0}, 40960
    s_mov_b32 s{sI}, 10
    s_waitcnt vmcnt(0)
    s_barrier
    K2_f4:
    buffer_load_dwordx4 v{vD}, {sr(WS,4)}, s{sWp} offen sc1 lds
    buffer_load_dwordx4 v{vD}, {sr(WS,4)}, s{sWp} offen offset:1024 sc1 lds
    s_mov_b32 exec_hi, 0
    buffer_load_dwordx4 v{vD}, {sr(WS,4)}, s{sWp} offen offset:2048 sc1 lds
    s_mov_b32 exec_hi, -1
    s_add_u32 s{sWp}, s{sWp}, 20480
    s_add_u32 m0, m0, 2560
    s_sub_u32 s{sI}, s{sI}, 1
    s_cmp_lg_u32 s{sI}, 0
    s_cbranch_scc1 K2_f4
    """)
    FO, FW = 104, 140
    def wread(j):
        b = FW + 12 * (j % 2)
        a(f"""
        ds_read_b128 {vr(b,4)}, v{vW} offset:{2560*j}
        ds_read_b128 {vr(b+4,4)}, v{vW} offset:{2560*j+1024}
        ds_read_b128 {vr(b+8,4)}, v{vW2} offset:{2560*j+2048}
        """)
    def oload(j):
        b = FO + 8 * (j % 4)
        a(f"""
        buffer_load_dwordx4 {vr(b,4)}, v{vD}, {sr(WS,4)}, s{sH0} offen offset:{1024*(j%4)} sc1
        buffer_load_dwordx4 {vr(b+4,4)}, v{vD}, {sr(WS,4)}, s{sH1} offen offset:{1024*(j%4)} sc1
        """)
        if j % 4 == 3: a(f"s_add_u32 s{sH0}, s{sH0}, 4096\ns_add_u32 s{sH1}, s{sH1}, 4096")
    a("s_waitcnt vmcnt(0)")
    wread(0); wread(1)
    a("s_setprio 3\ns_barrier")
    poll(a, "K2_p4", 7, 5, WS, sT3)
    'st2' in OPT or stamp(a, 5)
    for j in range(4): oload(j)
    for j in range(10):
        later = min(j + 3, 9) - j
        a(f"s_waitcnt vmcnt({2*later}) lgkmcnt({0 if (j == 9 or PROF) else 3})")
        mm6(FW + 12 * (j % 2), FO + 8 * (j % 4))
        if j + 4 < 10: oload(j + 4)
        if j + 2 < 10: wread(j + 2)
    fin_prep()
    a(f"""
    v_and_b32 v7, 31, v{vL}
    v_mul_u32_u24 v7, 160, v7
    v_lshrrev_b32 v{RR}, 5, v{vL}
    v_mul_u32_u24 v{RR}, 10240, v{RR}
    v_add3_u32 v7, v7, v{RR}, s{sT2}
    """)
    for r in range(2):
        for o in range(10): a(f"ds_write_b128 v7, {vr(ACC+48*r+4*o,4)} offset:{5120*r+16*o}")
    a(f"""
    s_waitcnt lgkmcnt(0)
    s_cmp_lt_u32 s{sW}, 10
    s_cbranch_scc1 K3_bar
    s_barrier
    {"s_branch K_pe" if PROF else "s_endpgm"}
    """)
    vMx = 3
    sP, sO1, sO2, sO3 = 48, 49, 50, 51
    a(f"""
    K_last:
    K2_slow:
    v_subrev_u32 v{vA}, {16*10240}, v{vA}
    v_mov_b32 v{vMx}, 0xff800000
    s_mov_b32 s{sP}, 0
    """)
    for i in range(16): a(f"v_mov_b32 v{O+i}, 0")
    a(f"""
    K2_sp:
    s_mov_b32 s{sI}, 0
    K2_sl:
    s_lshr_b32 s{sT0}, s{sI}, 1
    s_mul_i32 s{sT0}, s{sT0}, 10240
    s_add_u32 s{sT0}, s{sT0}, {WS_KV}
    s_and_b32 s{sT1}, s{sI}, 1
    s_lshl_b32 s{sO1}, s{sT1}, 10
    s_add_u32 s{sO1}, s{sO1}, s{sT0}
    s_lshl_b32 s{sO2}, s{sT1}, 3
    s_add_u32 s{sO2}, s{sO2}, s{sT0}
    s_mul_i32 s{sO3}, s{sT1}, 1280
    s_add_u32 s{sO3}, s{sO3}, s{sT0}
    buffer_load_dwordx4 {vr(KM,4)}, v{vA}, {sr(WS,4)}, s{sO1} offen sc1
    buffer_load_dwordx4 {vr(KM+4,4)}, v{vA}, {sr(WS,4)}, s{sO1} offen offset:512 sc1
    buffer_load_dwordx2 {vr(KT,2)}, v{vA}, {sr(WS,4)}, s{sO2} offen offset:2048 sc1
    s_mov_b64 exec, {sr(sVm,2)}
    """)
    for f in range(4): a(f"buffer_load_dwordx4 {vr(V+4*f,4)}, v{vA}, {sr(WS,4)}, s{sO3} offen offset:{2560+320*f} sc1")
    a(f"""
    s_mov_b64 exec, -1
    s_waitcnt vmcnt(0)
    v_mfma_f32_32x32x4_2b_bf16 {vr(S,32)}, {vr(KT,2)}, {vr(QT,2)}, 0
    s_nop 15
    s_nop 3
    {MF(vr(S,16), vr(KM,4), vr(QM,4), vr(S,16))}
    {MF(vr(S+16,16), vr(KM+4,4), vr(QM,4), vr(S+16,16))}
    s_cmp_lg_u32 s{sP}, 0
    s_nop 12
    s_cbranch_scc1 K2_sp2
    """)
    for i in range(16): a(f"v_max3_f32 v{vMx}, v{S+2*i}, v{S+2*i+1}, v{vMx}")
    a("s_branch K2_snext\nK2_sp2:")
    for i in range(32): a(f"v_sub_f32 v{S+i}, v{S+i}, v{vMx}")
    for i in range(32): a(f"v_exp_f32 v{S+i}, v{S+i}")
    a("s_nop 0")
    for i in range(16): a(f"v_cvt_pk_bf16_f32 v{P+i}, v{S+2*i}, v{S+2*i+1}")
    a("s_nop 1")
    for f in range(4): a(MF(vr(O,16), vr(V+4*f,4), vr(P+4*f,4), vr(O,16)))
    a(f"""
    s_nop 15
    K2_snext:
    s_add_u32 s{sI}, s{sI}, 1
    s_cmp_lt_u32 s{sI}, 32
    s_cbranch_scc1 K2_sl
    s_cmp_lg_u32 s{sP}, 0
    s_cbranch_scc1 K2_fin
    v_mov_b32 v{P}, v{vMx}
    s_nop 1
    v_permlane32_swap_b32 v{P}, v{vMx}
    s_mov_b32 s{sP}, 1
    v_max_f32 v{vMx}, v{vMx}, v{P}
    s_branch K2_sp
    """)
    return 164

def main(out):
    a = Asm()
    gen_k1(a); n = gen_k2(a)
    head = f"""; LayerNorm + MQA attention + SiLU FFN in one launch (generated by work/gen6.py)
; @launch grid=(256,1,1) block=(768,1,1) lds=163840
.amdgcn_target "amdgcn-amd-amdhsa--gfx950"
.text
"""
    tail = '.section .rodata,"a"\n' + kdesc(KN, n)
    open(out, "w").write(head + a.text() + tail)

if __name__ == "__main__":
    if "--prof" in sys.argv:
        PROF = True; sys.argv.remove("--prof")
    main(sys.argv[1] if len(sys.argv) > 1 else f"cdna_kernels/{NAME}.s")
```

```python
import sys, math, os, struct
import abody, kbody
OPT = set(os.environ.get('OPT', '').split(','))
NAME = "parallel_sum__grouped_kv_mqa__dense_activation_silu__prompt"
WS_Q, WS_KV, WS_H, WS_O, WS_WP, WS_Y, WS_PROF, WS_END = 0, 0x300000, 0x340000, 0x940000, 0xD00000, 0x1000000, 0xC00000, 0x1500000
WS_SR, WS_SC = 0x280000, 0x2D2000
WS_F1, WS_F3, WS_FK = 0x1000000, 0x1080000, 0x1060000
SLP = int(os.environ.get('SLP', '4'))
XB = 147456; XFC, XN, XQ = XB + 2560, XB + 3072, XB + 4096
sN = 68
KN = NAME + '_kernel'
SPINMAX = 20000
ROTR, ROTC = (int(c) for c in os.environ.get('ROT', '3,3').split(','))
PRE = int(os.environ.get('PRE', '2'))
PRE_CTRL = """s_or_b32 s{sT0}, s{sI}, 2
    s_cmp_eq_u32 s{sT0}, 3
    s_cbranch_scc1 K1_issue
    s_cmp_lg_u32 s{sI}, 2
    s_cbranch_scc1 K1_w18""" if PRE == 2 else """s_cmp_lt_u32 s{sI}, %d
    s_cbranch_scc1 K1_issue
    s_cmp_lg_u32 s{sI}, %d
    s_cbranch_scc1 K1_w18""" % (PRE, PRE)
CSAT = int(os.environ.get('CSAT', '2'))
NF1 = 5
HS = 102400
SEGS = eval(os.environ.get('SEGS', '[1, 3, 10, 2]'))
DEEP = int(os.environ.get('DEEP', '99'))
GPRIO = int(os.environ.get('GPRIO', '0'))
ROT3 = int(os.environ.get('ROT3', '5'))
HOOK = int(os.environ.get('HOOK', '2'))
LOG2E = 1.4426950408889634
def f32(x): return "0x%08x" % struct.unpack("<I", struct.pack("<f", x))[0]

class Asm:
    def __init__(self): self.l = []
    def __call__(self, s):
        for x in s.strip("\n").split("\n"):
            x = x.strip()
            if x: self.l.append(("" if x.endswith(":") else "    ") + x)
    def text(self): return "\n".join(self.l) + "\n"
def vr(a, n): return "v[%d:%d]" % (a, a + n - 1)
def ar(a, n): return "a[%d:%d]" % (a, a + n - 1)
def sr(a, n): return "s[%d:%d]" % (a, a + n - 1)
def srd(a, d, base, nbytes):
    a(f"s_mov_b32 s{d}, s{base}\ns_mov_b32 s{d+1}, s{base+1}\ns_mov_b32 s{d+2}, {nbytes}\ns_mov_b32 s{d+3}, 0x00020000")
def kdesc(name, vgpr, agpr=0, sgpr=102):
    acc = (vgpr + 3) // 4 * 4
    return f""".p2align 6
.amdhsa_kernel {name}
  .amdhsa_next_free_vgpr {acc + agpr if agpr else vgpr}
  .amdhsa_next_free_sgpr {sgpr}
  .amdhsa_accum_offset {acc}
  .amdhsa_group_segment_fixed_size 0
  .amdhsa_kernarg_size 88
  .amdhsa_user_sgpr_count 2
  .amdhsa_user_sgpr_kernarg_segment_ptr 1
  .amdhsa_system_sgpr_workgroup_id_x 1
.end_amdhsa_kernel
"""
def khead(a, name): a.l.append(f".globl {name}\n.p2align 8\n.type {name},@function\n{name}:")
PROF = False
DIAGX = int(os.environ.get('DIAGX', '0'))
def stamp(a, i):
    if DIAGX:
        a(f"s_memrealtime s[{70+2*i}:{71+2*i}]")
        return
    if 'dbgt' in OPT:
        a(f"s_memrealtime s[{70+2*i}:{71+2*i}]")
        if i == 0: a("s_mov_b32 s72, 0\ns_mov_b32 s74, 0\ns_mov_b32 s76, 0")
        return
    if PROF:
        a(f"s_memtime s[{70+2*i}:{71+2*i}]")
        if i == 0: a("s_memrealtime s[84:85]")
def prof_end(a, kidx, WS, sW):
    if DIAGX:
        a(f"""
        s_cmp_lg_u32 s{sW}, 0
        s_cbranch_scc1 K_end
        s_cmp_lg_u32 s2, {int(os.environ.get('DIAGWG', '40'))}
        s_cbranch_scc1 K_end
        s_waitcnt vmcnt(0)
        s_memrealtime s[82:83]
        s_waitcnt lgkmcnt(0)
        {f"s_sub_u32 s84, s{70+2*DIAGX}, s70" if DIAGX < 7 else f"s_sub_u32 s84, s70, s{sN}"}
        {"s_add_u32 s84, s84, 1500" if DIAGX == 7 else ""}
        s_lshl_b32 s84, s84, 2
        K_dl:
        s_memrealtime s[86:87]
        s_waitcnt lgkmcnt(0)
        s_sub_u32 s86, s86, s82
        s_cmp_lt_u32 s86, s84
        s_cbranch_scc1 K_dl
        """)
        return
    if 'dbgt' in OPT:
        a(f"""
        s_cmp_lg_u32 s{sW}, 0
        s_cbranch_scc1 K_end
        s_waitcnt vmcnt(0)
        s_memrealtime s[82:83]
        s_mov_b32 s20, s4
        s_mov_b32 s21, s5
        s_mov_b32 s22, 256
        s_mov_b32 s23, 0x00020000
        s_mov_b64 exec, 1
        v_mov_b32 v0, 0
        s_waitcnt lgkmcnt(0)
        s_not_b32 s84, s70
        v_mov_b32 v1, s84
        buffer_atomic_umax v1, v0, s[20:23], 0 offen offset:4
        """)
        for i in range(7):
            a(f"v_mov_b32 v{2+i}, s{70+2*i}\nbuffer_atomic_umax v{2+i}, v0, s[20:23], 0 offen offset:{8+4*i}")
        return
    if not PROF: return
    a(f"""
    s_waitcnt vmcnt(0)
    s_memtime s[82:83]
    s_memrealtime s[86:87]
    s_mov_b64 exec, -1
    s_waitcnt lgkmcnt(0)
    s_lshl_b32 s88, s2, 4
    s_add_u32 s88, s88, s{sW}
    s_lshl_b32 s88, s88, 6
    s_add_u32 s88, s88, {WS_PROF + kidx * 0x40000}
    v_mov_b32 v0, 0
    """)
    if 'kvs' in OPT: a("s_mov_b32 s80, s90")
    if 'lacc' in OPT: a(f"s_cmp_lt_u32 s{sW}, 8\ns_cbranch_scc1 K_pe2\ns_add_u32 s76, s70, s95\ns_add_u32 s78, s70, s96\ns_add_u32 s80, s70, s97\nK_pe2:")
    for i in range(7): a(f"v_mov_b32 v{4+i}, s{70+2*i}")
    a(f"""
    v_mov_b32 v11, s84
    v_mov_b32 v12, s86
    v_mov_b32 v13, 0
    v_mov_b32 v14, 0
    v_mov_b32 v15, 0
    s_mov_b64 exec, 1
    buffer_store_dwordx4 v[4:7], v0, {sr(WS,4)}, s88 offen
    buffer_store_dwordx4 v[8:11], v0, {sr(WS,4)}, s88 offen offset:16
    buffer_store_dwordx4 v[12:15], v0, {sr(WS,4)}, s88 offen offset:32
    """)
def poll(a, lab, vaddr, vtmp, WS, sCnt):
    a(f"""
    s_mov_b32 s{sCnt}, 0
    {lab}:
    buffer_load_dword v{vtmp}, v{vaddr}, {sr(WS,4)}, 0 offen sc1
    s_add_u32 s{sCnt}, s{sCnt}, 1
    s_waitcnt vmcnt(0)
    v_cmp_ne_u32 vcc, s{sN}, v{vtmp}
    s_cbranch_vccz {lab}x
    s_sleep {SLP}
    s_cmp_lt_u32 s{sCnt}, {SPINMAX}
    s_cbranch_scc1 {lab}
    {lab}x:
    """)
def setflag(a, soff, WS, v0, v1, emask="1"):
    a(f"""
    v_mov_b32 v{v0}, s{sN}
    v_lshlrev_b32 v{v1}, 8, v0
    s_mov_b64 exec, {emask}
    s_waitcnt vmcnt(0)
    buffer_store_dword v{v0}, v{v1}, {sr(WS,4)}, s{soff} offen sc1
    s_mov_b64 exec, -1
    """)
def rowidx(a, d, rt, t):
    a(f"""
    s_mul_i32 s{d}, s{rt}, 205
    s_lshr_b32 s{d}, s{d}, 10
    s_mul_i32 s{t}, s{d}, 5
    s_sub_u32 s{t}, s{rt}, s{t}
    s_lshl_b32 s{d}, s{d}, 1
    s_cmp_ge_u32 s{t}, 3
    s_addc_u32 s{d}, s{d}, 0
    """)
def round_bf16(a, d, s): a(f"v_cvt_pk_bf16_f32 v{d}, v{s}, v{s}\nv_lshlrev_b32 v{d}, 16, v{d}")
def MF(d, A, B, C): return f"v_mfma_f32_32x32x16_bf16 {d}, {A}, {B}, {C}"

def ldswait(a, lab, vaddr, vtmp, sTmp, sNeed, off=0):
    a(f"""
    {lab}:
    ds_read_b32 v{vtmp}, v{vaddr} offset:{off}
    s_waitcnt lgkmcnt(0)
    v_readfirstlane_b32 s{sTmp}, v{vtmp}
    s_cmp_ge_u32 s{sTmp}, {sNeed}
    s_cbranch_scc1 {lab}x
    {'s_sleep 1' if 'nosl' not in OPT else ''}
    s_sub_u32 s65, s65, 1
    s_cbranch_scc0 {lab}
    s_mov_b32 s65, 0
    {lab}x:
    """)
def ldsadd(a, vaddr, vone, off=0):
    a(f"s_mov_b64 exec, 1\nds_add_u32 v{vaddr}, v{vone} offset:{off}\ns_mov_b64 exec, -1")

def acc(a, i):
    if PROF and 'lacc' in OPT:
        a(f"s_memtime s[92:93]\ns_waitcnt lgkmcnt(0)\ns_sub_u32 s94, s92, s91\ns_mov_b32 s91, s92\ns_add_u32 s{95+i}, s{95+i}, s94")
def gen_k1(a):
    khead(a, KN)
    SLOT = 36864
    CNT = XN + 16
    sW, sR, sG, sRB, sCB = 32, 33, 34, 35, 36
    sI, sK, sSlot, sT0, sT1, sMx, sNeed, sStr64, sDelta, sRd, sT2, sT3, sK0, sMB, sU, sTyp, sRT, sS32, sOnes = 38, 39, 40, 41, 42, 43, 44, 45, 46, 47, 48, 49, 50, 51, 52, 53, 54, 55, 37
    sHr, sIdle, sGs, DB2, sHc = 56, 69, 57, 12, 57
    X, WA, WS, DBG = 20, 24, 28, 20
    vL, vXs, vWs, vCom, vOne, vC, vF = 0, 1, 2, 11, 10, 17, 18
    vAx, vAw = 12, 16
    vT = 24
    AC = 32; fW, fX = 80, 96
    a(f"""
    s_cmp_ge_u32 s2, 256
    s_cbranch_scc1 K_end
    """); stamp(a, 0); a(f"""
    s_load_dwordx8 s[8:15], s[0:1], 0
    s_load_dwordx4 s[60:63], s[0:1], 48
    s_load_dwordx4 s[4:7], s[0:1], 72
    s_load_dwordx2 s[16:17], s[0:1], 32
    s_load_dwordx2 s[18:19], s[0:1], 64
    v_lshrrev_b32 v1, 6, v0
    v_and_b32 v{vL}, 63, v0
    v_readfirstlane_b32 s{sW}, v1
    s_and_b32 s{sT0}, s2, 7
    s_lshr_b32 s{sT1}, s2, 3
    s_mul_i32 s{sT2}, s{sT0}, 30
    s_add_u32 s{sT2}, s{sT2}, s{sT1}
    v_lshrrev_b32 v{vT}, 5, v{vL}
    v_and_b32 v{vT+1}, 3, v{vL}
    v_bfe_u32 v{vT+2}, v{vL}, 2, 3
    v_lshlrev_b32 v{vT+3}, 4, v{vT+1}
    s_mov_b32 s{WS+2}, {WS_END}
    s_mov_b32 s{WS+3}, 0x00020000
    s_lshl_b32 s{sT3}, s{sW}, 8
    s_add_u32 s{sT3}, s{sT3}, s{sT1}
    s_cmp_lg_u32 s{sT3}, {(1 << 8) + 30}
    s_cbranch_scc1 K1_npf
    s_getpc_b64 s[66:67]
    K1_pc:
    v_lshlrev_b32 v2, 7, v{vL}
    v_add_u32 v3, 8192, v2
    v_min_u32 v3, K_last-K1_pc, v3
    {"" if 'nocpf' in OPT else "global_load_dword v60, v2, s[66:67]"}
    {"" if 'nocpf' in OPT else "global_load_dword v61, v3, s[66:67]"}
    K1_npf:
    s_cmp_ge_u32 s{sT1}, 30
    s_cbranch_scc1 K1_aux
    s_cmp_ge_u32 s{sT2}, 234
    s_cbranch_scc1 K1_aux
    s_cmp_lt_u32 s{sT2}, 126
    s_cselect_b32 s{sT0}, 0, 126
    s_cselect_b32 s{sT1}, 7, 6
    s_movk_i32 s{sT3}, 10923
    s_cselect_b32 s{sT3}, 9363, s{sT3}
    s_cselect_b32 s{sRB}, 0, 7
    s_sub_u32 s{sT2}, s{sT2}, s{sT0}
    s_mul_i32 s{sCB}, s{sT2}, s{sT3}
    s_lshr_b32 s{sCB}, s{sCB}, 16
    s_mul_i32 s{sT1}, s{sT1}, s{sCB}
    s_sub_u32 s{sT2}, s{sT2}, s{sT1}
    s_add_u32 s{sRB}, s{sRB}, s{sT2}
    s_and_b32 s{sR}, s{sW}, 3
    s_add_u32 s{sK}, s{sRB}, s{sCB}
    s_and_b32 s{sK}, s{sK}, 1
    s_mul_i32 s{sK}, s{sK}, 5
    s_cmp_lt_u32 s{sW}, 8
    s_cbranch_scc1 K1_C
    """)
    def common2():
        a(f"""
        v_bfe_u32 v{vT+4}, v{vL}, 2, 2
        v_bfe_u32 v{vT+5}, v{vL}, 4, 1
        v_lshl_add_u32 v{vT+4}, v{vT+4}, 1, v{vT+5}
        v_lshl_add_u32 v{vT+4}, v{vT+4}, 2, v{vT+1}
        v_lshlrev_b32 v{vCom}, 3, v{vT+4}
        s_mov_b32 s{sOnes}, 0x3f803f80
        s_cmp_eq_u32 s{sCB}, 17
        s_cselect_b32 s{sT0}, 1, 3
        s_and_b32 s{sT0}, s{sT0}, s{sR}
        s_lshr_b32 s{sT1}, s{sT0}, 1
        s_lshl_b32 s{sT1}, s{sT1}, 13
        s_and_b32 s{sT0}, s{sT0}, 1
        s_lshl_b32 s{sT0}, s{sT0}, 9
        s_add_u32 s{sT0}, s{sT0}, s{sT1}
        s_add_u32 s{sT0}, s{sT0}, 20480
        v_lshl_add_u32 v{vAw}, v{vT}, 10, v{vCom}
        v_add_u32 v{vAw}, s{sT0}, v{vAw}
        """)
    vQb, vQa = 4, 6
    a(f"""
    s_mul_i32 s{sT0}, s{sRB}, 160
    s_lshl_b32 s{sT1}, s{sR}, 3
    s_add_u32 s{sT0}, s{sT0}, s{sT1}
    s_mul_i32 s{sT0}, s{sT0}, 1280
    v_lshrrev_b32 v{vT+4}, 3, v{vL}
    v_mul_u32_u24 v{vT+4}, 1280, v{vT+4}
    v_add_u32 v{vT+4}, s{sT0}, v{vT+4}
    v_and_b32 v{vT+5}, 7, v{vL}
    v_lshrrev_b32 v{vT+6}, 4, v{vL}
    v_xor_b32 v{vT+5}, v{vT+5}, v{vT+6}
    s_and_b32 s{sT0}, s{sR}, 1
    s_lshl_b32 s{sT0}, s{sT0}, 2
    v_xor_b32 v{vT+5}, s{sT0}, v{vT+5}
    v_lshl_add_u32 v{vXs}, v{vT+5}, 4, v{vT+4}
    s_cmp_lt_u32 s{sCB}, 5
    s_movk_i32 s{sT0}, 3072
    s_cselect_b32 s{sT0}, 1280, s{sT0}
    s_cselect_b32 s{sT2}, 0, 5
    s_sub_u32 s{sT2}, s{sCB}, s{sT2}
    s_lshl_b32 s{sT2}, s{sT2}, 8
    v_lshl_add_u32 v{vT+4}, v{vT}, 6, v{vT+3}
    v_add_u32 v{vT+4}, s{sT2}, v{vT+4}
    v_add_u32 v{vT+5}, s{sT1}, v{vT+2}
    v_mad_u32_u24 v{vWs}, v{vT+5}, s{sT0}, v{vT+4}
    v_min_u32 v{vT+4}, 24, v{vT+3}
    v_mad_u32_u24 v{vT+6}, v{vT+5}, 40, v{vT+4}
    v_mov_b32 v{vT+7}, 0
    v_cmp_eq_u32 vcc, 0, v{vT}
    s_lshl_b32 s{sStr64}, s{sT0}, 6
    s_lshl_b32 s{sS32}, s{sT0}, 5
    s_mul_i32 s{WA+2}, s{sT0}, 640
    s_lshl_b32 s{sMx}, s{sR}, 10
    s_mov_b32 s{sI}, 0
    s_mov_b32 s{sSlot}, 0
    s_mov_b32 s{X+2}, {2048*1280}
    s_mov_b32 s{X+3}, 0x00020000
    s_mov_b32 s{WA+3}, 0x00020000
    s_cmp_lt_u32 s{sCB}, 5
    s_waitcnt lgkmcnt(0)
    s_mov_b32 s{X}, s8
    s_mov_b32 s{X+1}, s9
    s_cselect_b32 s{WA}, s10, s60
    s_cselect_b32 s{WA+1}, s11, s61
    v_mov_b32 v{vQb}, s14
    v_mov_b32 v{vQb+1}, s15
    v_mov_b32 v{vQa}, s12
    v_mov_b32 v{vQa+1}, s13
    v_cndmask_b32 v{vQb}, v{vQb}, v{vQa}, vcc
    v_cndmask_b32 v{vQb+1}, v{vQb+1}, v{vQa+1}, vcc
    v_lshl_add_u64 {vr(vQb,2)}, {vr(vT+6,2)}, 0, {vr(vQb,2)}
    v_mov_b32 v8, 2560
    """)
    stamp(a, 1)
    if PROF and 'lacc' in OPT: a("s_waitcnt lgkmcnt(0)\ns_mov_b32 s91, s72\ns_mov_b32 s95, 0\ns_mov_b32 s96, 0\ns_mov_b32 s97, 0")
    a("K1_issue:"); acc(a, 2)
    a(f"""
    s_lshl_b32 s{sT0}, s{sK}, 7
    s_add_u32 m0, s{sSlot}, s{sMx}
    s_mul_i32 s{sT1}, s{sK}, s{sStr64}
    """)
    for i in range(5):
        a(f"buffer_load_dwordx4 v{vXs}, {sr(X,4)}, s{sT0} offen lds\ns_add_u32 m0, m0, 4096\ns_add_u32 s{sT0}, s{sT0}, {32*1280}")
    a(f"""
    s_add_u32 s{sT2}, s{sT1}, s{sS32}
    s_cmp_eq_u32 s{sCB}, 17
    s_cbranch_scc1 K1_ikv
    buffer_load_dwordx4 v{vWs}, {sr(WA,4)}, s{sT1} offen lds
    s_add_u32 m0, m0, 4096
    s_nop 0
    buffer_load_dwordx4 v{vWs}, {sr(WA,4)}, s{sT2} offen lds
    s_add_u32 m0, m0, {4096-128}
    s_nop 0
    buffer_load_dwordx4 v{vWs}, {sr(WA,4)}, s{sT1} offen offset:128 lds
    s_add_u32 m0, m0, 4096
    s_nop 0
    buffer_load_dwordx4 v{vWs}, {sr(WA,4)}, s{sT2} offen offset:128 lds
    K1_i2:
    """); acc(a, 0); a(f"""
    s_add_u32 s{sK}, s{sK}, 1
    s_cmp_eq_u32 s{sK}, 10
    s_cselect_b32 s{sK}, 0, s{sK}
    s_add_u32 s{sSlot}, s{sSlot}, {SLOT}
    s_cmp_eq_u32 s{sSlot}, {4*SLOT}
    s_cselect_b32 s{sSlot}, 0, s{sSlot}
    s_add_u32 s{sI}, s{sI}, 1
    s_cmp_eq_u32 s{sI}, 1
    s_cbranch_scc1 K1_l1
    s_waitcnt vmcnt(9)
    s_barrier
    s_cmp_lg_u32 s{sI}, 10
    s_cbranch_scc1 K1_issue
    s_branch K1_g0
    K1_ikv:
    v_mad_u64_u32 {vr(vQa,2)}, s[58:59], v8, s{sK}, {vr(vQb,2)}
    global_load_lds_dwordx4 {vr(vQa,2)}, off
    s_add_u32 m0, m0, {4096-1280}
    s_nop 0
    global_load_lds_dwordx4 {vr(vQa,2)}, off offset:1280
    s_waitcnt vmcnt(7)
    s_branch K1_i2
    K1_l1:
    s_mov_b32 s{WS}, s6
    s_mov_b32 s{WS+1}, s7
    """)
    a(f"""
    s_cmp_eq_u32 s{sR}, 3
    s_mul_i32 s{sT0}, s{sRB}, 25600
    s_mul_i32 s{sT1}, s{sCB}, 10240
    s_movk_i32 s{sGs}, 2560
    s_cselect_b32 s{sGs}, 1024, s{sGs}
    s_cselect_b32 s{sT0}, s{sT1}, s{sT0}
    s_mov_b32 s{sT1}, {WS_SR}
    s_cselect_b32 s{sT1}, {WS_SC}, s{sT1}
    s_cselect_b32 s{sT2}, 0, s{sR}
    s_add_u32 s{sU}, s{sT0}, s{sT1}
    s_lshl_b32 s{sT2}, s{sT2}, 6
    v_add_u32 v20, s{sT2}, v{vL}
    v_min_u32 v20, 159, v20
    v_lshlrev_b32 v20, 4, v20
    s_mov_b32 s{DB2}, s4
    s_mov_b32 s{DB2+1}, s5
    s_mov_b32 s{DB2+2}, 256
    s_mov_b32 s{DB2+3}, 0x00020000
    v_mov_b32 v22, 0
    s_mul_i32 s62, s{sRB}, {5*96*1024}
    s_lshl_b32 s{sT0}, s{sCB}, 2
    s_add_u32 s{sT0}, s{sT0}, s{sR}
    s_lshl_b32 s{sT1}, s{sT0}, 11
    s_add_u32 s62, s62, s{sT1}
    s_add_u32 s62, s62, {WS_H - 5*8192}
    s_lshl_b32 s63, s{sT0}, 4
    s_add_u32 s63, s63, s{sRB}
    s_lshl_b32 s63, s63, 8
    s_add_u32 s63, s63, {WS_F1}
    s_sub_u32 s{sT0}, s{sCB}, 5
    s_cmp_lt_u32 s{sT0}, 12
    s_cselect_b32 s62, s62, 0
    s_branch K1_issue
    K1_g0:
    """)
    G = 32
    a(f"""
    s_mov_b32 s{sI}, 0
    """)
    a(f"K1_gat:\ns_mov_b32 s{sT0}, s{sU}\nbuffer_load_dword v21, v22, {sr(DB2,4)}, 0 offen sc1")
    for k in range(10):
        a(f"buffer_load_dwordx4 {vr(G+4*k,4)}, v20, {sr(WS,4)}, s{sT0} offen sc1\ns_add_u32 s{sT0}, s{sT0}, s{sGs}")
    a(f"""
    s_cmp_lg_u32 s{sI}, 0
    s_cbranch_scc1 K1_g2
    s_waitcnt vmcnt(11)
    s_barrier
    """)
    a(f"""
    K1_g2:
    s_add_u32 s{sI}, s{sI}, 1
    s_waitcnt vmcnt(0)
    v_cmp_eq_u32 vcc, 0, v21
    v_readfirstlane_b32 s{sN}, v21
    s_nop 0
    v_cndmask_b32 v6, 0, 1, vcc
    """)
    for k in range(10):
        a(f"v_xor_b32 v{G+4*k+1}, v{G+4*k+1}, v21\nv_xor_b32 v{G+4*k+3}, v{G+4*k+3}, v21\nv_or3_b32 v6, v{G+4*k+1}, v{G+4*k+3}, v6")
    a(f"""
    v_cmp_ne_u32 vcc, 0, v6
    s_cbranch_vccz K1_g3
    s_sleep {SLP}
    s_cmp_lt_u32 s{sI}, {SPINMAX}
    s_cbranch_scc1 K1_gat
    K1_g3:
    """)
    for k in range(1, 10):
        a(f"v_add_f32 v{G}, v{G}, v{G+4*k}\nv_add_f32 v{G+2}, v{G+2}, v{G+4*k+2}")
    a(f"""
    s_cmp_eq_u32 s{sR}, 3
    s_cbranch_scc1 K1_gc
    v_mul_f32 v{G}, {f32(1.0/640)}, v{G}
    v_mul_f32 v{G+2}, {f32(1.0/640)}, v{G+2}
    v_cvt_pk_bf16_f32 v{G+4}, -v{G}, -v{G}
    v_fma_f32 v{G+2}, -v{G}, v{G}, v{G+2}
    v_max_f32 v{G+2}, 0, v{G+2}
    """)
    round_bf16(a, G+2, G+2)
    a(f"v_add_f32 v{G+2}, {f32(1e-5)}, v{G+2}")
    round_bf16(a, G+2, G+2)
    a(f"v_sqrt_f32 v{G+6}, v{G+2}\nv_mov_b32 v{G+5}, 0")
    round_bf16(a, G+6, G+6)
    a(f"""
    v_rcp_f32 v{G+7}, v{G+6}
    v_add_u32 v5, {XB}, v20
    s_nop 0
    ds_write_b128 v5, {vr(G+4,4)}
    s_branch K1_gd
    K1_gc:
    v_and_b32 v{G+1}, 0xffff0000, v{G}
    v_and_b32 v{G+3}, 0xffff0000, v{G+2}
    v_sub_f32 v{G}, v{G}, v{G+1}
    v_sub_f32 v{G+2}, v{G+2}, v{G+3}
    v_cvt_pk_bf16_f32 v{G+4}, v{G+1}, v{G}
    v_cvt_pk_bf16_f32 v{G+5}, v{G+3}, v{G+2}
    v_lshlrev_b32 v5, 3, v{vL}
    v_add_u32 v5, {XFC}, v5
    ds_write_b64 v5, {vr(G+4,2)}
    v_mov_b32 v5, {XN}
    ds_write_b32 v5, v21
    K1_gd:
    """)
    a("s_waitcnt lgkmcnt(0)\ns_barrier\ns_branch K2_G")
    vN = 2
    a(f"""
    K1_C:
    """)
    common2()
    a(f"""
    s_lshr_b32 s{sG}, s{sW}, 2
    s_mov_b32 s{sK0}, s{sK}
    s_mov_b32 s{DBG+2}, 256
    s_mov_b32 s{DBG+3}, 0x00020000
    v_mov_b32 v{vN+1}, 0
    v_and_b32 v{vT+4}, 31, v{vL}
    v_bfe_u32 v{vT+5}, v{vL}, 1, 3
    v_lshlrev_b32 v{vT+4}, 7, v{vT+4}
    s_waitcnt lgkmcnt(0)
    s_mov_b32 s{WS}, s6
    s_mov_b32 s{WS+1}, s7
    s_mov_b32 s{DBG}, s4
    s_mov_b32 s{DBG+1}, s5
    s_lshl_b32 s{sT1}, s{sW}, 12
    v_lshlrev_b32 v{vT+6}, 2, v{vT}
    v_xor_b32 v{vT+6}, v{vT+6}, v{vT+5}
    v_lshl_add_u32 v4, v{vT+6}, 4, v{vT+4}
    v_add_u32 v4, s{sT1}, v4
    v_xor_b32 v5, 16, v4
    v_xor_b32 v6, 32, v4
    v_xor_b32 v7, 48, v4
    v_xor_b32 v{vT+5}, v{vT+5}, v{vT}
    s_mul_i32 s{sT1}, s{sG}, {3*4096}
    v_add_u32 v{vT+4}, s{sT1}, v{vT+4}
    """)
    for i in range(4):
        a(f"v_xor_b32 v{vT+6}, {2*i}, v{vT+5}\nv_lshl_add_u32 v{vAx+i}, v{vT+6}, 4, v{vT+4}")
    a(f"""
    s_mov_b32 s{sI}, 1
    s_mov_b32 s{sDelta}, {SLOT}
    s_sub_u32 s{sT0}, s{sW}, 2
    s_cmp_lt_u32 s{sT0}, 4
    s_cselect_b32 s{sIdle}, 1, 0
    s_cmp_eq_u32 s{sCB}, 17
    s_cselect_b32 s{sIdle}, s{sIdle}, 0
    s_lshr_b32 s{sHr}, s{sCB}, 1
    s_add_u32 s{sHr}, s{sHr}, 2
    s_cmp_lt_u32 s{sCB}, 10
    s_cselect_b32 s{sHr}, s{sHr}, 0
    s_cmp_lt_u32 s{sW}, 5
    s_cselect_b32 s{sHr}, s{sHr}, 0
    s_lshr_b32 s{sHc}, s{sRB}, 1
    s_add_u32 s{sHc}, s{sHc}, 2
    s_cmp_lt_u32 s{sRB}, 10
    s_cselect_b32 s{sHc}, s{sHc}, 0
    """)
    for i in range(48): a(f"v_mov_b32 v{AC+i}, 0")
    a(f"s_cmp_lg_u32 s{sIdle}, 0\ns_cbranch_scc1 K1_idle\ns_barrier")
    stamp(a, 1)
    a(f"buffer_load_dword v{vN}, v{vN+1}, {sr(DBG,4)}, 0 offen sc1")
    KR = dict(fW=fW, fX=fX, AC=AC, vAx=vAx, vAw=vAw, sDelta=sDelta)
    vFl = vT + 7
    def cloop(T):
        first, ba, bb, tail = kbody.streamC(KR, T)
        a(f"K1_start{T}:")
        for l in first: a(l)
        a(f"s_branch K1_mid{T}\nK1_comp{T}:\ns_barrier")
        if 'bt' in OPT: a(f"s_memtime s[92:93]\ns_waitcnt lgkmcnt(0)\ns_sub_u32 s92, s92, s70\nv_mov_b32 v22, s92\nv_cmp_eq_u32 vcc, s{sI}, v0\ns_nop 1\nv_cndmask_b32 v23, v23, v22, vcc")
        a(f"s_cmp_eq_u32 s{sI}, s{sHr}\ns_cbranch_scc1 K1_hr\nK1_hr{T}:")
        if T == 2: a(f"s_cmp_eq_u32 s{sI}, s{sHc}\ns_cbranch_scc1 K1_hc\nK1_hc2:")
        for l in ba: a(l)
        a(f"K1_mid{T}:")
        for l in bb: a(l)
        a(f"""
        s_and_b32 s{sT0}, s{sI}, 3
        s_cmp_eq_u32 s{sT0}, 3
        s_mov_b32 s{sDelta}, {SLOT}
        s_cselect_b32 s{sDelta}, {(-3*SLOT) & 0xffffffff}, s{sDelta}
        s_add_u32 s{sI}, s{sI}, 1
        s_cmp_lg_u32 s{sI}, 11
        s_waitcnt lgkmcnt(0)
        s_cbranch_scc1 K1_comp{T}
        """)
        a("s_barrier")
        for l in tail: a(l)
    a(f"s_cmp_lg_u32 s{sG}, 0\ns_cbranch_scc0 K1_start3")
    cloop(2)
    a(f"""
    s_branch K1_cdone
    K1_idle:
    s_barrier
    s_add_u32 s{sI}, s{sI}, 1
    s_cmp_lg_u32 s{sI}, 12
    s_cbranch_scc1 K1_idle
    s_branch K1_cdone
    """)
    cloop(3)
    a("K1_cdone:")
    stamp(a, 2)
    if 'bt' in OPT:
        a(f"""
        s_lshl_b32 s92, s2, 4
        s_add_u32 s92, s92, s{sW}
        s_lshl_b32 s92, s92, 6
        s_add_u32 s92, s92, {WS_PROF + 0x40000}
        v_lshlrev_b32 v22, 2, v0
        s_mov_b64 exec, 0xffff
        buffer_store_dword v23, v22, {sr(WS,4)}, s92 offen
        s_mov_b64 exec, -1
        """)
    ST, vCA, E, PK = 144, 20, 112, 128
    vMq, vNe = 24, 30
    a(f"""
    v_and_b32 v3, 31, v{vL}
    s_mul_i32 s{sT0}, s{sG}, {96*16}
    s_add_u32 s{sT0}, s{sT0}, {XB}
    v_lshl_add_u32 v4, v3, 4, s{sT0}
    s_lshl_b32 s{sT0}, s{sR}, 7
    s_add_u32 s{sT0}, s{sT0}, {XFC}
    v_lshl_add_u32 v5, v3, 2, s{sT0}
    v_lshlrev_b32 v1, 4, v{vL}
    v_mov_b32 v{vCA+1}, 0
    s_mul_i32 s{sRT}, s{sRB}, 5
    s_mul_i32 s{sT0}, s{sG}, 3
    s_add_u32 s{sRT}, s{sRT}, s{sT0}
    s_sub_u32 s{sU}, 3, s{sG}
    s_add_u32 s{sU}, s{sU}, s{sRT}
    s_min_u32 s{sU}, s{sU}, 64
    s_lshl_b32 s{sT0}, s{sCB}, 13
    s_lshl_b32 s{sT1}, s{sR}, 11
    s_add_u32 s{sMx}, s{sT0}, s{sT1}
    v_cmp_gt_u32 vcc, 32, v{vL}
    v_mov_b32 v6, {XN}
    """)
    a(f"""
    ds_read_b32 v6, v6
    ds_read_b32 v{vCA}, v5
    ds_read_b128 {vr(ST,4)}, v4
    ds_read_b128 {vr(ST+4,4)}, v4 offset:512
    ds_read_b128 {vr(ST+8,4)}, v4 offset:1024
    s_mov_b32 s{sI}, 0
    s_waitcnt lgkmcnt(3)
    v_cndmask_b32 v{vCA}, 0, v{vCA}, vcc
    v_readfirstlane_b32 s{sN}, v6
    s_sub_u32 s{sT0}, s{sCB}, 5
    s_cmp_lt_u32 s{sT0}, 12
    s_waitcnt lgkmcnt(0)
    v_mfma_f32_32x32x8_bf16 {vr(AC,16)}, {vr(vCA,2)}, {vr(ST,2)}, {vr(AC,16)}
    v_mfma_f32_32x32x8_bf16 {vr(AC+16,16)}, {vr(vCA,2)}, {vr(ST+4,2)}, {vr(AC+16,16)}
    v_mfma_f32_32x32x8_bf16 {vr(AC+32,16)}, {vr(vCA,2)}, {vr(ST+8,2)}, {vr(AC+32,16)}
    s_cbranch_scc0 K1_lin
    s_mul_i32 s{sT3}, s{sR}, 10240
    s_mul_i32 s{sT0}, s{sG}, 6144
    s_add_u32 s{sT3}, s{sT3}, s{sT0}
    s_add_u32 s{sT3}, s{sT3}, {HS}
    v_add_u32 v1, s{sT3}, v1
    s_nop 3
    K1_epiH:
    v_mul_f32 v{vNe}, {f32(-LOG2E)}, v{ST+3}
    """)
    for i in range(8): a(f"v_pk_mul_f32 {vr(E+2*i,2)}, {vr(AC+2*i,2)}, {vr(vNe,2)} op_sel_hi:[1,0]")
    for i in range(16): a(f"v_exp_f32 v{E+i}, v{E+i}")
    for i in range(8): a(f"v_pk_fma_f32 {vr(E+2*i,2)}, {vr(E+2*i,2)}, {vr(ST+2,2)}, {vr(ST+2,2)} op_sel_hi:[1,0,0]")
    for i in range(16): a(f"v_rcp_f32 v{E+i}, v{E+i}")
    for i in range(8): a(f"v_pk_mul_f32 {vr(E+2*i,2)}, {vr(E+2*i,2)}, {vr(AC+2*i,2)}")
    for i in range(8): a(f"v_cvt_pk_bf16_f32 v{PK+i}, v{E+2*i}, v{E+2*i+1}")
    a(f"""
    ds_write_b128 v1, {vr(PK,4)}
    ds_write_b128 v1, {vr(PK+4,4)} offset:1024
    v_add_u32 v1, 2048, v1
    s_add_u32 s{sRT}, s{sRT}, 1
    s_cmp_eq_u32 s{sRT}, s{sU}
    s_cbranch_scc1 {"K1_hd" if PROF else "K2_A"}
    s_add_u32 s{sI}, s{sI}, 1
    s_cmp_eq_u32 s{sI}, 2
    s_cbranch_scc1 K1_e2
    """)
    for i in range(8): a(f"v_pk_mov_b32 {vr(AC+2*i,2)}, {vr(AC+16+2*i,2)}, {vr(AC+16+2*i,2)} op_sel:[0,1]")
    a(f"v_pk_mov_b32 {vr(ST+2,2)}, {vr(ST+6,2)}, {vr(ST+6,2)} op_sel:[0,1]\ns_branch K1_epiH\nK1_e2:")
    for i in range(8): a(f"v_pk_mov_b32 {vr(AC+2*i,2)}, {vr(AC+32+2*i,2)}, {vr(AC+32+2*i,2)} op_sel:[0,1]")
    a(f"v_pk_mov_b32 {vr(ST+2,2)}, {vr(ST+10,2)}, {vr(ST+10,2)} op_sel:[0,1]\ns_branch K1_epiH")
    if PROF:
        a("K1_hd:"); stamp(a, 3); a("s_branch K2_A")
    PQ = 96
    a(f"""
    K1_lin:
    s_cmp_lg_u32 s{sIdle}, 0
    s_cbranch_scc1 K2_A
    s_cmp_eq_u32 s{sCB}, 17
    s_mov_b32 s{sK}, {f32(20 ** -0.5 * LOG2E)}
    s_cselect_b32 s{sK}, 1.0, s{sK}
    v_mul_f32 v{vMq}, s{sK}, v{ST+3}
    v_mul_f32 v{vMq+2}, s{sK}, v{ST+7}
    v_mul_f32 v{vMq+4}, s{sK}, v{ST+11}
    s_mul_i32 s{sT3}, s{sRT}, 40960
    s_add_u32 s{sT3}, s{sT3}, s{sMx}
    s_cmp_eq_u32 s{sCB}, 17
    s_cbranch_scc1 K1_kv
    """)
    for j in range(3):
        for i in range(16): a(f"v_mul_f32 v{AC+16*j+i}, v{AC+16*j+i}, v{vMq+2*j}")
        for i in range(8): a(f"v_cvt_pk_bf16_f32 v{PQ+8*j+i}, v{AC+16*j+2*i}, v{AC+16*j+2*i+1}")
        a(f"""
        buffer_store_dwordx4 {vr(PQ+8*j,4)}, v1, {sr(WS,4)}, s{sT3} offen sc1
        buffer_store_dwordx4 {vr(PQ+8*j+4,4)}, v1, {sr(WS,4)}, s{sT3} offen offset:1024 sc1
        """)
        if j < 2:
            a(f"""
            s_add_u32 s{sT3}, s{sT3}, 40960
            s_add_u32 s{sT0}, s{sRT}, {j+1}
            s_cmp_lt_u32 s{sT0}, s{sU}
            s_cselect_b32 s{sT3}, s{sT3}, {WS_END}
            """)
    a(f"""
    s_branch K1_done
    K1_kv:
    """)
    for j in range(3):
        for i in range(12): a(f"v_mul_f32 v{AC+16*j+i}, v{AC+16*j+i}, v{vMq+2*j}")
        for i in range(6): a(f"v_cvt_pk_bf16_f32 v{PQ+8*j+i}, v{AC+16*j+2*i}, v{AC+16*j+2*i+1}")
    a(f"""
    v_lshrrev_b32 v5, 5, v{vL}
    s_bitcmp1_b32 s{sR}, 0
    s_cbranch_scc1 K1_vst
    v_mul_u32_u24 v4, 5120, v5
    v_lshl_add_u32 v4, v3, 4, v4
    v_lshlrev_b32 v5, 4, v3
    """)
    def kvbase(j):
        a(f"""
        s_add_u32 s{sT2}, s{sRT}, {j}
        s_lshr_b32 s{sT0}, s{sT2}, 2
        s_mul_i32 s{sT0}, s{sT0}, 10240
        s_add_u32 s{sT0}, s{sT0}, {WS_KV}
        s_cmp_lt_u32 s{sT2}, s{sU}
        s_cselect_b32 s{sT0}, s{sT0}, {WS_END}
        s_and_b32 s{sT2}, s{sT2}, 3
        """)
    for j in range(3):
        kvbase(j)
        a(f"""
        s_lshl_b32 s{sT1}, s{sT2}, 9
        s_add_u32 s{sT1}, s{sT1}, s{sT0}
        buffer_store_dwordx4 {vr(PQ+8*j,4)}, v4, {sr(WS,4)}, s{sT1} offen sc1
        s_and_b32 s{sT1}, s{sT2}, 1
        s_mul_i32 s{sT1}, s{sT1}, 5120
        s_add_u32 s{sT0}, s{sT0}, s{sT1}
        s_lshr_b32 s{sT1}, s{sT2}, 1
        s_lshl_b32 s{sT1}, s{sT1}, 3
        s_add_u32 s{sT0}, s{sT0}, s{sT1}
        s_mov_b32 exec_lo, 0
        buffer_store_dwordx2 {vr(PQ+8*j+4,2)}, v5, {sr(WS,4)}, s{sT0} offen offset:2048 sc1
        s_mov_b32 exec_lo, -1
        """)
    a(f"""
    s_branch K1_done
    K1_vst:
    s_lshl_b32 s{sT3}, s{sG}, 12
    s_add_u32 s{sT3}, s{sT3}, {XQ+2048}
    v_bfe_u32 v4, v3, 2, 1
    v_mul_u32_u24 v4, 640, v4
    v_lshl_add_u32 v4, v5, 6, v4
    v_lshrrev_b32 v5, 4, v3
    v_mul_u32_u24 v5, 320, v5
    v_add_u32 v4, v4, v5
    v_bfe_u32 v5, v3, 3, 1
    v_lshl_add_u32 v4, v5, 3, v4
    v_and_b32 v5, 3, v3
    v_lshl_add_u32 v4, v5, 1, v4
    v_add_u32 v4, s{sT3}, v4
    v_add_u32 v5, s{sT3}, v1
    """)
    for jj in range(3):
        if jj == 2: a("s_mov_b32 exec_lo, 0")
        for j in range(3):
            o = 1280 * j + 128 * jj - (64 if jj == 2 else 0); p = PQ + 8 * j + 2 * jj
            a(f"""
            ds_write_b16 v4, v{p} offset:{o}
            ds_write_b16_d16_hi v4, v{p} offset:{o+16}
            ds_write_b16 v4, v{p+1} offset:{o+32}
            ds_write_b16_d16_hi v4, v{p+1} offset:{o+48}
            """)
        a("s_waitcnt lgkmcnt(0)")
    a("s_mov_b32 exec_lo, -1\ns_mov_b32 exec_hi, 0xff")
    for j in range(6): a(f"ds_read_b128 {vr(AC+4*j,4)}, v5 offset:{640*j}")
    for j in range(3):
        kvbase(j)
        a(f"""
        s_mul_i32 s{sT1}, s{sT2}, 640
        s_add_u32 s{sT0}, s{sT0}, s{sT1}
        s_add_u32 s{sT1}, s{sT0}, 5120
        s_waitcnt lgkmcnt({4-2*j})
        buffer_store_dwordx4 {vr(AC+8*j,4)}, v1, {sr(WS,4)}, s{sT0} offen offset:2560 sc1
        buffer_store_dwordx4 {vr(AC+8*j+4,4)}, v1, {sr(WS,4)}, s{sT1} offen offset:2560 sc1
        """)
    a("s_mov_b32 exec_hi, -1\ns_branch K1_done")
    def hook_head():
        a(f"""
        s_sub_u32 s{sT0}, s{sI}, 1
        s_add_u32 s{sT1}, s{sT0}, s{sK0}
        s_cmp_eq_u32 s{sT1}, 10
        s_cselect_b32 s{sT1}, 0, s{sT1}
        """)
    def nonce(lab):
        a(f"""
        s_mov_b32 s{sT2}, 0
        {lab}:
        s_waitcnt vmcnt(0)
        v_readfirstlane_b32 s{sN}, v{vN}
        s_add_u32 s{sT2}, s{sT2}, 1
        s_cmp_lg_u32 s{sN}, 0
        s_cbranch_scc1 {lab}x
        buffer_load_dword v{vN}, v{vN+1}, {sr(DBG,4)}, 0 offen sc1
        s_cmp_lt_u32 s{sT2}, {SPINMAX}
        s_cbranch_scc1 {lab}
        {lab}x:
        """)
    a("K1_hr:"); hook_head()
    a(f"s_and_b32 s{sT0}, s{sT0}, 3\ns_mul_i32 s{sT0}, s{sT0}, {SLOT}")
    for i in range(4): a(f"v_add_u32 v{4+i}, s{sT0}, v{4+i}\nds_read_b128 {vr(144+4*i,4)}, v{4+i}")
    a(f"""
    v_mov_b32 v4, 0
    v_mov_b32 v6, 0
    s_mul_i32 s{sT0}, s{sRB}, 10
    s_add_u32 s{sT0}, s{sT0}, s{sT1}
    s_mul_i32 s{sT0}, s{sT0}, 2560
    s_lshl_b32 s{sT1}, s{sW}, 9
    s_add_u32 s{sT0}, s{sT0}, s{sT1}
    s_add_u32 s{sT0}, s{sT0}, {WS_SR}
    """)
    nonce("K1_n1")
    a("s_waitcnt lgkmcnt(0)")
    for i in range(16): a(f"v_dot2c_f32_bf16 v4, s{sOnes}, v{144+i}\nv_dot2c_f32_bf16 v6, v{144+i}, v{144+i}")
    a(f"""
    v_mov_b32 v5, v{vN}
    v_mov_b32 v7, v{vN}
    v_lshlrev_b32 v144, 4, v{vL}
    v_mov_b32 v8, v4
    v_mov_b32 v9, v6
    s_cmp_eq_u32 s{sG}, 0
    s_nop 0
    v_permlane32_swap_b32 v8, v4
    v_permlane32_swap_b32 v9, v6
    v_add_f32 v4, v4, v8
    v_add_f32 v6, v6, v9
    s_mov_b32 exec_hi, 0
    buffer_store_dwordx4 {vr(4,4)}, v144, {sr(WS,4)}, s{sT0} offen sc1
    s_mov_b32 exec_hi, -1
    s_cbranch_scc1 K1_hr3
    s_branch K1_hr2
    K1_hc:
    """)
    for k in range(4):
        for q in range(2): a(f"ds_read_b64_tr_b16 {vr(144+4*k+2*q,2)}, v{vAw} offset:{2048*k+256*q}")
    hook_head()
    a(f"""
    v_mov_b32 v160, 0
    s_mul_i32 s{sT0}, s{sCB}, 10
    s_add_u32 s{sT0}, s{sT0}, s{sT1}
    s_lshl_b32 s{sT0}, s{sT0}, 10
    s_add_u32 s{sT0}, s{sT0}, {WS_SC}
    s_lshl_b32 s{sT1}, s{sR}, 8
    s_add_u32 s{sT0}, s{sT0}, s{sT1}
    s_xor_b32 s{sT3}, s{sT0}, 512
    s_cmp_eq_u32 s{sCB}, 17
    s_cselect_b32 s{sT3}, s{sT3}, {WS_END}
    """)
    nonce("K1_n2")
    a("s_waitcnt lgkmcnt(0)")
    for i in range(16): a(f"v_dot2c_f32_bf16 v160, s{sOnes}, v{144+i}")
    a(f"""
    v_mov_b32 v161, v{vN}
    v_lshlrev_b32 v144, 3, v{vL}
    s_nop 0
    v_mov_b32 v162, v160
    s_nop 1
    v_permlane32_swap_b32 v162, v160
    v_add_f32 v160, v160, v162
    s_mov_b32 exec_hi, 0
    buffer_store_dwordx2 {vr(160,2)}, v144, {sr(WS,4)}, s{sT0} offen sc1
    buffer_store_dwordx2 {vr(160,2)}, v144, {sr(WS,4)}, s{sT3} offen sc1
    s_mov_b32 exec_hi, -1
    s_branch K1_hc2
    """)
    sJ, sL, sPst = 34, 35, 36
    WP = 24; vPs = 2
    a(f"""
    K1_aux:
    s_memrealtime s[66:67]
    v_bfe_u32 v{vT+4}, v{vL}, 2, 2
    v_bfe_u32 v{vT+5}, v{vL}, 4, 1
    v_lshl_add_u32 v{vT+4}, v{vT+4}, 1, v{vT+5}
    v_lshl_add_u32 v{vT+4}, v{vT+4}, 2, v{vT+1}
    v_lshlrev_b32 v{vCom}, 3, v{vT+4}
    s_lshl_b32 s{sT0}, s{sT0}, 1
    s_add_u32 s{sT0}, s{sT0}, s{sT1}
    s_sub_u32 s{sT0}, s{sT0}, 30
    s_sub_u32 s{sT2}, s{sT2}, {234-16}
    s_cmp_ge_u32 s{sT1}, 30
    s_cselect_b32 s{sT0}, s{sT0}, s{sT2}
    s_mul_i32 s{sJ}, s{sT0}, 12
    s_add_u32 s{sJ}, s{sJ}, s{sW}
    s_mul_i32 s{sL}, s{sW}, 12288
    v_lshl_add_u32 v{vT+3}, v{vT}, 6, v{vT+3}
    v_lshrrev_b32 v{vT+6}, 2, v{vT+2}
    v_and_b32 v{vT+7}, 3, v{vT+2}
    s_mov_b32 m0, s{sL}
    s_mov_b32 s{WP+3}, 0x00020000
    s_mov_b32 s{sI}, s{sJ}
    s_waitcnt lgkmcnt(0)
    s_mov_b32 s{WS}, s6
    s_mov_b32 s{WS+1}, s7
    s_mov_b32 s{DBG}, s4
    s_mov_b32 s{DBG+1}, s5
    s_mov_b32 s{DBG+2}, 256
    s_mov_b32 s{DBG+3}, 0x00020000
    s_lshl_b32 s{sU}, s{sT0}, 7
    s_add_u32 s{sU}, s{sU}, {WS_F1 + 72*4096}
    s_mov_b64 s[58:59], 1
    s_cmp_lg_u32 s{sJ}, 0
    s_cbranch_scc1 K1_a1
    s_or_b32 s66, s66, 1
    v_mov_b32 v4, s66
    v_mov_b32 v5, 0
    s_mov_b64 exec, 1
    buffer_store_dword v4, v5, {sr(DBG,4)}, 0 offen sc1
    s_mov_b64 exec, -1
    K1_a1:
    s_mul_i32 s{sT0}, s{sI}, 6554
    s_lshr_b32 s{sT0}, s{sT0}, 16
    s_mul_i32 s{sT1}, s{sT0}, 10
    s_sub_u32 s{sT1}, s{sI}, s{sT1}
    s_lshl_b32 s{sT1}, s{sT1}, 7
    s_sub_u32 s{sT2}, s{sT0}, 96
    s_mul_i32 s{sT3}, s{sT2}, 205
    s_lshr_b32 s{sT3}, s{sT3}, 10
    s_mul_i32 s55, s{sT3}, 5
    s_sub_u32 s55, s{sT2}, s55
    s_mul_i32 s{sT3}, s{sT3}, 80
    s_mul_i32 s56, s55, 20
    s_cmp_eq_u32 s55, 4
    s_cselect_b32 s56, 16, s56
    s_cselect_b32 s55, 1, 0
    s_add_u32 s{sT3}, s{sT3}, s56
    s_lshl_b32 s{sT2}, s{sT0}, 4
    s_cmp_lt_u32 s{sT0}, 96
    s_cselect_b32 s{sT3}, s{sT2}, s{sT3}
    s_cselect_b32 s55, 0, s55
    s_cselect_b32 s{WP}, s62, s16
    s_cselect_b32 s{WP+1}, s63, s17
    s_mov_b32 s{WP+2}, {640*1280}
    s_cselect_b32 s{WP+2}, {1536*1280}, s{WP+2}
    s_mul_i32 s{sT3}, s{sT3}, 1280
    s_add_u32 s56, s{sT3}, s{sT1}
    s_cmp_eq_u32 s55, 0
    s_cselect_b32 s{sT2}, 4, 40
    s_movk_i32 s57, {20*1280}
    s_cselect_b32 s57, {8*1280}, s57
    s_add_u32 s57, s57, s56
    v_mad_u32_u24 v{vPs}, v{vT+6}, s{sT2}, v{vT+7}
    v_mul_u32_u24 v{vPs}, 1280, v{vPs}
    v_add_u32 v{vPs}, v{vPs}, v{vT+3}
    buffer_load_dwordx4 v{vPs}, {sr(WP,4)}, s56 offen lds
    s_add_u32 m0, m0, 1024
    s_add_u32 s{sI}, s{sI}, 264
    buffer_load_dwordx4 v{vPs}, {sr(WP,4)}, s57 offen lds
    s_add_u32 m0, m0, 1024
    s_cmp_lt_u32 s{sI}, 1360
    s_cbranch_scc1 K1_a1
    v_lshl_add_u32 v4, v{vT}, 8, v{vCom}
    v_add_u32 v4, s{sL}, v4
    v_and_b32 v5, 15, v{vL}
    v_lshlrev_b32 v5, 4, v5
    v_lshl_add_u32 v5, v{vT}, 8, v5
    v_lshl_add_u32 v5, v{vT+5}, 9, v5
    s_lshl_b32 s{sPst}, s{sJ}, 11
    s_add_u32 s{sPst}, s{sPst}, {WS_WP}
    s_waitcnt vmcnt(0)
    K1_a2:
    ds_read_b64_tr_b16 {vr(32,2)}, v4
    ds_read_b64_tr_b16 {vr(34,2)}, v4 offset:1024
    ds_read_b64_tr_b16 {vr(36,2)}, v4 offset:512
    ds_read_b64_tr_b16 {vr(38,2)}, v4 offset:1536
    v_add_u32 v4, 2048, v4
    s_add_u32 s{sJ}, s{sJ}, 264
    s_waitcnt lgkmcnt(0)
    buffer_store_dwordx4 {vr(32,4)}, v5, {sr(WS,4)}, s{sPst} offen sc1
    buffer_store_dwordx4 {vr(36,4)}, v5, {sr(WS,4)}, s{sPst} offen offset:1024 sc1
    s_add_u32 s{sPst}, s{sPst}, {264*2048}
    s_cmp_lt_u32 s{sJ}, 1360
    s_cbranch_scc1 K1_a2
    v_mov_b32 v5, 0
    s_mov_b32 s{sT3}, 0
    K1_a3:
    buffer_load_dword v4, v5, {sr(DBG,4)}, 0 offen sc1
    s_add_u32 s{sT3}, s{sT3}, 1
    s_waitcnt vmcnt(0)
    v_readfirstlane_b32 s{sN}, v4
    s_cmp_gt_u32 s{sT3}, {SPINMAX}
    s_cbranch_scc1 K1_a4
    s_cmp_eq_u32 s{sN}, 0
    s_cbranch_scc1 K1_a3
    K1_a4:
    s_mov_b32 s62, 0
    s_barrier
    s_cmp_ge_u32 s{sW}, 8
    s_cbranch_scc1 K2_G
    s_cmp_lg_u32 s{sW}, 0
    s_cbranch_scc1 K2_A
    s_branch K1_flag
    K1_done:
    s_lshl_b32 s{sU}, s{sCB}, 2
    s_add_u32 s{sU}, s{sU}, s{sR}
    s_lshl_b32 s{sU}, s{sU}, 5
    s_lshl_b32 s{sT0}, s{sRB}, 1
    s_add_u32 s{sU}, s{sU}, s{sT0}
    s_add_u32 s{sU}, s{sU}, s{sG}
    s_lshl_b32 s{sU}, s{sU}, 7
    s_add_u32 s{sU}, s{sU}, {WS_F1}
    s_mov_b64 s[58:59], 1
    s_cmp_lg_u32 s{sCB}, 17
    s_cbranch_scc1 K1_flag
    v_mov_b32 v4, 1
    v_mov_b32 v5, 0
    {"s_memtime s[72:73]" if PROF and 'kvs' in OPT else ""}
    s_mov_b64 exec, 1
    s_waitcnt vmcnt(0)
    {"s_memtime s[76:77]" if PROF and 'kvs' in OPT else ""}
    buffer_atomic_add v4, v5, {sr(DBG,4)}, 0 offen offset:128 sc0
    s_mov_b32 s{sU}, {WS_FK}
    s_mov_b64 s[58:59], -1
    s_waitcnt vmcnt(0)
    {"s_memtime s[90:91]" if PROF and 'kvs' in OPT else ""}
    v_readfirstlane_b32 s{sT0}, v4
    s_mov_b64 exec, -1
    s_mul_hi_u32 s{sT1}, s{sT0}, {(1 << 32) // 52 + 1}
    s_mul_i32 s{sT1}, s{sT1}, 52
    s_sub_u32 s{sT0}, s{sT0}, s{sT1}
    s_cmp_lg_u32 s{sT0}, 51
    s_cbranch_scc1 K2_A
    """)
    'kvs' in OPT or stamp(a, 3)
    setflag(a, sU, WS, 4, 5, '-1')
    a("s_branch K2_A\nK1_flag:")
    stamp(a, 3)
    a(f"s_mov_b32 s64, s{sU}\ns_branch K2_A2")

def tile_ids(a, sRB, sNB, sT0):
    if 'map84' not in OPT:
        a(f"""
        s_and_b32 s{sT0}, s2, 7
        s_lshl_b32 s{sRB}, s{sT0}, 2
        s_bfe_u32 s{sT0}, s2, 0x20003
        s_add_u32 s{sRB}, s{sRB}, s{sT0}
        s_lshr_b32 s{sNB}, s2, 5
        """)
        return
    a(f"""
    s_and_b32 s{sT0}, s2, 3
    s_lshl_b32 s{sRB}, s{sT0}, 3
    s_bfe_u32 s{sT0}, s2, 0x30003
    s_add_u32 s{sRB}, s{sRB}, s{sT0}
    s_bfe_u32 s{sT0}, s2, 0x10002
    s_lshl_b32 s{sNB}, s{sT0}, 2
    s_lshr_b32 s{sT0}, s2, 6
    s_add_u32 s{sNB}, s{sNB}, s{sT0}
    """)
def wlane(a, vL, vW, vW2, t):
    a(f"""
    v_and_b32 v{vW2}, 15, v{vL}
    v_lshlrev_b32 v{vW2}, 4, v{vW2}
    v_lshrrev_b32 v{t}, 5, v{vL}
    v_lshl_add_u32 v{vW2}, v{t}, 8, v{vW2}
    v_bfe_u32 v{t}, v{vL}, 4, 1
    v_lshl_add_u32 v{vW}, v{t}, 9, v{vW2}
    {"" if 'nozp' in OPT else f"v_lshl_add_u32 v{vW2}, v{t}, 30, v{vW2}"}
    """)

def gen_k2(a):
    sW, sR, sG, sRB, sCB, sHD, sRT = 32, 33, 34, 35, 36, 37, 38
    sI, sT0, sT1, sT2, sSrc, sVm, sSeg, sT3 = 39, 40, 41, 42, 43, 44, 52, 53
    WS, X, OUT = 28, 20, 24
    vL, vA, vD = 0, 1, 2
    QM, QT, KM, KT, V, P, O, S = 4, 8, 12, 20, 24, 40, 56, 72
    R = dict(vA=vA, QM=QM, QT=QT, KM=KM, KT=KT, V=V, P=P, O=O, S=S)
    def aids():
        a(f"""
        s_and_b32 s{sT0}, s2, 3
        s_lshl_b32 s{sRB}, s{sT0}, 2
        s_bfe_u32 s{sT0}, s2, 0x20003
        s_add_u32 s{sRB}, s{sRB}, s{sT0}
        s_bfe_u32 s{sT0}, s2, 0x10002
        s_lshl_b32 s{sCB}, s{sT0}, 3
        s_lshr_b32 s{sT0}, s2, 5
        s_add_u32 s{sCB}, s{sCB}, s{sT0}
        s_and_b32 s{sR}, s{sW}, 3
        s_lshl_b32 s{sRT}, s{sRB}, 2
        s_add_u32 s{sRT}, s{sRT}, s{sR}
        v_lshlrev_b32 v{vD}, 4, v{vL}
        """)
    a(f"K2_A:\ns_mov_b32 s64, {WS_END}\ns_mov_b64 s[58:59], 1\nK2_A2:"); aids()
    a(f"""
    s_lshr_b32 s{sG}, s{sW}, 2
    s_lshl_b32 s{sHD}, s{sCB}, 1
    s_and_b32 s{sT1}, s{sHD}, 2
    s_add_u32 s{sHD}, s{sHD}, s{sG}
    s_mul_i32 s{sT2}, s{sG}, 5
    s_add_u32 s{sT1}, s{sT1}, s{sT2}
    s_mul_i32 s{sT2}, s{sR}, 3072
    s_add_u32 s{sT2}, s{sT2}, {XQ}
    v_and_b32 v{vA}, 31, v{vL}
    v_lshlrev_b32 v{vA}, 4, v{vA}
    v_lshrrev_b32 v3, 5, v{vL}
    v_add_u32 v{P}, s{sT1}, v3
    v_add_u32 v{P+1}, 2, v{P}
    s_add_u32 s{sT1}, s{sT1}, 4
    v_mov_b32 v{P+2}, s{sT1}
    v_add_u32 v{P+3}, s{sT2}, v{vA}
    """)
    for i in range(3):
        a(f"""
        v_lshrrev_b32 v{P+4}, 2, v{P+i}
        v_lshl_add_u32 v{P+5}, v{P+4}, 10, v{P+3}
        v_and_b32 v{P+4}, 1, v{P+i}
        v_lshl_add_u32 v{P+5}, v{P+4}, 9, v{P+5}
        v_and_b32 v{P+4}, 2, v{P+i}
        v_lshl_add_u32 v{P+i}, v{P+4}, 2, v{P+5}
        """)
    a(f"""
    s_mov_b32 s{sVm}, 0x000fffff
    s_mov_b32 s{sVm+1}, 0x000fffff
    v_mul_u32_u24 v3, 5120, v3
    v_add_u32 v{vA}, v{vA}, v3
    v_and_b32 v3, 27, v{vL}
    v_cmp_eq_u32 vcc, 24, v3
    v_mov_b32 v3, 0x3f803f80
    """)
    for i in range(16): a(f"v_mov_b32 v{O+i}, 0")
    for i in range(16): a(f"v_cndmask_b32 v{V+i}, 0, v3, vcc")
    for i in range(4): a(f"v_mov_b32 v{P+12+i}, 0")
    segw = sum(n << (4 * i) for i, n in enumerate(SEGS))
    a(f"""
    s_mov_b32 s{sSeg}, {segw >> 4}
    s_mov_b32 s{sI}, {SEGS[0]}
    """)
    a(f"""
    s_lshr_b32 s54, s{sHD}, 2
    s_mul_i32 s54, s54, 5
    s_mul_i32 s55, s{sRT}, 40
    s_add_u32 s54, s54, s55
    s_lshl_b32 s54, s54, 10
    s_add_u32 s54, s54, {WS_O}
    s_and_b32 s55, s{sHD}, 3
    s_lshl_b32 s55, s55, 10
    s_add_u32 s55, s55, s54
    s_bfe_u32 s{sT2}, s{sHD}, 0x10001
    s_lshl_b32 s{sT2}, s{sT2}, 9
    s_add_u32 s54, s54, s{sT2}
    s_and_b32 s{sT2}, s{sHD}, 1
    s_lshl_b32 s{sT2}, s{sT2}, 3
    s_add_u32 s54, s54, s{sT2}
    s_add_u32 s54, s54, 4096
    s_lshl_b32 s56, s{sRT}, 5
    s_add_u32 s56, s56, s{sHD}
    s_lshl_b32 s56, s56, 7
    s_add_u32 s56, s56, {WS_F3}
    v_mov_b32 v{S}, -1
    v_mov_b32 v{S+1}, -1
    v_mov_b32 v{S+2}, -1
    v_mov_b32 v{S+3}, -1
    """)
    setflag(a, 64, WS, 10, 11, 's[58:59]')
    if 'st1' in OPT: stamp(a, 1)
    a("s_waitcnt lgkmcnt(0)\ns_barrier"); stamp(a, 4); a(f"""
    buffer_store_dwordx4 {vr(S,4)}, v{vD}, {sr(WS,4)}, s55 offen sc1
    s_mov_b32 exec_hi, 0
    buffer_store_dwordx2 {vr(S,2)}, v{vD}, {sr(WS,4)}, s54 offen sc1
    {"s_mov_b32 exec_lo, 0xff" if 'pret' in OPT else ""}
    {f"buffer_store_dwordx4 {vr(O,4)}, v{vD}, {sr(WS,4)}, s56 offen sc1" if 'pret' in OPT else ""}
    s_mov_b64 exec, -1
    ds_read_b64 {vr(QT,2)}, v{P+2}
    ds_read_b128 {vr(KT,4)}, v{vA} offset:2048
    ds_read_b64 {vr(QM,2)}, v{P}
    ds_read_b64 {vr(QM+2,2)}, v{P+1}
    ds_read_b128 {vr(KM,4)}, v{vA} offset:0
    ds_read_b128 {vr(KM+4,4)}, v{vA} offset:512
    s_waitcnt lgkmcnt({0 if PROF else 4})
    v_mfma_f32_32x32x4_2b_bf16 {vr(S,32)}, {vr(KT,2)}, {vr(QT,2)}, 0
    s_waitcnt lgkmcnt(0)
    s_nop 15
    s_nop 2
    {MF(vr(S,16), vr(KM,4), vr(QM,4), vr(S,16))}
    {MF(vr(S+16,16), vr(KM+4,4), vr(QM,4), vr(S+16,16))}
    ds_read_b128 {vr(KM,4)}, v{vA} offset:1024
    ds_read_b128 {vr(KM+4,4)}, v{vA} offset:1536
    s_mov_b64 exec, {sr(sVm,2)}
    ds_read_b128 {vr(V,4)}, v{vA} offset:2560
    ds_read_b128 {vr(V+4,4)}, v{vA} offset:2880
    s_mov_b64 exec, -1
    s_nop 7
    .p2align 6
    K2_loop:
    """)
    for l in abody.body(R, 0, (3, 2, 1), sVm): a(l)
    a(f"""
    v_add_u32 v{vA}, 10240, v{vA}
    s_sub_u32 s{sI}, s{sI}, 1
    s_cmp_lg_u32 s{sI}, 0
    s_cbranch_scc1 K2_loop
    s_and_b32 s{sI}, s{sSeg}, 15
    s_cbranch_scc0 K2_exit
    s_lshr_b32 s{sSeg}, s{sSeg}, 4
    s_barrier
    s_branch K2_loop
    K2_exit:
    """); stamp(a, 5); a(f"""
    {MF(vr(O,16), vr(V+12,4), vr(P+12,4), vr(O,16))}
    s_mov_b32 s46, {f32(2.0**-64)}
    s_mov_b32 s47, {f32(2.0**64)}
    s_nop 9
    v_cmp_nle_f32 vcc, s46, v{O+12}
    v_cmp_nge_f32 s[46:47], s47, v{O+12}
    s_waitcnt lgkmcnt(0)
    s_or_b64 vcc, vcc, s[46:47]
    s_cbranch_scc1 K2_slow
    K2_fin:
    v_rcp_f32 v{P}, v{O+12}
    v_mov_b32 v4, s{sN}
    v_lshlrev_b32 v5, 2, v{vL}
    s_waitcnt vmcnt(0)
    """)
    for i in range(12): a(f"v_mul_f32 v{O+i}, v{O+i}, v{P}")
    for i in range(6): a(f"v_cvt_pk_bf16_f32 v{S+i}, v{O+2*i}, v{O+2*i+1}")
    a(f"""
    buffer_store_dwordx4 {vr(S,4)}, v{vD}, {sr(WS,4)}, s55 offen sc1
    s_mov_b32 exec_hi, 0
    buffer_store_dwordx2 {vr(S+4,2)}, v{vD}, {sr(WS,4)}, s54 offen sc1
    {"" if 'fline' in OPT else "s_mov_b64 exec, 1"}
    buffer_store_dword v4, v5, {sr(WS,4)}, s56 offen sc1
    s_mov_b64 exec, -1
    """)
    if 'p3' in OPT: stamp(a, 1)
    if 'p3' in OPT: stamp(a, 2)
    a("s_barrier")
    if 'p3' in OPT: stamp(a, 3)
    sKQ, sRB2, sNB, sH0, sH1, sWp = 33, 35, 36, 46, 47, 48
    XR = 104; RR = 108
    def fin_prep():
        tile_ids(a, sRB2, sNB, sT0)
        srd(a, X, 8, 2048*1280); srd(a, OUT, 18, 2048*1280)
        a(f"""
        s_lshl_b32 s{sT0}, s{sW}, 6
        v_add_u32 v4, s{sT0}, v{vL}
        v_mul_u32_u24 v5, 6554, v4
        v_lshrrev_b32 v5, 16, v5
        v_mul_u32_u24 v5, {1280-160}, v5
        v_lshlrev_b32 v4, 4, v4
        v_add_u32 v5, v5, v4
        s_mul_i32 s{sT3}, s{sRB2}, {64*1280}
        s_mul_i32 s{sT1}, s{sNB}, 160
        s_add_u32 s{sT3}, s{sT3}, s{sT1}
        v_add_u32 v6, 51200, v4
        buffer_load_dwordx4 {vr(XR,4)}, v5, {sr(X,4)}, s{sT3} offen
        """)
    fin_prep()
    a("K3_bar:\ns_barrier")
    if 'p3' in OPT: stamp(a, 4); a("s_waitcnt lgkmcnt(0)")
    for p in range(4):
        for h in range(2): a(f"ds_read_b128 {vr(RR+8*p+4*h,4)}, v{4 if p < 2 else 6} offset:{(p%2)*25600 + h*10240}")
    a("s_waitcnt vmcnt(0)")
    for i in range(4): a(f"v_lshlrev_b32 v{8+2*i}, 16, v{XR+i}\nv_and_b32 v{9+2*i}, 0xffff0000, v{XR+i}")
    for p in range(4):
        a(f"s_waitcnt lgkmcnt({6-2*p})")
        for i in range(4): a(f"v_pk_add_f32 {vr(8+2*i,2)}, {vr(8+2*i,2)}, {vr(RR+8*p+2*i,2)}")
    for i in range(4): a(f"v_cvt_pk_bf16_f32 v{XR+i}, v{8+2*i}, v{9+2*i}")
    a(f"buffer_store_dwordx4 {vr(XR,4)}, v5, {sr(OUT,4)}, s{sT3} offen\nK_pe:")
    prof_end(a, 0, WS, sW)
    a("K_end:\ns_endpgm")
    vW, vW2 = 1, 3
    ACC, FR = 8, 104
    a("K2_G:"); aids()
    def fill(n, lab):
        a(f"""
        s_mov_b32 s{sI}, {n}
        {lab}:
        buffer_load_dwordx4 v{vD}, {sr(WS,4)}, s{sSrc} offen sc1 lds
        s_add_u32 s{sSrc}, s{sSrc}, 4096
        s_add_u32 m0, m0, 4096
        s_sub_u32 s{sI}, s{sI}, 1
        s_cmp_lg_u32 s{sI}, 0
        s_cbranch_scc1 {lab}
        """)
    rowidx(a, sT1, sRT, sT0)
    a(f"""
    s_lshl_b32 s{sT0}, s{sR}, 10
    s_add_u32 s{sSrc}, s{sT0}, {WS_KV}
    s_mov_b32 m0, s{sT0}
    s_mul_i32 s{sT2}, s{sCB}, 10
    s_lshr_b32 s{sT2}, s{sT2}, 2
    v_and_b32 v4, 2, v{vL}
    v_add_u32 v4, s{sT2}, v4
    v_lshrrev_b32 v4, 1, v4
    v_lshl_add_u32 v4, v4, 5, s{sT1}
    v_lshlrev_b32 v4, 7, v4
    v_add_u32 v4, {WS_F1}, v4
    s_and_b32 s{sT0}, s2, 63
    s_lshl_b32 s{sT0}, s{sT0}, 8
    s_add_u32 s{sT0}, s{sT0}, {WS_FK}
    v_writelane_b32 v4, s{sT0}, 0
    s_mul_i32 s54, s{sRT}, 40
    s_add_u32 s54, s54, s{sT2}
    s_lshl_b32 s54, s54, 10
    s_mov_b32 s{sT3}, 0
    s_mov_b32 s{sSeg}, 1
    buffer_load_dword v5, v4, {sr(WS,4)}, 0 offen sc1
    """)
    for i in range(96): a(f"v_mov_b32 v{ACC+i}, 0")
    tile_ids(a, sRB2, sNB, sT0)
    wlane(a, vL, vW, vW2, 6)
    a(f"""
    K2_p1:
    s_waitcnt vmcnt(0)
    v_cmp_ne_u32 vcc, s{sN}, v5
    s_add_u32 s{sT3}, s{sT3}, 1
    s_cmp_ge_u32 s{sT3}, {SPINMAX}
    s_cselect_b64 vcc, 0, vcc
    s_andn2_b32 s{sT0}, s{sSeg}, vcc_lo
    s_cbranch_scc0 K2_p1b
    s_mov_b32 s{sSeg}, 0
    """)
    stamp(a, 2)
    fill(NF1, "K2_f1")
    a(f"""
    K2_p1b:
    s_cmp_eq_u64 vcc, 0
    s_cbranch_scc1 K2_p1x
    s_sleep {SLP}
    buffer_load_dword v5, v4, {sr(WS,4)}, 0 offen sc1
    s_branch K2_p1
    K2_p1x:
    s_mov_b32 s{sSeg}, m0
    s_mul_i32 s{sT1}, s{sR}, 3072
    s_add_u32 m0, s{sT1}, {XQ}
    s_nop 0
    """)
    for i in range(3): a(f"buffer_load_dwordx4 v{vD}, {sr(WS,4)}, s54 offen offset:{1024*i} sc1 lds")
    a(f"""
    s_mov_b32 m0, s{sSeg}
    s_setprio 3
    s_waitcnt vmcnt(0)
    s_barrier
    """); stamp(a, 3)
    a(f"""
    s_mul_i32 s{sT0}, s{sR}, 10240
    s_add_u32 s{sT0}, s{sT0}, {HS}
    v_add_u32 v4, s{sT0}, v{vD}
    """)
    for i in range(10): a(f"ds_read_b128 {vr(FR+4*i,4)}, v4 offset:{1024*i}")
    fill(10, "K2_f2")
    a(f"""
    s_waitcnt vmcnt(0) lgkmcnt(0)
    s_barrier
    s_cmp_eq_u32 s62, 0
    s_cbranch_scc1 K2_nh
    """)
    for j in range(5):
        if j == 4: a(f"s_cmp_lt_u32 s62, {WS_H + 64*96*1024}\ns_cselect_b32 s62, s62, {WS_END}")
        a(f"""
        buffer_store_dwordx4 {vr(FR+8*j,4)}, v{vD}, {sr(WS,4)}, s62 offen sc1
        buffer_store_dwordx4 {vr(FR+8*j+4,4)}, v{vD}, {sr(WS,4)}, s62 offen offset:1024 sc1
        s_add_u32 s62, s62, {96*1024}
        """)
    a("K2_nh:")
    fill(25, "K2_f3")
    a(f"""
    s_cmp_eq_u32 s62, 0
    s_cselect_b32 s63, {WS_END}, s63
    v_mov_b32 v4, s{sN}
    v_mov_b32 v5, 0
    s_mov_b64 exec, 1
    s_waitcnt vmcnt(25)
    buffer_store_dword v4, v5, {sr(WS,4)}, s63 offen sc1
    s_mov_b64 exec, -1
    s_waitcnt vmcnt(1)
    s_barrier
    """)
    a(f"s_lshl_b32 s{sT2}, s{sRB2}, 1")
    rowidx(a, sH0, sT2, sT0)
    a(f"s_add_u32 s{sT2}, s{sT2}, 1")
    rowidx(a, sH1, sT2, sT0)
    a(f"""
    v_and_b32 v4, 1, v{vL}
    v_cmp_eq_u32 vcc, 0, v4
    v_mov_b32 v4, s{sH0}
    v_mov_b32 v5, s{sH1}
    v_cndmask_b32 v4, v5, v4, vcc
    v_and_b32 v4, 30, v4
    v_lshrrev_b32 v5, 1, v{vL}
    v_min_u32 v5, 11, v5
    s_mul_i32 s{sT0}, s{sKQ}, 12
    s_add_u32 s{sT0}, s{sT0}, 20
    v_add_u32 v5, s{sT0}, v5
    v_lshl_add_u32 v4, v5, 5, v4
    v_cmp_gt_u32 vcc, 32, v{vL}
    v_min_u32 v5, 53, v{vL}
    v_add_u32 v5, {72*32 - 32}, v5
    v_cndmask_b32 v4, v5, v4, vcc
    v_lshlrev_b32 v4, 7, v4
    v_add_u32 v4, {WS_F1}, v4
    s_mul_i32 s{sH0}, s{sRB2}, 192
    s_mul_i32 s{sT0}, s{sKQ}, 24
    s_add_u32 s{sH0}, s{sH0}, s{sT0}
    s_lshl_b32 s{sH0}, s{sH0}, 10
    s_add_u32 s{sH0}, s{sH0}, {WS_H}
    s_add_u32 s{sH1}, s{sH0}, {96*1024}
    s_mul_i32 s{sWp}, s{sT0}, 20480
    s_mul_i32 s{sT0}, s{sNB}, 2560
    s_add_u32 s{sWp}, s{sWp}, s{sT0}
    s_add_u32 s{sWp}, s{sWp}, {WS_WP}
    """)
    if 'st3' in OPT: stamp(a, 2)
    poll(a, "K2_p3", 4, 5, WS, sT3)
    stamp(a, 1)
    def gload(j):
        b = FR + 20 * j
        a(f"""
        buffer_load_dwordx4 {vr(b,4)}, v{vD}, {sr(WS,4)}, s{sH0} offen offset:{1024*j} sc1
        buffer_load_dwordx4 {vr(b+4,4)}, v{vD}, {sr(WS,4)}, s{sH1} offen offset:{1024*j} sc1
        buffer_load_dwordx4 {vr(b+8,4)}, v{vW}, {sr(WS,4)}, s{sWp} offen sc1
        buffer_load_dwordx4 {vr(b+12,4)}, v{vW}, {sr(WS,4)}, s{sWp} offen offset:1024 sc1
        buffer_load_dwordx4 {vr(b+16,4)}, v{vW2}, {sr(WS,4)}, s{sWp} offen offset:2048 sc1
        s_add_u32 s{sWp}, s{sWp}, 20480
        """)
    for j in range(3): gload(j)
    a(f"s_setprio {GPRIO}")
    a(f"""
    s_mov_b32 s{sI}, 8
    K2_Gl:
    s_add_u32 s{sH0}, s{sH0}, 3072
    s_add_u32 s{sH1}, s{sH1}, 3072
    s_cmp_eq_u32 s{sI}, 1
    s_cselect_b32 s{sH0}, {WS_END}, s{sH0}
    s_cselect_b32 s{sH1}, {WS_END}, s{sH1}
    s_cselect_b32 s{sWp}, {WS_END}, s{sWp}
    """)
    def mm6(aw, bo):
        for t in range(3):
            for r in range(2):
                a(MF(vr(ACC+48*r+16*t,16), vr(aw+4*t,4), vr(bo+4*r,4), vr(ACC+48*r+16*t,16)))
    for j in range(3):
        b = FR + 20 * j
        a("s_waitcnt vmcnt(10)")
        mm6(b + 8, b)
        gload(j)
    a(f"""
    s_sub_u32 s{sI}, s{sI}, 1
    s_cmp_lg_u32 s{sI}, 0
    s_cbranch_scc1 K2_Gl
    """); 'st2' in OPT or stamp(a, 4)
    a(f"""
    s_setprio 3
    s_mul_i32 s{sT2}, s{sKQ}, 25600
    s_mul_i32 s{sWp}, s{sKQ}, {10*20480}
    s_mul_i32 s{sT0}, s{sNB}, 2560
    s_add_u32 s{sWp}, s{sWp}, s{sT0}
    s_add_u32 s{sWp}, s{sWp}, {WS_WP + 96*20480}
    s_mov_b32 m0, s{sT2}
    v_add_u32 v{vW}, s{sT2}, v{vW}
    v_add_u32 v{vW2}, s{sT2}, v{vW2}
    s_lshl_b32 s{sT0}, s{sRB2}, 3
    s_add_u32 s{sT0}, s{sT0}, s{sKQ}
    s_lshl_b32 s{sT0}, s{sT0}, 10
    s_add_u32 s{sT0}, s{sT0}, {WS_F3}
    v_and_b32 v7, 39, v{vL}
    v_lshl_add_u32 v7, v7, 7, s{sT0}
    s_mul_i32 s{sH0}, s{sRB2}, 80
    s_mul_i32 s{sT0}, s{sKQ}, 10
    s_add_u32 s{sH0}, s{sH0}, s{sT0}
    s_lshl_b32 s{sH0}, s{sH0}, 10
    s_add_u32 s{sH0}, s{sH0}, {WS_O}
    s_add_u32 s{sH1}, s{sH0}, 40960
    s_mul_i32 s49, s{sNB}, {ROT3}
    s_lshr_b32 s49, s49, 2
    s_mul_i32 s{sT0}, s49, 20480
    s_add_u32 s50, s{sWp}, {10*20480}
    s_add_u32 s{sWp}, s{sWp}, s{sT0}
    s_lshl_b32 s49, s49, 10
    s_mov_b32 s{sI}, 10
    s_waitcnt vmcnt(0)
    s_barrier
    K2_f4:
    buffer_load_dwordx4 v{vD}, {sr(WS,4)}, s{sWp} offen sc1 lds
    buffer_load_dwordx4 v{vD}, {sr(WS,4)}, s{sWp} offen offset:1024 sc1 lds
    s_mov_b32 exec_hi, 0
    buffer_load_dwordx4 v{vD}, {sr(WS,4)}, s{sWp} offen offset:2048 sc1 lds
    s_mov_b32 exec_hi, -1
    s_add_u32 s{sWp}, s{sWp}, 20480
    s_cmp_eq_u32 s{sWp}, s50
    s_cselect_b32 s{sT0}, {10*20480}, 0
    s_sub_u32 s{sWp}, s{sWp}, s{sT0}
    s_add_u32 m0, m0, 2560
    s_sub_u32 s{sI}, s{sI}, 1
    s_cmp_lg_u32 s{sI}, 0
    s_cbranch_scc1 K2_f4
    """)
    FO, FW = 104, 140
    def wread(j):
        b = FW + 12 * (j % 2)
        a(f"""
        ds_read_b128 {vr(b,4)}, v{vW} offset:{2560*j}
        ds_read_b128 {vr(b+4,4)}, v{vW} offset:{2560*j+1024}
        ds_read_b128 {vr(b+8,4)}, v{vW2} offset:{2560*j+2048}
        """)
    OA = 88
    def oissue(j):
        b = FO + 8 * (j % 4)
        a(f"""
        buffer_load_dwordx4 {vr(b,4)}, v{vD}, {sr(WS,4)}, s{OA+2*(j%4)} offen sc1
        buffer_load_dwordx4 {vr(b+4,4)}, v{vD}, {sr(WS,4)}, s{OA+2*(j%4)+1} offen sc1
        """)
    def oaddr(j):
        a(f"""
        s_add_u32 s{OA+2*(j%4)}, s{sH0}, s49
        s_add_u32 s{OA+2*(j%4)+1}, s{sH1}, s49
        s_add_u32 s49, s49, 1024
        s_cmp_eq_u32 s49, 10240
        s_cselect_b32 s49, 0, s49
        """)
    a("s_waitcnt vmcnt(0)")
    wread(0); wread(1)
    for j in range(4): oaddr(j)
    a(f"s_mov_b32 s51, {SPINMAX}\ns_barrier")
    if 'p3' in OPT: stamp(a, 1)
    poll(a, "K2_p4", 7, 5, WS, sT3)
    'st2' in OPT or stamp(a, 5)
    for j in range(4): oissue(j)
    retry = []
    for j in range(10):
        later = min(j + 3, 9) - j
        b = FO + 8 * (j % 4)
        a(f"""
        s_waitcnt vmcnt({2*later}) lgkmcnt({0 if (j == 9 or PROF) else 3})
        K3_c{j}:
        v_max3_u32 v5, v{b}, v{b+2}, v{b+4}
        v_max_u32 v5, v5, v{b+6}
        v_cmp_eq_u32 vcc, -1, v5
        s_cbranch_vccnz K3_r{j}
        K3_m{j}:
        """)
        mm6(FW + 12 * (j % 2), b)
        if j + 4 < 10: oaddr(j + 4); oissue(j + 4)
        if j + 2 < 10: wread(j + 2)
    def retries():
        for j in range(10):
            a(f"K3_r{j}:\ns_cmp_eq_u32 s51, 0\ns_cbranch_scc1 K3_m{j}\ns_sub_u32 s51, s51, 1")
            oissue(j)
            a(f"s_waitcnt vmcnt(0)\ns_branch K3_c{j}")
    if 'p3' in OPT: stamp(a, 2)
    fin_prep()
    a(f"""
    v_and_b32 v7, 31, v{vL}
    v_mul_u32_u24 v7, 160, v7
    v_lshrrev_b32 v{RR}, 5, v{vL}
    v_mul_u32_u24 v{RR}, 10240, v{RR}
    v_add3_u32 v7, v7, v{RR}, s{sT2}
    """)
    for r in range(2):
        for o in range(10): a(f"ds_write_b128 v7, {vr(ACC+48*r+4*o,4)} offset:{5120*r+16*o}")
    a(f"""
    s_waitcnt lgkmcnt(0)
    {"s_memtime s[76:77]" if PROF and 'p3' in OPT else ""}
    s_cmp_lt_u32 s{sW}, 10
    s_cbranch_scc1 K3_bar
    s_barrier
    {"s_branch K_pe" if PROF else "s_endpgm"}
    """)
    retries()
    vMx = 3
    sP, sO1, sO2, sO3 = 48, 49, 50, 51
    a(f"""
    K_last:
    K2_slow:
    v_subrev_u32 v{vA}, {16*10240}, v{vA}
    v_mov_b32 v{vMx}, 0xff800000
    s_mov_b32 s{sP}, 0
    """)
    for i in range(16): a(f"v_mov_b32 v{O+i}, 0")
    a(f"""
    K2_sp:
    s_mov_b32 s{sI}, 0
    K2_sl:
    s_lshr_b32 s{sT0}, s{sI}, 1
    s_mul_i32 s{sT0}, s{sT0}, 10240
    s_add_u32 s{sT0}, s{sT0}, {WS_KV}
    s_and_b32 s{sT1}, s{sI}, 1
    s_lshl_b32 s{sO1}, s{sT1}, 10
    s_add_u32 s{sO1}, s{sO1}, s{sT0}
    s_lshl_b32 s{sO2}, s{sT1}, 3
    s_add_u32 s{sO2}, s{sO2}, s{sT0}
    s_mul_i32 s{sO3}, s{sT1}, 1280
    s_add_u32 s{sO3}, s{sO3}, s{sT0}
    buffer_load_dwordx4 {vr(KM,4)}, v{vA}, {sr(WS,4)}, s{sO1} offen sc1
    buffer_load_dwordx4 {vr(KM+4,4)}, v{vA}, {sr(WS,4)}, s{sO1} offen offset:512 sc1
    buffer_load_dwordx2 {vr(KT,2)}, v{vA}, {sr(WS,4)}, s{sO2} offen offset:2048 sc1
    s_mov_b64 exec, {sr(sVm,2)}
    """)
    for f in range(4): a(f"buffer_load_dwordx4 {vr(V+4*f,4)}, v{vA}, {sr(WS,4)}, s{sO3} offen offset:{2560+320*f} sc1")
    a(f"""
    s_mov_b64 exec, -1
    s_waitcnt vmcnt(0)
    v_mfma_f32_32x32x4_2b_bf16 {vr(S,32)}, {vr(KT,2)}, {vr(QT,2)}, 0
    s_nop 15
    s_nop 3
    {MF(vr(S,16), vr(KM,4), vr(QM,4), vr(S,16))}
    {MF(vr(S+16,16), vr(KM+4,4), vr(QM,4), vr(S+16,16))}
    s_cmp_lg_u32 s{sP}, 0
    s_nop 12
    s_cbranch_scc1 K2_sp2
    """)
    for i in range(16): a(f"v_max3_f32 v{vMx}, v{S+2*i}, v{S+2*i+1}, v{vMx}")
    a("s_branch K2_snext\nK2_sp2:")
    for i in range(32): a(f"v_sub_f32 v{S+i}, v{S+i}, v{vMx}")
    for i in range(32): a(f"v_exp_f32 v{S+i}, v{S+i}")
    a("s_nop 0")
    for i in range(16): a(f"v_cvt_pk_bf16_f32 v{P+i}, v{S+2*i}, v{S+2*i+1}")
    a("s_nop 1")
    for f in range(4): a(MF(vr(O,16), vr(V+4*f,4), vr(P+4*f,4), vr(O,16)))
    a(f"""
    s_nop 15
    K2_snext:
    s_add_u32 s{sI}, s{sI}, 1
    s_cmp_lt_u32 s{sI}, 32
    s_cbranch_scc1 K2_sl
    s_cmp_lg_u32 s{sP}, 0
    s_cbranch_scc1 K2_fin
    v_mov_b32 v{P}, v{vMx}
    s_nop 1
    v_permlane32_swap_b32 v{P}, v{vMx}
    s_mov_b32 s{sP}, 1
    v_max_f32 v{vMx}, v{vMx}, v{P}
    s_branch K2_sp
    """)
    return 164

def main(out):
    a = Asm()
    gen_k1(a); n = gen_k2(a)
    head = f"""; LayerNorm + MQA attention + SiLU FFN in one launch (generated by work/gen6.py)
; @launch grid=(256,1,1) block=(768,1,1) lds=163840
.amdgcn_target "amdgcn-amd-amdhsa--gfx950"
.text
"""
    tail = '.section .rodata,"a"\n' + kdesc(KN, n)
    txt = a.text()
    import re
    if 'pollsys' in OPT: txt = re.sub(r"(buffer_load_dword v\d+, v\d+, s\[28:31\], 0 offen) sc1", r"\1 sc0 sc1", txt)
    if 'flagsys' in OPT: txt = re.sub(r"(buffer_store_dword v\d+, v\d+, s\[28:31\], s\d+ offen) sc1", r"\1 sc0 sc1", txt)
    if 'flagatom' in OPT: txt = re.sub(r"buffer_store_dword (v\d+, v\d+, s\[28:31\], s\d+ offen) sc1", r"buffer_atomic_swap \1", txt)
    if 'allsys' in OPT: txt = re.sub(r"(?<!sc0) sc1", " sc0 sc1", txt)
    if 'rt' in OPT: txt = txt.replace("s_memtime", "s_memrealtime")
    open(out, "w").write(head + txt + tail)

if __name__ == "__main__":
    if "--prof" in sys.argv:
        PROF = True; sys.argv.remove("--prof")
    main(sys.argv[1] if len(sys.argv) > 1 else f"cdna_kernels/{NAME}.s")
```

```python
import sys, math, os, struct
import abody, kbody
OPT = set(os.environ.get('OPT', '').split(','))
NAME = "parallel_sum__grouped_kv_mqa__dense_activation_silu__prompt"
WS_Q, WS_KV, WS_H, WS_O, WS_WP, WS_Y, WS_PROF, WS_END = 0, 0x300000, 0x340000, 0x940000, 0xD00000, 0x1000000, 0xC00000, 0x1500000
WS_SR, WS_SC = 0x280000, 0x2D2000
WS_F1, WS_F3, WS_FK = 0x1000000, 0x1080000, 0x1060000
SLP = int(os.environ.get('SLP', '4'))
XB = 147456; XFC, XN, XQ = XB + 2560, XB + 3072, XB + 4096
sN = 68
KN = NAME + '_kernel'
SPINMAX = 20000
ROTR, ROTC = (int(c) for c in os.environ.get('ROT', '3,3').split(','))
PRE = int(os.environ.get('PRE', '2'))
PRE_CTRL = """s_or_b32 s{sT0}, s{sI}, 2
    s_cmp_eq_u32 s{sT0}, 3
    s_cbranch_scc1 K1_issue
    s_cmp_lg_u32 s{sI}, 2
    s_cbranch_scc1 K1_w18""" if PRE == 2 else """s_cmp_lt_u32 s{sI}, %d
    s_cbranch_scc1 K1_issue
    s_cmp_lg_u32 s{sI}, %d
    s_cbranch_scc1 K1_w18""" % (PRE, PRE)
CSAT = int(os.environ.get('CSAT', '2'))
NF1 = 5
HS = 102400
SEGS = eval(os.environ.get('SEGS', '[1, 3, 10, 2]'))
DEEP = int(os.environ.get('DEEP', '99'))
GPRIO = int(os.environ.get('GPRIO', '0'))
ROT3 = int(os.environ.get('ROT3', '5'))
RW = int(os.environ.get('RW', '10')); RMUL = int(os.environ.get('RMUL', '3'))
HOOK = int(os.environ.get('HOOK', '2'))
LOG2E = 1.4426950408889634
def f32(x): return "0x%08x" % struct.unpack("<I", struct.pack("<f", x))[0]

class Asm:
    def __init__(self): self.l = []
    def __call__(self, s):
        for x in s.strip("\n").split("\n"):
            x = x.strip()
            if x: self.l.append(("" if x.endswith(":") else "    ") + x)
    def text(self): return "\n".join(self.l) + "\n"
def vr(a, n): return "v[%d:%d]" % (a, a + n - 1)
def ar(a, n): return "a[%d:%d]" % (a, a + n - 1)
def sr(a, n): return "s[%d:%d]" % (a, a + n - 1)
def srd(a, d, base, nbytes):
    a(f"s_mov_b32 s{d}, s{base}\ns_mov_b32 s{d+1}, s{base+1}\ns_mov_b32 s{d+2}, {nbytes}\ns_mov_b32 s{d+3}, 0x00020000")
def kdesc(name, vgpr, agpr=0, sgpr=102):
    acc = (vgpr + 3) // 4 * 4
    return f""".p2align 6
.amdhsa_kernel {name}
  .amdhsa_next_free_vgpr {acc + agpr if agpr else vgpr}
  .amdhsa_next_free_sgpr {sgpr}
  .amdhsa_accum_offset {acc}
  .amdhsa_group_segment_fixed_size 0
  .amdhsa_kernarg_size 88
  .amdhsa_user_sgpr_count 2
  .amdhsa_user_sgpr_kernarg_segment_ptr 1
  .amdhsa_system_sgpr_workgroup_id_x 1
.end_amdhsa_kernel
"""
def khead(a, name): a.l.append(f".globl {name}\n.p2align 8\n.type {name},@function\n{name}:")
PROF = False
DIAGX = int(os.environ.get('DIAGX', '0'))
def stamp(a, i):
    if DIAGX:
        a(f"s_memrealtime s[{70+2*i}:{71+2*i}]")
        return
    if 'dbgt' in OPT:
        a(f"s_memrealtime s[{70+2*i}:{71+2*i}]")
        if i == 0: a("s_mov_b32 s72, 0\ns_mov_b32 s74, 0\ns_mov_b32 s76, 0")
        return
    if PROF:
        a(f"s_memtime s[{70+2*i}:{71+2*i}]")
        if i == 0: a("s_memrealtime s[84:85]")
def prof_end(a, kidx, WS, sW):
    if DIAGX:
        a(f"""
        s_cmp_lg_u32 s{sW}, 0
        s_cbranch_scc1 K_end
        s_cmp_lg_u32 s2, {int(os.environ.get('DIAGWG', '40'))}
        s_cbranch_scc1 K_end
        s_waitcnt vmcnt(0)
        s_memrealtime s[82:83]
        s_waitcnt lgkmcnt(0)
        {f"s_sub_u32 s84, s{70+2*DIAGX}, s70" if DIAGX < 7 else f"s_sub_u32 s84, s70, s{sN}"}
        {"s_add_u32 s84, s84, 1500" if DIAGX == 7 else ""}
        s_lshl_b32 s84, s84, 2
        K_dl:
        s_memrealtime s[86:87]
        s_waitcnt lgkmcnt(0)
        s_sub_u32 s86, s86, s82
        s_cmp_lt_u32 s86, s84
        s_cbranch_scc1 K_dl
        """)
        return
    if 'dbgt' in OPT:
        a(f"""
        s_cmp_lg_u32 s{sW}, 0
        s_cbranch_scc1 K_end
        s_waitcnt vmcnt(0)
        s_memrealtime s[82:83]
        s_mov_b32 s20, s4
        s_mov_b32 s21, s5
        s_mov_b32 s22, 256
        s_mov_b32 s23, 0x00020000
        s_mov_b64 exec, 1
        v_mov_b32 v0, 0
        s_waitcnt lgkmcnt(0)
        s_not_b32 s84, s70
        v_mov_b32 v1, s84
        buffer_atomic_umax v1, v0, s[20:23], 0 offen offset:4
        """)
        for i in range(7):
            a(f"v_mov_b32 v{2+i}, s{70+2*i}\nbuffer_atomic_umax v{2+i}, v0, s[20:23], 0 offen offset:{8+4*i}")
        return
    if not PROF: return
    a(f"""
    s_waitcnt vmcnt(0)
    s_memtime s[82:83]
    s_memrealtime s[86:87]
    s_mov_b64 exec, -1
    s_waitcnt lgkmcnt(0)
    s_lshl_b32 s88, s2, 4
    s_add_u32 s88, s88, s{sW}
    s_lshl_b32 s88, s88, 6
    s_add_u32 s88, s88, {WS_PROF + kidx * 0x40000}
    v_mov_b32 v0, 0
    """)
    if 'kvs' in OPT: a("s_mov_b32 s80, s90")
    if 'lacc' in OPT: a(f"s_cmp_lt_u32 s{sW}, 8\ns_cbranch_scc1 K_pe2\ns_add_u32 s76, s70, s95\ns_add_u32 s78, s70, s96\ns_add_u32 s80, s70, s97\nK_pe2:")
    for i in range(7): a(f"v_mov_b32 v{4+i}, s{70+2*i}")
    a(f"""
    v_mov_b32 v11, s84
    v_mov_b32 v12, s86
    v_mov_b32 v13, 0
    v_mov_b32 v14, 0
    v_mov_b32 v15, 0
    s_mov_b64 exec, 1
    buffer_store_dwordx4 v[4:7], v0, {sr(WS,4)}, s88 offen
    buffer_store_dwordx4 v[8:11], v0, {sr(WS,4)}, s88 offen offset:16
    buffer_store_dwordx4 v[12:15], v0, {sr(WS,4)}, s88 offen offset:32
    """)
def poll(a, lab, vaddr, vtmp, WS, sCnt):
    a(f"""
    s_mov_b32 s{sCnt}, 0
    {lab}:
    buffer_load_dword v{vtmp}, v{vaddr}, {sr(WS,4)}, 0 offen sc1
    s_add_u32 s{sCnt}, s{sCnt}, 1
    s_waitcnt vmcnt(0)
    v_cmp_ne_u32 vcc, s{sN}, v{vtmp}
    s_cbranch_vccz {lab}x
    s_sleep {SLP}
    s_cmp_lt_u32 s{sCnt}, {SPINMAX}
    s_cbranch_scc1 {lab}
    {lab}x:
    """)
def setflag(a, soff, WS, v0, v1, emask="1"):
    a(f"""
    v_mov_b32 v{v0}, s{sN}
    v_lshlrev_b32 v{v1}, 8, v0
    s_mov_b64 exec, {emask}
    s_waitcnt vmcnt(0)
    buffer_store_dword v{v0}, v{v1}, {sr(WS,4)}, s{soff} offen sc1
    s_mov_b64 exec, -1
    """)
def rowidx(a, d, rt, t):
    a(f"""
    s_mul_i32 s{d}, s{rt}, 205
    s_lshr_b32 s{d}, s{d}, 10
    s_mul_i32 s{t}, s{d}, 5
    s_sub_u32 s{t}, s{rt}, s{t}
    s_lshl_b32 s{d}, s{d}, 1
    s_cmp_ge_u32 s{t}, 3
    s_addc_u32 s{d}, s{d}, 0
    """)
def round_bf16(a, d, s): a(f"v_cvt_pk_bf16_f32 v{d}, v{s}, v{s}\nv_lshlrev_b32 v{d}, 16, v{d}")
def MF(d, A, B, C): return f"v_mfma_f32_32x32x16_bf16 {d}, {A}, {B}, {C}"

def ldswait(a, lab, vaddr, vtmp, sTmp, sNeed, off=0):
    a(f"""
    {lab}:
    ds_read_b32 v{vtmp}, v{vaddr} offset:{off}
    s_waitcnt lgkmcnt(0)
    v_readfirstlane_b32 s{sTmp}, v{vtmp}
    s_cmp_ge_u32 s{sTmp}, {sNeed}
    s_cbranch_scc1 {lab}x
    {'s_sleep 1' if 'nosl' not in OPT else ''}
    s_sub_u32 s65, s65, 1
    s_cbranch_scc0 {lab}
    s_mov_b32 s65, 0
    {lab}x:
    """)
def ldsadd(a, vaddr, vone, off=0):
    a(f"s_mov_b64 exec, 1\nds_add_u32 v{vaddr}, v{vone} offset:{off}\ns_mov_b64 exec, -1")

def acc(a, i):
    if PROF and 'lacc' in OPT:
        a(f"s_memtime s[92:93]\ns_waitcnt lgkmcnt(0)\ns_sub_u32 s94, s92, s91\ns_mov_b32 s91, s92\ns_add_u32 s{95+i}, s{95+i}, s94")
def gen_k1(a):
    khead(a, KN)
    SLOT = 36864
    CNT = XN + 16
    sW, sR, sG, sRB, sCB = 32, 33, 34, 35, 36
    sI, sK, sSlot, sT0, sT1, sMx, sNeed, sStr64, sDelta, sRd, sT2, sT3, sK0, sMB, sU, sTyp, sRT, sS32, sOnes = 38, 39, 40, 41, 42, 43, 44, 45, 46, 47, 48, 49, 50, 51, 52, 53, 54, 55, 37
    sHr, sIdle, sGs, DB2, sHc = 56, 69, 57, 12, 57
    X, WA, WS, DBG = 20, 24, 28, 20
    vL, vXs, vWs, vCom, vOne, vC, vF = 0, 1, 2, 11, 10, 17, 18
    vAx, vAw = 12, 16
    vT = 24
    AC = 32; fW, fX = 80, 96
    a(f"""
    s_cmp_ge_u32 s2, 256
    s_cbranch_scc1 K_end
    """); stamp(a, 0); a(f"""
    s_load_dwordx8 s[8:15], s[0:1], 0
    s_load_dwordx4 s[60:63], s[0:1], 48
    s_load_dwordx4 s[4:7], s[0:1], 72
    s_load_dwordx2 s[16:17], s[0:1], 32
    s_load_dwordx2 s[18:19], s[0:1], 64
    v_lshrrev_b32 v1, 6, v0
    v_and_b32 v{vL}, 63, v0
    v_readfirstlane_b32 s{sW}, v1
    s_and_b32 s{sT0}, s2, 7
    s_lshr_b32 s{sT1}, s2, 3
    s_mul_i32 s{sT2}, s{sT0}, 30
    s_add_u32 s{sT2}, s{sT2}, s{sT1}
    v_lshrrev_b32 v{vT}, 5, v{vL}
    v_and_b32 v{vT+1}, 3, v{vL}
    v_bfe_u32 v{vT+2}, v{vL}, 2, 3
    v_lshlrev_b32 v{vT+3}, 4, v{vT+1}
    s_mov_b32 s{WS+2}, {WS_END}
    s_mov_b32 s{WS+3}, 0x00020000
    s_lshl_b32 s{sT3}, s{sW}, 8
    s_add_u32 s{sT3}, s{sT3}, s{sT1}
    s_cmp_lg_u32 s{sT3}, {(1 << 8) + 30}
    s_cbranch_scc1 K1_npf
    s_getpc_b64 s[66:67]
    K1_pc:
    v_lshlrev_b32 v2, 7, v{vL}
    v_add_u32 v3, 8192, v2
    v_min_u32 v3, K_last-K1_pc, v3
    {"" if 'nocpf' in OPT else "global_load_dword v60, v2, s[66:67]"}
    {"" if 'nocpf' in OPT else "global_load_dword v61, v3, s[66:67]"}
    K1_npf:
    s_cmp_ge_u32 s{sT1}, 30
    s_cbranch_scc1 K1_aux
    s_cmp_ge_u32 s{sT2}, 234
    s_cbranch_scc1 K1_aux
    s_cmp_lt_u32 s{sT2}, 126
    s_cselect_b32 s{sT0}, 0, 126
    s_cselect_b32 s{sT1}, 7, 6
    s_movk_i32 s{sT3}, 10923
    s_cselect_b32 s{sT3}, 9363, s{sT3}
    s_cselect_b32 s{sRB}, 0, 7
    s_sub_u32 s{sT2}, s{sT2}, s{sT0}
    s_mul_i32 s{sCB}, s{sT2}, s{sT3}
    s_lshr_b32 s{sCB}, s{sCB}, 16
    s_mul_i32 s{sT1}, s{sT1}, s{sCB}
    s_sub_u32 s{sT2}, s{sT2}, s{sT1}
    s_add_u32 s{sRB}, s{sRB}, s{sT2}
    s_and_b32 s{sR}, s{sW}, 3
    s_add_u32 s{sK}, s{sRB}, s{sCB}
    s_mul_i32 s{sK}, s{sK}, {RMUL}
    s_mul_i32 s{sT0}, s{sK}, {65536 // RW + 1}
    s_lshr_b32 s{sT0}, s{sT0}, 16
    s_mul_i32 s{sT0}, s{sT0}, {RW}
    s_sub_u32 s{sK}, s{sK}, s{sT0}
    s_mul_i32 s{sK}, s{sK}, {10 // RW}
    s_cmp_lt_u32 s{sW}, 8
    s_cbranch_scc1 K1_C
    """)
    def common2():
        a(f"""
        v_bfe_u32 v{vT+4}, v{vL}, 2, 2
        v_bfe_u32 v{vT+5}, v{vL}, 4, 1
        v_lshl_add_u32 v{vT+4}, v{vT+4}, 1, v{vT+5}
        v_lshl_add_u32 v{vT+4}, v{vT+4}, 2, v{vT+1}
        v_lshlrev_b32 v{vCom}, 3, v{vT+4}
        s_mov_b32 s{sOnes}, 0x3f803f80
        s_cmp_eq_u32 s{sCB}, 17
        s_cselect_b32 s{sT0}, 1, 3
        s_and_b32 s{sT0}, s{sT0}, s{sR}
        s_lshr_b32 s{sT1}, s{sT0}, 1
        s_lshl_b32 s{sT1}, s{sT1}, 13
        s_and_b32 s{sT0}, s{sT0}, 1
        s_lshl_b32 s{sT0}, s{sT0}, 9
        s_add_u32 s{sT0}, s{sT0}, s{sT1}
        s_add_u32 s{sT0}, s{sT0}, 20480
        v_lshl_add_u32 v{vAw}, v{vT}, 10, v{vCom}
        v_add_u32 v{vAw}, s{sT0}, v{vAw}
        """)
    vQb, vQa = 4, 6
    a(f"""
    s_mul_i32 s{sT0}, s{sRB}, 160
    s_lshl_b32 s{sT1}, s{sR}, 3
    s_add_u32 s{sT0}, s{sT0}, s{sT1}
    s_mul_i32 s{sT0}, s{sT0}, 1280
    v_lshrrev_b32 v{vT+4}, 3, v{vL}
    v_mul_u32_u24 v{vT+4}, 1280, v{vT+4}
    v_add_u32 v{vT+4}, s{sT0}, v{vT+4}
    v_and_b32 v{vT+5}, 7, v{vL}
    v_lshrrev_b32 v{vT+6}, 4, v{vL}
    v_xor_b32 v{vT+5}, v{vT+5}, v{vT+6}
    s_and_b32 s{sT0}, s{sR}, 1
    s_lshl_b32 s{sT0}, s{sT0}, 2
    v_xor_b32 v{vT+5}, s{sT0}, v{vT+5}
    v_lshl_add_u32 v{vXs}, v{vT+5}, 4, v{vT+4}
    s_cmp_lt_u32 s{sCB}, 5
    s_movk_i32 s{sT0}, 3072
    s_cselect_b32 s{sT0}, 1280, s{sT0}
    s_cselect_b32 s{sT2}, 0, 5
    s_sub_u32 s{sT2}, s{sCB}, s{sT2}
    s_lshl_b32 s{sT2}, s{sT2}, 8
    v_lshl_add_u32 v{vT+4}, v{vT}, 6, v{vT+3}
    v_add_u32 v{vT+4}, s{sT2}, v{vT+4}
    v_add_u32 v{vT+5}, s{sT1}, v{vT+2}
    v_mad_u32_u24 v{vWs}, v{vT+5}, s{sT0}, v{vT+4}
    v_min_u32 v{vT+4}, 24, v{vT+3}
    v_mad_u32_u24 v{vT+6}, v{vT+5}, 40, v{vT+4}
    v_mov_b32 v{vT+7}, 0
    v_cmp_eq_u32 vcc, 0, v{vT}
    s_lshl_b32 s{sStr64}, s{sT0}, 6
    s_lshl_b32 s{sS32}, s{sT0}, 5
    s_mul_i32 s{WA+2}, s{sT0}, 640
    s_lshl_b32 s{sMx}, s{sR}, 10
    s_mov_b32 s{sI}, 0
    s_mov_b32 s{sSlot}, 0
    s_mov_b32 s{X+2}, {2048*1280}
    s_mov_b32 s{X+3}, 0x00020000
    s_mov_b32 s{WA+3}, 0x00020000
    s_cmp_lt_u32 s{sCB}, 5
    s_waitcnt lgkmcnt(0)
    s_mov_b32 s{X}, s8
    s_mov_b32 s{X+1}, s9
    s_cselect_b32 s{WA}, s10, s60
    s_cselect_b32 s{WA+1}, s11, s61
    v_mov_b32 v{vQb}, s14
    v_mov_b32 v{vQb+1}, s15
    v_mov_b32 v{vQa}, s12
    v_mov_b32 v{vQa+1}, s13
    v_cndmask_b32 v{vQb}, v{vQb}, v{vQa}, vcc
    v_cndmask_b32 v{vQb+1}, v{vQb+1}, v{vQa+1}, vcc
    v_lshl_add_u64 {vr(vQb,2)}, {vr(vT+6,2)}, 0, {vr(vQb,2)}
    v_mov_b32 v8, 2560
    """)
    stamp(a, 1)
    if PROF and 'lacc' in OPT: a("s_waitcnt lgkmcnt(0)\ns_mov_b32 s91, s72\ns_mov_b32 s95, 0\ns_mov_b32 s96, 0\ns_mov_b32 s97, 0")
    a("K1_issue:"); acc(a, 2)
    a(f"""
    s_lshl_b32 s{sT0}, s{sK}, 7
    s_add_u32 m0, s{sSlot}, s{sMx}
    s_mul_i32 s{sT1}, s{sK}, s{sStr64}
    """)
    for i in range(5):
        a(f"buffer_load_dwordx4 v{vXs}, {sr(X,4)}, s{sT0} offen lds\ns_add_u32 m0, m0, 4096\ns_add_u32 s{sT0}, s{sT0}, {32*1280}")
    a(f"""
    s_add_u32 s{sT2}, s{sT1}, s{sS32}
    s_cmp_eq_u32 s{sCB}, 17
    s_cbranch_scc1 K1_ikv
    buffer_load_dwordx4 v{vWs}, {sr(WA,4)}, s{sT1} offen lds
    s_add_u32 m0, m0, 4096
    s_nop 0
    buffer_load_dwordx4 v{vWs}, {sr(WA,4)}, s{sT2} offen lds
    s_add_u32 m0, m0, {4096-128}
    s_nop 0
    buffer_load_dwordx4 v{vWs}, {sr(WA,4)}, s{sT1} offen offset:128 lds
    s_add_u32 m0, m0, 4096
    s_nop 0
    buffer_load_dwordx4 v{vWs}, {sr(WA,4)}, s{sT2} offen offset:128 lds
    K1_i2:
    """); acc(a, 0); a(f"""
    s_add_u32 s{sK}, s{sK}, 1
    s_cmp_eq_u32 s{sK}, 10
    s_cselect_b32 s{sK}, 0, s{sK}
    s_add_u32 s{sSlot}, s{sSlot}, {SLOT}
    s_cmp_eq_u32 s{sSlot}, {4*SLOT}
    s_cselect_b32 s{sSlot}, 0, s{sSlot}
    s_add_u32 s{sI}, s{sI}, 1
    s_cmp_eq_u32 s{sI}, 1
    s_cbranch_scc1 K1_l1
    s_waitcnt vmcnt(9)
    s_barrier
    s_cmp_lg_u32 s{sI}, 10
    s_cbranch_scc1 K1_issue
    s_branch K1_g0
    K1_ikv:
    v_mad_u64_u32 {vr(vQa,2)}, s[58:59], v8, s{sK}, {vr(vQb,2)}
    global_load_lds_dwordx4 {vr(vQa,2)}, off
    s_add_u32 m0, m0, {4096-1280}
    s_nop 0
    global_load_lds_dwordx4 {vr(vQa,2)}, off offset:1280
    s_waitcnt vmcnt(7)
    s_branch K1_i2
    K1_l1:
    s_mov_b32 s{WS}, s6
    s_mov_b32 s{WS+1}, s7
    """)
    a(f"""
    s_cmp_eq_u32 s{sR}, 3
    s_mul_i32 s{sT0}, s{sRB}, 25600
    s_mul_i32 s{sT1}, s{sCB}, 10240
    s_movk_i32 s{sGs}, 2560
    s_cselect_b32 s{sGs}, 1024, s{sGs}
    s_cselect_b32 s{sT0}, s{sT1}, s{sT0}
    s_mov_b32 s{sT1}, {WS_SR}
    s_cselect_b32 s{sT1}, {WS_SC}, s{sT1}
    s_cselect_b32 s{sT2}, 0, s{sR}
    s_add_u32 s{sU}, s{sT0}, s{sT1}
    s_lshl_b32 s{sT2}, s{sT2}, 6
    v_add_u32 v20, s{sT2}, v{vL}
    v_min_u32 v20, 159, v20
    v_lshlrev_b32 v20, 4, v20
    s_mov_b32 s{DB2}, s4
    s_mov_b32 s{DB2+1}, s5
    s_mov_b32 s{DB2+2}, 256
    s_mov_b32 s{DB2+3}, 0x00020000
    v_mov_b32 v22, 0
    s_mul_i32 s62, s{sRB}, {5*96*1024}
    s_lshl_b32 s{sT0}, s{sCB}, 2
    s_add_u32 s{sT0}, s{sT0}, s{sR}
    s_lshl_b32 s{sT1}, s{sT0}, 11
    s_add_u32 s62, s62, s{sT1}
    s_add_u32 s62, s62, {WS_H - 5*8192}
    s_lshl_b32 s63, s{sT0}, 4
    s_add_u32 s63, s63, s{sRB}
    s_lshl_b32 s63, s63, 8
    s_add_u32 s63, s63, {WS_F1}
    s_sub_u32 s{sT0}, s{sCB}, 5
    s_cmp_lt_u32 s{sT0}, 12
    s_cselect_b32 s62, s62, 0
    s_branch K1_issue
    K1_g0:
    """)
    G = 32
    a(f"""
    s_mov_b32 s{sI}, 0
    """)
    a(f"K1_gat:\ns_mov_b32 s{sT0}, s{sU}\nbuffer_load_dword v21, v22, {sr(DB2,4)}, 0 offen sc1")
    for k in range(10):
        a(f"buffer_load_dwordx4 {vr(G+4*k,4)}, v20, {sr(WS,4)}, s{sT0} offen sc1\ns_add_u32 s{sT0}, s{sT0}, s{sGs}")
    a(f"""
    s_cmp_lg_u32 s{sI}, 0
    s_cbranch_scc1 K1_g2
    s_waitcnt vmcnt(11)
    s_barrier
    """)
    a(f"""
    K1_g2:
    s_add_u32 s{sI}, s{sI}, 1
    s_waitcnt vmcnt(0)
    v_cmp_eq_u32 vcc, 0, v21
    v_readfirstlane_b32 s{sN}, v21
    s_nop 0
    v_cndmask_b32 v6, 0, 1, vcc
    """)
    for k in range(10):
        a(f"v_xor_b32 v{G+4*k+1}, v{G+4*k+1}, v21\nv_xor_b32 v{G+4*k+3}, v{G+4*k+3}, v21\nv_or3_b32 v6, v{G+4*k+1}, v{G+4*k+3}, v6")
    a(f"""
    v_cmp_ne_u32 vcc, 0, v6
    s_cbranch_vccz K1_g3
    s_sleep {SLP}
    s_cmp_lt_u32 s{sI}, {SPINMAX}
    s_cbranch_scc1 K1_gat
    K1_g3:
    """)
    for k in range(1, 10):
        a(f"v_add_f32 v{G}, v{G}, v{G+4*k}\nv_add_f32 v{G+2}, v{G+2}, v{G+4*k+2}")
    a(f"""
    s_cmp_eq_u32 s{sR}, 3
    s_cbranch_scc1 K1_gc
    v_mul_f32 v{G}, {f32(1.0/640)}, v{G}
    v_mul_f32 v{G+2}, {f32(1.0/640)}, v{G+2}
    v_cvt_pk_bf16_f32 v{G+4}, -v{G}, -v{G}
    v_fma_f32 v{G+2}, -v{G}, v{G}, v{G+2}
    v_max_f32 v{G+2}, 0, v{G+2}
    """)
    round_bf16(a, G+2, G+2)
    a(f"v_add_f32 v{G+2}, {f32(1e-5)}, v{G+2}")
    round_bf16(a, G+2, G+2)
    a(f"v_sqrt_f32 v{G+6}, v{G+2}\nv_mov_b32 v{G+5}, 0")
    round_bf16(a, G+6, G+6)
    a(f"""
    v_rcp_f32 v{G+7}, v{G+6}
    v_add_u32 v5, {XB}, v20
    s_nop 0
    ds_write_b128 v5, {vr(G+4,4)}
    s_branch K1_gd
    K1_gc:
    v_and_b32 v{G+1}, 0xffff0000, v{G}
    v_and_b32 v{G+3}, 0xffff0000, v{G+2}
    v_sub_f32 v{G}, v{G}, v{G+1}
    v_sub_f32 v{G+2}, v{G+2}, v{G+3}
    v_cvt_pk_bf16_f32 v{G+4}, v{G+1}, v{G}
    v_cvt_pk_bf16_f32 v{G+5}, v{G+3}, v{G+2}
    v_lshlrev_b32 v5, 3, v{vL}
    v_add_u32 v5, {XFC}, v5
    ds_write_b64 v5, {vr(G+4,2)}
    v_mov_b32 v5, {XN}
    ds_write_b32 v5, v21
    K1_gd:
    """)
    a("s_waitcnt lgkmcnt(0)\ns_barrier\ns_branch K2_G")
    vN = 2
    a(f"""
    K1_C:
    """)
    common2()
    a(f"""
    s_lshr_b32 s{sG}, s{sW}, 2
    s_mov_b32 s{sK0}, s{sK}
    s_mov_b32 s{DBG+2}, 256
    s_mov_b32 s{DBG+3}, 0x00020000
    v_mov_b32 v{vN+1}, 0
    v_and_b32 v{vT+4}, 31, v{vL}
    v_bfe_u32 v{vT+5}, v{vL}, 1, 3
    v_lshlrev_b32 v{vT+4}, 7, v{vT+4}
    s_waitcnt lgkmcnt(0)
    s_mov_b32 s{WS}, s6
    s_mov_b32 s{WS+1}, s7
    s_mov_b32 s{DBG}, s4
    s_mov_b32 s{DBG+1}, s5
    s_lshl_b32 s{sT1}, s{sW}, 12
    v_lshlrev_b32 v{vT+6}, 2, v{vT}
    v_xor_b32 v{vT+6}, v{vT+6}, v{vT+5}
    v_lshl_add_u32 v4, v{vT+6}, 4, v{vT+4}
    v_add_u32 v4, s{sT1}, v4
    v_xor_b32 v5, 16, v4
    v_xor_b32 v6, 32, v4
    v_xor_b32 v7, 48, v4
    v_xor_b32 v{vT+5}, v{vT+5}, v{vT}
    s_mul_i32 s{sT1}, s{sG}, {3*4096}
    v_add_u32 v{vT+4}, s{sT1}, v{vT+4}
    """)
    for i in range(4):
        a(f"v_xor_b32 v{vT+6}, {2*i}, v{vT+5}\nv_lshl_add_u32 v{vAx+i}, v{vT+6}, 4, v{vT+4}")
    a(f"""
    s_mov_b32 s{sI}, 1
    s_mov_b32 s{sDelta}, {SLOT}
    s_sub_u32 s{sT0}, s{sW}, 2
    s_cmp_lt_u32 s{sT0}, 4
    s_cselect_b32 s{sIdle}, 1, 0
    s_cmp_eq_u32 s{sCB}, 17
    s_cselect_b32 s{sIdle}, s{sIdle}, 0
    s_mul_i32 s{sHr}, s{sCB}, {65536 // RW + 1}
    s_lshr_b32 s{sHr}, s{sHr}, 16
    s_add_u32 s{sHr}, s{sHr}, 2
    s_cmp_lt_u32 s{sCB}, 10
    s_cselect_b32 s{sHr}, s{sHr}, 0
    s_cmp_lt_u32 s{sW}, 5
    s_cselect_b32 s{sHr}, s{sHr}, 0
    s_mul_i32 s{sHc}, s{sRB}, {65536 // RW + 1}
    s_lshr_b32 s{sHc}, s{sHc}, 16
    s_add_u32 s{sHc}, s{sHc}, 2
    s_cmp_lt_u32 s{sRB}, 10
    s_cselect_b32 s{sHc}, s{sHc}, 0
    """)
    for i in range(48): a(f"v_mov_b32 v{AC+i}, 0")
    a(f"s_cmp_lg_u32 s{sIdle}, 0\ns_cbranch_scc1 K1_idle\ns_barrier")
    stamp(a, 1)
    a(f"buffer_load_dword v{vN}, v{vN+1}, {sr(DBG,4)}, 0 offen sc1")
    KR = dict(fW=fW, fX=fX, AC=AC, vAx=vAx, vAw=vAw, sDelta=sDelta)
    vFl = vT + 7
    def cloop(T):
        first, ba, bb, tail = kbody.streamC(KR, T)
        a(f"K1_start{T}:")
        for l in first: a(l)
        a(f"s_branch K1_mid{T}\nK1_comp{T}:\ns_barrier")
        if 'bt' in OPT: a(f"s_memtime s[92:93]\ns_waitcnt lgkmcnt(0)\ns_sub_u32 s92, s92, s70\nv_mov_b32 v22, s92\nv_cmp_eq_u32 vcc, s{sI}, v0\ns_nop 1\nv_cndmask_b32 v23, v23, v22, vcc")
        a(f"s_cmp_eq_u32 s{sI}, s{sHr}\ns_cbranch_scc1 K1_hr\nK1_hr{T}:")
        if T == 2: a(f"s_cmp_eq_u32 s{sI}, s{sHc}\ns_cbranch_scc1 K1_hc\nK1_hc2:")
        for l in ba: a(l)
        a(f"K1_mid{T}:")
        for l in bb: a(l)
        a(f"""
        s_and_b32 s{sT0}, s{sI}, 3
        s_cmp_eq_u32 s{sT0}, 3
        s_mov_b32 s{sDelta}, {SLOT}
        s_cselect_b32 s{sDelta}, {(-3*SLOT) & 0xffffffff}, s{sDelta}
        s_add_u32 s{sI}, s{sI}, 1
        s_cmp_lg_u32 s{sI}, 11
        s_waitcnt lgkmcnt(0)
        s_cbranch_scc1 K1_comp{T}
        """)
        a("s_barrier")
        for l in tail: a(l)
    a(f"s_cmp_lg_u32 s{sG}, 0\ns_cbranch_scc0 K1_start3")
    cloop(2)
    a(f"""
    s_branch K1_cdone
    K1_idle:
    s_barrier
    s_add_u32 s{sI}, s{sI}, 1
    s_cmp_lg_u32 s{sI}, 12
    s_cbranch_scc1 K1_idle
    s_branch K1_cdone
    """)
    cloop(3)
    a("K1_cdone:")
    stamp(a, 2)
    if 'bt' in OPT:
        a(f"""
        s_lshl_b32 s92, s2, 4
        s_add_u32 s92, s92, s{sW}
        s_lshl_b32 s92, s92, 6
        s_add_u32 s92, s92, {WS_PROF + 0x40000}
        v_lshlrev_b32 v22, 2, v0
        s_mov_b64 exec, 0xffff
        buffer_store_dword v23, v22, {sr(WS,4)}, s92 offen
        s_mov_b64 exec, -1
        """)
    ST, vCA, E, PK = 144, 20, 112, 128
    vMq, vNe = 24, 30
    a(f"""
    v_and_b32 v3, 31, v{vL}
    s_mul_i32 s{sT0}, s{sG}, {96*16}
    s_add_u32 s{sT0}, s{sT0}, {XB}
    v_lshl_add_u32 v4, v3, 4, s{sT0}
    s_lshl_b32 s{sT0}, s{sR}, 7
    s_add_u32 s{sT0}, s{sT0}, {XFC}
    v_lshl_add_u32 v5, v3, 2, s{sT0}
    v_lshlrev_b32 v1, 4, v{vL}
    v_mov_b32 v{vCA+1}, 0
    s_mul_i32 s{sRT}, s{sRB}, 5
    s_mul_i32 s{sT0}, s{sG}, 3
    s_add_u32 s{sRT}, s{sRT}, s{sT0}
    s_sub_u32 s{sU}, 3, s{sG}
    s_add_u32 s{sU}, s{sU}, s{sRT}
    s_min_u32 s{sU}, s{sU}, 64
    s_lshl_b32 s{sT0}, s{sCB}, 13
    s_lshl_b32 s{sT1}, s{sR}, 11
    s_add_u32 s{sMx}, s{sT0}, s{sT1}
    v_cmp_gt_u32 vcc, 32, v{vL}
    v_mov_b32 v6, {XN}
    """)
    a(f"""
    ds_read_b32 v6, v6
    ds_read_b32 v{vCA}, v5
    ds_read_b128 {vr(ST,4)}, v4
    ds_read_b128 {vr(ST+4,4)}, v4 offset:512
    ds_read_b128 {vr(ST+8,4)}, v4 offset:1024
    s_mov_b32 s{sI}, 0
    s_waitcnt lgkmcnt(3)
    v_cndmask_b32 v{vCA}, 0, v{vCA}, vcc
    v_readfirstlane_b32 s{sN}, v6
    s_sub_u32 s{sT0}, s{sCB}, 5
    s_cmp_lt_u32 s{sT0}, 12
    s_waitcnt lgkmcnt(0)
    v_mfma_f32_32x32x8_bf16 {vr(AC,16)}, {vr(vCA,2)}, {vr(ST,2)}, {vr(AC,16)}
    v_mfma_f32_32x32x8_bf16 {vr(AC+16,16)}, {vr(vCA,2)}, {vr(ST+4,2)}, {vr(AC+16,16)}
    v_mfma_f32_32x32x8_bf16 {vr(AC+32,16)}, {vr(vCA,2)}, {vr(ST+8,2)}, {vr(AC+32,16)}
    s_cbranch_scc0 K1_lin
    s_mul_i32 s{sT3}, s{sR}, 10240
    s_mul_i32 s{sT0}, s{sG}, 6144
    s_add_u32 s{sT3}, s{sT3}, s{sT0}
    s_add_u32 s{sT3}, s{sT3}, {HS}
    v_add_u32 v1, s{sT3}, v1
    s_nop 3
    K1_epiH:
    v_mul_f32 v{vNe}, {f32(-LOG2E)}, v{ST+3}
    """)
    for i in range(8): a(f"v_pk_mul_f32 {vr(E+2*i,2)}, {vr(AC+2*i,2)}, {vr(vNe,2)} op_sel_hi:[1,0]")
    for i in range(16): a(f"v_exp_f32 v{E+i}, v{E+i}")
    for i in range(8): a(f"v_pk_fma_f32 {vr(E+2*i,2)}, {vr(E+2*i,2)}, {vr(ST+2,2)}, {vr(ST+2,2)} op_sel_hi:[1,0,0]")
    for i in range(16): a(f"v_rcp_f32 v{E+i}, v{E+i}")
    for i in range(8): a(f"v_pk_mul_f32 {vr(E+2*i,2)}, {vr(E+2*i,2)}, {vr(AC+2*i,2)}")
    for i in range(8): a(f"v_cvt_pk_bf16_f32 v{PK+i}, v{E+2*i}, v{E+2*i+1}")
    a(f"""
    ds_write_b128 v1, {vr(PK,4)}
    ds_write_b128 v1, {vr(PK+4,4)} offset:1024
    v_add_u32 v1, 2048, v1
    s_add_u32 s{sRT}, s{sRT}, 1
    s_cmp_eq_u32 s{sRT}, s{sU}
    s_cbranch_scc1 {"K1_hd" if PROF else "K2_A"}
    s_add_u32 s{sI}, s{sI}, 1
    s_cmp_eq_u32 s{sI}, 2
    s_cbranch_scc1 K1_e2
    """)
    for i in range(8): a(f"v_pk_mov_b32 {vr(AC+2*i,2)}, {vr(AC+16+2*i,2)}, {vr(AC+16+2*i,2)} op_sel:[0,1]")
    a(f"v_pk_mov_b32 {vr(ST+2,2)}, {vr(ST+6,2)}, {vr(ST+6,2)} op_sel:[0,1]\ns_branch K1_epiH\nK1_e2:")
    for i in range(8): a(f"v_pk_mov_b32 {vr(AC+2*i,2)}, {vr(AC+32+2*i,2)}, {vr(AC+32+2*i,2)} op_sel:[0,1]")
    a(f"v_pk_mov_b32 {vr(ST+2,2)}, {vr(ST+10,2)}, {vr(ST+10,2)} op_sel:[0,1]\ns_branch K1_epiH")
    if PROF:
        a("K1_hd:"); stamp(a, 3); a("s_branch K2_A")
    PQ = 96
    a(f"""
    K1_lin:
    s_cmp_lg_u32 s{sIdle}, 0
    s_cbranch_scc1 K2_A
    s_cmp_eq_u32 s{sCB}, 17
    s_mov_b32 s{sK}, {f32(20 ** -0.5 * LOG2E)}
    s_cselect_b32 s{sK}, 1.0, s{sK}
    v_mul_f32 v{vMq}, s{sK}, v{ST+3}
    v_mul_f32 v{vMq+2}, s{sK}, v{ST+7}
    v_mul_f32 v{vMq+4}, s{sK}, v{ST+11}
    s_mul_i32 s{sT3}, s{sRT}, 40960
    s_add_u32 s{sT3}, s{sT3}, s{sMx}
    s_cmp_eq_u32 s{sCB}, 17
    s_cbranch_scc1 K1_kv
    """)
    for j in range(3):
        for i in range(16): a(f"v_mul_f32 v{AC+16*j+i}, v{AC+16*j+i}, v{vMq+2*j}")
        for i in range(8): a(f"v_cvt_pk_bf16_f32 v{PQ+8*j+i}, v{AC+16*j+2*i}, v{AC+16*j+2*i+1}")
        a(f"""
        buffer_store_dwordx4 {vr(PQ+8*j,4)}, v1, {sr(WS,4)}, s{sT3} offen sc1
        buffer_store_dwordx4 {vr(PQ+8*j+4,4)}, v1, {sr(WS,4)}, s{sT3} offen offset:1024 sc1
        """)
        if j < 2:
            a(f"""
            s_add_u32 s{sT3}, s{sT3}, 40960
            s_add_u32 s{sT0}, s{sRT}, {j+1}
            s_cmp_lt_u32 s{sT0}, s{sU}
            s_cselect_b32 s{sT3}, s{sT3}, {WS_END}
            """)
    a(f"""
    s_branch K1_done
    K1_kv:
    """)
    for j in range(3):
        for i in range(12): a(f"v_mul_f32 v{AC+16*j+i}, v{AC+16*j+i}, v{vMq+2*j}")
        for i in range(6): a(f"v_cvt_pk_bf16_f32 v{PQ+8*j+i}, v{AC+16*j+2*i}, v{AC+16*j+2*i+1}")
    a(f"""
    v_lshrrev_b32 v5, 5, v{vL}
    s_bitcmp1_b32 s{sR}, 0
    s_cbranch_scc1 K1_vst
    v_mul_u32_u24 v4, 5120, v5
    v_lshl_add_u32 v4, v3, 4, v4
    v_lshlrev_b32 v5, 4, v3
    """)
    def kvbase(j):
        a(f"""
        s_add_u32 s{sT2}, s{sRT}, {j}
        s_lshr_b32 s{sT0}, s{sT2}, 2
        s_mul_i32 s{sT0}, s{sT0}, 10240
        s_add_u32 s{sT0}, s{sT0}, {WS_KV}
        s_cmp_lt_u32 s{sT2}, s{sU}
        s_cselect_b32 s{sT0}, s{sT0}, {WS_END}
        s_and_b32 s{sT2}, s{sT2}, 3
        """)
    for j in range(3):
        kvbase(j)
        a(f"""
        s_lshl_b32 s{sT1}, s{sT2}, 9
        s_add_u32 s{sT1}, s{sT1}, s{sT0}
        buffer_store_dwordx4 {vr(PQ+8*j,4)}, v4, {sr(WS,4)}, s{sT1} offen sc1
        s_and_b32 s{sT1}, s{sT2}, 1
        s_mul_i32 s{sT1}, s{sT1}, 5120
        s_add_u32 s{sT0}, s{sT0}, s{sT1}
        s_lshr_b32 s{sT1}, s{sT2}, 1
        s_lshl_b32 s{sT1}, s{sT1}, 3
        s_add_u32 s{sT0}, s{sT0}, s{sT1}
        s_mov_b32 exec_lo, 0
        buffer_store_dwordx2 {vr(PQ+8*j+4,2)}, v5, {sr(WS,4)}, s{sT0} offen offset:2048 sc1
        s_mov_b32 exec_lo, -1
        """)
    a(f"""
    s_branch K1_done
    K1_vst:
    s_lshl_b32 s{sT3}, s{sG}, 12
    s_add_u32 s{sT3}, s{sT3}, {XQ+2048}
    v_bfe_u32 v4, v3, 2, 1
    v_mul_u32_u24 v4, 640, v4
    v_lshl_add_u32 v4, v5, 6, v4
    v_lshrrev_b32 v5, 4, v3
    v_mul_u32_u24 v5, 320, v5
    v_add_u32 v4, v4, v5
    v_bfe_u32 v5, v3, 3, 1
    v_lshl_add_u32 v4, v5, 3, v4
    v_and_b32 v5, 3, v3
    v_lshl_add_u32 v4, v5, 1, v4
    v_add_u32 v4, s{sT3}, v4
    v_add_u32 v5, s{sT3}, v1
    """)
    for jj in range(3):
        if jj == 2: a("s_mov_b32 exec_lo, 0")
        for j in range(3):
            o = 1280 * j + 128 * jj - (64 if jj == 2 else 0); p = PQ + 8 * j + 2 * jj
            a(f"""
            ds_write_b16 v4, v{p} offset:{o}
            ds_write_b16_d16_hi v4, v{p} offset:{o+16}
            ds_write_b16 v4, v{p+1} offset:{o+32}
            ds_write_b16_d16_hi v4, v{p+1} offset:{o+48}
            """)
        a("s_waitcnt lgkmcnt(0)")
    a("s_mov_b32 exec_lo, -1\ns_mov_b32 exec_hi, 0xff")
    for j in range(6): a(f"ds_read_b128 {vr(AC+4*j,4)}, v5 offset:{640*j}")
    for j in range(3):
        kvbase(j)
        a(f"""
        s_mul_i32 s{sT1}, s{sT2}, 640
        s_add_u32 s{sT0}, s{sT0}, s{sT1}
        s_add_u32 s{sT1}, s{sT0}, 5120
        s_waitcnt lgkmcnt({4-2*j})
        buffer_store_dwordx4 {vr(AC+8*j,4)}, v1, {sr(WS,4)}, s{sT0} offen offset:2560 sc1
        buffer_store_dwordx4 {vr(AC+8*j+4,4)}, v1, {sr(WS,4)}, s{sT1} offen offset:2560 sc1
        """)
    a("s_mov_b32 exec_hi, -1\ns_branch K1_done")
    def hook_head():
        a(f"""
        s_sub_u32 s{sT0}, s{sI}, 1
        s_add_u32 s{sT1}, s{sT0}, s{sK0}
        s_cmp_eq_u32 s{sT1}, 10
        s_cselect_b32 s{sT1}, 0, s{sT1}
        """)
    def nonce(lab):
        a(f"""
        s_mov_b32 s{sT2}, 0
        {lab}:
        s_waitcnt vmcnt(0)
        v_readfirstlane_b32 s{sN}, v{vN}
        s_add_u32 s{sT2}, s{sT2}, 1
        s_cmp_lg_u32 s{sN}, 0
        s_cbranch_scc1 {lab}x
        buffer_load_dword v{vN}, v{vN+1}, {sr(DBG,4)}, 0 offen sc1
        s_cmp_lt_u32 s{sT2}, {SPINMAX}
        s_cbranch_scc1 {lab}
        {lab}x:
        """)
    a("K1_hr:"); hook_head()
    a(f"s_and_b32 s{sT0}, s{sT0}, 3\ns_mul_i32 s{sT0}, s{sT0}, {SLOT}")
    for i in range(4): a(f"v_add_u32 v{4+i}, s{sT0}, v{4+i}\nds_read_b128 {vr(144+4*i,4)}, v{4+i}")
    a(f"""
    v_mov_b32 v4, 0
    v_mov_b32 v6, 0
    s_mul_i32 s{sT0}, s{sRB}, 10
    s_add_u32 s{sT0}, s{sT0}, s{sT1}
    s_mul_i32 s{sT0}, s{sT0}, 2560
    s_lshl_b32 s{sT1}, s{sW}, 9
    s_add_u32 s{sT0}, s{sT0}, s{sT1}
    s_add_u32 s{sT0}, s{sT0}, {WS_SR}
    """)
    nonce("K1_n1")
    a("s_waitcnt lgkmcnt(0)")
    for i in range(16): a(f"v_dot2c_f32_bf16 v4, s{sOnes}, v{144+i}\nv_dot2c_f32_bf16 v6, v{144+i}, v{144+i}")
    a(f"""
    v_mov_b32 v5, v{vN}
    v_mov_b32 v7, v{vN}
    v_lshlrev_b32 v144, 4, v{vL}
    v_mov_b32 v8, v4
    v_mov_b32 v9, v6
    s_cmp_eq_u32 s{sG}, 0
    s_nop 0
    v_permlane32_swap_b32 v8, v4
    v_permlane32_swap_b32 v9, v6
    v_add_f32 v4, v4, v8
    v_add_f32 v6, v6, v9
    s_mov_b32 exec_hi, 0
    buffer_store_dwordx4 {vr(4,4)}, v144, {sr(WS,4)}, s{sT0} offen sc1
    s_mov_b32 exec_hi, -1
    s_cbranch_scc1 K1_hr3
    s_branch K1_hr2
    K1_hc:
    """)
    for k in range(4):
        for q in range(2): a(f"ds_read_b64_tr_b16 {vr(144+4*k+2*q,2)}, v{vAw} offset:{2048*k+256*q}")
    hook_head()
    a(f"""
    v_mov_b32 v160, 0
    s_mul_i32 s{sT0}, s{sCB}, 10
    s_add_u32 s{sT0}, s{sT0}, s{sT1}
    s_lshl_b32 s{sT0}, s{sT0}, 10
    s_add_u32 s{sT0}, s{sT0}, {WS_SC}
    s_lshl_b32 s{sT1}, s{sR}, 8
    s_add_u32 s{sT0}, s{sT0}, s{sT1}
    s_xor_b32 s{sT3}, s{sT0}, 512
    s_cmp_eq_u32 s{sCB}, 17
    s_cselect_b32 s{sT3}, s{sT3}, {WS_END}
    """)
    nonce("K1_n2")
    a("s_waitcnt lgkmcnt(0)")
    for i in range(16): a(f"v_dot2c_f32_bf16 v160, s{sOnes}, v{144+i}")
    a(f"""
    v_mov_b32 v161, v{vN}
    v_lshlrev_b32 v144, 3, v{vL}
    s_nop 0
    v_mov_b32 v162, v160
    s_nop 1
    v_permlane32_swap_b32 v162, v160
    v_add_f32 v160, v160, v162
    s_mov_b32 exec_hi, 0
    buffer_store_dwordx2 {vr(160,2)}, v144, {sr(WS,4)}, s{sT0} offen sc1
    buffer_store_dwordx2 {vr(160,2)}, v144, {sr(WS,4)}, s{sT3} offen sc1
    s_mov_b32 exec_hi, -1
    s_branch K1_hc2
    """)
    sJ, sL, sPst = 34, 35, 36
    WP = 24; vPs = 2
    a(f"""
    K1_aux:
    s_memrealtime s[66:67]
    v_bfe_u32 v{vT+4}, v{vL}, 2, 2
    v_bfe_u32 v{vT+5}, v{vL}, 4, 1
    v_lshl_add_u32 v{vT+4}, v{vT+4}, 1, v{vT+5}
    v_lshl_add_u32 v{vT+4}, v{vT+4}, 2, v{vT+1}
    v_lshlrev_b32 v{vCom}, 3, v{vT+4}
    s_lshl_b32 s{sT0}, s{sT0}, 1
    s_add_u32 s{sT0}, s{sT0}, s{sT1}
    s_sub_u32 s{sT0}, s{sT0}, 30
    s_sub_u32 s{sT2}, s{sT2}, {234-16}
    s_cmp_ge_u32 s{sT1}, 30
    s_cselect_b32 s{sT0}, s{sT0}, s{sT2}
    s_mul_i32 s{sJ}, s{sT0}, 12
    s_add_u32 s{sJ}, s{sJ}, s{sW}
    s_mul_i32 s{sL}, s{sW}, 12288
    v_lshl_add_u32 v{vT+3}, v{vT}, 6, v{vT+3}
    v_lshrrev_b32 v{vT+6}, 2, v{vT+2}
    v_and_b32 v{vT+7}, 3, v{vT+2}
    s_mov_b32 m0, s{sL}
    s_mov_b32 s{WP+3}, 0x00020000
    s_mov_b32 s{sI}, s{sJ}
    s_waitcnt lgkmcnt(0)
    s_mov_b32 s{WS}, s6
    s_mov_b32 s{WS+1}, s7
    s_mov_b32 s{DBG}, s4
    s_mov_b32 s{DBG+1}, s5
    s_mov_b32 s{DBG+2}, 256
    s_mov_b32 s{DBG+3}, 0x00020000
    s_lshl_b32 s{sU}, s{sT0}, 7
    s_add_u32 s{sU}, s{sU}, {WS_F1 + 72*4096}
    s_mov_b64 s[58:59], 1
    s_cmp_lg_u32 s{sJ}, 0
    s_cbranch_scc1 K1_a1
    s_or_b32 s66, s66, 1
    v_mov_b32 v4, s66
    v_mov_b32 v5, 0
    s_mov_b64 exec, 1
    buffer_store_dword v4, v5, {sr(DBG,4)}, 0 offen sc1
    s_mov_b64 exec, -1
    K1_a1:
    s_mul_i32 s{sT0}, s{sI}, 6554
    s_lshr_b32 s{sT0}, s{sT0}, 16
    s_mul_i32 s{sT1}, s{sT0}, 10
    s_sub_u32 s{sT1}, s{sI}, s{sT1}
    s_lshl_b32 s{sT1}, s{sT1}, 7
    s_sub_u32 s{sT2}, s{sT0}, 96
    s_mul_i32 s{sT3}, s{sT2}, 205
    s_lshr_b32 s{sT3}, s{sT3}, 10
    s_mul_i32 s55, s{sT3}, 5
    s_sub_u32 s55, s{sT2}, s55
    s_mul_i32 s{sT3}, s{sT3}, 80
    s_mul_i32 s56, s55, 20
    s_cmp_eq_u32 s55, 4
    s_cselect_b32 s56, 16, s56
    s_cselect_b32 s55, 1, 0
    s_add_u32 s{sT3}, s{sT3}, s56
    s_lshl_b32 s{sT2}, s{sT0}, 4
    s_cmp_lt_u32 s{sT0}, 96
    s_cselect_b32 s{sT3}, s{sT2}, s{sT3}
    s_cselect_b32 s55, 0, s55
    s_cselect_b32 s{WP}, s62, s16
    s_cselect_b32 s{WP+1}, s63, s17
    s_mov_b32 s{WP+2}, {640*1280}
    s_cselect_b32 s{WP+2}, {1536*1280}, s{WP+2}
    s_mul_i32 s{sT3}, s{sT3}, 1280
    s_add_u32 s56, s{sT3}, s{sT1}
    s_cmp_eq_u32 s55, 0
    s_cselect_b32 s{sT2}, 4, 40
    s_movk_i32 s57, {20*1280}
    s_cselect_b32 s57, {8*1280}, s57
    s_add_u32 s57, s57, s56
    v_mad_u32_u24 v{vPs}, v{vT+6}, s{sT2}, v{vT+7}
    v_mul_u32_u24 v{vPs}, 1280, v{vPs}
    v_add_u32 v{vPs}, v{vPs}, v{vT+3}
    buffer_load_dwordx4 v{vPs}, {sr(WP,4)}, s56 offen lds
    s_add_u32 m0, m0, 1024
    s_add_u32 s{sI}, s{sI}, 264
    buffer_load_dwordx4 v{vPs}, {sr(WP,4)}, s57 offen lds
    s_add_u32 m0, m0, 1024
    s_cmp_lt_u32 s{sI}, 1360
    s_cbranch_scc1 K1_a1
    v_lshl_add_u32 v4, v{vT}, 8, v{vCom}
    v_add_u32 v4, s{sL}, v4
    v_and_b32 v5, 15, v{vL}
    v_lshlrev_b32 v5, 4, v5
    v_lshl_add_u32 v5, v{vT}, 8, v5
    v_lshl_add_u32 v5, v{vT+5}, 9, v5
    s_lshl_b32 s{sPst}, s{sJ}, 11
    s_add_u32 s{sPst}, s{sPst}, {WS_WP}
    s_waitcnt vmcnt(0)
    K1_a2:
    ds_read_b64_tr_b16 {vr(32,2)}, v4
    ds_read_b64_tr_b16 {vr(34,2)}, v4 offset:1024
    ds_read_b64_tr_b16 {vr(36,2)}, v4 offset:512
    ds_read_b64_tr_b16 {vr(38,2)}, v4 offset:1536
    v_add_u32 v4, 2048, v4
    s_add_u32 s{sJ}, s{sJ}, 264
    s_waitcnt lgkmcnt(0)
    buffer_store_dwordx4 {vr(32,4)}, v5, {sr(WS,4)}, s{sPst} offen sc1
    buffer_store_dwordx4 {vr(36,4)}, v5, {sr(WS,4)}, s{sPst} offen offset:1024 sc1
    s_add_u32 s{sPst}, s{sPst}, {264*2048}
    s_cmp_lt_u32 s{sJ}, 1360
    s_cbranch_scc1 K1_a2
    v_mov_b32 v5, 0
    s_mov_b32 s{sT3}, 0
    K1_a3:
    buffer_load_dword v4, v5, {sr(DBG,4)}, 0 offen sc1
    s_add_u32 s{sT3}, s{sT3}, 1
    s_waitcnt vmcnt(0)
    v_readfirstlane_b32 s{sN}, v4
    s_cmp_gt_u32 s{sT3}, {SPINMAX}
    s_cbranch_scc1 K1_a4
    s_cmp_eq_u32 s{sN}, 0
    s_cbranch_scc1 K1_a3
    K1_a4:
    s_mov_b32 s62, 0
    s_barrier
    s_cmp_ge_u32 s{sW}, 8
    s_cbranch_scc1 K2_G
    s_cmp_lg_u32 s{sW}, 0
    s_cbranch_scc1 K2_A
    s_branch K1_flag
    K1_done:
    s_lshl_b32 s{sU}, s{sCB}, 2
    s_add_u32 s{sU}, s{sU}, s{sR}
    s_lshl_b32 s{sU}, s{sU}, 5
    s_lshl_b32 s{sT0}, s{sRB}, 1
    s_add_u32 s{sU}, s{sU}, s{sT0}
    s_add_u32 s{sU}, s{sU}, s{sG}
    s_lshl_b32 s{sU}, s{sU}, 7
    s_add_u32 s{sU}, s{sU}, {WS_F1}
    s_mov_b64 s[58:59], 1
    s_cmp_lg_u32 s{sCB}, 17
    s_cbranch_scc1 K1_flag
    v_mov_b32 v4, 1
    v_mov_b32 v5, 0
    {"s_memtime s[72:73]" if PROF and 'kvs' in OPT else ""}
    s_mov_b64 exec, 1
    s_waitcnt vmcnt(0)
    {"s_memtime s[76:77]" if PROF and 'kvs' in OPT else ""}
    buffer_atomic_add v4, v5, {sr(DBG,4)}, 0 offen offset:128 sc0
    s_mov_b32 s{sU}, {WS_FK}
    s_mov_b64 s[58:59], -1
    s_waitcnt vmcnt(0)
    {"s_memtime s[90:91]" if PROF and 'kvs' in OPT else ""}
    v_readfirstlane_b32 s{sT0}, v4
    s_mov_b64 exec, -1
    s_mul_hi_u32 s{sT1}, s{sT0}, {(1 << 32) // 52 + 1}
    s_mul_i32 s{sT1}, s{sT1}, 52
    s_sub_u32 s{sT0}, s{sT0}, s{sT1}
    s_cmp_lg_u32 s{sT0}, 51
    s_cbranch_scc1 K2_A
    """)
    'kvs' in OPT or stamp(a, 3)
    setflag(a, sU, WS, 4, 5, '-1')
    a("s_branch K2_A\nK1_flag:")
    stamp(a, 3)
    a(f"s_mov_b32 s64, s{sU}\ns_branch K2_A2")

def tile_ids(a, sRB, sNB, sT0):
    if 'map84' not in OPT:
        a(f"""
        s_and_b32 s{sT0}, s2, 7
        s_lshl_b32 s{sRB}, s{sT0}, 2
        s_bfe_u32 s{sT0}, s2, 0x20003
        s_add_u32 s{sRB}, s{sRB}, s{sT0}
        s_lshr_b32 s{sNB}, s2, 5
        """)
        return
    a(f"""
    s_and_b32 s{sT0}, s2, 3
    s_lshl_b32 s{sRB}, s{sT0}, 3
    s_bfe_u32 s{sT0}, s2, 0x30003
    s_add_u32 s{sRB}, s{sRB}, s{sT0}
    s_bfe_u32 s{sT0}, s2, 0x10002
    s_lshl_b32 s{sNB}, s{sT0}, 2
    s_lshr_b32 s{sT0}, s2, 6
    s_add_u32 s{sNB}, s{sNB}, s{sT0}
    """)
def wlane(a, vL, vW, vW2, t):
    a(f"""
    v_and_b32 v{vW2}, 15, v{vL}
    v_lshlrev_b32 v{vW2}, 4, v{vW2}
    v_lshrrev_b32 v{t}, 5, v{vL}
    v_lshl_add_u32 v{vW2}, v{t}, 8, v{vW2}
    v_bfe_u32 v{t}, v{vL}, 4, 1
    v_lshl_add_u32 v{vW}, v{t}, 9, v{vW2}
    {"" if 'nozp' in OPT else f"v_lshl_add_u32 v{vW2}, v{t}, 30, v{vW2}"}
    """)

def gen_k2(a):
    sW, sR, sG, sRB, sCB, sHD, sRT = 32, 33, 34, 35, 36, 37, 38
    sI, sT0, sT1, sT2, sSrc, sVm, sSeg, sT3 = 39, 40, 41, 42, 43, 44, 52, 53
    WS, X, OUT = 28, 20, 24
    vL, vA, vD = 0, 1, 2
    QM, QT, KM, KT, V, P, O, S = 4, 8, 12, 20, 24, 40, 56, 72
    R = dict(vA=vA, QM=QM, QT=QT, KM=KM, KT=KT, V=V, P=P, O=O, S=S)
    def aids():
        a(f"""
        s_and_b32 s{sT0}, s2, 3
        s_lshl_b32 s{sRB}, s{sT0}, 2
        s_bfe_u32 s{sT0}, s2, 0x20003
        s_add_u32 s{sRB}, s{sRB}, s{sT0}
        s_bfe_u32 s{sT0}, s2, 0x10002
        s_lshl_b32 s{sCB}, s{sT0}, 3
        s_lshr_b32 s{sT0}, s2, 5
        s_add_u32 s{sCB}, s{sCB}, s{sT0}
        s_and_b32 s{sR}, s{sW}, 3
        s_lshl_b32 s{sRT}, s{sRB}, 2
        s_add_u32 s{sRT}, s{sRT}, s{sR}
        v_lshlrev_b32 v{vD}, 4, v{vL}
        """)
    a(f"K2_A:\ns_mov_b32 s64, {WS_END}\ns_mov_b64 s[58:59], 1\nK2_A2:"); aids()
    a(f"""
    s_lshr_b32 s{sG}, s{sW}, 2
    s_lshl_b32 s{sHD}, s{sCB}, 1
    s_and_b32 s{sT1}, s{sHD}, 2
    s_add_u32 s{sHD}, s{sHD}, s{sG}
    s_mul_i32 s{sT2}, s{sG}, 5
    s_add_u32 s{sT1}, s{sT1}, s{sT2}
    s_mul_i32 s{sT2}, s{sR}, 3072
    s_add_u32 s{sT2}, s{sT2}, {XQ}
    v_and_b32 v{vA}, 31, v{vL}
    v_lshlrev_b32 v{vA}, 4, v{vA}
    v_lshrrev_b32 v3, 5, v{vL}
    v_add_u32 v{P}, s{sT1}, v3
    v_add_u32 v{P+1}, 2, v{P}
    s_add_u32 s{sT1}, s{sT1}, 4
    v_mov_b32 v{P+2}, s{sT1}
    v_add_u32 v{P+3}, s{sT2}, v{vA}
    """)
    for i in range(3):
        a(f"""
        v_lshrrev_b32 v{P+4}, 2, v{P+i}
        v_lshl_add_u32 v{P+5}, v{P+4}, 10, v{P+3}
        v_and_b32 v{P+4}, 1, v{P+i}
        v_lshl_add_u32 v{P+5}, v{P+4}, 9, v{P+5}
        v_and_b32 v{P+4}, 2, v{P+i}
        v_lshl_add_u32 v{P+i}, v{P+4}, 2, v{P+5}
        """)
    a(f"""
    s_mov_b32 s{sVm}, 0x000fffff
    s_mov_b32 s{sVm+1}, 0x000fffff
    v_mul_u32_u24 v3, 5120, v3
    v_add_u32 v{vA}, v{vA}, v3
    v_and_b32 v3, 27, v{vL}
    v_cmp_eq_u32 vcc, 24, v3
    v_mov_b32 v3, 0x3f803f80
    """)
    for i in range(16): a(f"v_mov_b32 v{O+i}, 0")
    for i in range(16): a(f"v_cndmask_b32 v{V+i}, 0, v3, vcc")
    for i in range(4): a(f"v_mov_b32 v{P+12+i}, 0")
    segw = sum(n << (4 * i) for i, n in enumerate(SEGS))
    a(f"""
    s_mov_b32 s{sSeg}, {segw >> 4}
    s_mov_b32 s{sI}, {SEGS[0]}
    """)
    a(f"""
    s_lshr_b32 s54, s{sHD}, 2
    s_mul_i32 s54, s54, 5
    s_mul_i32 s55, s{sRT}, 40
    s_add_u32 s54, s54, s55
    s_lshl_b32 s54, s54, 10
    s_add_u32 s54, s54, {WS_O}
    s_and_b32 s55, s{sHD}, 3
    s_lshl_b32 s55, s55, 10
    s_add_u32 s55, s55, s54
    s_bfe_u32 s{sT2}, s{sHD}, 0x10001
    s_lshl_b32 s{sT2}, s{sT2}, 9
    s_add_u32 s54, s54, s{sT2}
    s_and_b32 s{sT2}, s{sHD}, 1
    s_lshl_b32 s{sT2}, s{sT2}, 3
    s_add_u32 s54, s54, s{sT2}
    s_add_u32 s54, s54, 4096
    s_lshl_b32 s56, s{sRT}, 5
    s_add_u32 s56, s56, s{sHD}
    s_lshl_b32 s56, s56, 7
    s_add_u32 s56, s56, {WS_F3}
    v_mov_b32 v{S}, -1
    v_mov_b32 v{S+1}, -1
    v_mov_b32 v{S+2}, -1
    v_mov_b32 v{S+3}, -1
    """)
    setflag(a, 64, WS, 10, 11, 's[58:59]')
    if 'st1' in OPT: stamp(a, 1)
    a("s_waitcnt lgkmcnt(0)\ns_barrier"); stamp(a, 4); a(f"""
    buffer_store_dwordx4 {vr(S,4)}, v{vD}, {sr(WS,4)}, s55 offen sc1
    s_mov_b32 exec_hi, 0
    buffer_store_dwordx2 {vr(S,2)}, v{vD}, {sr(WS,4)}, s54 offen sc1
    {"s_mov_b32 exec_lo, 0xff" if 'pret' in OPT else ""}
    {f"buffer_store_dwordx4 {vr(O,4)}, v{vD}, {sr(WS,4)}, s56 offen sc1" if 'pret' in OPT else ""}
    s_mov_b64 exec, -1
    ds_read_b64 {vr(QT,2)}, v{P+2}
    ds_read_b128 {vr(KT,4)}, v{vA} offset:2048
    ds_read_b64 {vr(QM,2)}, v{P}
    ds_read_b64 {vr(QM+2,2)}, v{P+1}
    ds_read_b128 {vr(KM,4)}, v{vA} offset:0
    ds_read_b128 {vr(KM+4,4)}, v{vA} offset:512
    s_waitcnt lgkmcnt({0 if PROF else 4})
    v_mfma_f32_32x32x4_2b_bf16 {vr(S,32)}, {vr(KT,2)}, {vr(QT,2)}, 0
    s_waitcnt lgkmcnt(0)
    s_nop 15
    s_nop 2
    {MF(vr(S,16), vr(KM,4), vr(QM,4), vr(S,16))}
    {MF(vr(S+16,16), vr(KM+4,4), vr(QM,4), vr(S+16,16))}
    ds_read_b128 {vr(KM,4)}, v{vA} offset:1024
    ds_read_b128 {vr(KM+4,4)}, v{vA} offset:1536
    s_mov_b64 exec, {sr(sVm,2)}
    ds_read_b128 {vr(V,4)}, v{vA} offset:2560
    ds_read_b128 {vr(V+4,4)}, v{vA} offset:2880
    s_mov_b64 exec, -1
    s_nop 7
    .p2align 6
    K2_loop:
    """)
    for l in abody.body(R, 0, (3, 2, 1), sVm): a(l)
    a(f"""
    v_add_u32 v{vA}, 10240, v{vA}
    s_sub_u32 s{sI}, s{sI}, 1
    s_cmp_lg_u32 s{sI}, 0
    s_cbranch_scc1 K2_loop
    s_and_b32 s{sI}, s{sSeg}, 15
    s_cbranch_scc0 K2_exit
    s_lshr_b32 s{sSeg}, s{sSeg}, 4
    s_barrier
    s_branch K2_loop
    K2_exit:
    """); stamp(a, 5); a(f"""
    {MF(vr(O,16), vr(V+12,4), vr(P+12,4), vr(O,16))}
    s_mov_b32 s46, {f32(2.0**-64)}
    s_mov_b32 s47, {f32(2.0**64)}
    s_nop 9
    v_cmp_nle_f32 vcc, s46, v{O+12}
    v_cmp_nge_f32 s[46:47], s47, v{O+12}
    s_waitcnt lgkmcnt(0)
    s_or_b64 vcc, vcc, s[46:47]
    s_cbranch_scc1 K2_slow
    K2_fin:
    v_rcp_f32 v{P}, v{O+12}
    v_mov_b32 v4, s{sN}
    v_lshlrev_b32 v5, 2, v{vL}
    s_waitcnt vmcnt(0)
    """)
    for i in range(12): a(f"v_mul_f32 v{O+i}, v{O+i}, v{P}")
    for i in range(6): a(f"v_cvt_pk_bf16_f32 v{S+i}, v{O+2*i}, v{O+2*i+1}")
    a(f"""
    buffer_store_dwordx4 {vr(S,4)}, v{vD}, {sr(WS,4)}, s55 offen sc1
    s_mov_b32 exec_hi, 0
    buffer_store_dwordx2 {vr(S+4,2)}, v{vD}, {sr(WS,4)}, s54 offen sc1
    {"" if 'fline' in OPT else "s_mov_b64 exec, 1"}
    buffer_store_dword v4, v5, {sr(WS,4)}, s56 offen sc1
    s_mov_b64 exec, -1
    """)
    if 'p3' in OPT: stamp(a, 1)
    if 'p3' in OPT: stamp(a, 2)
    a("s_barrier")
    if 'p3' in OPT: stamp(a, 3)
    sKQ, sRB2, sNB, sH0, sH1, sWp = 33, 35, 36, 46, 47, 48
    XR = 104; RR = 108
    def fin_prep():
        tile_ids(a, sRB2, sNB, sT0)
        srd(a, X, 8, 2048*1280); srd(a, OUT, 18, 2048*1280)
        a(f"""
        s_lshl_b32 s{sT0}, s{sW}, 6
        v_add_u32 v4, s{sT0}, v{vL}
        v_mul_u32_u24 v5, 6554, v4
        v_lshrrev_b32 v5, 16, v5
        v_mul_u32_u24 v5, {1280-160}, v5
        v_lshlrev_b32 v4, 4, v4
        v_add_u32 v5, v5, v4
        s_mul_i32 s{sT3}, s{sRB2}, {64*1280}
        s_mul_i32 s{sT1}, s{sNB}, 160
        s_add_u32 s{sT3}, s{sT3}, s{sT1}
        v_add_u32 v6, 51200, v4
        buffer_load_dwordx4 {vr(XR,4)}, v5, {sr(X,4)}, s{sT3} offen
        """)
    fin_prep()
    a("K3_bar:\ns_barrier")
    if 'p3' in OPT: stamp(a, 4); a("s_waitcnt lgkmcnt(0)")
    for p in range(4):
        for h in range(2): a(f"ds_read_b128 {vr(RR+8*p+4*h,4)}, v{4 if p < 2 else 6} offset:{(p%2)*25600 + h*10240}")
    a("s_waitcnt vmcnt(0)")
    for i in range(4): a(f"v_lshlrev_b32 v{8+2*i}, 16, v{XR+i}\nv_and_b32 v{9+2*i}, 0xffff0000, v{XR+i}")
    for p in range(4):
        a(f"s_waitcnt lgkmcnt({6-2*p})")
        for i in range(4): a(f"v_pk_add_f32 {vr(8+2*i,2)}, {vr(8+2*i,2)}, {vr(RR+8*p+2*i,2)}")
    for i in range(4): a(f"v_cvt_pk_bf16_f32 v{XR+i}, v{8+2*i}, v{9+2*i}")
    a(f"buffer_store_dwordx4 {vr(XR,4)}, v5, {sr(OUT,4)}, s{sT3} offen {os.environ.get('OUTF', '')}\nK_pe:")
    prof_end(a, 0, WS, sW)
    a("K_end:\ns_endpgm")
    vW, vW2 = 1, 3
    ACC, FR = 8, 104
    a("K2_G:"); aids()
    def fill(n, lab):
        a(f"""
        s_mov_b32 s{sI}, {n}
        {lab}:
        buffer_load_dwordx4 v{vD}, {sr(WS,4)}, s{sSrc} offen sc1 lds
        s_add_u32 s{sSrc}, s{sSrc}, 4096
        s_add_u32 m0, m0, 4096
        s_sub_u32 s{sI}, s{sI}, 1
        s_cmp_lg_u32 s{sI}, 0
        s_cbranch_scc1 {lab}
        """)
    rowidx(a, sT1, sRT, sT0)
    a(f"""
    s_lshl_b32 s{sT0}, s{sR}, 10
    s_add_u32 s{sSrc}, s{sT0}, {WS_KV}
    s_mov_b32 m0, s{sT0}
    s_mul_i32 s{sT2}, s{sCB}, 10
    s_lshr_b32 s{sT2}, s{sT2}, 2
    v_and_b32 v4, 2, v{vL}
    v_add_u32 v4, s{sT2}, v4
    v_lshrrev_b32 v4, 1, v4
    v_lshl_add_u32 v4, v4, 5, s{sT1}
    v_lshlrev_b32 v4, 7, v4
    v_add_u32 v4, {WS_F1}, v4
    s_and_b32 s{sT0}, s2, 63
    s_lshl_b32 s{sT0}, s{sT0}, 8
    s_add_u32 s{sT0}, s{sT0}, {WS_FK}
    v_writelane_b32 v4, s{sT0}, 0
    s_mul_i32 s54, s{sRT}, 40
    s_add_u32 s54, s54, s{sT2}
    s_lshl_b32 s54, s54, 10
    s_mov_b32 s{sT3}, 0
    s_mov_b32 s{sSeg}, 1
    buffer_load_dword v5, v4, {sr(WS,4)}, 0 offen sc1
    """)
    for i in range(96): a(f"v_mov_b32 v{ACC+i}, 0")
    tile_ids(a, sRB2, sNB, sT0)
    wlane(a, vL, vW, vW2, 6)
    a(f"""
    K2_p1:
    s_waitcnt vmcnt(0)
    v_cmp_ne_u32 vcc, s{sN}, v5
    s_add_u32 s{sT3}, s{sT3}, 1
    s_cmp_ge_u32 s{sT3}, {SPINMAX}
    s_cselect_b64 vcc, 0, vcc
    s_andn2_b32 s{sT0}, s{sSeg}, vcc_lo
    s_cbranch_scc0 K2_p1b
    s_mov_b32 s{sSeg}, 0
    """)
    stamp(a, 2)
    fill(NF1, "K2_f1")
    a(f"""
    K2_p1b:
    s_cmp_eq_u64 vcc, 0
    s_cbranch_scc1 K2_p1x
    s_sleep {SLP}
    buffer_load_dword v5, v4, {sr(WS,4)}, 0 offen sc1
    s_branch K2_p1
    K2_p1x:
    s_mov_b32 s{sSeg}, m0
    s_mul_i32 s{sT1}, s{sR}, 3072
    s_add_u32 m0, s{sT1}, {XQ}
    s_nop 0
    """)
    for i in range(3): a(f"buffer_load_dwordx4 v{vD}, {sr(WS,4)}, s54 offen offset:{1024*i} sc1 lds")
    a(f"""
    s_mov_b32 m0, s{sSeg}
    s_setprio 3
    s_waitcnt vmcnt(0)
    s_barrier
    """); stamp(a, 3)
    a(f"""
    s_mul_i32 s{sT0}, s{sR}, 10240
    s_add_u32 s{sT0}, s{sT0}, {HS}
    v_add_u32 v4, s{sT0}, v{vD}
    """)
    for i in range(10): a(f"ds_read_b128 {vr(FR+4*i,4)}, v4 offset:{1024*i}")
    fill(10, "K2_f2")
    a(f"""
    s_waitcnt vmcnt(0) lgkmcnt(0)
    s_barrier
    s_cmp_eq_u32 s62, 0
    s_cbranch_scc1 K2_nh
    """)
    for j in range(5):
        if j == 4: a(f"s_cmp_lt_u32 s62, {WS_H + 64*96*1024}\ns_cselect_b32 s62, s62, {WS_END}")
        a(f"""
        buffer_store_dwordx4 {vr(FR+8*j,4)}, v{vD}, {sr(WS,4)}, s62 offen sc1
        buffer_store_dwordx4 {vr(FR+8*j+4,4)}, v{vD}, {sr(WS,4)}, s62 offen offset:1024 sc1
        s_add_u32 s62, s62, {96*1024}
        """)
    a("K2_nh:")
    fill(25, "K2_f3")
    a(f"""
    s_cmp_eq_u32 s62, 0
    s_cselect_b32 s63, {WS_END}, s63
    v_mov_b32 v4, s{sN}
    v_mov_b32 v5, 0
    s_mov_b64 exec, 1
    s_waitcnt vmcnt(25)
    buffer_store_dword v4, v5, {sr(WS,4)}, s63 offen sc1
    s_mov_b64 exec, -1
    s_waitcnt vmcnt(1)
    s_barrier
    """)
    a(f"s_lshl_b32 s{sT2}, s{sRB2}, 1")
    rowidx(a, sH0, sT2, sT0)
    a(f"s_add_u32 s{sT2}, s{sT2}, 1")
    rowidx(a, sH1, sT2, sT0)
    a(f"""
    v_and_b32 v4, 1, v{vL}
    v_cmp_eq_u32 vcc, 0, v4
    v_mov_b32 v4, s{sH0}
    v_mov_b32 v5, s{sH1}
    v_cndmask_b32 v4, v5, v4, vcc
    v_and_b32 v4, 30, v4
    v_lshrrev_b32 v5, 1, v{vL}
    v_min_u32 v5, 11, v5
    s_mul_i32 s{sT0}, s{sKQ}, 12
    s_add_u32 s{sT0}, s{sT0}, 20
    v_add_u32 v5, s{sT0}, v5
    v_lshl_add_u32 v4, v5, 5, v4
    v_cmp_gt_u32 vcc, 32, v{vL}
    v_min_u32 v5, 53, v{vL}
    v_add_u32 v5, {72*32 - 32}, v5
    v_cndmask_b32 v4, v5, v4, vcc
    v_lshlrev_b32 v4, 7, v4
    v_add_u32 v4, {WS_F1}, v4
    s_mul_i32 s{sH0}, s{sRB2}, 192
    s_mul_i32 s{sT0}, s{sKQ}, 24
    s_add_u32 s{sH0}, s{sH0}, s{sT0}
    s_lshl_b32 s{sH0}, s{sH0}, 10
    s_add_u32 s{sH0}, s{sH0}, {WS_H}
    s_add_u32 s{sH1}, s{sH0}, {96*1024}
    s_mul_i32 s{sWp}, s{sT0}, 20480
    s_mul_i32 s{sT0}, s{sNB}, 2560
    s_add_u32 s{sWp}, s{sWp}, s{sT0}
    s_add_u32 s{sWp}, s{sWp}, {WS_WP}
    """)
    if 'st3' in OPT: stamp(a, 2)
    poll(a, "K2_p3", 4, 5, WS, sT3)
    stamp(a, 1)
    def gload(j):
        b = FR + 20 * j
        a(f"""
        buffer_load_dwordx4 {vr(b,4)}, v{vD}, {sr(WS,4)}, s{sH0} offen offset:{1024*j} sc1
        buffer_load_dwordx4 {vr(b+4,4)}, v{vD}, {sr(WS,4)}, s{sH1} offen offset:{1024*j} sc1
        buffer_load_dwordx4 {vr(b+8,4)}, v{vW}, {sr(WS,4)}, s{sWp} offen sc1
        buffer_load_dwordx4 {vr(b+12,4)}, v{vW}, {sr(WS,4)}, s{sWp} offen offset:1024 sc1
        buffer_load_dwordx4 {vr(b+16,4)}, v{vW2}, {sr(WS,4)}, s{sWp} offen offset:2048 sc1
        s_add_u32 s{sWp}, s{sWp}, 20480
        """)
    for j in range(3): gload(j)
    a(f"s_setprio {GPRIO}")
    a(f"""
    s_mov_b32 s{sI}, 8
    K2_Gl:
    s_add_u32 s{sH0}, s{sH0}, 3072
    s_add_u32 s{sH1}, s{sH1}, 3072
    s_cmp_eq_u32 s{sI}, 1
    s_cselect_b32 s{sH0}, {WS_END}, s{sH0}
    s_cselect_b32 s{sH1}, {WS_END}, s{sH1}
    s_cselect_b32 s{sWp}, {WS_END}, s{sWp}
    """)
    def mm6(aw, bo):
        for t in range(3):
            for r in range(2):
                a(MF(vr(ACC+48*r+16*t,16), vr(aw+4*t,4), vr(bo+4*r,4), vr(ACC+48*r+16*t,16)))
    for j in range(3):
        b = FR + 20 * j
        a("s_waitcnt vmcnt(10)")
        mm6(b + 8, b)
        gload(j)
    a(f"""
    s_sub_u32 s{sI}, s{sI}, 1
    s_cmp_lg_u32 s{sI}, 0
    s_cbranch_scc1 K2_Gl
    """); 'st2' in OPT or stamp(a, 4)
    a(f"""
    s_setprio 3
    s_mul_i32 s{sT2}, s{sKQ}, 25600
    s_mul_i32 s{sWp}, s{sKQ}, {10*20480}
    s_mul_i32 s{sT0}, s{sNB}, 2560
    s_add_u32 s{sWp}, s{sWp}, s{sT0}
    s_add_u32 s{sWp}, s{sWp}, {WS_WP + 96*20480}
    s_mov_b32 m0, s{sT2}
    v_add_u32 v{vW}, s{sT2}, v{vW}
    v_add_u32 v{vW2}, s{sT2}, v{vW2}
    s_lshl_b32 s{sT0}, s{sRB2}, 3
    s_add_u32 s{sT0}, s{sT0}, s{sKQ}
    s_lshl_b32 s{sT0}, s{sT0}, 10
    s_add_u32 s{sT0}, s{sT0}, {WS_F3}
    v_and_b32 v7, 39, v{vL}
    v_lshl_add_u32 v7, v7, 7, s{sT0}
    s_mul_i32 s{sH0}, s{sRB2}, 80
    s_mul_i32 s{sT0}, s{sKQ}, 10
    s_add_u32 s{sH0}, s{sH0}, s{sT0}
    s_lshl_b32 s{sH0}, s{sH0}, 10
    s_add_u32 s{sH0}, s{sH0}, {WS_O}
    s_add_u32 s{sH1}, s{sH0}, 40960
    s_mul_i32 s49, s{sNB}, {ROT3}
    s_lshr_b32 s49, s49, 2
    s_mul_i32 s{sT0}, s49, 20480
    s_add_u32 s50, s{sWp}, {10*20480}
    s_add_u32 s{sWp}, s{sWp}, s{sT0}
    s_lshl_b32 s49, s49, 10
    s_mov_b32 s{sI}, 10
    s_waitcnt vmcnt(0)
    s_barrier
    K2_f4:
    buffer_load_dwordx4 v{vD}, {sr(WS,4)}, s{sWp} offen sc1 lds
    buffer_load_dwordx4 v{vD}, {sr(WS,4)}, s{sWp} offen offset:1024 sc1 lds
    s_mov_b32 exec_hi, 0
    buffer_load_dwordx4 v{vD}, {sr(WS,4)}, s{sWp} offen offset:2048 sc1 lds
    s_mov_b32 exec_hi, -1
    s_add_u32 s{sWp}, s{sWp}, 20480
    s_cmp_eq_u32 s{sWp}, s50
    s_cselect_b32 s{sT0}, {10*20480}, 0
    s_sub_u32 s{sWp}, s{sWp}, s{sT0}
    s_add_u32 m0, m0, 2560
    s_sub_u32 s{sI}, s{sI}, 1
    s_cmp_lg_u32 s{sI}, 0
    s_cbranch_scc1 K2_f4
    """)
    FO, FW = 104, 140
    def wread(j):
        b = FW + 12 * (j % 2)
        a(f"""
        ds_read_b128 {vr(b,4)}, v{vW} offset:{2560*j}
        ds_read_b128 {vr(b+4,4)}, v{vW} offset:{2560*j+1024}
        ds_read_b128 {vr(b+8,4)}, v{vW2} offset:{2560*j+2048}
        """)
    OA = 88
    def oissue(j):
        b = FO + 8 * (j % 4)
        a(f"""
        buffer_load_dwordx4 {vr(b,4)}, v{vD}, {sr(WS,4)}, s{OA+2*(j%4)} offen sc1
        buffer_load_dwordx4 {vr(b+4,4)}, v{vD}, {sr(WS,4)}, s{OA+2*(j%4)+1} offen sc1
        """)
    def oaddr(j):
        a(f"""
        s_add_u32 s{OA+2*(j%4)}, s{sH0}, s49
        s_add_u32 s{OA+2*(j%4)+1}, s{sH1}, s49
        s_add_u32 s49, s49, 1024
        s_cmp_eq_u32 s49, 10240
        s_cselect_b32 s49, 0, s49
        """)
    a("s_waitcnt vmcnt(0)")
    wread(0); wread(1)
    for j in range(4): oaddr(j)
    a(f"s_mov_b32 s51, {SPINMAX}\ns_barrier")
    if 'p3' in OPT: stamp(a, 1)
    poll(a, "K2_p4", 7, 5, WS, sT3)
    'st2' in OPT or stamp(a, 5)
    for j in range(4): oissue(j)
    retry = []
    for j in range(10):
        later = min(j + 3, 9) - j
        b = FO + 8 * (j % 4)
        a(f"""
        s_waitcnt vmcnt({2*later}) lgkmcnt({0 if (j == 9 or PROF) else 3})
        K3_c{j}:
        v_max3_u32 v5, v{b}, v{b+2}, v{b+4}
        v_max_u32 v5, v5, v{b+6}
        v_cmp_eq_u32 vcc, -1, v5
        s_cbranch_vccnz K3_r{j}
        K3_m{j}:
        """)
        mm6(FW + 12 * (j % 2), b)
        if j + 4 < 10: oaddr(j + 4); oissue(j + 4)
        if j + 2 < 10: wread(j + 2)
    def retries():
        for j in range(10):
            a(f"K3_r{j}:\ns_cmp_eq_u32 s51, 0\ns_cbranch_scc1 K3_m{j}\ns_sub_u32 s51, s51, 1")
            oissue(j)
            a(f"s_waitcnt vmcnt(0)\ns_branch K3_c{j}")
    if 'p3' in OPT: stamp(a, 2)
    fin_prep()
    a(f"""
    v_and_b32 v7, 31, v{vL}
    v_mul_u32_u24 v7, 160, v7
    v_lshrrev_b32 v{RR}, 5, v{vL}
    v_mul_u32_u24 v{RR}, 10240, v{RR}
    v_add3_u32 v7, v7, v{RR}, s{sT2}
    """)
    for r in range(2):
        for o in range(10): a(f"ds_write_b128 v7, {vr(ACC+48*r+4*o,4)} offset:{5120*r+16*o}")
    a(f"""
    s_waitcnt lgkmcnt(0)
    {"s_memtime s[76:77]" if PROF and 'p3' in OPT else ""}
    s_cmp_lt_u32 s{sW}, 10
    s_cbranch_scc1 K3_bar
    s_barrier
    {"s_branch K_pe" if PROF else "s_endpgm"}
    """)
    retries()
    vMx = 3
    sP, sO1, sO2, sO3 = 48, 49, 50, 51
    a(f"""
    K_last:
    K2_slow:
    v_subrev_u32 v{vA}, {16*10240}, v{vA}
    v_mov_b32 v{vMx}, 0xff800000
    s_mov_b32 s{sP}, 0
    """)
    for i in range(16): a(f"v_mov_b32 v{O+i}, 0")
    a(f"""
    K2_sp:
    s_mov_b32 s{sI}, 0
    K2_sl:
    s_lshr_b32 s{sT0}, s{sI}, 1
    s_mul_i32 s{sT0}, s{sT0}, 10240
    s_add_u32 s{sT0}, s{sT0}, {WS_KV}
    s_and_b32 s{sT1}, s{sI}, 1
    s_lshl_b32 s{sO1}, s{sT1}, 10
    s_add_u32 s{sO1}, s{sO1}, s{sT0}
    s_lshl_b32 s{sO2}, s{sT1}, 3
    s_add_u32 s{sO2}, s{sO2}, s{sT0}
    s_mul_i32 s{sO3}, s{sT1}, 1280
    s_add_u32 s{sO3}, s{sO3}, s{sT0}
    buffer_load_dwordx4 {vr(KM,4)}, v{vA}, {sr(WS,4)}, s{sO1} offen sc1
    buffer_load_dwordx4 {vr(KM+4,4)}, v{vA}, {sr(WS,4)}, s{sO1} offen offset:512 sc1
    buffer_load_dwordx2 {vr(KT,2)}, v{vA}, {sr(WS,4)}, s{sO2} offen offset:2048 sc1
    s_mov_b64 exec, {sr(sVm,2)}
    """)
    for f in range(4): a(f"buffer_load_dwordx4 {vr(V+4*f,4)}, v{vA}, {sr(WS,4)}, s{sO3} offen offset:{2560+320*f} sc1")
    a(f"""
    s_mov_b64 exec, -1
    s_waitcnt vmcnt(0)
    v_mfma_f32_32x32x4_2b_bf16 {vr(S,32)}, {vr(KT,2)}, {vr(QT,2)}, 0
    s_nop 15
    s_nop 3
    {MF(vr(S,16), vr(KM,4), vr(QM,4), vr(S,16))}
    {MF(vr(S+16,16), vr(KM+4,4), vr(QM,4), vr(S+16,16))}
    s_cmp_lg_u32 s{sP}, 0
    s_nop 12
    s_cbranch_scc1 K2_sp2
    """)
    for i in range(16): a(f"v_max3_f32 v{vMx}, v{S+2*i}, v{S+2*i+1}, v{vMx}")
    a("s_branch K2_snext\nK2_sp2:")
    for i in range(32): a(f"v_sub_f32 v{S+i}, v{S+i}, v{vMx}")
    for i in range(32): a(f"v_exp_f32 v{S+i}, v{S+i}")
    a("s_nop 0")
    for i in range(16): a(f"v_cvt_pk_bf16_f32 v{P+i}, v{S+2*i}, v{S+2*i+1}")
    a("s_nop 1")
    for f in range(4): a(MF(vr(O,16), vr(V+4*f,4), vr(P+4*f,4), vr(O,16)))
    a(f"""
    s_nop 15
    K2_snext:
    s_add_u32 s{sI}, s{sI}, 1
    s_cmp_lt_u32 s{sI}, 32
    s_cbranch_scc1 K2_sl
    s_cmp_lg_u32 s{sP}, 0
    s_cbranch_scc1 K2_fin
    v_mov_b32 v{P}, v{vMx}
    s_nop 1
    v_permlane32_swap_b32 v{P}, v{vMx}
    s_mov_b32 s{sP}, 1
    v_max_f32 v{vMx}, v{vMx}, v{P}
    s_branch K2_sp
    """)
    return 164

def main(out):
    a = Asm()
    gen_k1(a); n = gen_k2(a)
    head = f"""; LayerNorm + MQA attention + SiLU FFN in one launch (generated by work/gen6.py)
; @launch grid=(256,1,1) block=(768,1,1) lds=163840
.amdgcn_target "amdgcn-amd-amdhsa--gfx950"
.text
"""
    tail = '.section .rodata,"a"\n' + kdesc(KN, n)
    txt = a.text()
    import re
    if 'pollsys' in OPT: txt = re.sub(r"(buffer_load_dword v\d+, v\d+, s\[28:31\], 0 offen) sc1", r"\1 sc0 sc1", txt)
    if 'flagsys' in OPT: txt = re.sub(r"(buffer_store_dword v\d+, v\d+, s\[28:31\], s\d+ offen) sc1", r"\1 sc0 sc1", txt)
    if 'flagatom' in OPT: txt = re.sub(r"buffer_store_dword (v\d+, v\d+, s\[28:31\], s\d+ offen) sc1", r"buffer_atomic_swap \1", txt)
    if 'allsys' in OPT: txt = re.sub(r"(?<!sc0) sc1", " sc0 sc1", txt)
    if 'rt' in OPT: txt = txt.replace("s_memtime", "s_memrealtime")
    open(out, "w").write(head + txt + tail)

if __name__ == "__main__":
    if "--prof" in sys.argv:
        PROF = True; sys.argv.remove("--prof")
    main(sys.argv[1] if len(sys.argv) > 1 else f"cdna_kernels/{NAME}.s")
```

```python
import sys, math, os, struct
import abody, kbody
OPT = set(os.environ.get('OPT', '').split(','))
NAME = "parallel_sum__grouped_kv_mqa__dense_activation_silu__prompt"
WS_Q, WS_KV, WS_H, WS_O, WS_WP, WS_Y, WS_PROF, WS_END = 0, 0x300000, 0x340000, 0x940000, 0xD00000, 0x1000000, 0xC00000, 0x1500000
WS_SR, WS_SC = 0x280000, 0x2D2000
WS_F1, WS_F3, WS_FK = 0x1000000, 0x1080000, 0x1060000
SLP = int(os.environ.get('SLP', '4'))
XB = 147456; XFC, XN, XQ = XB + 2560, XB + 3072, XB + 4096
sN = 68
KN = NAME + '_kernel'
SPINMAX = 20000
ROTR, ROTC = (int(c) for c in os.environ.get('ROT', '3,3').split(','))
PRE = int(os.environ.get('PRE', '2'))
PRE_CTRL = """s_or_b32 s{sT0}, s{sI}, 2
    s_cmp_eq_u32 s{sT0}, 3
    s_cbranch_scc1 K1_issue
    s_cmp_lg_u32 s{sI}, 2
    s_cbranch_scc1 K1_w18""" if PRE == 2 else """s_cmp_lt_u32 s{sI}, %d
    s_cbranch_scc1 K1_issue
    s_cmp_lg_u32 s{sI}, %d
    s_cbranch_scc1 K1_w18""" % (PRE, PRE)
CSAT = int(os.environ.get('CSAT', '2'))
NF1 = 5
HS = 102400
SEGS = eval(os.environ.get('SEGS', '[1, 3, 10, 2]'))
DEEP = int(os.environ.get('DEEP', '99'))
GPRIO = int(os.environ.get('GPRIO', '0'))
ROT3 = int(os.environ.get('ROT3', '5'))
RW = int(os.environ.get('RW', '10')); RMUL = int(os.environ.get('RMUL', '3'))
TSH = int(os.environ.get('TSH', '0'))
HOOK = int(os.environ.get('HOOK', '2'))
LOG2E = 1.4426950408889634
def f32(x): return "0x%08x" % struct.unpack("<I", struct.pack("<f", x))[0]

class Asm:
    def __init__(self): self.l = []
    def __call__(self, s):
        for x in s.strip("\n").split("\n"):
            x = x.strip()
            if x: self.l.append(("" if x.endswith(":") else "    ") + x)
    def text(self): return "\n".join(self.l) + "\n"
def vr(a, n): return "v[%d:%d]" % (a, a + n - 1)
def ar(a, n): return "a[%d:%d]" % (a, a + n - 1)
def sr(a, n): return "s[%d:%d]" % (a, a + n - 1)
def srd(a, d, base, nbytes):
    a(f"s_mov_b32 s{d}, s{base}\ns_mov_b32 s{d+1}, s{base+1}\ns_mov_b32 s{d+2}, {nbytes}\ns_mov_b32 s{d+3}, 0x00020000")
def kdesc(name, vgpr, agpr=0, sgpr=102):
    acc = (vgpr + 3) // 4 * 4
    return f""".p2align 6
.amdhsa_kernel {name}
  .amdhsa_next_free_vgpr {acc + agpr if agpr else vgpr}
  .amdhsa_next_free_sgpr {sgpr}
  .amdhsa_accum_offset {acc}
  .amdhsa_group_segment_fixed_size 0
  .amdhsa_kernarg_size 88
  .amdhsa_user_sgpr_count 2
  .amdhsa_user_sgpr_kernarg_segment_ptr 1
  .amdhsa_system_sgpr_workgroup_id_x 1
.end_amdhsa_kernel
"""
def khead(a, name): a.l.append(f".globl {name}\n.p2align 8\n.type {name},@function\n{name}:")
PROF = False
DIAGX = int(os.environ.get('DIAGX', '0'))
DIAGC = os.environ.get('DIAGC', '')
def stamp(a, i):
    if DIAGX:
        a(f"{'s_memtime' if DIAGC else 's_memrealtime'} s[{70+2*i}:{71+2*i}]")
        return
    if 'dbgt' in OPT:
        a(f"s_memrealtime s[{70+2*i}:{71+2*i}]")
        if i == 0: a("s_mov_b32 s72, 0\ns_mov_b32 s74, 0\ns_mov_b32 s76, 0")
        return
    if PROF:
        a(f"s_memtime s[{70+2*i}:{71+2*i}]")
        if i == 0: a("s_memrealtime s[84:85]")
def prof_end(a, kidx, WS, sW):
    if DIAGX:
        a(f"""
        s_cmp_lg_u32 s{sW}, {DIAGC.split(',')[1] if DIAGC else 0}
        s_cbranch_scc1 K_end
        s_cmp_lg_u32 s2, {int(os.environ.get('DIAGWG', '40'))}
        s_cbranch_scc1 K_end
        s_waitcnt vmcnt(0)
        s_memrealtime s[82:83]
        s_waitcnt lgkmcnt(0)
        {f"s_sub_u32 s84, s{70+2*DIAGX}, s70" if DIAGX < 7 else f"s_sub_u32 s84, s70, s{sN}"}
        {"s_add_u32 s84, s84, 1500" if DIAGX == 7 else ""}
        s_lshl_b32 s84, s84, 2
        {f"s_sub_u32 s84, s{70+2*DIAGX}, s{70+2*int(DIAGC.split(',')[0])}" if DIAGC else ""}
        {"s_lshr_b32 s84, s84, 2" if DIAGC else ""}
        K_dl:
        s_memrealtime s[86:87]
        s_waitcnt lgkmcnt(0)
        s_sub_u32 s86, s86, s82
        s_cmp_lt_u32 s86, s84
        s_cbranch_scc1 K_dl
        """)
        return
    if 'dbgt' in OPT:
        a(f"""
        s_cmp_lg_u32 s{sW}, 0
        s_cbranch_scc1 K_end
        s_waitcnt vmcnt(0)
        s_memrealtime s[82:83]
        s_mov_b32 s20, s4
        s_mov_b32 s21, s5
        s_mov_b32 s22, 256
        s_mov_b32 s23, 0x00020000
        s_mov_b64 exec, 1
        v_mov_b32 v0, 0
        s_waitcnt lgkmcnt(0)
        s_not_b32 s84, s70
        v_mov_b32 v1, s84
        buffer_atomic_umax v1, v0, s[20:23], 0 offen offset:4
        """)
        for i in range(7):
            a(f"v_mov_b32 v{2+i}, s{70+2*i}\nbuffer_atomic_umax v{2+i}, v0, s[20:23], 0 offen offset:{8+4*i}")
        return
    if not PROF: return
    a(f"""
    s_waitcnt vmcnt(0)
    s_memtime s[82:83]
    s_memrealtime s[86:87]
    s_mov_b64 exec, -1
    s_waitcnt lgkmcnt(0)
    s_lshl_b32 s88, s2, 4
    s_add_u32 s88, s88, s{sW}
    s_lshl_b32 s88, s88, 6
    s_add_u32 s88, s88, {WS_PROF + kidx * 0x40000}
    v_mov_b32 v0, 0
    """)
    if 'kvs' in OPT: a("s_mov_b32 s80, s90")
    if 'lacc' in OPT: a(f"s_cmp_lt_u32 s{sW}, 8\ns_cbranch_scc1 K_pe2\ns_add_u32 s76, s70, s95\ns_add_u32 s78, s70, s96\ns_add_u32 s80, s70, s97\nK_pe2:")
    for i in range(7): a(f"v_mov_b32 v{4+i}, s{70+2*i}")
    a(f"""
    v_mov_b32 v11, s84
    v_mov_b32 v12, s86
    v_mov_b32 v13, 0
    v_mov_b32 v14, 0
    v_mov_b32 v15, 0
    s_mov_b64 exec, 1
    buffer_store_dwordx4 v[4:7], v0, {sr(WS,4)}, s88 offen
    buffer_store_dwordx4 v[8:11], v0, {sr(WS,4)}, s88 offen offset:16
    buffer_store_dwordx4 v[12:15], v0, {sr(WS,4)}, s88 offen offset:32
    """)
def poll(a, lab, vaddr, vtmp, WS, sCnt):
    a(f"""
    s_mov_b32 s{sCnt}, 0
    {lab}:
    buffer_load_dword v{vtmp}, v{vaddr}, {sr(WS,4)}, 0 offen sc1
    s_add_u32 s{sCnt}, s{sCnt}, 1
    s_waitcnt vmcnt(0)
    v_cmp_ne_u32 vcc, s{sN}, v{vtmp}
    s_cbranch_vccz {lab}x
    s_sleep {SLP}
    s_cmp_lt_u32 s{sCnt}, {SPINMAX}
    s_cbranch_scc1 {lab}
    {lab}x:
    """)
def setflag(a, soff, WS, v0, v1, emask="1"):
    a(f"""
    v_mov_b32 v{v0}, s{sN}
    v_lshlrev_b32 v{v1}, 8, v0
    s_mov_b64 exec, {emask}
    s_waitcnt vmcnt(0)
    buffer_store_dword v{v0}, v{v1}, {sr(WS,4)}, s{soff} offen sc1
    s_mov_b64 exec, -1
    """)
def rowidx(a, d, rt, t):
    a(f"""
    s_mul_i32 s{d}, s{rt}, 205
    s_lshr_b32 s{d}, s{d}, 10
    s_mul_i32 s{t}, s{d}, 5
    s_sub_u32 s{t}, s{rt}, s{t}
    s_lshl_b32 s{d}, s{d}, 1
    s_cmp_ge_u32 s{t}, 3
    s_addc_u32 s{d}, s{d}, 0
    """)
def round_bf16(a, d, s): a(f"v_cvt_pk_bf16_f32 v{d}, v{s}, v{s}\nv_lshlrev_b32 v{d}, 16, v{d}")
def MF(d, A, B, C): return f"v_mfma_f32_32x32x16_bf16 {d}, {A}, {B}, {C}"

def ldswait(a, lab, vaddr, vtmp, sTmp, sNeed, off=0):
    a(f"""
    {lab}:
    ds_read_b32 v{vtmp}, v{vaddr} offset:{off}
    s_waitcnt lgkmcnt(0)
    v_readfirstlane_b32 s{sTmp}, v{vtmp}
    s_cmp_ge_u32 s{sTmp}, {sNeed}
    s_cbranch_scc1 {lab}x
    {'s_sleep 1' if 'nosl' not in OPT else ''}
    s_sub_u32 s65, s65, 1
    s_cbranch_scc0 {lab}
    s_mov_b32 s65, 0
    {lab}x:
    """)
def ldsadd(a, vaddr, vone, off=0):
    a(f"s_mov_b64 exec, 1\nds_add_u32 v{vaddr}, v{vone} offset:{off}\ns_mov_b64 exec, -1")

def acc(a, i):
    if PROF and 'lacc' in OPT:
        a(f"s_memtime s[92:93]\ns_waitcnt lgkmcnt(0)\ns_sub_u32 s94, s92, s91\ns_mov_b32 s91, s92\ns_add_u32 s{95+i}, s{95+i}, s94")
def gen_k1(a):
    khead(a, KN)
    SLOT = 36864
    CNT = XN + 16
    sW, sR, sG, sRB, sCB = 32, 33, 34, 35, 36
    sI, sK, sSlot, sT0, sT1, sMx, sNeed, sStr64, sDelta, sRd, sT2, sT3, sK0, sMB, sU, sTyp, sRT, sS32, sOnes = 38, 39, 40, 41, 42, 43, 44, 45, 46, 47, 48, 49, 50, 51, 52, 53, 54, 55, 37
    sHr, sIdle, sGs, DB2, sHc = 56, 69, 57, 12, 57
    X, WA, WS, DBG = 20, 24, 28, 20
    vL, vXs, vWs, vCom, vOne, vC, vF = 0, 1, 2, 11, 10, 17, 18
    vAx, vAw = 12, 16
    vT = 24
    AC = 32; fW, fX = 80, 96
    a(f"""
    s_cmp_ge_u32 s2, 256
    s_cbranch_scc1 K_end
    """); stamp(a, 0); a(f"""
    s_load_dwordx8 s[8:15], s[0:1], 0
    s_load_dwordx4 s[60:63], s[0:1], 48
    s_load_dwordx4 s[4:7], s[0:1], 72
    s_load_dwordx2 s[16:17], s[0:1], 32
    s_load_dwordx2 s[18:19], s[0:1], 64
    v_lshrrev_b32 v1, 6, v0
    v_and_b32 v{vL}, 63, v0
    v_readfirstlane_b32 s{sW}, v1
    s_and_b32 s{sT0}, s2, 7
    s_lshr_b32 s{sT1}, s2, 3
    s_mul_i32 s{sT2}, s{sT0}, 30
    s_add_u32 s{sT2}, s{sT2}, s{sT1}
    v_lshrrev_b32 v{vT}, 5, v{vL}
    v_and_b32 v{vT+1}, 3, v{vL}
    v_bfe_u32 v{vT+2}, v{vL}, 2, 3
    v_lshlrev_b32 v{vT+3}, 4, v{vT+1}
    s_mov_b32 s{WS+2}, {WS_END}
    s_mov_b32 s{WS+3}, 0x00020000
    s_lshl_b32 s{sT3}, s{sW}, 8
    s_add_u32 s{sT3}, s{sT3}, s{sT1}
    s_cmp_lg_u32 s{sT3}, {(1 << 8) + 30}
    s_cbranch_scc1 K1_npf
    s_getpc_b64 s[66:67]
    K1_pc:
    v_lshlrev_b32 v2, 7, v{vL}
    v_add_u32 v3, 8192, v2
    v_min_u32 v3, K_last-K1_pc, v3
    {"" if 'nocpf' in OPT else "global_load_dword v60, v2, s[66:67]"}
    {"" if 'nocpf' in OPT else "global_load_dword v61, v3, s[66:67]"}
    K1_npf:
    s_cmp_ge_u32 s{sT1}, 30
    s_cbranch_scc1 K1_aux
    s_cmp_ge_u32 s{sT2}, 234
    s_cbranch_scc1 K1_aux
    s_cmp_lt_u32 s{sT2}, 126
    s_cselect_b32 s{sT0}, 0, 126
    s_cselect_b32 s{sT1}, 7, 6
    s_movk_i32 s{sT3}, 10923
    s_cselect_b32 s{sT3}, 9363, s{sT3}
    s_cselect_b32 s{sRB}, 0, 7
    s_sub_u32 s{sT2}, s{sT2}, s{sT0}
    s_mul_i32 s{sCB}, s{sT2}, s{sT3}
    s_lshr_b32 s{sCB}, s{sCB}, 16
    s_mul_i32 s{sT1}, s{sT1}, s{sCB}
    s_sub_u32 s{sT2}, s{sT2}, s{sT1}
    s_add_u32 s{sRB}, s{sRB}, s{sT2}
    s_and_b32 s{sR}, s{sW}, 3
    s_add_u32 s{sK}, s{sRB}, s{sCB}
    s_mul_i32 s{sK}, s{sK}, {RMUL}
    s_mul_i32 s{sT0}, s{sK}, {65536 // RW + 1}
    s_lshr_b32 s{sT0}, s{sT0}, 16
    s_mul_i32 s{sT0}, s{sT0}, {RW}
    s_sub_u32 s{sK}, s{sK}, s{sT0}
    s_mul_i32 s{sK}, s{sK}, {10 // RW}
    s_cmp_lt_u32 s{sW}, 8
    s_cbranch_scc1 K1_C
    """)
    def common2():
        a(f"""
        v_bfe_u32 v{vT+4}, v{vL}, 2, 2
        v_bfe_u32 v{vT+5}, v{vL}, 4, 1
        v_lshl_add_u32 v{vT+4}, v{vT+4}, 1, v{vT+5}
        v_lshl_add_u32 v{vT+4}, v{vT+4}, 2, v{vT+1}
        v_lshlrev_b32 v{vCom}, 3, v{vT+4}
        s_mov_b32 s{sOnes}, 0x3f803f80
        s_cmp_eq_u32 s{sCB}, 17
        s_cselect_b32 s{sT0}, 1, 3
        s_and_b32 s{sT0}, s{sT0}, s{sR}
        s_lshr_b32 s{sT1}, s{sT0}, 1
        s_lshl_b32 s{sT1}, s{sT1}, 13
        s_and_b32 s{sT0}, s{sT0}, 1
        s_lshl_b32 s{sT0}, s{sT0}, 9
        s_add_u32 s{sT0}, s{sT0}, s{sT1}
        s_add_u32 s{sT0}, s{sT0}, 20480
        v_lshl_add_u32 v{vAw}, v{vT}, 10, v{vCom}
        v_add_u32 v{vAw}, s{sT0}, v{vAw}
        """)
    vQb, vQa = 4, 6
    a(f"""
    s_mul_i32 s{sT0}, s{sRB}, 160
    s_lshl_b32 s{sT1}, s{sR}, 3
    s_add_u32 s{sT0}, s{sT0}, s{sT1}
    s_mul_i32 s{sT0}, s{sT0}, 1280
    v_lshrrev_b32 v{vT+4}, 3, v{vL}
    v_mul_u32_u24 v{vT+4}, 1280, v{vT+4}
    v_add_u32 v{vT+4}, s{sT0}, v{vT+4}
    v_and_b32 v{vT+5}, 7, v{vL}
    v_lshrrev_b32 v{vT+6}, 4, v{vL}
    v_xor_b32 v{vT+5}, v{vT+5}, v{vT+6}
    s_and_b32 s{sT0}, s{sR}, 1
    s_lshl_b32 s{sT0}, s{sT0}, 2
    v_xor_b32 v{vT+5}, s{sT0}, v{vT+5}
    v_lshl_add_u32 v{vXs}, v{vT+5}, 4, v{vT+4}
    s_cmp_lt_u32 s{sCB}, 5
    s_movk_i32 s{sT0}, 3072
    s_cselect_b32 s{sT0}, 1280, s{sT0}
    s_cselect_b32 s{sT2}, 0, 5
    s_sub_u32 s{sT2}, s{sCB}, s{sT2}
    s_lshl_b32 s{sT2}, s{sT2}, 8
    v_lshl_add_u32 v{vT+4}, v{vT}, 6, v{vT+3}
    v_add_u32 v{vT+4}, s{sT2}, v{vT+4}
    v_add_u32 v{vT+5}, s{sT1}, v{vT+2}
    v_mad_u32_u24 v{vWs}, v{vT+5}, s{sT0}, v{vT+4}
    v_min_u32 v{vT+4}, 24, v{vT+3}
    v_mad_u32_u24 v{vT+6}, v{vT+5}, 40, v{vT+4}
    v_mov_b32 v{vT+7}, 0
    v_cmp_eq_u32 vcc, 0, v{vT}
    s_lshl_b32 s{sStr64}, s{sT0}, 6
    s_lshl_b32 s{sS32}, s{sT0}, 5
    s_mul_i32 s{WA+2}, s{sT0}, 640
    s_lshl_b32 s{sMx}, s{sR}, 10
    s_mov_b32 s{sI}, 0
    s_mov_b32 s{sSlot}, 0
    s_mov_b32 s{X+2}, {2048*1280}
    s_mov_b32 s{X+3}, 0x00020000
    s_mov_b32 s{WA+3}, 0x00020000
    s_cmp_lt_u32 s{sCB}, 5
    s_waitcnt lgkmcnt(0)
    s_mov_b32 s{X}, s8
    s_mov_b32 s{X+1}, s9
    s_cselect_b32 s{WA}, s10, s60
    s_cselect_b32 s{WA+1}, s11, s61
    v_mov_b32 v{vQb}, s14
    v_mov_b32 v{vQb+1}, s15
    v_mov_b32 v{vQa}, s12
    v_mov_b32 v{vQa+1}, s13
    v_cndmask_b32 v{vQb}, v{vQb}, v{vQa}, vcc
    v_cndmask_b32 v{vQb+1}, v{vQb+1}, v{vQa+1}, vcc
    v_lshl_add_u64 {vr(vQb,2)}, {vr(vT+6,2)}, 0, {vr(vQb,2)}
    v_mov_b32 v8, 2560
    """)
    stamp(a, 1)
    if PROF and 'lacc' in OPT: a("s_waitcnt lgkmcnt(0)\ns_mov_b32 s91, s72\ns_mov_b32 s95, 0\ns_mov_b32 s96, 0\ns_mov_b32 s97, 0")
    a("K1_issue:"); acc(a, 2)
    a(f"""
    s_lshl_b32 s{sT0}, s{sK}, 7
    s_add_u32 m0, s{sSlot}, s{sMx}
    s_mul_i32 s{sT1}, s{sK}, s{sStr64}
    """)
    for i in range(5):
        a(f"buffer_load_dwordx4 v{vXs}, {sr(X,4)}, s{sT0} offen lds\ns_add_u32 m0, m0, 4096\ns_add_u32 s{sT0}, s{sT0}, {32*1280}")
    a(f"""
    s_add_u32 s{sT2}, s{sT1}, s{sS32}
    s_cmp_eq_u32 s{sCB}, 17
    s_cbranch_scc1 K1_ikv
    buffer_load_dwordx4 v{vWs}, {sr(WA,4)}, s{sT1} offen lds
    s_add_u32 m0, m0, 4096
    s_nop 0
    buffer_load_dwordx4 v{vWs}, {sr(WA,4)}, s{sT2} offen lds
    s_add_u32 m0, m0, {4096-128}
    s_nop 0
    buffer_load_dwordx4 v{vWs}, {sr(WA,4)}, s{sT1} offen offset:128 lds
    s_add_u32 m0, m0, 4096
    s_nop 0
    buffer_load_dwordx4 v{vWs}, {sr(WA,4)}, s{sT2} offen offset:128 lds
    K1_i2:
    """); acc(a, 0); a(f"""
    s_add_u32 s{sK}, s{sK}, 1
    s_cmp_eq_u32 s{sK}, 10
    s_cselect_b32 s{sK}, 0, s{sK}
    s_add_u32 s{sSlot}, s{sSlot}, {SLOT}
    s_cmp_eq_u32 s{sSlot}, {4*SLOT}
    s_cselect_b32 s{sSlot}, 0, s{sSlot}
    s_add_u32 s{sI}, s{sI}, 1
    s_cmp_eq_u32 s{sI}, 1
    s_cbranch_scc1 K1_l1
    s_waitcnt vmcnt(9)
    s_barrier
    s_cmp_lg_u32 s{sI}, 10
    s_cbranch_scc1 K1_issue
    s_branch K1_g0
    K1_ikv:
    v_mad_u64_u32 {vr(vQa,2)}, s[58:59], v8, s{sK}, {vr(vQb,2)}
    global_load_lds_dwordx4 {vr(vQa,2)}, off
    s_add_u32 m0, m0, {4096-1280}
    s_nop 0
    global_load_lds_dwordx4 {vr(vQa,2)}, off offset:1280
    s_waitcnt vmcnt(7)
    s_branch K1_i2
    K1_l1:
    s_mov_b32 s{WS}, s6
    s_mov_b32 s{WS+1}, s7
    """)
    a(f"""
    s_cmp_eq_u32 s{sR}, 3
    s_mul_i32 s{sT0}, s{sRB}, 25600
    s_mul_i32 s{sT1}, s{sCB}, 10240
    s_movk_i32 s{sGs}, 2560
    s_cselect_b32 s{sGs}, 1024, s{sGs}
    s_cselect_b32 s{sT0}, s{sT1}, s{sT0}
    s_mov_b32 s{sT1}, {WS_SR}
    s_cselect_b32 s{sT1}, {WS_SC}, s{sT1}
    s_cselect_b32 s{sT2}, 0, s{sR}
    s_add_u32 s{sU}, s{sT0}, s{sT1}
    s_lshl_b32 s{sT2}, s{sT2}, 6
    v_add_u32 v20, s{sT2}, v{vL}
    v_min_u32 v20, 159, v20
    v_lshlrev_b32 v20, 4, v20
    s_mov_b32 s{DB2}, s4
    s_mov_b32 s{DB2+1}, s5
    s_mov_b32 s{DB2+2}, 256
    s_mov_b32 s{DB2+3}, 0x00020000
    v_mov_b32 v22, 0
    s_mul_i32 s62, s{sRB}, {5*96*1024}
    s_lshl_b32 s{sT0}, s{sCB}, 2
    s_add_u32 s{sT0}, s{sT0}, s{sR}
    s_lshl_b32 s{sT1}, s{sT0}, 11
    s_add_u32 s62, s62, s{sT1}
    s_add_u32 s62, s62, {WS_H - 5*8192}
    s_lshl_b32 s63, s{sT0}, 4
    s_add_u32 s63, s63, s{sRB}
    s_lshl_b32 s63, s63, 8
    s_add_u32 s63, s63, {WS_F1}
    s_sub_u32 s{sT0}, s{sCB}, 5
    s_cmp_lt_u32 s{sT0}, 12
    s_cselect_b32 s62, s62, 0
    s_branch K1_issue
    K1_g0:
    """)
    G = 32
    a(f"""
    s_mov_b32 s{sI}, 0
    """)
    a(f"K1_gat:\ns_mov_b32 s{sT0}, s{sU}\nbuffer_load_dword v21, v22, {sr(DB2,4)}, 0 offen sc1")
    for k in range(10):
        a(f"buffer_load_dwordx4 {vr(G+4*k,4)}, v20, {sr(WS,4)}, s{sT0} offen sc1\ns_add_u32 s{sT0}, s{sT0}, s{sGs}")
    a(f"""
    s_cmp_lg_u32 s{sI}, 0
    s_cbranch_scc1 K1_g2
    s_waitcnt vmcnt(11)
    s_barrier
    """)
    a(f"""
    K1_g2:
    s_add_u32 s{sI}, s{sI}, 1
    s_waitcnt vmcnt(0)
    v_cmp_eq_u32 vcc, 0, v21
    v_readfirstlane_b32 s{sN}, v21
    s_nop 0
    v_cndmask_b32 v6, 0, 1, vcc
    """)
    for k in range(10):
        a(f"v_xor_b32 v{G+4*k+1}, v{G+4*k+1}, v21\nv_xor_b32 v{G+4*k+3}, v{G+4*k+3}, v21\nv_or3_b32 v6, v{G+4*k+1}, v{G+4*k+3}, v6")
    a(f"""
    v_cmp_ne_u32 vcc, 0, v6
    s_cbranch_vccz K1_g3
    s_sleep {SLP}
    s_cmp_lt_u32 s{sI}, {SPINMAX}
    s_cbranch_scc1 K1_gat
    K1_g3:
    """)
    for k in range(1, 10):
        a(f"v_add_f32 v{G}, v{G}, v{G+4*k}\nv_add_f32 v{G+2}, v{G+2}, v{G+4*k+2}")
    a(f"""
    s_cmp_eq_u32 s{sR}, 3
    s_cbranch_scc1 K1_gc
    v_mul_f32 v{G}, {f32(1.0/640)}, v{G}
    v_mul_f32 v{G+2}, {f32(1.0/640)}, v{G+2}
    v_cvt_pk_bf16_f32 v{G+4}, -v{G}, -v{G}
    v_fma_f32 v{G+2}, -v{G}, v{G}, v{G+2}
    v_max_f32 v{G+2}, 0, v{G+2}
    """)
    round_bf16(a, G+2, G+2)
    a(f"v_add_f32 v{G+2}, {f32(1e-5)}, v{G+2}")
    round_bf16(a, G+2, G+2)
    a(f"v_sqrt_f32 v{G+6}, v{G+2}\nv_mov_b32 v{G+5}, 0")
    round_bf16(a, G+6, G+6)
    a(f"""
    v_rcp_f32 v{G+7}, v{G+6}
    v_add_u32 v5, {XB}, v20
    s_nop 0
    ds_write_b128 v5, {vr(G+4,4)}
    s_branch K1_gd
    K1_gc:
    v_and_b32 v{G+1}, 0xffff0000, v{G}
    v_and_b32 v{G+3}, 0xffff0000, v{G+2}
    v_sub_f32 v{G}, v{G}, v{G+1}
    v_sub_f32 v{G+2}, v{G+2}, v{G+3}
    v_cvt_pk_bf16_f32 v{G+4}, v{G+1}, v{G}
    v_cvt_pk_bf16_f32 v{G+5}, v{G+3}, v{G+2}
    v_lshlrev_b32 v5, 3, v{vL}
    v_add_u32 v5, {XFC}, v5
    ds_write_b64 v5, {vr(G+4,2)}
    v_mov_b32 v5, {XN}
    ds_write_b32 v5, v21
    K1_gd:
    """)
    a("s_waitcnt lgkmcnt(0)\ns_barrier\ns_branch K2_G")
    vN = 2
    a(f"""
    K1_C:
    """)
    common2()
    a(f"""
    s_lshr_b32 s{sG}, s{sW}, 2
    s_mov_b32 s{sK0}, s{sK}
    s_mov_b32 s{DBG+2}, 256
    s_mov_b32 s{DBG+3}, 0x00020000
    v_mov_b32 v{vN+1}, 0
    v_and_b32 v{vT+4}, 31, v{vL}
    v_bfe_u32 v{vT+5}, v{vL}, 1, 3
    v_lshlrev_b32 v{vT+4}, 7, v{vT+4}
    s_waitcnt lgkmcnt(0)
    s_mov_b32 s{WS}, s6
    s_mov_b32 s{WS+1}, s7
    s_mov_b32 s{DBG}, s4
    s_mov_b32 s{DBG+1}, s5
    """)
    if TSH:
        a(f"""
        s_lshl_b32 s{sT0}, s{sW}, {6 + TSH}
        v_lshlrev_b32 v4, {TSH}, v{vL}
        s_cmp_lt_u32 s{sT0}, {WS_F3 + 0x40000}
        s_cbranch_scc0 K1_nt1
        buffer_load_dword v163, v4, {sr(WS,4)}, s{sT0} offen
        K1_nt1:
        s_cmp_lg_u32 s{sW}, 7
        s_cbranch_scc1 K1_nt2
        s_mov_b32 s24, s18
        s_mov_b32 s25, s19
        s_mov_b32 s26, {2048*1280}
        s_mov_b32 s27, 0x00020000
        buffer_load_dword v163, v4, s[24:27], 0 offen
        K1_nt2:
        """)
    a(f"""
    s_lshl_b32 s{sT1}, s{sW}, 12
    v_lshlrev_b32 v{vT+6}, 2, v{vT}
    v_xor_b32 v{vT+6}, v{vT+6}, v{vT+5}
    v_lshl_add_u32 v4, v{vT+6}, 4, v{vT+4}
    v_add_u32 v4, s{sT1}, v4
    v_xor_b32 v5, 16, v4
    v_xor_b32 v6, 32, v4
    v_xor_b32 v7, 48, v4
    v_xor_b32 v{vT+5}, v{vT+5}, v{vT}
    s_mul_i32 s{sT1}, s{sG}, {3*4096}
    v_add_u32 v{vT+4}, s{sT1}, v{vT+4}
    """)
    for i in range(4):
        a(f"v_xor_b32 v{vT+6}, {2*i}, v{vT+5}\nv_lshl_add_u32 v{vAx+i}, v{vT+6}, 4, v{vT+4}")
    a(f"""
    s_mov_b32 s{sI}, 1
    s_mov_b32 s{sDelta}, {SLOT}
    s_sub_u32 s{sT0}, s{sW}, 2
    s_cmp_lt_u32 s{sT0}, 4
    s_cselect_b32 s{sIdle}, 1, 0
    s_cmp_eq_u32 s{sCB}, 17
    s_cselect_b32 s{sIdle}, s{sIdle}, 0
    s_mul_i32 s{sHr}, s{sCB}, {65536 // RW + 1}
    s_lshr_b32 s{sHr}, s{sHr}, 16
    s_add_u32 s{sHr}, s{sHr}, 2
    s_cmp_lt_u32 s{sCB}, 10
    s_cselect_b32 s{sHr}, s{sHr}, 0
    s_cmp_lt_u32 s{sW}, 5
    s_cselect_b32 s{sHr}, s{sHr}, 0
    s_mul_i32 s{sHc}, s{sRB}, {65536 // RW + 1}
    s_lshr_b32 s{sHc}, s{sHc}, 16
    s_add_u32 s{sHc}, s{sHc}, 2
    s_cmp_lt_u32 s{sRB}, 10
    s_cselect_b32 s{sHc}, s{sHc}, 0
    """)
    for i in range(48): a(f"v_mov_b32 v{AC+i}, 0")
    a(f"s_cmp_lg_u32 s{sIdle}, 0\ns_cbranch_scc1 K1_idle\ns_barrier")
    stamp(a, 1)
    a(f"buffer_load_dword v{vN}, v{vN+1}, {sr(DBG,4)}, 0 offen sc1")
    KR = dict(fW=fW, fX=fX, AC=AC, vAx=vAx, vAw=vAw, sDelta=sDelta)
    vFl = vT + 7
    def cloop(T):
        first, ba, bb, tail = kbody.streamC(KR, T)
        a(f"K1_start{T}:")
        for l in first: a(l)
        a(f"s_branch K1_mid{T}\nK1_comp{T}:\ns_barrier")
        if 'bt' in OPT: a(f"s_memtime s[92:93]\ns_waitcnt lgkmcnt(0)\ns_sub_u32 s92, s92, s70\nv_mov_b32 v22, s92\nv_cmp_eq_u32 vcc, s{sI}, v0\ns_nop 1\nv_cndmask_b32 v23, v23, v22, vcc")
        a(f"s_cmp_eq_u32 s{sI}, s{sHr}\ns_cbranch_scc1 K1_hr\nK1_hr{T}:")
        if T == 2: a(f"s_cmp_eq_u32 s{sI}, s{sHc}\ns_cbranch_scc1 K1_hc\nK1_hc2:")
        for l in ba: a(l)
        a(f"K1_mid{T}:")
        for l in bb: a(l)
        a(f"""
        s_and_b32 s{sT0}, s{sI}, 3
        s_cmp_eq_u32 s{sT0}, 3
        s_mov_b32 s{sDelta}, {SLOT}
        s_cselect_b32 s{sDelta}, {(-3*SLOT) & 0xffffffff}, s{sDelta}
        s_add_u32 s{sI}, s{sI}, 1
        s_cmp_lg_u32 s{sI}, 11
        s_waitcnt lgkmcnt(0)
        s_cbranch_scc1 K1_comp{T}
        """)
        a("s_barrier")
        for l in tail: a(l)
    a(f"s_cmp_lg_u32 s{sG}, 0\ns_cbranch_scc0 K1_start3")
    cloop(2)
    a(f"""
    s_branch K1_cdone
    K1_idle:
    s_barrier
    s_add_u32 s{sI}, s{sI}, 1
    s_cmp_lg_u32 s{sI}, 12
    s_cbranch_scc1 K1_idle
    s_branch K1_cdone
    """)
    cloop(3)
    a("K1_cdone:")
    stamp(a, 2)
    if 'bt' in OPT:
        a(f"""
        s_lshl_b32 s92, s2, 4
        s_add_u32 s92, s92, s{sW}
        s_lshl_b32 s92, s92, 6
        s_add_u32 s92, s92, {WS_PROF + 0x40000}
        v_lshlrev_b32 v22, 2, v0
        s_mov_b64 exec, 0xffff
        buffer_store_dword v23, v22, {sr(WS,4)}, s92 offen
        s_mov_b64 exec, -1
        """)
    ST, vCA, E, PK = 144, 20, 112, 128
    vMq, vNe = 24, 30
    a(f"""
    v_and_b32 v3, 31, v{vL}
    s_mul_i32 s{sT0}, s{sG}, {96*16}
    s_add_u32 s{sT0}, s{sT0}, {XB}
    v_lshl_add_u32 v4, v3, 4, s{sT0}
    s_lshl_b32 s{sT0}, s{sR}, 7
    s_add_u32 s{sT0}, s{sT0}, {XFC}
    v_lshl_add_u32 v5, v3, 2, s{sT0}
    v_lshlrev_b32 v1, 4, v{vL}
    v_mov_b32 v{vCA+1}, 0
    s_mul_i32 s{sRT}, s{sRB}, 5
    s_mul_i32 s{sT0}, s{sG}, 3
    s_add_u32 s{sRT}, s{sRT}, s{sT0}
    s_sub_u32 s{sU}, 3, s{sG}
    s_add_u32 s{sU}, s{sU}, s{sRT}
    s_min_u32 s{sU}, s{sU}, 64
    s_lshl_b32 s{sT0}, s{sCB}, 13
    s_lshl_b32 s{sT1}, s{sR}, 11
    s_add_u32 s{sMx}, s{sT0}, s{sT1}
    v_cmp_gt_u32 vcc, 32, v{vL}
    v_mov_b32 v6, {XN}
    """)
    a(f"""
    ds_read_b32 v6, v6
    ds_read_b32 v{vCA}, v5
    ds_read_b128 {vr(ST,4)}, v4
    ds_read_b128 {vr(ST+4,4)}, v4 offset:512
    ds_read_b128 {vr(ST+8,4)}, v4 offset:1024
    s_mov_b32 s{sI}, 0
    s_waitcnt lgkmcnt(3)
    v_cndmask_b32 v{vCA}, 0, v{vCA}, vcc
    v_readfirstlane_b32 s{sN}, v6
    s_sub_u32 s{sT0}, s{sCB}, 5
    s_cmp_lt_u32 s{sT0}, 12
    s_waitcnt lgkmcnt(0)
    v_mfma_f32_32x32x8_bf16 {vr(AC,16)}, {vr(vCA,2)}, {vr(ST,2)}, {vr(AC,16)}
    v_mfma_f32_32x32x8_bf16 {vr(AC+16,16)}, {vr(vCA,2)}, {vr(ST+4,2)}, {vr(AC+16,16)}
    v_mfma_f32_32x32x8_bf16 {vr(AC+32,16)}, {vr(vCA,2)}, {vr(ST+8,2)}, {vr(AC+32,16)}
    s_cbranch_scc0 K1_lin
    s_mul_i32 s{sT3}, s{sR}, 10240
    s_mul_i32 s{sT0}, s{sG}, 6144
    s_add_u32 s{sT3}, s{sT3}, s{sT0}
    s_add_u32 s{sT3}, s{sT3}, {HS}
    v_add_u32 v1, s{sT3}, v1
    s_nop 3
    K1_epiH:
    v_mul_f32 v{vNe}, {f32(-LOG2E)}, v{ST+3}
    """)
    for i in range(8): a(f"v_pk_mul_f32 {vr(E+2*i,2)}, {vr(AC+2*i,2)}, {vr(vNe,2)} op_sel_hi:[1,0]")
    for i in range(16): a(f"v_exp_f32 v{E+i}, v{E+i}")
    for i in range(8): a(f"v_pk_fma_f32 {vr(E+2*i,2)}, {vr(E+2*i,2)}, {vr(ST+2,2)}, {vr(ST+2,2)} op_sel_hi:[1,0,0]")
    for i in range(16): a(f"v_rcp_f32 v{E+i}, v{E+i}")
    for i in range(8): a(f"v_pk_mul_f32 {vr(E+2*i,2)}, {vr(E+2*i,2)}, {vr(AC+2*i,2)}")
    for i in range(8): a(f"v_cvt_pk_bf16_f32 v{PK+i}, v{E+2*i}, v{E+2*i+1}")
    a(f"""
    ds_write_b128 v1, {vr(PK,4)}
    ds_write_b128 v1, {vr(PK+4,4)} offset:1024
    v_add_u32 v1, 2048, v1
    s_add_u32 s{sRT}, s{sRT}, 1
    s_cmp_eq_u32 s{sRT}, s{sU}
    s_cbranch_scc1 {"K1_hd" if PROF else "K2_A"}
    s_add_u32 s{sI}, s{sI}, 1
    s_cmp_eq_u32 s{sI}, 2
    s_cbranch_scc1 K1_e2
    """)
    for i in range(8): a(f"v_pk_mov_b32 {vr(AC+2*i,2)}, {vr(AC+16+2*i,2)}, {vr(AC+16+2*i,2)} op_sel:[0,1]")
    a(f"v_pk_mov_b32 {vr(ST+2,2)}, {vr(ST+6,2)}, {vr(ST+6,2)} op_sel:[0,1]\ns_branch K1_epiH\nK1_e2:")
    for i in range(8): a(f"v_pk_mov_b32 {vr(AC+2*i,2)}, {vr(AC+32+2*i,2)}, {vr(AC+32+2*i,2)} op_sel:[0,1]")
    a(f"v_pk_mov_b32 {vr(ST+2,2)}, {vr(ST+10,2)}, {vr(ST+10,2)} op_sel:[0,1]\ns_branch K1_epiH")
    if PROF:
        a("K1_hd:"); stamp(a, 3); a("s_branch K2_A")
    PQ = 96
    a(f"""
    K1_lin:
    s_cmp_lg_u32 s{sIdle}, 0
    s_cbranch_scc1 K2_A
    s_cmp_eq_u32 s{sCB}, 17
    s_mov_b32 s{sK}, {f32(20 ** -0.5 * LOG2E)}
    s_cselect_b32 s{sK}, 1.0, s{sK}
    v_mul_f32 v{vMq}, s{sK}, v{ST+3}
    v_mul_f32 v{vMq+2}, s{sK}, v{ST+7}
    v_mul_f32 v{vMq+4}, s{sK}, v{ST+11}
    s_mul_i32 s{sT3}, s{sRT}, 40960
    s_add_u32 s{sT3}, s{sT3}, s{sMx}
    s_cmp_eq_u32 s{sCB}, 17
    s_cbranch_scc1 K1_kv
    """)
    for j in range(3):
        for i in range(16): a(f"v_mul_f32 v{AC+16*j+i}, v{AC+16*j+i}, v{vMq+2*j}")
        for i in range(8): a(f"v_cvt_pk_bf16_f32 v{PQ+8*j+i}, v{AC+16*j+2*i}, v{AC+16*j+2*i+1}")
        a(f"""
        buffer_store_dwordx4 {vr(PQ+8*j,4)}, v1, {sr(WS,4)}, s{sT3} offen sc1
        buffer_store_dwordx4 {vr(PQ+8*j+4,4)}, v1, {sr(WS,4)}, s{sT3} offen offset:1024 sc1
        """)
        if j < 2:
            a(f"""
            s_add_u32 s{sT3}, s{sT3}, 40960
            s_add_u32 s{sT0}, s{sRT}, {j+1}
            s_cmp_lt_u32 s{sT0}, s{sU}
            s_cselect_b32 s{sT3}, s{sT3}, {WS_END}
            """)
    a(f"""
    s_branch K1_done
    K1_kv:
    """)
    for j in range(3):
        for i in range(12): a(f"v_mul_f32 v{AC+16*j+i}, v{AC+16*j+i}, v{vMq+2*j}")
        for i in range(6): a(f"v_cvt_pk_bf16_f32 v{PQ+8*j+i}, v{AC+16*j+2*i}, v{AC+16*j+2*i+1}")
    a(f"""
    v_lshrrev_b32 v5, 5, v{vL}
    s_bitcmp1_b32 s{sR}, 0
    s_cbranch_scc1 K1_vst
    v_mul_u32_u24 v4, 5120, v5
    v_lshl_add_u32 v4, v3, 4, v4
    v_lshlrev_b32 v5, 4, v3
    """)
    def kvbase(j):
        a(f"""
        s_add_u32 s{sT2}, s{sRT}, {j}
        s_lshr_b32 s{sT0}, s{sT2}, 2
        s_mul_i32 s{sT0}, s{sT0}, 10240
        s_add_u32 s{sT0}, s{sT0}, {WS_KV}
        s_cmp_lt_u32 s{sT2}, s{sU}
        s_cselect_b32 s{sT0}, s{sT0}, {WS_END}
        s_and_b32 s{sT2}, s{sT2}, 3
        """)
    for j in range(3):
        kvbase(j)
        a(f"""
        s_lshl_b32 s{sT1}, s{sT2}, 9
        s_add_u32 s{sT1}, s{sT1}, s{sT0}
        buffer_store_dwordx4 {vr(PQ+8*j,4)}, v4, {sr(WS,4)}, s{sT1} offen sc1
        s_and_b32 s{sT1}, s{sT2}, 1
        s_mul_i32 s{sT1}, s{sT1}, 5120
        s_add_u32 s{sT0}, s{sT0}, s{sT1}
        s_lshr_b32 s{sT1}, s{sT2}, 1
        s_lshl_b32 s{sT1}, s{sT1}, 3
        s_add_u32 s{sT0}, s{sT0}, s{sT1}
        s_mov_b32 exec_lo, 0
        buffer_store_dwordx2 {vr(PQ+8*j+4,2)}, v5, {sr(WS,4)}, s{sT0} offen offset:2048 sc1
        s_mov_b32 exec_lo, -1
        """)
    a(f"""
    s_branch K1_done
    K1_vst:
    s_lshl_b32 s{sT3}, s{sG}, 12
    s_add_u32 s{sT3}, s{sT3}, {XQ+2048}
    v_bfe_u32 v4, v3, 2, 1
    v_mul_u32_u24 v4, 640, v4
    v_lshl_add_u32 v4, v5, 6, v4
    v_lshrrev_b32 v5, 4, v3
    v_mul_u32_u24 v5, 320, v5
    v_add_u32 v4, v4, v5
    v_bfe_u32 v5, v3, 3, 1
    v_lshl_add_u32 v4, v5, 3, v4
    v_and_b32 v5, 3, v3
    v_lshl_add_u32 v4, v5, 1, v4
    v_add_u32 v4, s{sT3}, v4
    v_add_u32 v5, s{sT3}, v1
    """)
    for jj in range(3):
        if jj == 2: a("s_mov_b32 exec_lo, 0")
        for j in range(3):
            o = 1280 * j + 128 * jj - (64 if jj == 2 else 0); p = PQ + 8 * j + 2 * jj
            a(f"""
            ds_write_b16 v4, v{p} offset:{o}
            ds_write_b16_d16_hi v4, v{p} offset:{o+16}
            ds_write_b16 v4, v{p+1} offset:{o+32}
            ds_write_b16_d16_hi v4, v{p+1} offset:{o+48}
            """)
        a("s_waitcnt lgkmcnt(0)")
    a("s_mov_b32 exec_lo, -1\ns_mov_b32 exec_hi, 0xff")
    for j in range(6): a(f"ds_read_b128 {vr(AC+4*j,4)}, v5 offset:{640*j}")
    for j in range(3):
        kvbase(j)
        a(f"""
        s_mul_i32 s{sT1}, s{sT2}, 640
        s_add_u32 s{sT0}, s{sT0}, s{sT1}
        s_add_u32 s{sT1}, s{sT0}, 5120
        s_waitcnt lgkmcnt({4-2*j})
        buffer_store_dwordx4 {vr(AC+8*j,4)}, v1, {sr(WS,4)}, s{sT0} offen offset:2560 sc1
        buffer_store_dwordx4 {vr(AC+8*j+4,4)}, v1, {sr(WS,4)}, s{sT1} offen offset:2560 sc1
        """)
    a("s_mov_b32 exec_hi, -1\ns_branch K1_done")
    def hook_head():
        a(f"""
        s_sub_u32 s{sT0}, s{sI}, 1
        s_add_u32 s{sT1}, s{sT0}, s{sK0}
        s_cmp_eq_u32 s{sT1}, 10
        s_cselect_b32 s{sT1}, 0, s{sT1}
        """)
    def nonce(lab):
        a(f"""
        s_mov_b32 s{sT2}, 0
        {lab}:
        s_waitcnt vmcnt(0)
        v_readfirstlane_b32 s{sN}, v{vN}
        s_add_u32 s{sT2}, s{sT2}, 1
        s_cmp_lg_u32 s{sN}, 0
        s_cbranch_scc1 {lab}x
        buffer_load_dword v{vN}, v{vN+1}, {sr(DBG,4)}, 0 offen sc1
        s_cmp_lt_u32 s{sT2}, {SPINMAX}
        s_cbranch_scc1 {lab}
        {lab}x:
        """)
    a("K1_hr:"); hook_head()
    a(f"s_and_b32 s{sT0}, s{sT0}, 3\ns_mul_i32 s{sT0}, s{sT0}, {SLOT}")
    for i in range(4): a(f"v_add_u32 v{4+i}, s{sT0}, v{4+i}\nds_read_b128 {vr(144+4*i,4)}, v{4+i}")
    a(f"""
    v_mov_b32 v4, 0
    v_mov_b32 v6, 0
    s_mul_i32 s{sT0}, s{sRB}, 10
    s_add_u32 s{sT0}, s{sT0}, s{sT1}
    s_mul_i32 s{sT0}, s{sT0}, 2560
    s_lshl_b32 s{sT1}, s{sW}, 9
    s_add_u32 s{sT0}, s{sT0}, s{sT1}
    s_add_u32 s{sT0}, s{sT0}, {WS_SR}
    """)
    nonce("K1_n1")
    a("s_waitcnt lgkmcnt(0)")
    for i in range(16): a(f"v_dot2c_f32_bf16 v4, s{sOnes}, v{144+i}\nv_dot2c_f32_bf16 v6, v{144+i}, v{144+i}")
    a(f"""
    v_mov_b32 v5, v{vN}
    v_mov_b32 v7, v{vN}
    v_lshlrev_b32 v144, 4, v{vL}
    v_mov_b32 v8, v4
    v_mov_b32 v9, v6
    s_cmp_eq_u32 s{sG}, 0
    s_nop 0
    v_permlane32_swap_b32 v8, v4
    v_permlane32_swap_b32 v9, v6
    v_add_f32 v4, v4, v8
    v_add_f32 v6, v6, v9
    s_mov_b32 exec_hi, 0
    buffer_store_dwordx4 {vr(4,4)}, v144, {sr(WS,4)}, s{sT0} offen sc1
    s_mov_b32 exec_hi, -1
    s_cbranch_scc1 K1_hr3
    s_branch K1_hr2
    K1_hc:
    """)
    for k in range(4):
        for q in range(2): a(f"ds_read_b64_tr_b16 {vr(144+4*k+2*q,2)}, v{vAw} offset:{2048*k+256*q}")
    hook_head()
    a(f"""
    v_mov_b32 v160, 0
    s_mul_i32 s{sT0}, s{sCB}, 10
    s_add_u32 s{sT0}, s{sT0}, s{sT1}
    s_lshl_b32 s{sT0}, s{sT0}, 10
    s_add_u32 s{sT0}, s{sT0}, {WS_SC}
    s_lshl_b32 s{sT1}, s{sR}, 8
    s_add_u32 s{sT0}, s{sT0}, s{sT1}
    s_xor_b32 s{sT3}, s{sT0}, 512
    s_cmp_eq_u32 s{sCB}, 17
    s_cselect_b32 s{sT3}, s{sT3}, {WS_END}
    """)
    nonce("K1_n2")
    a("s_waitcnt lgkmcnt(0)")
    for i in range(16): a(f"v_dot2c_f32_bf16 v160, s{sOnes}, v{144+i}")
    a(f"""
    v_mov_b32 v161, v{vN}
    v_lshlrev_b32 v144, 3, v{vL}
    s_nop 0
    v_mov_b32 v162, v160
    s_nop 1
    v_permlane32_swap_b32 v162, v160
    v_add_f32 v160, v160, v162
    s_mov_b32 exec_hi, 0
    buffer_store_dwordx2 {vr(160,2)}, v144, {sr(WS,4)}, s{sT0} offen sc1
    buffer_store_dwordx2 {vr(160,2)}, v144, {sr(WS,4)}, s{sT3} offen sc1
    s_mov_b32 exec_hi, -1
    s_branch K1_hc2
    """)
    sJ, sL, sPst = 34, 35, 36
    WP = 24; vPs = 2
    a(f"""
    K1_aux:
    s_memrealtime s[66:67]
    v_bfe_u32 v{vT+4}, v{vL}, 2, 2
    v_bfe_u32 v{vT+5}, v{vL}, 4, 1
    v_lshl_add_u32 v{vT+4}, v{vT+4}, 1, v{vT+5}
    v_lshl_add_u32 v{vT+4}, v{vT+4}, 2, v{vT+1}
    v_lshlrev_b32 v{vCom}, 3, v{vT+4}
    s_lshl_b32 s{sT0}, s{sT0}, 1
    s_add_u32 s{sT0}, s{sT0}, s{sT1}
    s_sub_u32 s{sT0}, s{sT0}, 30
    s_sub_u32 s{sT2}, s{sT2}, {234-16}
    s_cmp_ge_u32 s{sT1}, 30
    s_cselect_b32 s{sT0}, s{sT0}, s{sT2}
    s_mul_i32 s{sJ}, s{sT0}, 12
    s_add_u32 s{sJ}, s{sJ}, s{sW}
    s_mul_i32 s{sL}, s{sW}, 12288
    v_lshl_add_u32 v{vT+3}, v{vT}, 6, v{vT+3}
    v_lshrrev_b32 v{vT+6}, 2, v{vT+2}
    v_and_b32 v{vT+7}, 3, v{vT+2}
    s_mov_b32 m0, s{sL}
    s_mov_b32 s{WP+3}, 0x00020000
    s_mov_b32 s{sI}, s{sJ}
    s_waitcnt lgkmcnt(0)
    s_mov_b32 s{WS}, s6
    s_mov_b32 s{WS+1}, s7
    s_mov_b32 s{DBG}, s4
    s_mov_b32 s{DBG+1}, s5
    s_mov_b32 s{DBG+2}, 256
    s_mov_b32 s{DBG+3}, 0x00020000
    s_lshl_b32 s{sU}, s{sT0}, 7
    s_add_u32 s{sU}, s{sU}, {WS_F1 + 72*4096}
    s_mov_b64 s[58:59], 1
    s_cmp_lg_u32 s{sJ}, 0
    s_cbranch_scc1 K1_a0
    s_or_b32 s66, s66, 1
    v_mov_b32 v4, s66
    v_mov_b32 v5, 0
    s_mov_b64 exec, 1
    buffer_store_dword v4, v5, {sr(DBG,4)}, 0 offen sc1
    s_mov_b64 exec, -1
    K1_a0:
    """)
    def getnonce(lab):
        a(f"""
        v_mov_b32 v5, 0
        s_mov_b32 s{sT3}, 0
        {lab}:
        buffer_load_dword v4, v5, {sr(DBG,4)}, 0 offen sc1
        s_add_u32 s{sT3}, s{sT3}, 1
        s_waitcnt vmcnt(0)
        v_readfirstlane_b32 s{sN}, v4
        s_cmp_gt_u32 s{sT3}, {SPINMAX}
        s_cbranch_scc1 {lab}x
        s_cmp_lg_u32 s{sN}, 0
        s_cbranch_scc1 {lab}x
        s_sleep 8
        s_branch {lab}
        {lab}x:
        """)
    if 'adelay' in OPT:
        a(f"s_cmp_lg_u32 s{sW}, 0\ns_cbranch_scc1 K1_a5")
        getnonce("K1_a7")
        a(f"""
        s_mul_i32 s{sT0}, s{sJ}, 640
        s_add_u32 s{sT0}, s{sT0}, {WS_SC + 4}
        v_mov_b32 v4, s{sT0}
        """)
        poll(a, "K1_a6", 4, 5, WS, sT3)
        a("K1_a5:\ns_barrier")
    a(f"""
    K1_a1:
    s_mul_i32 s{sT0}, s{sI}, 6554
    s_lshr_b32 s{sT0}, s{sT0}, 16
    s_mul_i32 s{sT1}, s{sT0}, 10
    s_sub_u32 s{sT1}, s{sI}, s{sT1}
    s_lshl_b32 s{sT1}, s{sT1}, 7
    s_sub_u32 s{sT2}, s{sT0}, 96
    s_mul_i32 s{sT3}, s{sT2}, 205
    s_lshr_b32 s{sT3}, s{sT3}, 10
    s_mul_i32 s55, s{sT3}, 5
    s_sub_u32 s55, s{sT2}, s55
    s_mul_i32 s{sT3}, s{sT3}, 80
    s_mul_i32 s56, s55, 20
    s_cmp_eq_u32 s55, 4
    s_cselect_b32 s56, 16, s56
    s_cselect_b32 s55, 1, 0
    s_add_u32 s{sT3}, s{sT3}, s56
    s_lshl_b32 s{sT2}, s{sT0}, 4
    s_cmp_lt_u32 s{sT0}, 96
    s_cselect_b32 s{sT3}, s{sT2}, s{sT3}
    s_cselect_b32 s55, 0, s55
    s_cselect_b32 s{WP}, s62, s16
    s_cselect_b32 s{WP+1}, s63, s17
    s_mov_b32 s{WP+2}, {640*1280}
    s_cselect_b32 s{WP+2}, {1536*1280}, s{WP+2}
    s_mul_i32 s{sT3}, s{sT3}, 1280
    s_add_u32 s56, s{sT3}, s{sT1}
    s_cmp_eq_u32 s55, 0
    s_cselect_b32 s{sT2}, 4, 40
    s_movk_i32 s57, {20*1280}
    s_cselect_b32 s57, {8*1280}, s57
    s_add_u32 s57, s57, s56
    v_mad_u32_u24 v{vPs}, v{vT+6}, s{sT2}, v{vT+7}
    v_mul_u32_u24 v{vPs}, 1280, v{vPs}
    v_add_u32 v{vPs}, v{vPs}, v{vT+3}
    buffer_load_dwordx4 v{vPs}, {sr(WP,4)}, s56 offen lds
    s_add_u32 m0, m0, 1024
    s_add_u32 s{sI}, s{sI}, 264
    buffer_load_dwordx4 v{vPs}, {sr(WP,4)}, s57 offen lds
    s_add_u32 m0, m0, 1024
    s_cmp_lt_u32 s{sI}, 1360
    s_cbranch_scc1 K1_a1
    v_lshl_add_u32 v4, v{vT}, 8, v{vCom}
    v_add_u32 v4, s{sL}, v4
    v_and_b32 v5, 15, v{vL}
    v_lshlrev_b32 v5, 4, v5
    v_lshl_add_u32 v5, v{vT}, 8, v5
    v_lshl_add_u32 v5, v{vT+5}, 9, v5
    s_lshl_b32 s{sPst}, s{sJ}, 11
    s_add_u32 s{sPst}, s{sPst}, {WS_WP}
    s_waitcnt vmcnt(0)
    K1_a2:
    ds_read_b64_tr_b16 {vr(32,2)}, v4
    ds_read_b64_tr_b16 {vr(34,2)}, v4 offset:1024
    ds_read_b64_tr_b16 {vr(36,2)}, v4 offset:512
    ds_read_b64_tr_b16 {vr(38,2)}, v4 offset:1536
    v_add_u32 v4, 2048, v4
    s_add_u32 s{sJ}, s{sJ}, 264
    s_waitcnt lgkmcnt(0)
    buffer_store_dwordx4 {vr(32,4)}, v5, {sr(WS,4)}, s{sPst} offen sc1
    buffer_store_dwordx4 {vr(36,4)}, v5, {sr(WS,4)}, s{sPst} offen offset:1024 sc1
    s_add_u32 s{sPst}, s{sPst}, {264*2048}
    s_cmp_lt_u32 s{sJ}, 1360
    s_cbranch_scc1 K1_a2
    """)
    getnonce("K1_a3")
    a(f"""
    s_mov_b32 s62, 0
    s_barrier
    s_cmp_ge_u32 s{sW}, 8
    s_cbranch_scc1 K2_G
    s_cmp_lg_u32 s{sW}, 0
    s_cbranch_scc1 K2_A
    s_branch K1_flag
    K1_done:
    s_lshl_b32 s{sU}, s{sCB}, 2
    s_add_u32 s{sU}, s{sU}, s{sR}
    s_lshl_b32 s{sU}, s{sU}, 5
    s_lshl_b32 s{sT0}, s{sRB}, 1
    s_add_u32 s{sU}, s{sU}, s{sT0}
    s_add_u32 s{sU}, s{sU}, s{sG}
    s_lshl_b32 s{sU}, s{sU}, 7
    s_add_u32 s{sU}, s{sU}, {WS_F1}
    s_mov_b64 s[58:59], 1
    s_cmp_lg_u32 s{sCB}, 17
    s_cbranch_scc1 K1_flag
    v_mov_b32 v4, 1
    v_mov_b32 v5, 0
    {"s_memtime s[72:73]" if PROF and 'kvs' in OPT else ""}
    s_mov_b64 exec, 1
    s_waitcnt vmcnt(0)
    {"s_memtime s[76:77]" if PROF and 'kvs' in OPT else ""}
    buffer_atomic_add v4, v5, {sr(DBG,4)}, 0 offen offset:128 sc0
    s_mov_b32 s{sU}, {WS_FK}
    s_mov_b64 s[58:59], -1
    s_waitcnt vmcnt(0)
    {"s_memtime s[90:91]" if PROF and 'kvs' in OPT else ""}
    v_readfirstlane_b32 s{sT0}, v4
    s_mov_b64 exec, -1
    s_mul_hi_u32 s{sT1}, s{sT0}, {(1 << 32) // 52 + 1}
    s_mul_i32 s{sT1}, s{sT1}, 52
    s_sub_u32 s{sT0}, s{sT0}, s{sT1}
    s_cmp_lg_u32 s{sT0}, 51
    s_cbranch_scc1 K2_A
    """)
    'kvs' in OPT or stamp(a, 3)
    setflag(a, sU, WS, 4, 5, '-1')
    a("s_branch K2_A\nK1_flag:")
    stamp(a, 3)
    a(f"s_mov_b32 s64, s{sU}\ns_branch K2_A2")

def tile_ids(a, sRB, sNB, sT0):
    if 'map84' not in OPT:
        a(f"""
        s_and_b32 s{sT0}, s2, 7
        s_lshl_b32 s{sRB}, s{sT0}, 2
        s_bfe_u32 s{sT0}, s2, 0x20003
        s_add_u32 s{sRB}, s{sRB}, s{sT0}
        s_lshr_b32 s{sNB}, s2, 5
        """)
        return
    a(f"""
    s_and_b32 s{sT0}, s2, 3
    s_lshl_b32 s{sRB}, s{sT0}, 3
    s_bfe_u32 s{sT0}, s2, 0x30003
    s_add_u32 s{sRB}, s{sRB}, s{sT0}
    s_bfe_u32 s{sT0}, s2, 0x10002
    s_lshl_b32 s{sNB}, s{sT0}, 2
    s_lshr_b32 s{sT0}, s2, 6
    s_add_u32 s{sNB}, s{sNB}, s{sT0}
    """)
def wlane(a, vL, vW, vW2, t):
    a(f"""
    v_and_b32 v{vW2}, 15, v{vL}
    v_lshlrev_b32 v{vW2}, 4, v{vW2}
    v_lshrrev_b32 v{t}, 5, v{vL}
    v_lshl_add_u32 v{vW2}, v{t}, 8, v{vW2}
    v_bfe_u32 v{t}, v{vL}, 4, 1
    v_lshl_add_u32 v{vW}, v{t}, 9, v{vW2}
    {"" if 'nozp' in OPT else f"v_lshl_add_u32 v{vW2}, v{t}, 30, v{vW2}"}
    """)

def gen_k2(a):
    sW, sR, sG, sRB, sCB, sHD, sRT = 32, 33, 34, 35, 36, 37, 38
    sI, sT0, sT1, sT2, sSrc, sVm, sSeg, sT3 = 39, 40, 41, 42, 43, 44, 52, 53
    WS, X, OUT = 28, 20, 24
    vL, vA, vD = 0, 1, 2
    QM, QT, KM, KT, V, P, O, S = 4, 8, 12, 20, 24, 40, 56, 72
    R = dict(vA=vA, QM=QM, QT=QT, KM=KM, KT=KT, V=V, P=P, O=O, S=S)
    def aids():
        a(f"""
        s_and_b32 s{sT0}, s2, 3
        s_lshl_b32 s{sRB}, s{sT0}, 2
        s_bfe_u32 s{sT0}, s2, 0x20003
        s_add_u32 s{sRB}, s{sRB}, s{sT0}
        s_bfe_u32 s{sT0}, s2, 0x10002
        s_lshl_b32 s{sCB}, s{sT0}, 3
        s_lshr_b32 s{sT0}, s2, 5
        s_add_u32 s{sCB}, s{sCB}, s{sT0}
        s_and_b32 s{sR}, s{sW}, 3
        s_lshl_b32 s{sRT}, s{sRB}, 2
        s_add_u32 s{sRT}, s{sRT}, s{sR}
        v_lshlrev_b32 v{vD}, 4, v{vL}
        """)
    a(f"K2_A:\ns_mov_b32 s64, {WS_END}\ns_mov_b64 s[58:59], 1\nK2_A2:"); aids()
    a(f"""
    s_lshr_b32 s{sG}, s{sW}, 2
    s_lshl_b32 s{sHD}, s{sCB}, 1
    s_and_b32 s{sT1}, s{sHD}, 2
    s_add_u32 s{sHD}, s{sHD}, s{sG}
    s_mul_i32 s{sT2}, s{sG}, 5
    s_add_u32 s{sT1}, s{sT1}, s{sT2}
    s_mul_i32 s{sT2}, s{sR}, 3072
    s_add_u32 s{sT2}, s{sT2}, {XQ}
    v_and_b32 v{vA}, 31, v{vL}
    v_lshlrev_b32 v{vA}, 4, v{vA}
    v_lshrrev_b32 v3, 5, v{vL}
    v_add_u32 v{P}, s{sT1}, v3
    v_add_u32 v{P+1}, 2, v{P}
    s_add_u32 s{sT1}, s{sT1}, 4
    v_mov_b32 v{P+2}, s{sT1}
    v_add_u32 v{P+3}, s{sT2}, v{vA}
    """)
    for i in range(3):
        a(f"""
        v_lshrrev_b32 v{P+4}, 2, v{P+i}
        v_lshl_add_u32 v{P+5}, v{P+4}, 10, v{P+3}
        v_and_b32 v{P+4}, 1, v{P+i}
        v_lshl_add_u32 v{P+5}, v{P+4}, 9, v{P+5}
        v_and_b32 v{P+4}, 2, v{P+i}
        v_lshl_add_u32 v{P+i}, v{P+4}, 2, v{P+5}
        """)
    a(f"""
    s_mov_b32 s{sVm}, 0x000fffff
    s_mov_b32 s{sVm+1}, 0x000fffff
    v_mul_u32_u24 v3, 5120, v3
    v_add_u32 v{vA}, v{vA}, v3
    v_and_b32 v3, 27, v{vL}
    v_cmp_eq_u32 vcc, 24, v3
    v_mov_b32 v3, 0x3f803f80
    """)
    for i in range(16): a(f"v_mov_b32 v{O+i}, 0")
    for i in range(16): a(f"v_cndmask_b32 v{V+i}, 0, v3, vcc")
    for i in range(4): a(f"v_mov_b32 v{P+12+i}, 0")
    segw = sum(n << (4 * i) for i, n in enumerate(SEGS))
    a(f"""
    s_mov_b32 s{sSeg}, {segw >> 4}
    s_mov_b32 s{sI}, {SEGS[0]}
    """)
    a(f"""
    s_lshr_b32 s54, s{sHD}, 2
    s_mul_i32 s54, s54, 5
    s_mul_i32 s55, s{sRT}, 40
    s_add_u32 s54, s54, s55
    s_lshl_b32 s54, s54, 10
    s_add_u32 s54, s54, {WS_O}
    s_and_b32 s55, s{sHD}, 3
    s_lshl_b32 s55, s55, 10
    s_add_u32 s55, s55, s54
    s_bfe_u32 s{sT2}, s{sHD}, 0x10001
    s_lshl_b32 s{sT2}, s{sT2}, 9
    s_add_u32 s54, s54, s{sT2}
    s_and_b32 s{sT2}, s{sHD}, 1
    s_lshl_b32 s{sT2}, s{sT2}, 3
    s_add_u32 s54, s54, s{sT2}
    s_add_u32 s54, s54, 4096
    s_lshl_b32 s56, s{sRT}, 5
    s_add_u32 s56, s56, s{sHD}
    s_lshl_b32 s56, s56, 7
    s_add_u32 s56, s56, {WS_F3}
    v_mov_b32 v{S}, -1
    v_mov_b32 v{S+1}, -1
    v_mov_b32 v{S+2}, -1
    v_mov_b32 v{S+3}, -1
    """)
    setflag(a, 64, WS, 10, 11, 's[58:59]')
    if 'st1' in OPT: stamp(a, 1)
    a("s_waitcnt lgkmcnt(0)\ns_barrier"); stamp(a, 4); a(f"""
    buffer_store_dwordx4 {vr(S,4)}, v{vD}, {sr(WS,4)}, s55 offen sc1
    s_mov_b32 exec_hi, 0
    buffer_store_dwordx2 {vr(S,2)}, v{vD}, {sr(WS,4)}, s54 offen sc1
    {"s_mov_b32 exec_lo, 0xff" if 'pret' in OPT else ""}
    {f"buffer_store_dwordx4 {vr(O,4)}, v{vD}, {sr(WS,4)}, s56 offen sc1" if 'pret' in OPT else ""}
    s_mov_b64 exec, -1
    ds_read_b64 {vr(QT,2)}, v{P+2}
    ds_read_b128 {vr(KT,4)}, v{vA} offset:2048
    ds_read_b64 {vr(QM,2)}, v{P}
    ds_read_b64 {vr(QM+2,2)}, v{P+1}
    ds_read_b128 {vr(KM,4)}, v{vA} offset:0
    ds_read_b128 {vr(KM+4,4)}, v{vA} offset:512
    s_waitcnt lgkmcnt({0 if PROF else 4})
    v_mfma_f32_32x32x4_2b_bf16 {vr(S,32)}, {vr(KT,2)}, {vr(QT,2)}, 0
    s_waitcnt lgkmcnt(0)
    s_nop 15
    s_nop 2
    {MF(vr(S,16), vr(KM,4), vr(QM,4), vr(S,16))}
    {MF(vr(S+16,16), vr(KM+4,4), vr(QM,4), vr(S+16,16))}
    ds_read_b128 {vr(KM,4)}, v{vA} offset:1024
    ds_read_b128 {vr(KM+4,4)}, v{vA} offset:1536
    s_mov_b64 exec, {sr(sVm,2)}
    ds_read_b128 {vr(V,4)}, v{vA} offset:2560
    ds_read_b128 {vr(V+4,4)}, v{vA} offset:2880
    s_mov_b64 exec, -1
    s_nop 7
    .p2align 6
    K2_loop:
    """)
    for l in abody.body(R, 0, (3, 2, 1), sVm): a(l)
    a(f"""
    v_add_u32 v{vA}, 10240, v{vA}
    s_sub_u32 s{sI}, s{sI}, 1
    s_cmp_lg_u32 s{sI}, 0
    s_cbranch_scc1 K2_loop
    s_and_b32 s{sI}, s{sSeg}, 15
    s_cbranch_scc0 K2_exit
    s_lshr_b32 s{sSeg}, s{sSeg}, 4
    s_barrier
    s_branch K2_loop
    K2_exit:
    """); stamp(a, 5); a(f"""
    {MF(vr(O,16), vr(V+12,4), vr(P+12,4), vr(O,16))}
    s_mov_b32 s46, {f32(2.0**-64)}
    s_mov_b32 s47, {f32(2.0**64)}
    s_nop 9
    v_cmp_nle_f32 vcc, s46, v{O+12}
    v_cmp_nge_f32 s[46:47], s47, v{O+12}
    s_waitcnt lgkmcnt(0)
    s_or_b64 vcc, vcc, s[46:47]
    s_cbranch_scc1 K2_slow
    K2_fin:
    v_rcp_f32 v{P}, v{O+12}
    v_mov_b32 v4, s{sN}
    v_lshlrev_b32 v5, 2, v{vL}
    s_waitcnt vmcnt(0)
    """)
    for i in range(12): a(f"v_mul_f32 v{O+i}, v{O+i}, v{P}")
    for i in range(6): a(f"v_cvt_pk_bf16_f32 v{S+i}, v{O+2*i}, v{O+2*i+1}")
    a(f"""
    buffer_store_dwordx4 {vr(S,4)}, v{vD}, {sr(WS,4)}, s55 offen sc1
    s_mov_b32 exec_hi, 0
    buffer_store_dwordx2 {vr(S+4,2)}, v{vD}, {sr(WS,4)}, s54 offen sc1
    {"" if 'fline' in OPT else "s_mov_b64 exec, 1"}
    buffer_store_dword v4, v5, {sr(WS,4)}, s56 offen sc1
    s_mov_b64 exec, -1
    """)
    if 'p3' in OPT: stamp(a, 1)
    if 'p3' in OPT: stamp(a, 2)
    a("s_barrier")
    if 'p3' in OPT: stamp(a, 3)
    sKQ, sRB2, sNB, sH0, sH1, sWp = 33, 35, 36, 46, 47, 48
    XR = 104; RR = 108
    def fin_prep():
        tile_ids(a, sRB2, sNB, sT0)
        srd(a, X, 8, 2048*1280); srd(a, OUT, 18, 2048*1280)
        a(f"""
        s_lshl_b32 s{sT0}, s{sW}, 6
        v_add_u32 v4, s{sT0}, v{vL}
        v_mul_u32_u24 v5, 6554, v4
        v_lshrrev_b32 v5, 16, v5
        v_mul_u32_u24 v5, {1280-160}, v5
        v_lshlrev_b32 v4, 4, v4
        v_add_u32 v5, v5, v4
        s_mul_i32 s{sT3}, s{sRB2}, {64*1280}
        s_mul_i32 s{sT1}, s{sNB}, 160
        s_add_u32 s{sT3}, s{sT3}, s{sT1}
        v_add_u32 v6, 51200, v4
        buffer_load_dwordx4 {vr(XR,4)}, v5, {sr(X,4)}, s{sT3} offen
        """)
    fin_prep()
    a("K3_bar:\ns_barrier")
    if 'p3' in OPT: stamp(a, 4); a("s_waitcnt lgkmcnt(0)")
    for p in range(4):
        for h in range(2): a(f"ds_read_b128 {vr(RR+8*p+4*h,4)}, v{4 if p < 2 else 6} offset:{(p%2)*25600 + h*10240}")
    a("s_waitcnt vmcnt(0)")
    for i in range(4): a(f"v_lshlrev_b32 v{8+2*i}, 16, v{XR+i}\nv_and_b32 v{9+2*i}, 0xffff0000, v{XR+i}")
    for p in range(4):
        a(f"s_waitcnt lgkmcnt({6-2*p})")
        for i in range(4): a(f"v_pk_add_f32 {vr(8+2*i,2)}, {vr(8+2*i,2)}, {vr(RR+8*p+2*i,2)}")
    for i in range(4): a(f"v_cvt_pk_bf16_f32 v{XR+i}, v{8+2*i}, v{9+2*i}")
    a(f"buffer_store_dwordx4 {vr(XR,4)}, v5, {sr(OUT,4)}, s{sT3} offen {os.environ.get('OUTF', '')}\nK_pe:")
    prof_end(a, 0, WS, sW)
    a("K_end:\ns_endpgm")
    vW, vW2 = 1, 3
    ACC, FR = 8, 104
    a("K2_G:"); aids()
    def fill(n, lab):
        a(f"""
        s_mov_b32 s{sI}, {n}
        {lab}:
        buffer_load_dwordx4 v{vD}, {sr(WS,4)}, s{sSrc} offen sc1 lds
        s_add_u32 s{sSrc}, s{sSrc}, 4096
        s_add_u32 m0, m0, 4096
        s_sub_u32 s{sI}, s{sI}, 1
        s_cmp_lg_u32 s{sI}, 0
        s_cbranch_scc1 {lab}
        """)
    rowidx(a, sT1, sRT, sT0)
    a(f"""
    s_lshl_b32 s{sT0}, s{sR}, 10
    s_add_u32 s{sSrc}, s{sT0}, {WS_KV}
    s_mov_b32 m0, s{sT0}
    s_mul_i32 s{sT2}, s{sCB}, 10
    s_lshr_b32 s{sT2}, s{sT2}, 2
    v_and_b32 v4, 2, v{vL}
    v_add_u32 v4, s{sT2}, v4
    v_lshrrev_b32 v4, 1, v4
    v_lshl_add_u32 v4, v4, 5, s{sT1}
    v_lshlrev_b32 v4, 7, v4
    v_add_u32 v4, {WS_F1}, v4
    s_and_b32 s{sT0}, s2, 63
    s_lshl_b32 s{sT0}, s{sT0}, 8
    s_add_u32 s{sT0}, s{sT0}, {WS_FK}
    v_writelane_b32 v4, s{sT0}, 0
    s_mul_i32 s54, s{sRT}, 40
    s_add_u32 s54, s54, s{sT2}
    s_lshl_b32 s54, s54, 10
    s_mov_b32 s{sT3}, 0
    s_mov_b32 s{sSeg}, 1
    buffer_load_dword v5, v4, {sr(WS,4)}, 0 offen sc1
    """)
    for i in range(96): a(f"v_mov_b32 v{ACC+i}, 0")
    tile_ids(a, sRB2, sNB, sT0)
    wlane(a, vL, vW, vW2, 6)
    a(f"""
    K2_p1:
    s_waitcnt vmcnt(0)
    v_cmp_ne_u32 vcc, s{sN}, v5
    s_add_u32 s{sT3}, s{sT3}, 1
    s_cmp_ge_u32 s{sT3}, {SPINMAX}
    s_cselect_b64 vcc, 0, vcc
    s_andn2_b32 s{sT0}, s{sSeg}, vcc_lo
    s_cbranch_scc0 K2_p1b
    s_mov_b32 s{sSeg}, 0
    """)
    stamp(a, 2)
    fill(NF1, "K2_f1")
    a(f"""
    K2_p1b:
    s_cmp_eq_u64 vcc, 0
    s_cbranch_scc1 K2_p1x
    s_sleep {SLP}
    buffer_load_dword v5, v4, {sr(WS,4)}, 0 offen sc1
    s_branch K2_p1
    K2_p1x:
    s_mov_b32 s{sSeg}, m0
    s_mul_i32 s{sT1}, s{sR}, 3072
    s_add_u32 m0, s{sT1}, {XQ}
    s_nop 0
    """)
    for i in range(3): a(f"buffer_load_dwordx4 v{vD}, {sr(WS,4)}, s54 offen offset:{1024*i} sc1 lds")
    a(f"""
    s_mov_b32 m0, s{sSeg}
    s_setprio 3
    s_waitcnt vmcnt(0)
    s_barrier
    """); stamp(a, 3)
    a(f"""
    s_mul_i32 s{sT0}, s{sR}, 10240
    s_add_u32 s{sT0}, s{sT0}, {HS}
    v_add_u32 v4, s{sT0}, v{vD}
    """)
    for i in range(10): a(f"ds_read_b128 {vr(FR+4*i,4)}, v4 offset:{1024*i}")
    fill(10, "K2_f2")
    a(f"""
    s_waitcnt vmcnt(0) lgkmcnt(0)
    s_barrier
    s_cmp_eq_u32 s62, 0
    s_cbranch_scc1 K2_nh
    """)
    for j in range(5):
        if j == 4: a(f"s_cmp_lt_u32 s62, {WS_H + 64*96*1024}\ns_cselect_b32 s62, s62, {WS_END}")
        a(f"""
        buffer_store_dwordx4 {vr(FR+8*j,4)}, v{vD}, {sr(WS,4)}, s62 offen sc1
        buffer_store_dwordx4 {vr(FR+8*j+4,4)}, v{vD}, {sr(WS,4)}, s62 offen offset:1024 sc1
        s_add_u32 s62, s62, {96*1024}
        """)
    a("K2_nh:")
    fill(25, "K2_f3")
    a(f"""
    s_cmp_eq_u32 s62, 0
    s_cselect_b32 s63, {WS_END}, s63
    v_mov_b32 v4, s{sN}
    v_mov_b32 v5, 0
    s_mov_b64 exec, 1
    s_waitcnt vmcnt(25)
    buffer_store_dword v4, v5, {sr(WS,4)}, s63 offen sc1
    s_mov_b64 exec, -1
    s_waitcnt vmcnt(1)
    s_barrier
    """)
    a(f"s_lshl_b32 s{sT2}, s{sRB2}, 1")
    rowidx(a, sH0, sT2, sT0)
    a(f"s_add_u32 s{sT2}, s{sT2}, 1")
    rowidx(a, sH1, sT2, sT0)
    a(f"""
    v_and_b32 v4, 1, v{vL}
    v_cmp_eq_u32 vcc, 0, v4
    v_mov_b32 v4, s{sH0}
    v_mov_b32 v5, s{sH1}
    v_cndmask_b32 v4, v5, v4, vcc
    v_and_b32 v4, 30, v4
    v_lshrrev_b32 v5, 1, v{vL}
    v_min_u32 v5, 11, v5
    s_mul_i32 s{sT0}, s{sKQ}, 12
    s_add_u32 s{sT0}, s{sT0}, 20
    v_add_u32 v5, s{sT0}, v5
    v_lshl_add_u32 v4, v5, 5, v4
    v_cmp_gt_u32 vcc, 32, v{vL}
    v_min_u32 v5, 53, v{vL}
    v_add_u32 v5, {72*32 - 32}, v5
    v_cndmask_b32 v4, v5, v4, vcc
    v_lshlrev_b32 v4, 7, v4
    v_add_u32 v4, {WS_F1}, v4
    s_mul_i32 s{sH0}, s{sRB2}, 192
    s_mul_i32 s{sT0}, s{sKQ}, 24
    s_add_u32 s{sH0}, s{sH0}, s{sT0}
    s_lshl_b32 s{sH0}, s{sH0}, 10
    s_add_u32 s{sH0}, s{sH0}, {WS_H}
    s_add_u32 s{sH1}, s{sH0}, {96*1024}
    s_mul_i32 s{sWp}, s{sT0}, 20480
    s_mul_i32 s{sT0}, s{sNB}, 2560
    s_add_u32 s{sWp}, s{sWp}, s{sT0}
    s_add_u32 s{sWp}, s{sWp}, {WS_WP}
    """)
    if 'st3' in OPT: stamp(a, 2)
    poll(a, "K2_p3", 4, 5, WS, sT3)
    stamp(a, 1)
    def gload(j):
        b = FR + 20 * j
        a(f"""
        buffer_load_dwordx4 {vr(b,4)}, v{vD}, {sr(WS,4)}, s{sH0} offen offset:{1024*j} sc1
        buffer_load_dwordx4 {vr(b+4,4)}, v{vD}, {sr(WS,4)}, s{sH1} offen offset:{1024*j} sc1
        buffer_load_dwordx4 {vr(b+8,4)}, v{vW}, {sr(WS,4)}, s{sWp} offen sc1
        buffer_load_dwordx4 {vr(b+12,4)}, v{vW}, {sr(WS,4)}, s{sWp} offen offset:1024 sc1
        buffer_load_dwordx4 {vr(b+16,4)}, v{vW2}, {sr(WS,4)}, s{sWp} offen offset:2048 sc1
        s_add_u32 s{sWp}, s{sWp}, 20480
        """)
    for j in range(3): gload(j)
    a(f"s_setprio {GPRIO}")
    a(f"""
    s_mov_b32 s{sI}, 8
    K2_Gl:
    s_add_u32 s{sH0}, s{sH0}, 3072
    s_add_u32 s{sH1}, s{sH1}, 3072
    s_cmp_eq_u32 s{sI}, 1
    s_cselect_b32 s{sH0}, {WS_END}, s{sH0}
    s_cselect_b32 s{sH1}, {WS_END}, s{sH1}
    s_cselect_b32 s{sWp}, {WS_END}, s{sWp}
    """)
    def mm6(aw, bo):
        for t in range(3):
            for r in range(2):
                a(MF(vr(ACC+48*r+16*t,16), vr(aw+4*t,4), vr(bo+4*r,4), vr(ACC+48*r+16*t,16)))
    for j in range(3):
        b = FR + 20 * j
        a("s_waitcnt vmcnt(10)")
        mm6(b + 8, b)
        gload(j)
    a(f"""
    s_sub_u32 s{sI}, s{sI}, 1
    s_cmp_lg_u32 s{sI}, 0
    s_cbranch_scc1 K2_Gl
    """); 'st2' in OPT or stamp(a, 4)
    a(f"""
    s_setprio 3
    s_mul_i32 s{sT2}, s{sKQ}, 25600
    s_mul_i32 s{sWp}, s{sKQ}, {10*20480}
    s_mul_i32 s{sT0}, s{sNB}, 2560
    s_add_u32 s{sWp}, s{sWp}, s{sT0}
    s_add_u32 s{sWp}, s{sWp}, {WS_WP + 96*20480}
    s_mov_b32 m0, s{sT2}
    v_add_u32 v{vW}, s{sT2}, v{vW}
    v_add_u32 v{vW2}, s{sT2}, v{vW2}
    s_lshl_b32 s{sT0}, s{sRB2}, 3
    s_add_u32 s{sT0}, s{sT0}, s{sKQ}
    s_lshl_b32 s{sT0}, s{sT0}, 10
    s_add_u32 s{sT0}, s{sT0}, {WS_F3}
    v_and_b32 v7, 39, v{vL}
    v_lshl_add_u32 v7, v7, 7, s{sT0}
    s_mul_i32 s{sH0}, s{sRB2}, 80
    s_mul_i32 s{sT0}, s{sKQ}, 10
    s_add_u32 s{sH0}, s{sH0}, s{sT0}
    s_lshl_b32 s{sH0}, s{sH0}, 10
    s_add_u32 s{sH0}, s{sH0}, {WS_O}
    s_add_u32 s{sH1}, s{sH0}, 40960
    s_mul_i32 s49, s{sNB}, {ROT3}
    s_lshr_b32 s49, s49, 2
    s_mul_i32 s{sT0}, s49, 20480
    s_add_u32 s50, s{sWp}, {10*20480}
    s_add_u32 s{sWp}, s{sWp}, s{sT0}
    s_lshl_b32 s49, s49, 10
    s_mov_b32 s{sI}, 10
    s_waitcnt vmcnt(0)
    s_barrier
    K2_f4:
    buffer_load_dwordx4 v{vD}, {sr(WS,4)}, s{sWp} offen sc1 lds
    buffer_load_dwordx4 v{vD}, {sr(WS,4)}, s{sWp} offen offset:1024 sc1 lds
    s_mov_b32 exec_hi, 0
    buffer_load_dwordx4 v{vD}, {sr(WS,4)}, s{sWp} offen offset:2048 sc1 lds
    s_mov_b32 exec_hi, -1
    s_add_u32 s{sWp}, s{sWp}, 20480
    s_cmp_eq_u32 s{sWp}, s50
    s_cselect_b32 s{sT0}, {10*20480}, 0
    s_sub_u32 s{sWp}, s{sWp}, s{sT0}
    s_add_u32 m0, m0, 2560
    s_sub_u32 s{sI}, s{sI}, 1
    s_cmp_lg_u32 s{sI}, 0
    s_cbranch_scc1 K2_f4
    """)
    FO, FW = 104, 140
    def wread(j):
        b = FW + 12 * (j % 2)
        a(f"""
        ds_read_b128 {vr(b,4)}, v{vW} offset:{2560*j}
        ds_read_b128 {vr(b+4,4)}, v{vW} offset:{2560*j+1024}
        ds_read_b128 {vr(b+8,4)}, v{vW2} offset:{2560*j+2048}
        """)
    OA = 88
    def oissue(j):
        b = FO + 8 * (j % 4)
        a(f"""
        buffer_load_dwordx4 {vr(b,4)}, v{vD}, {sr(WS,4)}, s{OA+2*(j%4)} offen sc1
        buffer_load_dwordx4 {vr(b+4,4)}, v{vD}, {sr(WS,4)}, s{OA+2*(j%4)+1} offen sc1
        """)
    def oaddr(j):
        a(f"""
        s_add_u32 s{OA+2*(j%4)}, s{sH0}, s49
        s_add_u32 s{OA+2*(j%4)+1}, s{sH1}, s49
        s_add_u32 s49, s49, 1024
        s_cmp_eq_u32 s49, 10240
        s_cselect_b32 s49, 0, s49
        """)
    a("s_waitcnt vmcnt(0)")
    wread(0); wread(1)
    for j in range(4): oaddr(j)
    a(f"s_mov_b32 s51, {SPINMAX}\ns_barrier")
    if 'p3' in OPT: stamp(a, 1)
    poll(a, "K2_p4", 7, 5, WS, sT3)
    'st2' in OPT or stamp(a, 5)
    for j in range(4): oissue(j)
    retry = []
    for j in range(10):
        later = min(j + 3, 9) - j
        b = FO + 8 * (j % 4)
        a(f"""
        s_waitcnt vmcnt({2*later}) lgkmcnt({0 if (j == 9 or PROF) else 3})
        K3_c{j}:
        v_max3_u32 v5, v{b}, v{b+2}, v{b+4}
        v_max_u32 v5, v5, v{b+6}
        v_cmp_eq_u32 vcc, -1, v5
        s_cbranch_vccnz K3_r{j}
        K3_m{j}:
        """)
        mm6(FW + 12 * (j % 2), b)
        if j + 4 < 10: oaddr(j + 4); oissue(j + 4)
        if j + 2 < 10: wread(j + 2)
    def retries():
        for j in range(10):
            a(f"K3_r{j}:\ns_cmp_eq_u32 s51, 0\ns_cbranch_scc1 K3_m{j}\ns_sub_u32 s51, s51, 1")
            oissue(j)
            a(f"s_waitcnt vmcnt(0)\ns_branch K3_c{j}")
    if 'p3' in OPT: stamp(a, 2)
    fin_prep()
    a(f"""
    v_and_b32 v7, 31, v{vL}
    v_mul_u32_u24 v7, 160, v7
    v_lshrrev_b32 v{RR}, 5, v{vL}
    v_mul_u32_u24 v{RR}, 10240, v{RR}
    v_add3_u32 v7, v7, v{RR}, s{sT2}
    """)
    for r in range(2):
        for o in range(10): a(f"ds_write_b128 v7, {vr(ACC+48*r+4*o,4)} offset:{5120*r+16*o}")
    a(f"""
    s_waitcnt lgkmcnt(0)
    {"s_memtime s[76:77]" if PROF and 'p3' in OPT else ""}
    s_cmp_lt_u32 s{sW}, 10
    s_cbranch_scc1 K3_bar
    s_barrier
    {"s_branch K_pe" if PROF else "s_endpgm"}
    """)
    retries()
    vMx = 3
    sP, sO1, sO2, sO3 = 48, 49, 50, 51
    a(f"""
    K_last:
    K2_slow:
    v_subrev_u32 v{vA}, {16*10240}, v{vA}
    v_mov_b32 v{vMx}, 0xff800000
    s_mov_b32 s{sP}, 0
    """)
    for i in range(16): a(f"v_mov_b32 v{O+i}, 0")
    a(f"""
    K2_sp:
    s_mov_b32 s{sI}, 0
    K2_sl:
    s_lshr_b32 s{sT0}, s{sI}, 1
    s_mul_i32 s{sT0}, s{sT0}, 10240
    s_add_u32 s{sT0}, s{sT0}, {WS_KV}
    s_and_b32 s{sT1}, s{sI}, 1
    s_lshl_b32 s{sO1}, s{sT1}, 10
    s_add_u32 s{sO1}, s{sO1}, s{sT0}
    s_lshl_b32 s{sO2}, s{sT1}, 3
    s_add_u32 s{sO2}, s{sO2}, s{sT0}
    s_mul_i32 s{sO3}, s{sT1}, 1280
    s_add_u32 s{sO3}, s{sO3}, s{sT0}
    buffer_load_dwordx4 {vr(KM,4)}, v{vA}, {sr(WS,4)}, s{sO1} offen sc1
    buffer_load_dwordx4 {vr(KM+4,4)}, v{vA}, {sr(WS,4)}, s{sO1} offen offset:512 sc1
    buffer_load_dwordx2 {vr(KT,2)}, v{vA}, {sr(WS,4)}, s{sO2} offen offset:2048 sc1
    s_mov_b64 exec, {sr(sVm,2)}
    """)
    for f in range(4): a(f"buffer_load_dwordx4 {vr(V+4*f,4)}, v{vA}, {sr(WS,4)}, s{sO3} offen offset:{2560+320*f} sc1")
    a(f"""
    s_mov_b64 exec, -1
    s_waitcnt vmcnt(0)
    v_mfma_f32_32x32x4_2b_bf16 {vr(S,32)}, {vr(KT,2)}, {vr(QT,2)}, 0
    s_nop 15
    s_nop 3
    {MF(vr(S,16), vr(KM,4), vr(QM,4), vr(S,16))}
    {MF(vr(S+16,16), vr(KM+4,4), vr(QM,4), vr(S+16,16))}
    s_cmp_lg_u32 s{sP}, 0
    s_nop 12
    s_cbranch_scc1 K2_sp2
    """)
    for i in range(16): a(f"v_max3_f32 v{vMx}, v{S+2*i}, v{S+2*i+1}, v{vMx}")
    a("s_branch K2_snext\nK2_sp2:")
    for i in range(32): a(f"v_sub_f32 v{S+i}, v{S+i}, v{vMx}")
    for i in range(32): a(f"v_exp_f32 v{S+i}, v{S+i}")
    a("s_nop 0")
    for i in range(16): a(f"v_cvt_pk_bf16_f32 v{P+i}, v{S+2*i}, v{S+2*i+1}")
    a("s_nop 1")
    for f in range(4): a(MF(vr(O,16), vr(V+4*f,4), vr(P+4*f,4), vr(O,16)))
    a(f"""
    s_nop 15
    K2_snext:
    s_add_u32 s{sI}, s{sI}, 1
    s_cmp_lt_u32 s{sI}, 32
    s_cbranch_scc1 K2_sl
    s_cmp_lg_u32 s{sP}, 0
    s_cbranch_scc1 K2_fin
    v_mov_b32 v{P}, v{vMx}
    s_nop 1
    v_permlane32_swap_b32 v{P}, v{vMx}
    s_mov_b32 s{sP}, 1
    v_max_f32 v{vMx}, v{vMx}, v{P}
    s_branch K2_sp
    """)
    return 164

def main(out):
    a = Asm()
    gen_k1(a); n = gen_k2(a)
    head = f"""; LayerNorm + MQA attention + SiLU FFN in one launch (generated by work/gen6.py)
; @launch grid=(256,1,1) block=(768,1,1) lds=163840
.amdgcn_target "amdgcn-amd-amdhsa--gfx950"
.text
"""
    tail = '.section .rodata,"a"\n' + kdesc(KN, n)
    txt = a.text()
    import re
    if 'pollsys' in OPT: txt = re.sub(r"(buffer_load_dword v\d+, v\d+, s\[28:31\], 0 offen) sc1", r"\1 sc0 sc1", txt)
    if 'flagsys' in OPT: txt = re.sub(r"(buffer_store_dword v\d+, v\d+, s\[28:31\], s\d+ offen) sc1", r"\1 sc0 sc1", txt)
    if 'flagatom' in OPT: txt = re.sub(r"buffer_store_dword (v\d+, v\d+, s\[28:31\], s\d+ offen) sc1", r"buffer_atomic_swap \1", txt)
    if 'allsys' in OPT: txt = re.sub(r"(?<!sc0) sc1", " sc0 sc1", txt)
    if 'rt' in OPT: txt = txt.replace("s_memtime", "s_memrealtime")
    open(out, "w").write(head + txt + tail)

if __name__ == "__main__":
    if "--prof" in sys.argv:
        PROF = True; sys.argv.remove("--prof")
    main(sys.argv[1] if len(sys.argv) > 1 else f"cdna_kernels/{NAME}.s")
```

```python
import sys, math, os, struct
import abody, kbody
OPT = set(os.environ.get('OPT', '').split(','))
NAME = "parallel_sum__grouped_kv_mqa__dense_activation_silu__prompt"
WS_Q, WS_KV, WS_H, WS_O, WS_WP, WS_Y, WS_PROF, WS_END = 0, 0x300000, 0x340000, 0x940000, 0xD00000, 0x1000000, 0xC00000, 0x1500000
WS_SR, WS_SC = 0x280000, 0x2D2000
WS_F1, WS_F3, WS_FK = 0x1000000, 0x1080000, 0x1060000
SLP = int(os.environ.get('SLP', '4'))
XB = 147456; XFC, XN, XQ = XB + 2560, XB + 3072, XB + 4096
sN = 68
KN = NAME + '_kernel'
SPINMAX = 20000
ROTR, ROTC = (int(c) for c in os.environ.get('ROT', '3,3').split(','))
PRE = int(os.environ.get('PRE', '2'))
PRE_CTRL = """s_or_b32 s{sT0}, s{sI}, 2
    s_cmp_eq_u32 s{sT0}, 3
    s_cbranch_scc1 K1_issue
    s_cmp_lg_u32 s{sI}, 2
    s_cbranch_scc1 K1_w18""" if PRE == 2 else """s_cmp_lt_u32 s{sI}, %d
    s_cbranch_scc1 K1_issue
    s_cmp_lg_u32 s{sI}, %d
    s_cbranch_scc1 K1_w18""" % (PRE, PRE)
CSAT = int(os.environ.get('CSAT', '2'))
NF1 = 5
HS = 102400
SEGS = eval(os.environ.get('SEGS', '[1, 3, 10, 2]'))
DEEP = int(os.environ.get('DEEP', '99'))
GPRIO = int(os.environ.get('GPRIO', '0'))
ROT3 = int(os.environ.get('ROT3', '5'))
RW = int(os.environ.get('RW', '10')); RMUL = int(os.environ.get('RMUL', '3'))
TSH = int(os.environ.get('TSH', '0'))
HOOK = int(os.environ.get('HOOK', '2'))
LOG2E = 1.4426950408889634
def f32(x): return "0x%08x" % struct.unpack("<I", struct.pack("<f", x))[0]

class Asm:
    def __init__(self): self.l = []
    def __call__(self, s):
        for x in s.strip("\n").split("\n"):
            x = x.strip()
            if x: self.l.append(("" if x.endswith(":") else "    ") + x)
    def text(self): return "\n".join(self.l) + "\n"
def vr(a, n): return "v[%d:%d]" % (a, a + n - 1)
def ar(a, n): return "a[%d:%d]" % (a, a + n - 1)
def sr(a, n): return "s[%d:%d]" % (a, a + n - 1)
def srd(a, d, base, nbytes):
    a(f"s_mov_b32 s{d}, s{base}\ns_mov_b32 s{d+1}, s{base+1}\ns_mov_b32 s{d+2}, {nbytes}\ns_mov_b32 s{d+3}, 0x00020000")
def kdesc(name, vgpr, agpr=0, sgpr=102):
    acc = (vgpr + 3) // 4 * 4
    return f""".p2align 6
.amdhsa_kernel {name}
  .amdhsa_next_free_vgpr {acc + agpr if agpr else vgpr}
  .amdhsa_next_free_sgpr {sgpr}
  .amdhsa_accum_offset {acc}
  .amdhsa_group_segment_fixed_size 0
  .amdhsa_kernarg_size 88
  .amdhsa_user_sgpr_count 2
  .amdhsa_user_sgpr_kernarg_segment_ptr 1
  .amdhsa_system_sgpr_workgroup_id_x 1
.end_amdhsa_kernel
"""
def khead(a, name): a.l.append(f".globl {name}\n.p2align 8\n.type {name},@function\n{name}:")
PROF = False
DIAGX = int(os.environ.get('DIAGX', '0'))
DIAGC = os.environ.get('DIAGC', '')
def stamp(a, i):
    if DIAGX:
        a(f"{'s_memtime' if DIAGC else 's_memrealtime'} s[{70+2*i}:{71+2*i}]")
        return
    if 'dbgt' in OPT:
        a(f"s_memrealtime s[{70+2*i}:{71+2*i}]")
        if i == 0: a("s_mov_b32 s72, 0\ns_mov_b32 s74, 0\ns_mov_b32 s76, 0")
        return
    if PROF:
        a(f"s_memtime s[{70+2*i}:{71+2*i}]")
        if i == 0: a("s_memrealtime s[84:85]")
def prof_end(a, kidx, WS, sW):
    if DIAGX:
        a(f"""
        s_cmp_lg_u32 s{sW}, {DIAGC.split(',')[1] if DIAGC else 0}
        s_cbranch_scc1 K_end
        s_cmp_lg_u32 s2, {int(os.environ.get('DIAGWG', '40'))}
        s_cbranch_scc1 K_end
        s_waitcnt vmcnt(0)
        s_memrealtime s[82:83]
        s_waitcnt lgkmcnt(0)
        {f"s_sub_u32 s84, s{70+2*DIAGX}, s70" if DIAGX < 7 else f"s_sub_u32 s84, s70, s{sN}"}
        {"s_add_u32 s84, s84, 1500" if DIAGX == 7 else ""}
        s_lshl_b32 s84, s84, 2
        {f"s_sub_u32 s84, s{70+2*DIAGX}, s{70+2*int(DIAGC.split(',')[0])}" if DIAGC else ""}
        {"s_lshr_b32 s84, s84, 2" if DIAGC else ""}
        K_dl:
        s_memrealtime s[86:87]
        s_waitcnt lgkmcnt(0)
        s_sub_u32 s86, s86, s82
        s_cmp_lt_u32 s86, s84
        s_cbranch_scc1 K_dl
        """)
        return
    if 'dbgt' in OPT:
        a(f"""
        s_cmp_lg_u32 s{sW}, 0
        s_cbranch_scc1 K_end
        s_waitcnt vmcnt(0)
        s_memrealtime s[82:83]
        s_mov_b32 s20, s4
        s_mov_b32 s21, s5
        s_mov_b32 s22, 256
        s_mov_b32 s23, 0x00020000
        s_mov_b64 exec, 1
        v_mov_b32 v0, 0
        s_waitcnt lgkmcnt(0)
        s_not_b32 s84, s70
        v_mov_b32 v1, s84
        buffer_atomic_umax v1, v0, s[20:23], 0 offen offset:4
        """)
        for i in range(7):
            a(f"v_mov_b32 v{2+i}, s{70+2*i}\nbuffer_atomic_umax v{2+i}, v0, s[20:23], 0 offen offset:{8+4*i}")
        return
    if not PROF: return
    a(f"""
    s_waitcnt vmcnt(0)
    s_memtime s[82:83]
    s_memrealtime s[86:87]
    s_mov_b64 exec, -1
    s_waitcnt lgkmcnt(0)
    s_lshl_b32 s88, s2, 4
    s_add_u32 s88, s88, s{sW}
    s_lshl_b32 s88, s88, 6
    s_add_u32 s88, s88, {WS_PROF + kidx * 0x40000}
    v_mov_b32 v0, 0
    """)
    if 'kvs' in OPT: a("s_mov_b32 s80, s90")
    if 'lacc' in OPT: a(f"s_cmp_lt_u32 s{sW}, 8\ns_cbranch_scc1 K_pe2\ns_add_u32 s76, s70, s95\ns_add_u32 s78, s70, s96\ns_add_u32 s80, s70, s97\nK_pe2:")
    for i in range(7): a(f"v_mov_b32 v{4+i}, s{70+2*i}")
    a(f"""
    v_mov_b32 v11, s84
    v_mov_b32 v12, s86
    v_mov_b32 v13, 0
    v_mov_b32 v14, 0
    v_mov_b32 v15, 0
    s_mov_b64 exec, 1
    buffer_store_dwordx4 v[4:7], v0, {sr(WS,4)}, s88 offen
    buffer_store_dwordx4 v[8:11], v0, {sr(WS,4)}, s88 offen offset:16
    buffer_store_dwordx4 v[12:15], v0, {sr(WS,4)}, s88 offen offset:32
    """)
def poll(a, lab, vaddr, vtmp, WS, sCnt):
    a(f"""
    s_mov_b32 s{sCnt}, 0
    {lab}:
    buffer_load_dword v{vtmp}, v{vaddr}, {sr(WS,4)}, 0 offen sc1
    s_add_u32 s{sCnt}, s{sCnt}, 1
    s_waitcnt vmcnt(0)
    v_cmp_ne_u32 vcc, s{sN}, v{vtmp}
    s_cbranch_vccz {lab}x
    s_sleep {SLP}
    s_cmp_lt_u32 s{sCnt}, {SPINMAX}
    s_cbranch_scc1 {lab}
    {lab}x:
    """)
def setflag(a, soff, WS, v0, v1, emask="1"):
    a(f"""
    v_mov_b32 v{v0}, s{sN}
    v_lshlrev_b32 v{v1}, 8, v0
    s_mov_b64 exec, {emask}
    s_waitcnt vmcnt(0)
    buffer_store_dword v{v0}, v{v1}, {sr(WS,4)}, s{soff} offen sc1
    s_mov_b64 exec, -1
    """)
def rowidx(a, d, rt, t):
    a(f"""
    s_mul_i32 s{d}, s{rt}, 205
    s_lshr_b32 s{d}, s{d}, 10
    s_mul_i32 s{t}, s{d}, 5
    s_sub_u32 s{t}, s{rt}, s{t}
    s_lshl_b32 s{d}, s{d}, 1
    s_cmp_ge_u32 s{t}, 3
    s_addc_u32 s{d}, s{d}, 0
    """)
def round_bf16(a, d, s): a(f"v_cvt_pk_bf16_f32 v{d}, v{s}, v{s}\nv_lshlrev_b32 v{d}, 16, v{d}")
def MF(d, A, B, C): return f"v_mfma_f32_32x32x16_bf16 {d}, {A}, {B}, {C}"

def ldswait(a, lab, vaddr, vtmp, sTmp, sNeed, off=0):
    a(f"""
    {lab}:
    ds_read_b32 v{vtmp}, v{vaddr} offset:{off}
    s_waitcnt lgkmcnt(0)
    v_readfirstlane_b32 s{sTmp}, v{vtmp}
    s_cmp_ge_u32 s{sTmp}, {sNeed}
    s_cbranch_scc1 {lab}x
    {'s_sleep 1' if 'nosl' not in OPT else ''}
    s_sub_u32 s65, s65, 1
    s_cbranch_scc0 {lab}
    s_mov_b32 s65, 0
    {lab}x:
    """)
def ldsadd(a, vaddr, vone, off=0):
    a(f"s_mov_b64 exec, 1\nds_add_u32 v{vaddr}, v{vone} offset:{off}\ns_mov_b64 exec, -1")

def acc(a, i):
    if PROF and 'lacc' in OPT:
        a(f"s_memtime s[92:93]\ns_waitcnt lgkmcnt(0)\ns_sub_u32 s94, s92, s91\ns_mov_b32 s91, s92\ns_add_u32 s{95+i}, s{95+i}, s94")
def gen_k1(a):
    khead(a, KN)
    SLOT = 36864
    CNT = XN + 16
    sW, sR, sG, sRB, sCB = 32, 33, 34, 35, 36
    sI, sK, sSlot, sT0, sT1, sMx, sNeed, sStr64, sDelta, sRd, sT2, sT3, sK0, sMB, sU, sTyp, sRT, sS32, sOnes = 38, 39, 40, 41, 42, 43, 44, 45, 46, 47, 48, 49, 50, 51, 52, 53, 54, 55, 37
    sHr, sIdle, sGs, DB2, sHc = 56, 69, 57, 12, 57
    X, WA, WS, DBG = 20, 24, 28, 20
    vL, vXs, vWs, vCom, vOne, vC, vF = 0, 1, 2, 11, 10, 17, 18
    vAx, vAw = 12, 16
    vT = 24
    AC = 32; fW, fX = 80, 96
    a(f"""
    s_cmp_ge_u32 s2, 256
    s_cbranch_scc1 K_end
    """); stamp(a, 0); a(f"""
    s_load_dwordx8 s[8:15], s[0:1], 0
    s_load_dwordx4 s[60:63], s[0:1], 48
    s_load_dwordx4 s[4:7], s[0:1], 72
    s_load_dwordx2 s[16:17], s[0:1], 32
    s_load_dwordx2 s[18:19], s[0:1], 64
    v_lshrrev_b32 v1, 6, v0
    v_and_b32 v{vL}, 63, v0
    v_readfirstlane_b32 s{sW}, v1
    s_and_b32 s{sT0}, s2, 7
    s_lshr_b32 s{sT1}, s2, 3
    s_mul_i32 s{sT2}, s{sT0}, 30
    s_add_u32 s{sT2}, s{sT2}, s{sT1}
    v_lshrrev_b32 v{vT}, 5, v{vL}
    v_and_b32 v{vT+1}, 3, v{vL}
    v_bfe_u32 v{vT+2}, v{vL}, 2, 3
    v_lshlrev_b32 v{vT+3}, 4, v{vT+1}
    s_mov_b32 s{WS+2}, {WS_END}
    s_mov_b32 s{WS+3}, 0x00020000
    s_lshl_b32 s{sT3}, s{sW}, 8
    s_add_u32 s{sT3}, s{sT3}, s{sT1}
    s_cmp_lg_u32 s{sT3}, {(1 << 8) + 30}
    s_cbranch_scc1 K1_npf
    s_getpc_b64 s[66:67]
    K1_pc:
    v_lshlrev_b32 v2, 7, v{vL}
    v_add_u32 v3, 8192, v2
    v_min_u32 v3, K_last-K1_pc, v3
    {"" if 'nocpf' in OPT else "global_load_dword v60, v2, s[66:67]"}
    {"" if 'nocpf' in OPT else "global_load_dword v61, v3, s[66:67]"}
    K1_npf:
    s_cmp_ge_u32 s{sT1}, 30
    s_cbranch_scc1 K1_aux
    s_cmp_ge_u32 s{sT2}, 234
    s_cbranch_scc1 K1_aux
    s_cmp_lt_u32 s{sT2}, 126
    s_cselect_b32 s{sT0}, 0, 126
    s_cselect_b32 s{sT1}, 7, 6
    s_movk_i32 s{sT3}, 10923
    s_cselect_b32 s{sT3}, 9363, s{sT3}
    s_cselect_b32 s{sRB}, 0, 7
    s_sub_u32 s{sT2}, s{sT2}, s{sT0}
    s_mul_i32 s{sCB}, s{sT2}, s{sT3}
    s_lshr_b32 s{sCB}, s{sCB}, 16
    s_mul_i32 s{sT1}, s{sT1}, s{sCB}
    s_sub_u32 s{sT2}, s{sT2}, s{sT1}
    s_add_u32 s{sRB}, s{sRB}, s{sT2}
    s_and_b32 s{sR}, s{sW}, 3
    s_add_u32 s{sK}, s{sRB}, s{sCB}
    s_mul_i32 s{sK}, s{sK}, {RMUL}
    s_mul_i32 s{sT0}, s{sK}, {65536 // RW + 1}
    s_lshr_b32 s{sT0}, s{sT0}, 16
    s_mul_i32 s{sT0}, s{sT0}, {RW}
    s_sub_u32 s{sK}, s{sK}, s{sT0}
    s_mul_i32 s{sK}, s{sK}, {10 // RW}
    s_cmp_lt_u32 s{sW}, 8
    s_cbranch_scc1 K1_C
    """)
    def common2():
        a(f"""
        v_bfe_u32 v{vT+4}, v{vL}, 2, 2
        v_bfe_u32 v{vT+5}, v{vL}, 4, 1
        v_lshl_add_u32 v{vT+4}, v{vT+4}, 1, v{vT+5}
        v_lshl_add_u32 v{vT+4}, v{vT+4}, 2, v{vT+1}
        v_lshlrev_b32 v{vCom}, 3, v{vT+4}
        s_mov_b32 s{sOnes}, 0x3f803f80
        s_cmp_eq_u32 s{sCB}, 17
        s_cselect_b32 s{sT0}, 1, 3
        s_and_b32 s{sT0}, s{sT0}, s{sR}
        s_lshr_b32 s{sT1}, s{sT0}, 1
        s_lshl_b32 s{sT1}, s{sT1}, 13
        s_and_b32 s{sT0}, s{sT0}, 1
        s_lshl_b32 s{sT0}, s{sT0}, 9
        s_add_u32 s{sT0}, s{sT0}, s{sT1}
        s_add_u32 s{sT0}, s{sT0}, 20480
        v_lshl_add_u32 v{vAw}, v{vT}, 10, v{vCom}
        v_add_u32 v{vAw}, s{sT0}, v{vAw}
        """)
    vQb, vQa = 4, 6
    a(f"""
    s_mul_i32 s{sT0}, s{sRB}, 160
    s_lshl_b32 s{sT1}, s{sR}, 3
    s_add_u32 s{sT0}, s{sT0}, s{sT1}
    s_mul_i32 s{sT0}, s{sT0}, 1280
    v_lshrrev_b32 v{vT+4}, 3, v{vL}
    v_mul_u32_u24 v{vT+4}, 1280, v{vT+4}
    v_add_u32 v{vT+4}, s{sT0}, v{vT+4}
    v_and_b32 v{vT+5}, 7, v{vL}
    v_lshrrev_b32 v{vT+6}, 4, v{vL}
    v_xor_b32 v{vT+5}, v{vT+5}, v{vT+6}
    s_and_b32 s{sT0}, s{sR}, 1
    s_lshl_b32 s{sT0}, s{sT0}, 2
    v_xor_b32 v{vT+5}, s{sT0}, v{vT+5}
    v_lshl_add_u32 v{vXs}, v{vT+5}, 4, v{vT+4}
    s_cmp_lt_u32 s{sCB}, 5
    s_movk_i32 s{sT0}, 3072
    s_cselect_b32 s{sT0}, 1280, s{sT0}
    s_cselect_b32 s{sT2}, 0, 5
    s_sub_u32 s{sT2}, s{sCB}, s{sT2}
    s_lshl_b32 s{sT2}, s{sT2}, 8
    v_lshl_add_u32 v{vT+4}, v{vT}, 6, v{vT+3}
    v_add_u32 v{vT+4}, s{sT2}, v{vT+4}
    v_add_u32 v{vT+5}, s{sT1}, v{vT+2}
    v_mad_u32_u24 v{vWs}, v{vT+5}, s{sT0}, v{vT+4}
    v_min_u32 v{vT+4}, 24, v{vT+3}
    v_mad_u32_u24 v{vT+6}, v{vT+5}, 40, v{vT+4}
    v_mov_b32 v{vT+7}, 0
    v_cmp_eq_u32 vcc, 0, v{vT}
    s_lshl_b32 s{sStr64}, s{sT0}, 6
    s_lshl_b32 s{sS32}, s{sT0}, 5
    s_mul_i32 s{WA+2}, s{sT0}, 640
    s_lshl_b32 s{sMx}, s{sR}, 10
    s_mov_b32 s{sI}, 0
    s_mov_b32 s{sSlot}, 0
    s_mov_b32 s{X+2}, {2048*1280}
    s_mov_b32 s{X+3}, 0x00020000
    s_mov_b32 s{WA+3}, 0x00020000
    s_cmp_lt_u32 s{sCB}, 5
    s_waitcnt lgkmcnt(0)
    s_mov_b32 s{X}, s8
    s_mov_b32 s{X+1}, s9
    s_cselect_b32 s{WA}, s10, s60
    s_cselect_b32 s{WA+1}, s11, s61
    v_mov_b32 v{vQb}, s14
    v_mov_b32 v{vQb+1}, s15
    v_mov_b32 v{vQa}, s12
    v_mov_b32 v{vQa+1}, s13
    v_cndmask_b32 v{vQb}, v{vQb}, v{vQa}, vcc
    v_cndmask_b32 v{vQb+1}, v{vQb+1}, v{vQa+1}, vcc
    v_lshl_add_u64 {vr(vQb,2)}, {vr(vT+6,2)}, 0, {vr(vQb,2)}
    v_mov_b32 v8, 2560
    """)
    stamp(a, 1)
    if PROF and 'lacc' in OPT: a("s_waitcnt lgkmcnt(0)\ns_mov_b32 s91, s72\ns_mov_b32 s95, 0\ns_mov_b32 s96, 0\ns_mov_b32 s97, 0")
    a("K1_issue:"); acc(a, 2)
    a(f"""
    s_lshl_b32 s{sT0}, s{sK}, 7
    s_add_u32 m0, s{sSlot}, s{sMx}
    s_mul_i32 s{sT1}, s{sK}, s{sStr64}
    """)
    for i in range(5):
        a(f"buffer_load_dwordx4 v{vXs}, {sr(X,4)}, s{sT0} offen lds\ns_add_u32 m0, m0, 4096\ns_add_u32 s{sT0}, s{sT0}, {32*1280}")
    a(f"""
    s_add_u32 s{sT2}, s{sT1}, s{sS32}
    s_cmp_eq_u32 s{sCB}, 17
    s_cbranch_scc1 K1_ikv
    buffer_load_dwordx4 v{vWs}, {sr(WA,4)}, s{sT1} offen lds
    s_add_u32 m0, m0, 4096
    s_nop 0
    buffer_load_dwordx4 v{vWs}, {sr(WA,4)}, s{sT2} offen lds
    s_add_u32 m0, m0, {4096-128}
    s_nop 0
    buffer_load_dwordx4 v{vWs}, {sr(WA,4)}, s{sT1} offen offset:128 lds
    s_add_u32 m0, m0, 4096
    s_nop 0
    buffer_load_dwordx4 v{vWs}, {sr(WA,4)}, s{sT2} offen offset:128 lds
    K1_i2:
    """); acc(a, 0); a(f"""
    s_add_u32 s{sK}, s{sK}, 1
    s_cmp_eq_u32 s{sK}, 10
    s_cselect_b32 s{sK}, 0, s{sK}
    s_add_u32 s{sSlot}, s{sSlot}, {SLOT}
    s_cmp_eq_u32 s{sSlot}, {4*SLOT}
    s_cselect_b32 s{sSlot}, 0, s{sSlot}
    s_add_u32 s{sI}, s{sI}, 1
    s_cmp_eq_u32 s{sI}, 1
    s_cbranch_scc1 K1_l1
    s_waitcnt vmcnt(9)
    s_barrier
    s_cmp_lg_u32 s{sI}, 10
    s_cbranch_scc1 K1_issue
    s_branch K1_g0
    K1_ikv:
    v_mad_u64_u32 {vr(vQa,2)}, s[58:59], v8, s{sK}, {vr(vQb,2)}
    global_load_lds_dwordx4 {vr(vQa,2)}, off
    s_add_u32 m0, m0, {4096-1280}
    s_nop 0
    global_load_lds_dwordx4 {vr(vQa,2)}, off offset:1280
    s_waitcnt vmcnt(7)
    s_branch K1_i2
    K1_l1:
    s_mov_b32 s{WS}, s6
    s_mov_b32 s{WS+1}, s7
    """)
    a(f"""
    s_cmp_eq_u32 s{sR}, 3
    s_mul_i32 s{sT0}, s{sRB}, 25600
    s_mul_i32 s{sT1}, s{sCB}, 10240
    s_movk_i32 s{sGs}, 2560
    s_cselect_b32 s{sGs}, 1024, s{sGs}
    s_cselect_b32 s{sT0}, s{sT1}, s{sT0}
    s_mov_b32 s{sT1}, {WS_SR}
    s_cselect_b32 s{sT1}, {WS_SC}, s{sT1}
    s_cselect_b32 s{sT2}, 0, s{sR}
    s_add_u32 s{sU}, s{sT0}, s{sT1}
    s_lshl_b32 s{sT2}, s{sT2}, 6
    v_add_u32 v20, s{sT2}, v{vL}
    v_min_u32 v20, 159, v20
    v_lshlrev_b32 v20, 4, v20
    v_mov_b32 v22, {XN}
    s_mul_i32 s62, s{sRB}, {5*96*1024}
    s_lshl_b32 s{sT0}, s{sCB}, 2
    s_add_u32 s{sT0}, s{sT0}, s{sR}
    s_lshl_b32 s{sT1}, s{sT0}, 11
    s_add_u32 s62, s62, s{sT1}
    s_add_u32 s62, s62, {WS_H - 5*8192}
    s_lshl_b32 s63, s{sT0}, 4
    s_add_u32 s63, s63, s{sRB}
    s_lshl_b32 s63, s63, 8
    s_add_u32 s63, s63, {WS_F1}
    s_sub_u32 s{sT0}, s{sCB}, 5
    s_cmp_lt_u32 s{sT0}, 12
    s_cselect_b32 s62, s62, 0
    s_branch K1_issue
    K1_g0:
    ds_read_b32 v21, v22
    """)
    G = 32
    a(f"""
    s_mov_b32 s{sI}, 0
    """)
    a(f"K1_gat:\ns_mov_b32 s{sT0}, s{sU}")
    for k in range(10):
        a(f"buffer_load_dwordx4 {vr(G+4*k,4)}, v20, {sr(WS,4)}, s{sT0} offen sc1\ns_add_u32 s{sT0}, s{sT0}, s{sGs}")
    a(f"""
    s_cmp_lg_u32 s{sI}, 0
    s_cbranch_scc1 K1_g2
    s_waitcnt vmcnt(10)
    s_barrier
    """)
    a(f"""
    K1_g2:
    s_add_u32 s{sI}, s{sI}, 1
    s_waitcnt vmcnt(0) lgkmcnt(0)
    v_cmp_eq_u32 vcc, 0, v21
    v_readfirstlane_b32 s{sN}, v21
    s_nop 0
    v_cndmask_b32 v6, 0, 1, vcc
    """)
    for k in range(10):
        a(f"v_xor_b32 v{G+4*k+1}, v{G+4*k+1}, v21\nv_xor_b32 v{G+4*k+3}, v{G+4*k+3}, v21\nv_or3_b32 v6, v{G+4*k+1}, v{G+4*k+3}, v6")
    a(f"""
    v_cmp_ne_u32 vcc, 0, v6
    s_cbranch_vccz K1_g3
    s_sleep {SLP}
    s_cmp_lt_u32 s{sI}, {SPINMAX}
    s_cbranch_scc1 K1_gat
    K1_g3:
    """)
    for k in range(1, 10):
        a(f"v_add_f32 v{G}, v{G}, v{G+4*k}\nv_add_f32 v{G+2}, v{G+2}, v{G+4*k+2}")
    a(f"""
    s_cmp_eq_u32 s{sR}, 3
    s_cbranch_scc1 K1_gc
    v_mul_f32 v{G}, {f32(1.0/640)}, v{G}
    v_mul_f32 v{G+2}, {f32(1.0/640)}, v{G+2}
    v_cvt_pk_bf16_f32 v{G+4}, -v{G}, -v{G}
    v_fma_f32 v{G+2}, -v{G}, v{G}, v{G+2}
    v_max_f32 v{G+2}, 0, v{G+2}
    """)
    round_bf16(a, G+2, G+2)
    a(f"v_add_f32 v{G+2}, {f32(1e-5)}, v{G+2}")
    round_bf16(a, G+2, G+2)
    a(f"v_sqrt_f32 v{G+6}, v{G+2}\nv_mov_b32 v{G+5}, 0")
    round_bf16(a, G+6, G+6)
    a(f"""
    v_rcp_f32 v{G+7}, v{G+6}
    v_add_u32 v5, {XB}, v20
    s_nop 0
    ds_write_b128 v5, {vr(G+4,4)}
    s_branch K1_gd
    K1_gc:
    v_and_b32 v{G+1}, 0xffff0000, v{G}
    v_and_b32 v{G+3}, 0xffff0000, v{G+2}
    v_sub_f32 v{G}, v{G}, v{G+1}
    v_sub_f32 v{G+2}, v{G+2}, v{G+3}
    v_cvt_pk_bf16_f32 v{G+4}, v{G+1}, v{G}
    v_cvt_pk_bf16_f32 v{G+5}, v{G+3}, v{G+2}
    v_lshlrev_b32 v5, 3, v{vL}
    v_add_u32 v5, {XFC}, v5
    ds_write_b64 v5, {vr(G+4,2)}
    K1_gd:
    """)
    a("s_waitcnt lgkmcnt(0)\ns_barrier\ns_branch K2_G")
    vN = 2
    a(f"""
    K1_C:
    """)
    common2()
    a(f"""
    s_memrealtime s[66:67]
    s_lshr_b32 s{sG}, s{sW}, 2
    s_mov_b32 s{sK0}, s{sK}
    s_mov_b32 s{DBG+2}, 256
    s_mov_b32 s{DBG+3}, 0x00020000
    v_mov_b32 v{vN+1}, 0
    v_and_b32 v{vT+4}, 31, v{vL}
    v_bfe_u32 v{vT+5}, v{vL}, 1, 3
    v_lshlrev_b32 v{vT+4}, 7, v{vT+4}
    s_waitcnt lgkmcnt(0)
    s_mov_b32 s{WS}, s6
    s_mov_b32 s{WS+1}, s7
    s_mov_b32 s{DBG}, s4
    s_mov_b32 s{DBG+1}, s5
    s_or_b32 s{sT0}, s2, s{sW}
    s_cbranch_scc1 K1_nn
    s_or_b32 s66, s66, 1
    v_mov_b32 v{vN}, s66
    s_mov_b64 exec, 1
    buffer_store_dword v{vN}, v{vN+1}, {sr(DBG,4)}, 0 offen sc1
    s_mov_b64 exec, -1
    K1_nn:
    """)
    if TSH:
        a(f"""
        s_lshl_b32 s{sT0}, s{sW}, {6 + TSH}
        v_lshlrev_b32 v4, {TSH}, v{vL}
        s_cmp_lt_u32 s{sT0}, {WS_F3 + 0x40000}
        s_cbranch_scc0 K1_nt1
        buffer_load_dword v163, v4, {sr(WS,4)}, s{sT0} offen
        K1_nt1:
        s_cmp_lg_u32 s{sW}, 7
        s_cbranch_scc1 K1_nt2
        s_mov_b32 s24, s18
        s_mov_b32 s25, s19
        s_mov_b32 s26, {2048*1280}
        s_mov_b32 s27, 0x00020000
        buffer_load_dword v163, v4, s[24:27], 0 offen
        K1_nt2:
        """)
    a(f"""
    s_lshl_b32 s{sT1}, s{sW}, 12
    v_lshlrev_b32 v{vT+6}, 2, v{vT}
    v_xor_b32 v{vT+6}, v{vT+6}, v{vT+5}
    v_lshl_add_u32 v4, v{vT+6}, 4, v{vT+4}
    v_add_u32 v4, s{sT1}, v4
    v_xor_b32 v5, 16, v4
    v_xor_b32 v6, 32, v4
    v_xor_b32 v7, 48, v4
    v_xor_b32 v{vT+5}, v{vT+5}, v{vT}
    s_mul_i32 s{sT1}, s{sG}, {3*4096}
    v_add_u32 v{vT+4}, s{sT1}, v{vT+4}
    """)
    for i in range(4):
        a(f"v_xor_b32 v{vT+6}, {2*i}, v{vT+5}\nv_lshl_add_u32 v{vAx+i}, v{vT+6}, 4, v{vT+4}")
    a(f"""
    s_mov_b32 s{sI}, 1
    s_mov_b32 s{sDelta}, {SLOT}
    s_sub_u32 s{sT0}, s{sW}, 2
    s_cmp_lt_u32 s{sT0}, 4
    s_cselect_b32 s{sIdle}, 1, 0
    s_cmp_eq_u32 s{sCB}, 17
    s_cselect_b32 s{sIdle}, s{sIdle}, 0
    v_mov_b32 v9, {XN}
    """)
    for i in range(48): a(f"v_mov_b32 v{AC+i}, 0")
    a(f"""
    s_cmp_lg_u32 s{sIdle}, 0
    s_cbranch_scc1 K1_idle
    s_mul_i32 s{sT2}, s{sRB}, 10
    s_add_u32 s{sT2}, s{sT2}, s{sK0}
    s_mul_i32 s{sT2}, s{sT2}, 2560
    s_lshl_b32 s{sT1}, s{sW}, 9
    s_add_u32 s{sT2}, s{sT2}, s{sT1}
    s_add_u32 s{sT2}, s{sT2}, {WS_SR}
    s_mul_i32 s{sU}, s{sCB}, 10
    s_add_u32 s{sU}, s{sU}, s{sK0}
    s_lshl_b32 s{sU}, s{sU}, 10
    s_add_u32 s{sU}, s{sU}, {WS_SC}
    s_lshl_b32 s{sT1}, s{sR}, 8
    s_add_u32 s{sU}, s{sU}, s{sT1}
    s_xor_b32 s{sT3}, s{sU}, 512
    s_cmp_eq_u32 s{sCB}, 17
    s_cselect_b32 s{sT3}, s{sT3}, {WS_END}
    s_cmp_lg_u32 s{sW}, 7
    s_cbranch_scc1 K1_n1x
    s_mov_b32 s{sT0}, 0
    K1_n1:
    buffer_load_dword v{vN}, v{vN+1}, {sr(DBG,4)}, 0 offen sc1
    s_add_u32 s{sT0}, s{sT0}, 1
    s_waitcnt vmcnt(0)
    v_readfirstlane_b32 s{sT1}, v{vN}
    ds_write_b32 v9, v{vN}
    s_cmp_gt_u32 s{sT0}, {SPINMAX}
    s_cbranch_scc1 K1_n1x
    s_cmp_eq_u32 s{sT1}, 0
    s_cbranch_scc1 K1_n1
    K1_n1x:
    s_waitcnt lgkmcnt(0)
    s_barrier
    """)
    stamp(a, 1)
    a(f"""
    s_cmp_lt_u32 s{sCB}, 10
    s_cselect_b32 s{sT0}, 5, 0
    s_cmp_ge_u32 s{sW}, s{sT0}
    s_cbranch_scc1 K1_nr
    ds_read_b32 v161, v9
    """)
    for i in range(4): a(f"ds_read_b128 {vr(144+4*i,4)}, v{4+i}")
    a(f"v_mov_b32 v160, 0\nv_mov_b32 v162, 0\nv_lshlrev_b32 v4, 4, v{vL}\ns_waitcnt lgkmcnt(0)")
    for i in range(16): a(f"v_dot2c_f32_bf16 v160, s{sOnes}, v{144+i}\nv_dot2c_f32_bf16 v162, v{144+i}, v{144+i}")
    a(f"""
    v_mov_b32 v163, v161
    s_nop 1
    v_mov_b32 v5, v160
    v_mov_b32 v6, v162
    s_nop 1
    v_permlane32_swap_b32 v5, v160
    v_permlane32_swap_b32 v6, v162
    v_add_f32 v160, v160, v5
    v_add_f32 v162, v162, v6
    s_mov_b32 exec_hi, 0
    buffer_store_dwordx4 {vr(160,4)}, v4, {sr(WS,4)}, s{sT2} offen sc1
    s_mov_b32 exec_hi, -1
    K1_nr:
    s_cmp_eq_u32 s{sG}, 0
    s_cbranch_scc1 K1_start3
    s_cmp_ge_u32 s{sRB}, 10
    s_cbranch_scc1 K1_start2
    ds_read_b32 v7, v9
    """)
    for k in range(4):
        for q in range(2): a(f"ds_read_b64_tr_b16 {vr(144+4*k+2*q,2)}, v{vAw} offset:{2048*k+256*q}")
    a(f"v_mov_b32 v6, 0\nv_lshlrev_b32 v4, 3, v{vL}\ns_waitcnt lgkmcnt(0)")
    for i in range(16): a(f"v_dot2c_f32_bf16 v6, s{sOnes}, v{144+i}")
    a(f"""
    s_nop 2
    v_mov_b32 v5, v6
    s_nop 1
    v_permlane32_swap_b32 v5, v6
    v_add_f32 v6, v6, v5
    s_mov_b32 exec_hi, 0
    buffer_store_dwordx2 {vr(6,2)}, v4, {sr(WS,4)}, s{sU} offen sc1
    buffer_store_dwordx2 {vr(6,2)}, v4, {sr(WS,4)}, s{sT3} offen sc1
    s_mov_b32 exec_hi, -1
    """)
    KR = dict(fW=fW, fX=fX, AC=AC, vAx=vAx, vAw=vAw, sDelta=sDelta)
    vFl = vT + 7
    def cloop(T):
        first, ba, bb, tail = kbody.streamC(KR, T)
        a(f"K1_start{T}:")
        for l in first: a(l)
        a(f"s_branch K1_mid{T}\nK1_comp{T}:\ns_barrier")
        if os.environ.get('BSTAMP'): a(f"s_cmp_lg_u32 s{sI}, {int(os.environ['BSTAMP'])+1}\ns_cbranch_scc1 K1_bs{T}\ns_memtime s[72:73]\nK1_bs{T}:")
        if 'bt' in OPT: a(f"s_memtime s[92:93]\ns_waitcnt lgkmcnt(0)\ns_sub_u32 s92, s92, s70\nv_mov_b32 v22, s92\nv_cmp_eq_u32 vcc, s{sI}, v0\ns_nop 1\nv_cndmask_b32 v23, v23, v22, vcc")
        for l in ba: a(l)
        a(f"K1_mid{T}:")
        for l in bb: a(l)
        a(f"""
        s_and_b32 s{sT0}, s{sI}, 3
        s_cmp_eq_u32 s{sT0}, 3
        s_mov_b32 s{sDelta}, {SLOT}
        s_cselect_b32 s{sDelta}, {(-3*SLOT) & 0xffffffff}, s{sDelta}
        s_add_u32 s{sI}, s{sI}, 1
        s_cmp_lg_u32 s{sI}, 11
        s_waitcnt lgkmcnt(0)
        s_cbranch_scc1 K1_comp{T}
        """)
        a("s_barrier")
        for l in tail: a(l)
    cloop(2)
    a(f"""
    s_branch K1_cdone
    K1_idle:
    s_barrier
    s_add_u32 s{sI}, s{sI}, 1
    s_cmp_lg_u32 s{sI}, 12
    s_cbranch_scc1 K1_idle
    s_branch K1_cdone
    """)
    cloop(3)
    a("K1_cdone:")
    stamp(a, 2)
    if 'bt' in OPT:
        a(f"""
        s_lshl_b32 s92, s2, 4
        s_add_u32 s92, s92, s{sW}
        s_lshl_b32 s92, s92, 6
        s_add_u32 s92, s92, {WS_PROF + 0x40000}
        v_lshlrev_b32 v22, 2, v0
        s_mov_b64 exec, 0xffff
        buffer_store_dword v23, v22, {sr(WS,4)}, s92 offen
        s_mov_b64 exec, -1
        """)
    ST, vCA, E, PK = 144, 20, 112, 128
    vMq, vNe = 24, 30
    a(f"""
    v_and_b32 v3, 31, v{vL}
    s_mul_i32 s{sT0}, s{sG}, {96*16}
    s_add_u32 s{sT0}, s{sT0}, {XB}
    v_lshl_add_u32 v4, v3, 4, s{sT0}
    s_lshl_b32 s{sT0}, s{sR}, 7
    s_add_u32 s{sT0}, s{sT0}, {XFC}
    v_lshl_add_u32 v5, v3, 2, s{sT0}
    v_lshlrev_b32 v1, 4, v{vL}
    v_mov_b32 v{vCA+1}, 0
    s_mul_i32 s{sRT}, s{sRB}, 5
    s_mul_i32 s{sT0}, s{sG}, 3
    s_add_u32 s{sRT}, s{sRT}, s{sT0}
    s_sub_u32 s{sU}, 3, s{sG}
    s_add_u32 s{sU}, s{sU}, s{sRT}
    s_min_u32 s{sU}, s{sU}, 64
    s_lshl_b32 s{sT0}, s{sCB}, 13
    s_lshl_b32 s{sT1}, s{sR}, 11
    s_add_u32 s{sMx}, s{sT0}, s{sT1}
    v_cmp_gt_u32 vcc, 32, v{vL}
    v_mov_b32 v6, {XN}
    """)
    a(f"""
    ds_read_b32 v6, v6
    ds_read_b32 v{vCA}, v5
    ds_read_b128 {vr(ST,4)}, v4
    ds_read_b128 {vr(ST+4,4)}, v4 offset:512
    ds_read_b128 {vr(ST+8,4)}, v4 offset:1024
    s_mov_b32 s{sI}, 0
    s_waitcnt lgkmcnt(3)
    v_cndmask_b32 v{vCA}, 0, v{vCA}, vcc
    v_readfirstlane_b32 s{sN}, v6
    s_sub_u32 s{sT0}, s{sCB}, 5
    s_cmp_lt_u32 s{sT0}, 12
    s_waitcnt lgkmcnt(0)
    v_mfma_f32_32x32x8_bf16 {vr(AC,16)}, {vr(vCA,2)}, {vr(ST,2)}, {vr(AC,16)}
    v_mfma_f32_32x32x8_bf16 {vr(AC+16,16)}, {vr(vCA,2)}, {vr(ST+4,2)}, {vr(AC+16,16)}
    v_mfma_f32_32x32x8_bf16 {vr(AC+32,16)}, {vr(vCA,2)}, {vr(ST+8,2)}, {vr(AC+32,16)}
    s_cbranch_scc0 K1_lin
    s_mul_i32 s{sT3}, s{sR}, 10240
    s_mul_i32 s{sT0}, s{sG}, 6144
    s_add_u32 s{sT3}, s{sT3}, s{sT0}
    s_add_u32 s{sT3}, s{sT3}, {HS}
    v_add_u32 v1, s{sT3}, v1
    s_nop 3
    K1_epiH:
    v_mul_f32 v{vNe}, {f32(-LOG2E)}, v{ST+3}
    """)
    for i in range(8): a(f"v_pk_mul_f32 {vr(E+2*i,2)}, {vr(AC+2*i,2)}, {vr(vNe,2)} op_sel_hi:[1,0]")
    for i in range(16): a(f"v_exp_f32 v{E+i}, v{E+i}")
    for i in range(8): a(f"v_pk_fma_f32 {vr(E+2*i,2)}, {vr(E+2*i,2)}, {vr(ST+2,2)}, {vr(ST+2,2)} op_sel_hi:[1,0,0]")
    for i in range(16): a(f"v_rcp_f32 v{E+i}, v{E+i}")
    for i in range(8): a(f"v_pk_mul_f32 {vr(E+2*i,2)}, {vr(E+2*i,2)}, {vr(AC+2*i,2)}")
    for i in range(8): a(f"v_cvt_pk_bf16_f32 v{PK+i}, v{E+2*i}, v{E+2*i+1}")
    a(f"""
    ds_write_b128 v1, {vr(PK,4)}
    ds_write_b128 v1, {vr(PK+4,4)} offset:1024
    v_add_u32 v1, 2048, v1
    s_add_u32 s{sRT}, s{sRT}, 1
    s_cmp_eq_u32 s{sRT}, s{sU}
    s_cbranch_scc1 {"K1_hd" if PROF else "K2_A"}
    s_add_u32 s{sI}, s{sI}, 1
    s_cmp_eq_u32 s{sI}, 2
    s_cbranch_scc1 K1_e2
    """)
    for i in range(8): a(f"v_pk_mov_b32 {vr(AC+2*i,2)}, {vr(AC+16+2*i,2)}, {vr(AC+16+2*i,2)} op_sel:[0,1]")
    a(f"v_pk_mov_b32 {vr(ST+2,2)}, {vr(ST+6,2)}, {vr(ST+6,2)} op_sel:[0,1]\ns_branch K1_epiH\nK1_e2:")
    for i in range(8): a(f"v_pk_mov_b32 {vr(AC+2*i,2)}, {vr(AC+32+2*i,2)}, {vr(AC+32+2*i,2)} op_sel:[0,1]")
    a(f"v_pk_mov_b32 {vr(ST+2,2)}, {vr(ST+10,2)}, {vr(ST+10,2)} op_sel:[0,1]\ns_branch K1_epiH")
    if PROF:
        a("K1_hd:"); stamp(a, 3); a("s_branch K2_A")
    PQ = 96
    a(f"""
    K1_lin:
    s_cmp_lg_u32 s{sIdle}, 0
    s_cbranch_scc1 K2_A
    s_cmp_eq_u32 s{sCB}, 17
    s_mov_b32 s{sK}, {f32(20 ** -0.5 * LOG2E)}
    s_cselect_b32 s{sK}, 1.0, s{sK}
    v_mul_f32 v{vMq}, s{sK}, v{ST+3}
    v_mul_f32 v{vMq+2}, s{sK}, v{ST+7}
    v_mul_f32 v{vMq+4}, s{sK}, v{ST+11}
    s_mul_i32 s{sT3}, s{sRT}, 40960
    s_add_u32 s{sT3}, s{sT3}, s{sMx}
    s_cmp_eq_u32 s{sCB}, 17
    s_cbranch_scc1 K1_kv
    """)
    for j in range(3):
        for i in range(16): a(f"v_mul_f32 v{AC+16*j+i}, v{AC+16*j+i}, v{vMq+2*j}")
        for i in range(8): a(f"v_cvt_pk_bf16_f32 v{PQ+8*j+i}, v{AC+16*j+2*i}, v{AC+16*j+2*i+1}")
        a(f"""
        buffer_store_dwordx4 {vr(PQ+8*j,4)}, v1, {sr(WS,4)}, s{sT3} offen sc1
        buffer_store_dwordx4 {vr(PQ+8*j+4,4)}, v1, {sr(WS,4)}, s{sT3} offen offset:1024 sc1
        """)
        if j < 2:
            a(f"""
            s_add_u32 s{sT3}, s{sT3}, 40960
            s_add_u32 s{sT0}, s{sRT}, {j+1}
            s_cmp_lt_u32 s{sT0}, s{sU}
            s_cselect_b32 s{sT3}, s{sT3}, {WS_END}
            """)
    a(f"""
    s_branch K1_done
    K1_kv:
    """)
    for j in range(3):
        for i in range(12): a(f"v_mul_f32 v{AC+16*j+i}, v{AC+16*j+i}, v{vMq+2*j}")
        for i in range(6): a(f"v_cvt_pk_bf16_f32 v{PQ+8*j+i}, v{AC+16*j+2*i}, v{AC+16*j+2*i+1}")
    a(f"""
    v_lshrrev_b32 v5, 5, v{vL}
    s_bitcmp1_b32 s{sR}, 0
    s_cbranch_scc1 K1_vst
    v_mul_u32_u24 v4, 5120, v5
    v_lshl_add_u32 v4, v3, 4, v4
    v_lshlrev_b32 v5, 4, v3
    """)
    def kvbase(j):
        a(f"""
        s_add_u32 s{sT2}, s{sRT}, {j}
        s_lshr_b32 s{sT0}, s{sT2}, 2
        s_mul_i32 s{sT0}, s{sT0}, 10240
        s_add_u32 s{sT0}, s{sT0}, {WS_KV}
        s_cmp_lt_u32 s{sT2}, s{sU}
        s_cselect_b32 s{sT0}, s{sT0}, {WS_END}
        s_and_b32 s{sT2}, s{sT2}, 3
        """)
    for j in range(3):
        kvbase(j)
        a(f"""
        s_lshl_b32 s{sT1}, s{sT2}, 9
        s_add_u32 s{sT1}, s{sT1}, s{sT0}
        buffer_store_dwordx4 {vr(PQ+8*j,4)}, v4, {sr(WS,4)}, s{sT1} offen sc1
        s_and_b32 s{sT1}, s{sT2}, 1
        s_mul_i32 s{sT1}, s{sT1}, 5120
        s_add_u32 s{sT0}, s{sT0}, s{sT1}
        s_lshr_b32 s{sT1}, s{sT2}, 1
        s_lshl_b32 s{sT1}, s{sT1}, 3
        s_add_u32 s{sT0}, s{sT0}, s{sT1}
        s_mov_b32 exec_lo, 0
        buffer_store_dwordx2 {vr(PQ+8*j+4,2)}, v5, {sr(WS,4)}, s{sT0} offen offset:2048 sc1
        s_mov_b32 exec_lo, -1
        """)
    a(f"""
    s_branch K1_done
    K1_vst:
    s_lshl_b32 s{sT3}, s{sG}, 12
    s_add_u32 s{sT3}, s{sT3}, {XQ+2048}
    v_bfe_u32 v4, v3, 2, 1
    v_mul_u32_u24 v4, 640, v4
    v_lshl_add_u32 v4, v5, 6, v4
    v_lshrrev_b32 v5, 4, v3
    v_mul_u32_u24 v5, 320, v5
    v_add_u32 v4, v4, v5
    v_bfe_u32 v5, v3, 3, 1
    v_lshl_add_u32 v4, v5, 3, v4
    v_and_b32 v5, 3, v3
    v_lshl_add_u32 v4, v5, 1, v4
    v_add_u32 v4, s{sT3}, v4
    v_add_u32 v5, s{sT3}, v1
    """)
    for jj in range(3):
        if jj == 2: a("s_mov_b32 exec_lo, 0")
        for j in range(3):
            o = 1280 * j + 128 * jj - (64 if jj == 2 else 0); p = PQ + 8 * j + 2 * jj
            a(f"""
            ds_write_b16 v4, v{p} offset:{o}
            ds_write_b16_d16_hi v4, v{p} offset:{o+16}
            ds_write_b16 v4, v{p+1} offset:{o+32}
            ds_write_b16_d16_hi v4, v{p+1} offset:{o+48}
            """)
        a("s_waitcnt lgkmcnt(0)")
    a("s_mov_b32 exec_lo, -1\ns_mov_b32 exec_hi, 0xff")
    for j in range(6): a(f"ds_read_b128 {vr(AC+4*j,4)}, v5 offset:{640*j}")
    for j in range(3):
        kvbase(j)
        a(f"""
        s_mul_i32 s{sT1}, s{sT2}, 640
        s_add_u32 s{sT0}, s{sT0}, s{sT1}
        s_add_u32 s{sT1}, s{sT0}, 5120
        s_waitcnt lgkmcnt({4-2*j})
        buffer_store_dwordx4 {vr(AC+8*j,4)}, v1, {sr(WS,4)}, s{sT0} offen offset:2560 sc1
        buffer_store_dwordx4 {vr(AC+8*j+4,4)}, v1, {sr(WS,4)}, s{sT1} offen offset:2560 sc1
        """)
    a("s_mov_b32 exec_hi, -1\ns_branch K1_done")
    sJ, sL, sPst = 34, 35, 36
    WP = 24; vPs = 2
    a(f"""
    K1_aux:
    v_bfe_u32 v{vT+4}, v{vL}, 2, 2
    v_bfe_u32 v{vT+5}, v{vL}, 4, 1
    v_lshl_add_u32 v{vT+4}, v{vT+4}, 1, v{vT+5}
    v_lshl_add_u32 v{vT+4}, v{vT+4}, 2, v{vT+1}
    v_lshlrev_b32 v{vCom}, 3, v{vT+4}
    s_lshl_b32 s{sT0}, s{sT0}, 1
    s_add_u32 s{sT0}, s{sT0}, s{sT1}
    s_sub_u32 s{sT0}, s{sT0}, 30
    s_sub_u32 s{sT2}, s{sT2}, {234-16}
    s_cmp_ge_u32 s{sT1}, 30
    s_cselect_b32 s{sT0}, s{sT0}, s{sT2}
    s_mul_i32 s{sJ}, s{sT0}, 12
    s_add_u32 s{sJ}, s{sJ}, s{sW}
    s_mul_i32 s{sL}, s{sW}, 12288
    v_lshl_add_u32 v{vT+3}, v{vT}, 6, v{vT+3}
    v_lshrrev_b32 v{vT+6}, 2, v{vT+2}
    v_and_b32 v{vT+7}, 3, v{vT+2}
    s_mov_b32 m0, s{sL}
    s_mov_b32 s{WP+3}, 0x00020000
    s_mov_b32 s{sI}, s{sJ}
    s_waitcnt lgkmcnt(0)
    s_mov_b32 s{WS}, s6
    s_mov_b32 s{WS+1}, s7
    s_mov_b32 s{DBG}, s4
    s_mov_b32 s{DBG+1}, s5
    s_mov_b32 s{DBG+2}, 256
    s_mov_b32 s{DBG+3}, 0x00020000
    s_lshl_b32 s{sU}, s{sT0}, 7
    s_add_u32 s{sU}, s{sU}, {WS_F1 + 72*4096}
    s_mov_b64 s[58:59], 1
    K1_a0:
    """)
    def getnonce(lab):
        a(f"""
        v_mov_b32 v5, 0
        s_mov_b32 s{sT3}, 0
        {lab}:
        buffer_load_dword v4, v5, {sr(DBG,4)}, 0 offen sc1
        s_add_u32 s{sT3}, s{sT3}, 1
        s_waitcnt vmcnt(0)
        v_readfirstlane_b32 s{sN}, v4
        s_cmp_gt_u32 s{sT3}, {SPINMAX}
        s_cbranch_scc1 {lab}x
        s_cmp_lg_u32 s{sN}, 0
        s_cbranch_scc1 {lab}x
        s_sleep 8
        s_branch {lab}
        {lab}x:
        """)
    if 'adelay' in OPT:
        a(f"s_cmp_lg_u32 s{sW}, 0\ns_cbranch_scc1 K1_a5")
        getnonce("K1_a7")
        a(f"""
        s_mul_i32 s{sT0}, s{sJ}, 640
        s_add_u32 s{sT0}, s{sT0}, {WS_SC + 4}
        v_mov_b32 v4, s{sT0}
        """)
        poll(a, "K1_a6", 4, 5, WS, sT3)
        a("K1_a5:\ns_barrier")
    a(f"""
    K1_a1:
    s_mul_i32 s{sT0}, s{sI}, 6554
    s_lshr_b32 s{sT0}, s{sT0}, 16
    s_mul_i32 s{sT1}, s{sT0}, 10
    s_sub_u32 s{sT1}, s{sI}, s{sT1}
    s_lshl_b32 s{sT1}, s{sT1}, 7
    s_sub_u32 s{sT2}, s{sT0}, 96
    s_mul_i32 s{sT3}, s{sT2}, 205
    s_lshr_b32 s{sT3}, s{sT3}, 10
    s_mul_i32 s55, s{sT3}, 5
    s_sub_u32 s55, s{sT2}, s55
    s_mul_i32 s{sT3}, s{sT3}, 80
    s_mul_i32 s56, s55, 20
    s_cmp_eq_u32 s55, 4
    s_cselect_b32 s56, 16, s56
    s_cselect_b32 s55, 1, 0
    s_add_u32 s{sT3}, s{sT3}, s56
    s_lshl_b32 s{sT2}, s{sT0}, 4
    s_cmp_lt_u32 s{sT0}, 96
    s_cselect_b32 s{sT3}, s{sT2}, s{sT3}
    s_cselect_b32 s55, 0, s55
    s_cselect_b32 s{WP}, s62, s16
    s_cselect_b32 s{WP+1}, s63, s17
    s_mov_b32 s{WP+2}, {640*1280}
    s_cselect_b32 s{WP+2}, {1536*1280}, s{WP+2}
    s_mul_i32 s{sT3}, s{sT3}, 1280
    s_add_u32 s56, s{sT3}, s{sT1}
    s_cmp_eq_u32 s55, 0
    s_cselect_b32 s{sT2}, 4, 40
    s_movk_i32 s57, {20*1280}
    s_cselect_b32 s57, {8*1280}, s57
    s_add_u32 s57, s57, s56
    v_mad_u32_u24 v{vPs}, v{vT+6}, s{sT2}, v{vT+7}
    v_mul_u32_u24 v{vPs}, 1280, v{vPs}
    v_add_u32 v{vPs}, v{vPs}, v{vT+3}
    buffer_load_dwordx4 v{vPs}, {sr(WP,4)}, s56 offen lds
    s_add_u32 m0, m0, 1024
    s_add_u32 s{sI}, s{sI}, 264
    buffer_load_dwordx4 v{vPs}, {sr(WP,4)}, s57 offen lds
    s_add_u32 m0, m0, 1024
    s_cmp_lt_u32 s{sI}, 1360
    s_cbranch_scc1 K1_a1
    v_lshl_add_u32 v4, v{vT}, 8, v{vCom}
    v_add_u32 v4, s{sL}, v4
    v_and_b32 v5, 15, v{vL}
    v_lshlrev_b32 v5, 4, v5
    v_lshl_add_u32 v5, v{vT}, 8, v5
    v_lshl_add_u32 v5, v{vT+5}, 9, v5
    s_lshl_b32 s{sPst}, s{sJ}, 11
    s_add_u32 s{sPst}, s{sPst}, {WS_WP}
    s_waitcnt vmcnt(0)
    K1_a2:
    ds_read_b64_tr_b16 {vr(32,2)}, v4
    ds_read_b64_tr_b16 {vr(34,2)}, v4 offset:1024
    ds_read_b64_tr_b16 {vr(36,2)}, v4 offset:512
    ds_read_b64_tr_b16 {vr(38,2)}, v4 offset:1536
    v_add_u32 v4, 2048, v4
    s_add_u32 s{sJ}, s{sJ}, 264
    s_waitcnt lgkmcnt(0)
    buffer_store_dwordx4 {vr(32,4)}, v5, {sr(WS,4)}, s{sPst} offen sc1
    buffer_store_dwordx4 {vr(36,4)}, v5, {sr(WS,4)}, s{sPst} offen offset:1024 sc1
    s_add_u32 s{sPst}, s{sPst}, {264*2048}
    s_cmp_lt_u32 s{sJ}, 1360
    s_cbranch_scc1 K1_a2
    """)
    getnonce("K1_a3")
    a(f"""
    s_mov_b32 s62, 0
    s_barrier
    s_cmp_ge_u32 s{sW}, 8
    s_cbranch_scc1 K2_G
    s_cmp_lg_u32 s{sW}, 0
    s_cbranch_scc1 K2_A
    s_branch K1_flag
    K1_done:
    s_lshl_b32 s{sU}, s{sCB}, 2
    s_add_u32 s{sU}, s{sU}, s{sR}
    s_lshl_b32 s{sU}, s{sU}, 5
    s_lshl_b32 s{sT0}, s{sRB}, 1
    s_add_u32 s{sU}, s{sU}, s{sT0}
    s_add_u32 s{sU}, s{sU}, s{sG}
    s_lshl_b32 s{sU}, s{sU}, 7
    s_add_u32 s{sU}, s{sU}, {WS_F1}
    s_mov_b64 s[58:59], 1
    s_cmp_lg_u32 s{sCB}, 17
    s_cbranch_scc1 K1_flag
    v_mov_b32 v4, 1
    v_mov_b32 v5, 0
    {"s_memtime s[72:73]" if PROF and 'kvs' in OPT else ""}
    s_mov_b64 exec, 1
    s_waitcnt vmcnt(0)
    {"s_memtime s[76:77]" if PROF and 'kvs' in OPT else ""}
    buffer_atomic_add v4, v5, {sr(DBG,4)}, 0 offen offset:128 sc0
    s_mov_b32 s{sU}, {WS_FK}
    s_mov_b64 s[58:59], -1
    s_waitcnt vmcnt(0)
    {"s_memtime s[90:91]" if PROF and 'kvs' in OPT else ""}
    v_readfirstlane_b32 s{sT0}, v4
    s_mov_b64 exec, -1
    s_mul_hi_u32 s{sT1}, s{sT0}, {(1 << 32) // 52 + 1}
    s_mul_i32 s{sT1}, s{sT1}, 52
    s_sub_u32 s{sT0}, s{sT0}, s{sT1}
    s_cmp_lg_u32 s{sT0}, 51
    s_cbranch_scc1 K2_A
    """)
    'kvs' in OPT or stamp(a, 3)
    setflag(a, sU, WS, 4, 5, '-1')
    a("s_branch K2_A\nK1_flag:")
    stamp(a, 3)
    a(f"s_mov_b32 s64, s{sU}\ns_branch K2_A2")

def tile_ids(a, sRB, sNB, sT0):
    if 'map84' not in OPT:
        a(f"""
        s_and_b32 s{sT0}, s2, 7
        s_lshl_b32 s{sRB}, s{sT0}, 2
        s_bfe_u32 s{sT0}, s2, 0x20003
        s_add_u32 s{sRB}, s{sRB}, s{sT0}
        s_lshr_b32 s{sNB}, s2, 5
        """)
        return
    a(f"""
    s_and_b32 s{sT0}, s2, 3
    s_lshl_b32 s{sRB}, s{sT0}, 3
    s_bfe_u32 s{sT0}, s2, 0x30003
    s_add_u32 s{sRB}, s{sRB}, s{sT0}
    s_bfe_u32 s{sT0}, s2, 0x10002
    s_lshl_b32 s{sNB}, s{sT0}, 2
    s_lshr_b32 s{sT0}, s2, 6
    s_add_u32 s{sNB}, s{sNB}, s{sT0}
    """)
def wlane(a, vL, vW, vW2, t):
    a(f"""
    v_and_b32 v{vW2}, 15, v{vL}
    v_lshlrev_b32 v{vW2}, 4, v{vW2}
    v_lshrrev_b32 v{t}, 5, v{vL}
    v_lshl_add_u32 v{vW2}, v{t}, 8, v{vW2}
    v_bfe_u32 v{t}, v{vL}, 4, 1
    v_lshl_add_u32 v{vW}, v{t}, 9, v{vW2}
    {"" if 'nozp' in OPT else f"v_lshl_add_u32 v{vW2}, v{t}, 30, v{vW2}"}
    """)

def gen_k2(a):
    sW, sR, sG, sRB, sCB, sHD, sRT = 32, 33, 34, 35, 36, 37, 38
    sI, sT0, sT1, sT2, sSrc, sVm, sSeg, sT3 = 39, 40, 41, 42, 43, 44, 52, 53
    WS, X, OUT = 28, 20, 24
    vL, vA, vD = 0, 1, 2
    QM, QT, KM, KT, V, P, O, S = 4, 8, 12, 20, 24, 40, 56, 72
    R = dict(vA=vA, QM=QM, QT=QT, KM=KM, KT=KT, V=V, P=P, O=O, S=S)
    def aids():
        a(f"""
        s_and_b32 s{sT0}, s2, 3
        s_lshl_b32 s{sRB}, s{sT0}, 2
        s_bfe_u32 s{sT0}, s2, 0x20003
        s_add_u32 s{sRB}, s{sRB}, s{sT0}
        s_bfe_u32 s{sT0}, s2, 0x10002
        s_lshl_b32 s{sCB}, s{sT0}, 3
        s_lshr_b32 s{sT0}, s2, 5
        s_add_u32 s{sCB}, s{sCB}, s{sT0}
        s_and_b32 s{sR}, s{sW}, 3
        s_lshl_b32 s{sRT}, s{sRB}, 2
        s_add_u32 s{sRT}, s{sRT}, s{sR}
        v_lshlrev_b32 v{vD}, 4, v{vL}
        """)
    a(f"K2_A:\ns_mov_b32 s64, {WS_END}\ns_mov_b64 s[58:59], 1\nK2_A2:"); aids()
    a(f"""
    s_lshr_b32 s{sG}, s{sW}, 2
    s_lshl_b32 s{sHD}, s{sCB}, 1
    s_and_b32 s{sT1}, s{sHD}, 2
    s_add_u32 s{sHD}, s{sHD}, s{sG}
    s_mul_i32 s{sT2}, s{sG}, 5
    s_add_u32 s{sT1}, s{sT1}, s{sT2}
    s_mul_i32 s{sT2}, s{sR}, 3072
    s_add_u32 s{sT2}, s{sT2}, {XQ}
    v_and_b32 v{vA}, 31, v{vL}
    v_lshlrev_b32 v{vA}, 4, v{vA}
    v_lshrrev_b32 v3, 5, v{vL}
    v_add_u32 v{P}, s{sT1}, v3
    v_add_u32 v{P+1}, 2, v{P}
    s_add_u32 s{sT1}, s{sT1}, 4
    v_mov_b32 v{P+2}, s{sT1}
    v_add_u32 v{P+3}, s{sT2}, v{vA}
    """)
    for i in range(3):
        a(f"""
        v_lshrrev_b32 v{P+4}, 2, v{P+i}
        v_lshl_add_u32 v{P+5}, v{P+4}, 10, v{P+3}
        v_and_b32 v{P+4}, 1, v{P+i}
        v_lshl_add_u32 v{P+5}, v{P+4}, 9, v{P+5}
        v_and_b32 v{P+4}, 2, v{P+i}
        v_lshl_add_u32 v{P+i}, v{P+4}, 2, v{P+5}
        """)
    a(f"""
    s_mov_b32 s{sVm}, 0x000fffff
    s_mov_b32 s{sVm+1}, 0x000fffff
    v_mul_u32_u24 v3, 5120, v3
    v_add_u32 v{vA}, v{vA}, v3
    v_and_b32 v3, 27, v{vL}
    v_cmp_eq_u32 vcc, 24, v3
    v_mov_b32 v3, 0x3f803f80
    """)
    for i in range(16): a(f"v_mov_b32 v{O+i}, 0")
    for i in range(16): a(f"v_cndmask_b32 v{V+i}, 0, v3, vcc")
    for i in range(4): a(f"v_mov_b32 v{P+12+i}, 0")
    segw = sum(n << (4 * i) for i, n in enumerate(SEGS))
    a(f"""
    s_mov_b32 s{sSeg}, {segw >> 4}
    s_mov_b32 s{sI}, {SEGS[0]}
    """)
    a(f"""
    s_lshr_b32 s54, s{sHD}, 2
    s_mul_i32 s54, s54, 5
    s_mul_i32 s55, s{sRT}, 40
    s_add_u32 s54, s54, s55
    s_lshl_b32 s54, s54, 10
    s_add_u32 s54, s54, {WS_O}
    s_and_b32 s55, s{sHD}, 3
    s_lshl_b32 s55, s55, 10
    s_add_u32 s55, s55, s54
    s_bfe_u32 s{sT2}, s{sHD}, 0x10001
    s_lshl_b32 s{sT2}, s{sT2}, 9
    s_add_u32 s54, s54, s{sT2}
    s_and_b32 s{sT2}, s{sHD}, 1
    s_lshl_b32 s{sT2}, s{sT2}, 3
    s_add_u32 s54, s54, s{sT2}
    s_add_u32 s54, s54, 4096
    s_lshl_b32 s56, s{sRT}, 5
    s_add_u32 s56, s56, s{sHD}
    s_lshl_b32 s56, s56, 7
    s_add_u32 s56, s56, {WS_F3}
    v_mov_b32 v{S}, -1
    v_mov_b32 v{S+1}, -1
    v_mov_b32 v{S+2}, -1
    v_mov_b32 v{S+3}, -1
    """)
    setflag(a, 64, WS, 10, 11, 's[58:59]')
    if 'st1' in OPT: stamp(a, 1)
    a("s_waitcnt lgkmcnt(0)\ns_barrier"); stamp(a, 4); a(f"""
    buffer_store_dwordx4 {vr(S,4)}, v{vD}, {sr(WS,4)}, s55 offen sc1
    s_mov_b32 exec_hi, 0
    buffer_store_dwordx2 {vr(S,2)}, v{vD}, {sr(WS,4)}, s54 offen sc1
    {"s_mov_b32 exec_lo, 0xff" if 'pret' in OPT else ""}
    {f"buffer_store_dwordx4 {vr(O,4)}, v{vD}, {sr(WS,4)}, s56 offen sc1" if 'pret' in OPT else ""}
    s_mov_b64 exec, -1
    ds_read_b64 {vr(QT,2)}, v{P+2}
    ds_read_b128 {vr(KT,4)}, v{vA} offset:2048
    ds_read_b64 {vr(QM,2)}, v{P}
    ds_read_b64 {vr(QM+2,2)}, v{P+1}
    ds_read_b128 {vr(KM,4)}, v{vA} offset:0
    ds_read_b128 {vr(KM+4,4)}, v{vA} offset:512
    s_waitcnt lgkmcnt({0 if PROF else 4})
    v_mfma_f32_32x32x4_2b_bf16 {vr(S,32)}, {vr(KT,2)}, {vr(QT,2)}, 0
    s_waitcnt lgkmcnt(0)
    s_nop 15
    s_nop 2
    {MF(vr(S,16), vr(KM,4), vr(QM,4), vr(S,16))}
    {MF(vr(S+16,16), vr(KM+4,4), vr(QM,4), vr(S+16,16))}
    ds_read_b128 {vr(KM,4)}, v{vA} offset:1024
    ds_read_b128 {vr(KM+4,4)}, v{vA} offset:1536
    s_mov_b64 exec, {sr(sVm,2)}
    ds_read_b128 {vr(V,4)}, v{vA} offset:2560
    ds_read_b128 {vr(V+4,4)}, v{vA} offset:2880
    s_mov_b64 exec, -1
    s_nop 7
    .p2align 6
    K2_loop:
    """)
    for l in abody.body(R, 0, (3, 2, 1), sVm): a(l)
    a(f"""
    v_add_u32 v{vA}, 10240, v{vA}
    s_sub_u32 s{sI}, s{sI}, 1
    s_cmp_lg_u32 s{sI}, 0
    s_cbranch_scc1 K2_loop
    s_and_b32 s{sI}, s{sSeg}, 15
    s_cbranch_scc0 K2_exit
    s_lshr_b32 s{sSeg}, s{sSeg}, 4
    s_barrier
    s_branch K2_loop
    K2_exit:
    """); stamp(a, 5); a(f"""
    {MF(vr(O,16), vr(V+12,4), vr(P+12,4), vr(O,16))}
    s_mov_b32 s46, {f32(2.0**-64)}
    s_mov_b32 s47, {f32(2.0**64)}
    s_nop 9
    v_cmp_nle_f32 vcc, s46, v{O+12}
    v_cmp_nge_f32 s[46:47], s47, v{O+12}
    s_waitcnt lgkmcnt(0)
    s_or_b64 vcc, vcc, s[46:47]
    s_cbranch_scc1 K2_slow
    K2_fin:
    v_rcp_f32 v{P}, v{O+12}
    v_mov_b32 v4, s{sN}
    v_lshlrev_b32 v5, 2, v{vL}
    s_waitcnt vmcnt(0)
    """)
    for i in range(12): a(f"v_mul_f32 v{O+i}, v{O+i}, v{P}")
    for i in range(6): a(f"v_cvt_pk_bf16_f32 v{S+i}, v{O+2*i}, v{O+2*i+1}")
    a(f"""
    buffer_store_dwordx4 {vr(S,4)}, v{vD}, {sr(WS,4)}, s55 offen sc1
    s_mov_b32 exec_hi, 0
    buffer_store_dwordx2 {vr(S+4,2)}, v{vD}, {sr(WS,4)}, s54 offen sc1
    {"" if 'fline' in OPT else "s_mov_b64 exec, 1"}
    buffer_store_dword v4, v5, {sr(WS,4)}, s56 offen sc1
    s_mov_b64 exec, -1
    """)
    if 'p3' in OPT: stamp(a, 1)
    if 'p3' in OPT: stamp(a, 2)
    a("s_barrier")
    if 'p3' in OPT: stamp(a, 3)
    sKQ, sRB2, sNB, sH0, sH1, sWp = 33, 35, 36, 46, 47, 48
    XR = 104; RR = 108
    def fin_prep():
        tile_ids(a, sRB2, sNB, sT0)
        srd(a, X, 8, 2048*1280); srd(a, OUT, 18, 2048*1280)
        a(f"""
        s_lshl_b32 s{sT0}, s{sW}, 6
        v_add_u32 v4, s{sT0}, v{vL}
        v_mul_u32_u24 v5, 6554, v4
        v_lshrrev_b32 v5, 16, v5
        v_mul_u32_u24 v5, {1280-160}, v5
        v_lshlrev_b32 v4, 4, v4
        v_add_u32 v5, v5, v4
        s_mul_i32 s{sT3}, s{sRB2}, {64*1280}
        s_mul_i32 s{sT1}, s{sNB}, 160
        s_add_u32 s{sT3}, s{sT3}, s{sT1}
        v_add_u32 v6, 51200, v4
        buffer_load_dwordx4 {vr(XR,4)}, v5, {sr(X,4)}, s{sT3} offen
        """)
    fin_prep()
    a("K3_bar:\ns_barrier")
    if 'p3' in OPT: stamp(a, 4); a("s_waitcnt lgkmcnt(0)")
    for p in range(4):
        for h in range(2): a(f"ds_read_b128 {vr(RR+8*p+4*h,4)}, v{4 if p < 2 else 6} offset:{(p%2)*25600 + h*10240}")
    a("s_waitcnt vmcnt(0)")
    for i in range(4): a(f"v_lshlrev_b32 v{8+2*i}, 16, v{XR+i}\nv_and_b32 v{9+2*i}, 0xffff0000, v{XR+i}")
    for p in range(4):
        a(f"s_waitcnt lgkmcnt({6-2*p})")
        for i in range(4): a(f"v_pk_add_f32 {vr(8+2*i,2)}, {vr(8+2*i,2)}, {vr(RR+8*p+2*i,2)}")
    for i in range(4): a(f"v_cvt_pk_bf16_f32 v{XR+i}, v{8+2*i}, v{9+2*i}")
    a(f"buffer_store_dwordx4 {vr(XR,4)}, v5, {sr(OUT,4)}, s{sT3} offen {os.environ.get('OUTF', '')}\nK_pe:")
    prof_end(a, 0, WS, sW)
    a("K_end:\ns_endpgm")
    vW, vW2 = 1, 3
    ACC, FR = 8, 104
    a("K2_G:"); aids()
    def fill(n, lab):
        a(f"""
        s_mov_b32 s{sI}, {n}
        {lab}:
        buffer_load_dwordx4 v{vD}, {sr(WS,4)}, s{sSrc} offen sc1 lds
        s_add_u32 s{sSrc}, s{sSrc}, 4096
        s_add_u32 m0, m0, 4096
        s_sub_u32 s{sI}, s{sI}, 1
        s_cmp_lg_u32 s{sI}, 0
        s_cbranch_scc1 {lab}
        """)
    rowidx(a, sT1, sRT, sT0)
    a(f"""
    s_lshl_b32 s{sT0}, s{sR}, 10
    s_add_u32 s{sSrc}, s{sT0}, {WS_KV}
    s_mov_b32 m0, s{sT0}
    s_mul_i32 s{sT2}, s{sCB}, 10
    s_lshr_b32 s{sT2}, s{sT2}, 2
    v_and_b32 v4, 2, v{vL}
    v_add_u32 v4, s{sT2}, v4
    v_lshrrev_b32 v4, 1, v4
    v_lshl_add_u32 v4, v4, 5, s{sT1}
    v_lshlrev_b32 v4, 7, v4
    v_add_u32 v4, {WS_F1}, v4
    s_and_b32 s{sT0}, s2, 63
    s_lshl_b32 s{sT0}, s{sT0}, 8
    s_add_u32 s{sT0}, s{sT0}, {WS_FK}
    v_writelane_b32 v4, s{sT0}, 0
    s_mul_i32 s54, s{sRT}, 40
    s_add_u32 s54, s54, s{sT2}
    s_lshl_b32 s54, s54, 10
    s_mov_b32 s{sT3}, 0
    s_mov_b32 s{sSeg}, 1
    buffer_load_dword v5, v4, {sr(WS,4)}, 0 offen sc1
    """)
    for i in range(96): a(f"v_mov_b32 v{ACC+i}, 0")
    tile_ids(a, sRB2, sNB, sT0)
    wlane(a, vL, vW, vW2, 6)
    a(f"""
    K2_p1:
    s_waitcnt vmcnt(0)
    v_cmp_ne_u32 vcc, s{sN}, v5
    s_add_u32 s{sT3}, s{sT3}, 1
    s_cmp_ge_u32 s{sT3}, {SPINMAX}
    s_cselect_b64 vcc, 0, vcc
    s_andn2_b32 s{sT0}, s{sSeg}, vcc_lo
    s_cbranch_scc0 K2_p1b
    s_mov_b32 s{sSeg}, 0
    """)
    stamp(a, 2)
    fill(NF1, "K2_f1")
    a(f"""
    K2_p1b:
    s_cmp_eq_u64 vcc, 0
    s_cbranch_scc1 K2_p1x
    s_sleep {SLP}
    buffer_load_dword v5, v4, {sr(WS,4)}, 0 offen sc1
    s_branch K2_p1
    K2_p1x:
    s_mov_b32 s{sSeg}, m0
    s_mul_i32 s{sT1}, s{sR}, 3072
    s_add_u32 m0, s{sT1}, {XQ}
    s_nop 0
    """)
    for i in range(3): a(f"buffer_load_dwordx4 v{vD}, {sr(WS,4)}, s54 offen offset:{1024*i} sc1 lds")
    a(f"""
    s_mov_b32 m0, s{sSeg}
    s_setprio 3
    s_waitcnt vmcnt(0)
    s_barrier
    """); stamp(a, 3)
    a(f"""
    s_mul_i32 s{sT0}, s{sR}, 10240
    s_add_u32 s{sT0}, s{sT0}, {HS}
    v_add_u32 v4, s{sT0}, v{vD}
    """)
    for i in range(10): a(f"ds_read_b128 {vr(FR+4*i,4)}, v4 offset:{1024*i}")
    fill(10, "K2_f2")
    a(f"""
    s_waitcnt vmcnt(0) lgkmcnt(0)
    s_barrier
    s_cmp_eq_u32 s62, 0
    s_cbranch_scc1 K2_nh
    """)
    for j in range(5):
        if j == 4: a(f"s_cmp_lt_u32 s62, {WS_H + 64*96*1024}\ns_cselect_b32 s62, s62, {WS_END}")
        a(f"""
        buffer_store_dwordx4 {vr(FR+8*j,4)}, v{vD}, {sr(WS,4)}, s62 offen sc1
        buffer_store_dwordx4 {vr(FR+8*j+4,4)}, v{vD}, {sr(WS,4)}, s62 offen offset:1024 sc1
        s_add_u32 s62, s62, {96*1024}
        """)
    a("K2_nh:")
    fill(25, "K2_f3")
    a(f"""
    s_cmp_eq_u32 s62, 0
    s_cselect_b32 s63, {WS_END}, s63
    v_mov_b32 v4, s{sN}
    v_mov_b32 v5, 0
    s_mov_b64 exec, 1
    s_waitcnt vmcnt(25)
    buffer_store_dword v4, v5, {sr(WS,4)}, s63 offen sc1
    s_mov_b64 exec, -1
    s_waitcnt vmcnt(1)
    s_barrier
    """)
    a(f"s_lshl_b32 s{sT2}, s{sRB2}, 1")
    rowidx(a, sH0, sT2, sT0)
    a(f"s_add_u32 s{sT2}, s{sT2}, 1")
    rowidx(a, sH1, sT2, sT0)
    a(f"""
    v_and_b32 v4, 1, v{vL}
    v_cmp_eq_u32 vcc, 0, v4
    v_mov_b32 v4, s{sH0}
    v_mov_b32 v5, s{sH1}
    v_cndmask_b32 v4, v5, v4, vcc
    v_and_b32 v4, 30, v4
    v_lshrrev_b32 v5, 1, v{vL}
    v_min_u32 v5, 11, v5
    s_mul_i32 s{sT0}, s{sKQ}, 12
    s_add_u32 s{sT0}, s{sT0}, 20
    v_add_u32 v5, s{sT0}, v5
    v_lshl_add_u32 v4, v5, 5, v4
    v_cmp_gt_u32 vcc, 32, v{vL}
    v_min_u32 v5, 53, v{vL}
    v_add_u32 v5, {72*32 - 32}, v5
    v_cndmask_b32 v4, v5, v4, vcc
    v_lshlrev_b32 v4, 7, v4
    v_add_u32 v4, {WS_F1}, v4
    s_mul_i32 s{sH0}, s{sRB2}, 192
    s_mul_i32 s{sT0}, s{sKQ}, 24
    s_add_u32 s{sH0}, s{sH0}, s{sT0}
    s_lshl_b32 s{sH0}, s{sH0}, 10
    s_add_u32 s{sH0}, s{sH0}, {WS_H}
    s_add_u32 s{sH1}, s{sH0}, {96*1024}
    s_mul_i32 s{sWp}, s{sT0}, 20480
    s_mul_i32 s{sT0}, s{sNB}, 2560
    s_add_u32 s{sWp}, s{sWp}, s{sT0}
    s_add_u32 s{sWp}, s{sWp}, {WS_WP}
    """)
    if 'st3' in OPT: stamp(a, 2)
    poll(a, "K2_p3", 4, 5, WS, sT3)
    stamp(a, 1)
    def gload(j):
        b = FR + 20 * j
        a(f"""
        buffer_load_dwordx4 {vr(b,4)}, v{vD}, {sr(WS,4)}, s{sH0} offen offset:{1024*j} sc1
        buffer_load_dwordx4 {vr(b+4,4)}, v{vD}, {sr(WS,4)}, s{sH1} offen offset:{1024*j} sc1
        buffer_load_dwordx4 {vr(b+8,4)}, v{vW}, {sr(WS,4)}, s{sWp} offen sc1
        buffer_load_dwordx4 {vr(b+12,4)}, v{vW}, {sr(WS,4)}, s{sWp} offen offset:1024 sc1
        buffer_load_dwordx4 {vr(b+16,4)}, v{vW2}, {sr(WS,4)}, s{sWp} offen offset:2048 sc1
        s_add_u32 s{sWp}, s{sWp}, 20480
        """)
    for j in range(3): gload(j)
    a(f"s_setprio {GPRIO}")
    a(f"""
    s_mov_b32 s{sI}, 8
    K2_Gl:
    s_add_u32 s{sH0}, s{sH0}, 3072
    s_add_u32 s{sH1}, s{sH1}, 3072
    s_cmp_eq_u32 s{sI}, 1
    s_cselect_b32 s{sH0}, {WS_END}, s{sH0}
    s_cselect_b32 s{sH1}, {WS_END}, s{sH1}
    s_cselect_b32 s{sWp}, {WS_END}, s{sWp}
    """)
    def mm6(aw, bo):
        for t in range(3):
            for r in range(2):
                a(MF(vr(ACC+48*r+16*t,16), vr(aw+4*t,4), vr(bo+4*r,4), vr(ACC+48*r+16*t,16)))
    for j in range(3):
        b = FR + 20 * j
        a("s_waitcnt vmcnt(10)")
        mm6(b + 8, b)
        gload(j)
    a(f"""
    s_sub_u32 s{sI}, s{sI}, 1
    s_cmp_lg_u32 s{sI}, 0
    s_cbranch_scc1 K2_Gl
    """); 'st2' in OPT or stamp(a, 4)
    a(f"""
    s_setprio 3
    s_mul_i32 s{sT2}, s{sKQ}, 25600
    s_mul_i32 s{sWp}, s{sKQ}, {10*20480}
    s_mul_i32 s{sT0}, s{sNB}, 2560
    s_add_u32 s{sWp}, s{sWp}, s{sT0}
    s_add_u32 s{sWp}, s{sWp}, {WS_WP + 96*20480}
    s_mov_b32 m0, s{sT2}
    v_add_u32 v{vW}, s{sT2}, v{vW}
    v_add_u32 v{vW2}, s{sT2}, v{vW2}
    s_lshl_b32 s{sT0}, s{sRB2}, 3
    s_add_u32 s{sT0}, s{sT0}, s{sKQ}
    s_lshl_b32 s{sT0}, s{sT0}, 10
    s_add_u32 s{sT0}, s{sT0}, {WS_F3}
    v_and_b32 v7, 39, v{vL}
    v_lshl_add_u32 v7, v7, 7, s{sT0}
    s_mul_i32 s{sH0}, s{sRB2}, 80
    s_mul_i32 s{sT0}, s{sKQ}, 10
    s_add_u32 s{sH0}, s{sH0}, s{sT0}
    s_lshl_b32 s{sH0}, s{sH0}, 10
    s_add_u32 s{sH0}, s{sH0}, {WS_O}
    s_add_u32 s{sH1}, s{sH0}, 40960
    s_mul_i32 s49, s{sNB}, {ROT3}
    s_lshr_b32 s49, s49, 2
    s_mul_i32 s{sT0}, s49, 20480
    s_add_u32 s50, s{sWp}, {10*20480}
    s_add_u32 s{sWp}, s{sWp}, s{sT0}
    s_lshl_b32 s49, s49, 10
    s_mov_b32 s{sI}, 10
    s_waitcnt vmcnt(0)
    s_barrier
    K2_f4:
    buffer_load_dwordx4 v{vD}, {sr(WS,4)}, s{sWp} offen sc1 lds
    buffer_load_dwordx4 v{vD}, {sr(WS,4)}, s{sWp} offen offset:1024 sc1 lds
    s_mov_b32 exec_hi, 0
    buffer_load_dwordx4 v{vD}, {sr(WS,4)}, s{sWp} offen offset:2048 sc1 lds
    s_mov_b32 exec_hi, -1
    s_add_u32 s{sWp}, s{sWp}, 20480
    s_cmp_eq_u32 s{sWp}, s50
    s_cselect_b32 s{sT0}, {10*20480}, 0
    s_sub_u32 s{sWp}, s{sWp}, s{sT0}
    s_add_u32 m0, m0, 2560
    s_sub_u32 s{sI}, s{sI}, 1
    s_cmp_lg_u32 s{sI}, 0
    s_cbranch_scc1 K2_f4
    """)
    FO, FW = 104, 140
    def wread(j):
        b = FW + 12 * (j % 2)
        a(f"""
        ds_read_b128 {vr(b,4)}, v{vW} offset:{2560*j}
        ds_read_b128 {vr(b+4,4)}, v{vW} offset:{2560*j+1024}
        ds_read_b128 {vr(b+8,4)}, v{vW2} offset:{2560*j+2048}
        """)
    OA = 88
    def oissue(j):
        b = FO + 8 * (j % 4)
        a(f"""
        buffer_load_dwordx4 {vr(b,4)}, v{vD}, {sr(WS,4)}, s{OA+2*(j%4)} offen sc1
        buffer_load_dwordx4 {vr(b+4,4)}, v{vD}, {sr(WS,4)}, s{OA+2*(j%4)+1} offen sc1
        """)
    def oaddr(j):
        a(f"""
        s_add_u32 s{OA+2*(j%4)}, s{sH0}, s49
        s_add_u32 s{OA+2*(j%4)+1}, s{sH1}, s49
        s_add_u32 s49, s49, 1024
        s_cmp_eq_u32 s49, 10240
        s_cselect_b32 s49, 0, s49
        """)
    a("s_waitcnt vmcnt(0)")
    wread(0); wread(1)
    for j in range(4): oaddr(j)
    a(f"s_mov_b32 s51, {SPINMAX}\ns_barrier")
    if 'p3' in OPT: stamp(a, 1)
    poll(a, "K2_p4", 7, 5, WS, sT3)
    'st2' in OPT or stamp(a, 5)
    for j in range(4): oissue(j)
    retry = []
    for j in range(10):
        later = min(j + 3, 9) - j
        b = FO + 8 * (j % 4)
        a(f"""
        s_waitcnt vmcnt({2*later}) lgkmcnt({0 if (j == 9 or PROF) else 3})
        K3_c{j}:
        v_max3_u32 v5, v{b}, v{b+2}, v{b+4}
        v_max_u32 v5, v5, v{b+6}
        v_cmp_eq_u32 vcc, -1, v5
        s_cbranch_vccnz K3_r{j}
        K3_m{j}:
        """)
        mm6(FW + 12 * (j % 2), b)
        if j + 4 < 10: oaddr(j + 4); oissue(j + 4)
        if j + 2 < 10: wread(j + 2)
    def retries():
        for j in range(10):
            a(f"K3_r{j}:\ns_cmp_eq_u32 s51, 0\ns_cbranch_scc1 K3_m{j}\ns_sub_u32 s51, s51, 1")
            oissue(j)
            a(f"s_waitcnt vmcnt(0)\ns_branch K3_c{j}")
    if 'p3' in OPT: stamp(a, 2)
    fin_prep()
    a(f"""
    v_and_b32 v7, 31, v{vL}
    v_mul_u32_u24 v7, 160, v7
    v_lshrrev_b32 v{RR}, 5, v{vL}
    v_mul_u32_u24 v{RR}, 10240, v{RR}
    v_add3_u32 v7, v7, v{RR}, s{sT2}
    """)
    for r in range(2):
        for o in range(10): a(f"ds_write_b128 v7, {vr(ACC+48*r+4*o,4)} offset:{5120*r+16*o}")
    a(f"""
    s_waitcnt lgkmcnt(0)
    {"s_memtime s[76:77]" if PROF and 'p3' in OPT else ""}
    s_cmp_lt_u32 s{sW}, 10
    s_cbranch_scc1 K3_bar
    s_barrier
    {"s_branch K_pe" if PROF else "s_endpgm"}
    """)
    retries()
    vMx = 3
    sP, sO1, sO2, sO3 = 48, 49, 50, 51
    a(f"""
    K_last:
    K2_slow:
    v_subrev_u32 v{vA}, {16*10240}, v{vA}
    v_mov_b32 v{vMx}, 0xff800000
    s_mov_b32 s{sP}, 0
    """)
    for i in range(16): a(f"v_mov_b32 v{O+i}, 0")
    a(f"""
    K2_sp:
    s_mov_b32 s{sI}, 0
    K2_sl:
    s_lshr_b32 s{sT0}, s{sI}, 1
    s_mul_i32 s{sT0}, s{sT0}, 10240
    s_add_u32 s{sT0}, s{sT0}, {WS_KV}
    s_and_b32 s{sT1}, s{sI}, 1
    s_lshl_b32 s{sO1}, s{sT1}, 10
    s_add_u32 s{sO1}, s{sO1}, s{sT0}
    s_lshl_b32 s{sO2}, s{sT1}, 3
    s_add_u32 s{sO2}, s{sO2}, s{sT0}
    s_mul_i32 s{sO3}, s{sT1}, 1280
    s_add_u32 s{sO3}, s{sO3}, s{sT0}
    buffer_load_dwordx4 {vr(KM,4)}, v{vA}, {sr(WS,4)}, s{sO1} offen sc1
    buffer_load_dwordx4 {vr(KM+4,4)}, v{vA}, {sr(WS,4)}, s{sO1} offen offset:512 sc1
    buffer_load_dwordx2 {vr(KT,2)}, v{vA}, {sr(WS,4)}, s{sO2} offen offset:2048 sc1
    s_mov_b64 exec, {sr(sVm,2)}
    """)
    for f in range(4): a(f"buffer_load_dwordx4 {vr(V+4*f,4)}, v{vA}, {sr(WS,4)}, s{sO3} offen offset:{2560+320*f} sc1")
    a(f"""
    s_mov_b64 exec, -1
    s_waitcnt vmcnt(0)
    v_mfma_f32_32x32x4_2b_bf16 {vr(S,32)}, {vr(KT,2)}, {vr(QT,2)}, 0
    s_nop 15
    s_nop 3
    {MF(vr(S,16), vr(KM,4), vr(QM,4), vr(S,16))}
    {MF(vr(S+16,16), vr(KM+4,4), vr(QM,4), vr(S+16,16))}
    s_cmp_lg_u32 s{sP}, 0
    s_nop 12
    s_cbranch_scc1 K2_sp2
    """)
    for i in range(16): a(f"v_max3_f32 v{vMx}, v{S+2*i}, v{S+2*i+1}, v{vMx}")
    a("s_branch K2_snext\nK2_sp2:")
    for i in range(32): a(f"v_sub_f32 v{S+i}, v{S+i}, v{vMx}")
    for i in range(32): a(f"v_exp_f32 v{S+i}, v{S+i}")
    a("s_nop 0")
    for i in range(16): a(f"v_cvt_pk_bf16_f32 v{P+i}, v{S+2*i}, v{S+2*i+1}")
    a("s_nop 1")
    for f in range(4): a(MF(vr(O,16), vr(V+4*f,4), vr(P+4*f,4), vr(O,16)))
    a(f"""
    s_nop 15
    K2_snext:
    s_add_u32 s{sI}, s{sI}, 1
    s_cmp_lt_u32 s{sI}, 32
    s_cbranch_scc1 K2_sl
    s_cmp_lg_u32 s{sP}, 0
    s_cbranch_scc1 K2_fin
    v_mov_b32 v{P}, v{vMx}
    s_nop 1
    v_permlane32_swap_b32 v{P}, v{vMx}
    s_mov_b32 s{sP}, 1
    v_max_f32 v{vMx}, v{vMx}, v{P}
    s_branch K2_sp
    """)
    return 164

def main(out):
    a = Asm()
    gen_k1(a); n = gen_k2(a)
    head = f"""; LayerNorm + MQA attention + SiLU FFN in one launch (generated by work/gen7.py)
; @launch grid=(256,1,1) block=(768,1,1) lds=163840
.amdgcn_target "amdgcn-amd-amdhsa--gfx950"
.text
"""
    tail = '.section .rodata,"a"\n' + kdesc(KN, n)
    txt = a.text()
    import re
    if 'pollsys' in OPT: txt = re.sub(r"(buffer_load_dword v\d+, v\d+, s\[28:31\], 0 offen) sc1", r"\1 sc0 sc1", txt)
    if 'flagsys' in OPT: txt = re.sub(r"(buffer_store_dword v\d+, v\d+, s\[28:31\], s\d+ offen) sc1", r"\1 sc0 sc1", txt)
    if 'flagatom' in OPT: txt = re.sub(r"buffer_store_dword (v\d+, v\d+, s\[28:31\], s\d+ offen) sc1", r"buffer_atomic_swap \1", txt)
    if 'allsys' in OPT: txt = re.sub(r"(?<!sc0) sc1", " sc0 sc1", txt)
    if 'rt' in OPT: txt = txt.replace("s_memtime", "s_memrealtime")
    open(out, "w").write(head + txt + tail)

if __name__ == "__main__":
    if "--prof" in sys.argv:
        PROF = True; sys.argv.remove("--prof")
    main(sys.argv[1] if len(sys.argv) > 1 else f"cdna_kernels/{NAME}.s")
```

```python
import sys, math, os, struct
import abody, kbody
OPT = set(os.environ.get('OPT', '').split(','))
NAME = "parallel_sum__grouped_kv_mqa__dense_activation_silu__prompt"
WS_Q, WS_KV, WS_H, WS_O, WS_WP, WS_Y, WS_PROF, WS_END = 0, 0x300000, 0x340000, 0x940000, 0xD00000, 0x1000000, 0xC00000, 0x1500000
WS_SR, WS_SC = 0x280000, 0x2D2000
WS_F1, WS_F3, WS_FK = 0x1000000, 0x1080000, 0x1060000
SLP = int(os.environ.get('SLP', '4'))
XB = 147456; XFC, XN, XQ = XB + 2560, XB + 3072, XB + 4096
sN = 68
KN = NAME + '_kernel'
SPINMAX = 20000
ROTR, ROTC = (int(c) for c in os.environ.get('ROT', '3,3').split(','))
PRE = int(os.environ.get('PRE', '2'))
PRE_CTRL = """s_or_b32 s{sT0}, s{sI}, 2
    s_cmp_eq_u32 s{sT0}, 3
    s_cbranch_scc1 K1_issue
    s_cmp_lg_u32 s{sI}, 2
    s_cbranch_scc1 K1_w18""" if PRE == 2 else """s_cmp_lt_u32 s{sI}, %d
    s_cbranch_scc1 K1_issue
    s_cmp_lg_u32 s{sI}, %d
    s_cbranch_scc1 K1_w18""" % (PRE, PRE)
CSAT = int(os.environ.get('CSAT', '2'))
NF1 = 5
HS = 102400
SEGS = eval(os.environ.get('SEGS', '[1, 3, 10, 2]'))
DEEP = int(os.environ.get('DEEP', '99'))
GPRIO = int(os.environ.get('GPRIO', '0'))
ROT3 = int(os.environ.get('ROT3', '5'))
RW = int(os.environ.get('RW', '10')); RMUL = int(os.environ.get('RMUL', '3'))
TSH = int(os.environ.get('TSH', '0'))
DEF = int(os.environ.get('DEF', '2'))
HOOK = int(os.environ.get('HOOK', '2'))
LOG2E = 1.4426950408889634
def f32(x): return "0x%08x" % struct.unpack("<I", struct.pack("<f", x))[0]

class Asm:
    def __init__(self): self.l = []
    def __call__(self, s):
        for x in s.strip("\n").split("\n"):
            x = x.strip()
            if x: self.l.append(("" if x.endswith(":") else "    ") + x)
    def text(self): return "\n".join(self.l) + "\n"
def vr(a, n): return "v[%d:%d]" % (a, a + n - 1)
def ar(a, n): return "a[%d:%d]" % (a, a + n - 1)
def sr(a, n): return "s[%d:%d]" % (a, a + n - 1)
def srd(a, d, base, nbytes):
    a(f"s_mov_b32 s{d}, s{base}\ns_mov_b32 s{d+1}, s{base+1}\ns_mov_b32 s{d+2}, {nbytes}\ns_mov_b32 s{d+3}, 0x00020000")
def kdesc(name, vgpr, agpr=0, sgpr=102):
    acc = (vgpr + 3) // 4 * 4
    return f""".p2align 6
.amdhsa_kernel {name}
  .amdhsa_next_free_vgpr {acc + agpr if agpr else vgpr}
  .amdhsa_next_free_sgpr {sgpr}
  .amdhsa_accum_offset {acc}
  .amdhsa_group_segment_fixed_size 0
  .amdhsa_kernarg_size 88
  .amdhsa_user_sgpr_count 2
  .amdhsa_user_sgpr_kernarg_segment_ptr 1
  .amdhsa_system_sgpr_workgroup_id_x 1
.end_amdhsa_kernel
"""
def khead(a, name): a.l.append(f".globl {name}\n.p2align 8\n.type {name},@function\n{name}:")
PROF = False
DIAGX = int(os.environ.get('DIAGX', '0'))
DIAGC = os.environ.get('DIAGC', '')
def stamp(a, i):
    if DIAGX:
        a(f"{'s_memtime' if DIAGC else 's_memrealtime'} s[{70+2*i}:{71+2*i}]")
        return
    if 'dbgt' in OPT:
        a(f"s_memrealtime s[{70+2*i}:{71+2*i}]")
        if i == 0: a("s_mov_b32 s72, 0\ns_mov_b32 s74, 0\ns_mov_b32 s76, 0")
        return
    if PROF:
        a(f"s_memtime s[{70+2*i}:{71+2*i}]")
        if i == 0: a("s_memrealtime s[84:85]")
def prof_end(a, kidx, WS, sW):
    if DIAGX:
        a(f"""
        s_cmp_lg_u32 s{sW}, {DIAGC.split(',')[1] if DIAGC else 0}
        s_cbranch_scc1 K_end
        s_cmp_lg_u32 s2, {int(os.environ.get('DIAGWG', '40'))}
        s_cbranch_scc1 K_end
        s_waitcnt vmcnt(0)
        s_memrealtime s[82:83]
        s_waitcnt lgkmcnt(0)
        {f"s_sub_u32 s84, s{70+2*DIAGX}, s70" if DIAGX < 7 else f"s_sub_u32 s84, s70, s{sN}"}
        {"s_add_u32 s84, s84, 1500" if DIAGX == 7 else ""}
        s_lshl_b32 s84, s84, 2
        {f"s_sub_u32 s84, s{70+2*DIAGX}, s{70+2*int(DIAGC.split(',')[0])}" if DIAGC else ""}
        {"s_lshr_b32 s84, s84, 2" if DIAGC else ""}
        K_dl:
        s_memrealtime s[86:87]
        s_waitcnt lgkmcnt(0)
        s_sub_u32 s86, s86, s82
        s_cmp_lt_u32 s86, s84
        s_cbranch_scc1 K_dl
        """)
        return
    if 'dbgt' in OPT:
        a(f"""
        s_cmp_lg_u32 s{sW}, 0
        s_cbranch_scc1 K_end
        s_waitcnt vmcnt(0)
        s_memrealtime s[82:83]
        s_mov_b32 s20, s4
        s_mov_b32 s21, s5
        s_mov_b32 s22, 256
        s_mov_b32 s23, 0x00020000
        s_mov_b64 exec, 1
        v_mov_b32 v0, 0
        s_waitcnt lgkmcnt(0)
        s_not_b32 s84, s70
        v_mov_b32 v1, s84
        buffer_atomic_umax v1, v0, s[20:23], 0 offen offset:4
        """)
        for i in range(7):
            a(f"v_mov_b32 v{2+i}, s{70+2*i}\nbuffer_atomic_umax v{2+i}, v0, s[20:23], 0 offen offset:{8+4*i}")
        return
    if not PROF: return
    a(f"""
    s_waitcnt vmcnt(0)
    s_memtime s[82:83]
    s_memrealtime s[86:87]
    s_mov_b64 exec, -1
    s_waitcnt lgkmcnt(0)
    s_lshl_b32 s88, s2, 4
    s_add_u32 s88, s88, s{sW}
    s_lshl_b32 s88, s88, 6
    s_add_u32 s88, s88, {WS_PROF + kidx * 0x40000}
    v_mov_b32 v0, 0
    """)
    if 'kvs' in OPT: a("s_mov_b32 s80, s90")
    if 'lacc' in OPT: a(f"s_cmp_lt_u32 s{sW}, 8\ns_cbranch_scc1 K_pe2\ns_add_u32 s76, s70, s95\ns_add_u32 s78, s70, s96\ns_add_u32 s80, s70, s97\nK_pe2:")
    for i in range(7): a(f"v_mov_b32 v{4+i}, s{70+2*i}")
    a(f"""
    v_mov_b32 v11, s84
    v_mov_b32 v12, s86
    v_mov_b32 v13, 0
    v_mov_b32 v14, 0
    v_mov_b32 v15, 0
    s_mov_b64 exec, 1
    buffer_store_dwordx4 v[4:7], v0, {sr(WS,4)}, s88 offen
    buffer_store_dwordx4 v[8:11], v0, {sr(WS,4)}, s88 offen offset:16
    buffer_store_dwordx4 v[12:15], v0, {sr(WS,4)}, s88 offen offset:32
    """)
def poll(a, lab, vaddr, vtmp, WS, sCnt):
    a(f"""
    s_mov_b32 s{sCnt}, 0
    {lab}:
    buffer_load_dword v{vtmp}, v{vaddr}, {sr(WS,4)}, 0 offen sc1
    s_add_u32 s{sCnt}, s{sCnt}, 1
    s_waitcnt vmcnt(0)
    v_cmp_ne_u32 vcc, s{sN}, v{vtmp}
    s_cbranch_vccz {lab}x
    s_sleep {SLP}
    s_cmp_lt_u32 s{sCnt}, {SPINMAX}
    s_cbranch_scc1 {lab}
    {lab}x:
    """)
def setflag(a, soff, WS, v0, v1, emask="1"):
    a(f"""
    v_mov_b32 v{v0}, s{sN}
    v_lshlrev_b32 v{v1}, 8, v0
    s_mov_b64 exec, {emask}
    s_waitcnt vmcnt(0)
    buffer_store_dword v{v0}, v{v1}, {sr(WS,4)}, s{soff} offen sc1
    s_mov_b64 exec, -1
    """)
def rowidx(a, d, rt, t):
    a(f"""
    s_mul_i32 s{d}, s{rt}, 205
    s_lshr_b32 s{d}, s{d}, 10
    s_mul_i32 s{t}, s{d}, 5
    s_sub_u32 s{t}, s{rt}, s{t}
    s_lshl_b32 s{d}, s{d}, 1
    s_cmp_ge_u32 s{t}, 3
    s_addc_u32 s{d}, s{d}, 0
    """)
def round_bf16(a, d, s): a(f"v_cvt_pk_bf16_f32 v{d}, v{s}, v{s}\nv_lshlrev_b32 v{d}, 16, v{d}")
def MF(d, A, B, C): return f"v_mfma_f32_32x32x16_bf16 {d}, {A}, {B}, {C}"

def ldswait(a, lab, vaddr, vtmp, sTmp, sNeed, off=0):
    a(f"""
    {lab}:
    ds_read_b32 v{vtmp}, v{vaddr} offset:{off}
    s_waitcnt lgkmcnt(0)
    v_readfirstlane_b32 s{sTmp}, v{vtmp}
    s_cmp_ge_u32 s{sTmp}, {sNeed}
    s_cbranch_scc1 {lab}x
    {'s_sleep 1' if 'nosl' not in OPT else ''}
    s_sub_u32 s65, s65, 1
    s_cbranch_scc0 {lab}
    s_mov_b32 s65, 0
    {lab}x:
    """)
def ldsadd(a, vaddr, vone, off=0):
    a(f"s_mov_b64 exec, 1\nds_add_u32 v{vaddr}, v{vone} offset:{off}\ns_mov_b64 exec, -1")

def acc(a, i):
    if PROF and 'lacc' in OPT:
        a(f"s_memtime s[92:93]\ns_waitcnt lgkmcnt(0)\ns_sub_u32 s94, s92, s91\ns_mov_b32 s91, s92\ns_add_u32 s{95+i}, s{95+i}, s94")
def gen_k1(a):
    khead(a, KN)
    SLOT = 36864
    CNT = XN + 16
    sW, sR, sG, sRB, sCB = 32, 33, 34, 35, 36
    sI, sK, sSlot, sT0, sT1, sMx, sNeed, sStr64, sDelta, sRd, sT2, sT3, sK0, sMB, sU, sTyp, sRT, sS32, sOnes = 38, 39, 40, 41, 42, 43, 44, 45, 46, 47, 48, 49, 50, 51, 52, 53, 54, 55, 37
    sHr, sIdle, sGs, DB2, sHc = 56, 69, 57, 12, 57
    X, WA, WS, DBG = 20, 24, 28, 20
    vL, vXs, vWs, vCom, vOne, vC, vF = 0, 1, 2, 11, 10, 17, 18
    vAx, vAw = 12, 16
    vT = 24
    AC = 32; fW, fX = 80, 96
    a(f"""
    s_cmp_ge_u32 s2, 256
    s_cbranch_scc1 K_end
    """); stamp(a, 0); a(f"""
    s_load_dwordx8 s[8:15], s[0:1], 0
    s_load_dwordx4 s[60:63], s[0:1], 48
    s_load_dwordx4 s[4:7], s[0:1], 72
    s_load_dwordx2 s[16:17], s[0:1], 32
    s_load_dwordx2 s[18:19], s[0:1], 64
    v_lshrrev_b32 v1, 6, v0
    v_and_b32 v{vL}, 63, v0
    v_readfirstlane_b32 s{sW}, v1
    s_and_b32 s{sT0}, s2, 7
    s_lshr_b32 s{sT1}, s2, 3
    s_mul_i32 s{sT2}, s{sT0}, 30
    s_add_u32 s{sT2}, s{sT2}, s{sT1}
    v_lshrrev_b32 v{vT}, 5, v{vL}
    v_and_b32 v{vT+1}, 3, v{vL}
    v_bfe_u32 v{vT+2}, v{vL}, 2, 3
    v_lshlrev_b32 v{vT+3}, 4, v{vT+1}
    s_mov_b32 s{WS+2}, {WS_END}
    s_mov_b32 s{WS+3}, 0x00020000
    s_lshl_b32 s{sT3}, s{sW}, 8
    s_add_u32 s{sT3}, s{sT3}, s{sT1}
    s_cmp_lg_u32 s{sT3}, {(1 << 8) + 30}
    s_cbranch_scc1 K1_npf
    s_getpc_b64 s[66:67]
    K1_pc:
    v_lshlrev_b32 v2, 7, v{vL}
    v_add_u32 v3, 8192, v2
    v_min_u32 v3, K_last-K1_pc, v3
    {"" if 'nocpf' in OPT else "global_load_dword v60, v2, s[66:67]"}
    {"" if 'nocpf' in OPT else "global_load_dword v61, v3, s[66:67]"}
    K1_npf:
    s_cmp_ge_u32 s{sT1}, 30
    s_cbranch_scc1 K1_aux
    s_cmp_ge_u32 s{sT2}, 234
    s_cbranch_scc1 K1_aux
    s_cmp_lt_u32 s{sT2}, 126
    s_cselect_b32 s{sT0}, 0, 126
    s_cselect_b32 s{sT1}, 7, 6
    s_movk_i32 s{sT3}, 10923
    s_cselect_b32 s{sT3}, 9363, s{sT3}
    s_cselect_b32 s{sRB}, 0, 7
    s_sub_u32 s{sT2}, s{sT2}, s{sT0}
    s_mul_i32 s{sCB}, s{sT2}, s{sT3}
    s_lshr_b32 s{sCB}, s{sCB}, 16
    s_mul_i32 s{sT1}, s{sT1}, s{sCB}
    s_sub_u32 s{sT2}, s{sT2}, s{sT1}
    s_add_u32 s{sRB}, s{sRB}, s{sT2}
    s_and_b32 s{sR}, s{sW}, 3
    s_add_u32 s{sK}, s{sRB}, s{sCB}
    s_mul_i32 s{sK}, s{sK}, {RMUL}
    s_mul_i32 s{sT0}, s{sK}, {65536 // RW + 1}
    s_lshr_b32 s{sT0}, s{sT0}, 16
    s_mul_i32 s{sT0}, s{sT0}, {RW}
    s_sub_u32 s{sK}, s{sK}, s{sT0}
    s_mul_i32 s{sK}, s{sK}, {10 // RW}
    s_cmp_lt_u32 s{sW}, 8
    s_cbranch_scc1 K1_C
    """)
    def common2():
        a(f"""
        v_bfe_u32 v{vT+4}, v{vL}, 2, 2
        v_bfe_u32 v{vT+5}, v{vL}, 4, 1
        v_lshl_add_u32 v{vT+4}, v{vT+4}, 1, v{vT+5}
        v_lshl_add_u32 v{vT+4}, v{vT+4}, 2, v{vT+1}
        v_lshlrev_b32 v{vCom}, 3, v{vT+4}
        s_mov_b32 s{sOnes}, 0x3f803f80
        s_cmp_eq_u32 s{sCB}, 17
        s_cselect_b32 s{sT0}, 1, 3
        s_and_b32 s{sT0}, s{sT0}, s{sR}
        s_lshr_b32 s{sT1}, s{sT0}, 1
        s_lshl_b32 s{sT1}, s{sT1}, 13
        s_and_b32 s{sT0}, s{sT0}, 1
        s_lshl_b32 s{sT0}, s{sT0}, 9
        s_add_u32 s{sT0}, s{sT0}, s{sT1}
        s_add_u32 s{sT0}, s{sT0}, 20480
        v_lshl_add_u32 v{vAw}, v{vT}, 10, v{vCom}
        v_add_u32 v{vAw}, s{sT0}, v{vAw}
        """)
    vQb, vQa = 4, 6
    a(f"""
    s_mul_i32 s{sT0}, s{sRB}, 160
    s_lshl_b32 s{sT1}, s{sR}, 3
    s_add_u32 s{sT0}, s{sT0}, s{sT1}
    s_mul_i32 s{sT0}, s{sT0}, 1280
    v_lshrrev_b32 v{vT+4}, 3, v{vL}
    v_mul_u32_u24 v{vT+4}, 1280, v{vT+4}
    v_add_u32 v{vT+4}, s{sT0}, v{vT+4}
    v_and_b32 v{vT+5}, 7, v{vL}
    v_lshrrev_b32 v{vT+6}, 4, v{vL}
    v_xor_b32 v{vT+5}, v{vT+5}, v{vT+6}
    s_and_b32 s{sT0}, s{sR}, 1
    s_lshl_b32 s{sT0}, s{sT0}, 2
    v_xor_b32 v{vT+5}, s{sT0}, v{vT+5}
    v_lshl_add_u32 v{vXs}, v{vT+5}, 4, v{vT+4}
    s_cmp_lt_u32 s{sCB}, 5
    s_movk_i32 s{sT0}, 3072
    s_cselect_b32 s{sT0}, 1280, s{sT0}
    s_cselect_b32 s{sT2}, 0, 5
    s_sub_u32 s{sT2}, s{sCB}, s{sT2}
    s_lshl_b32 s{sT2}, s{sT2}, 8
    v_lshl_add_u32 v{vT+4}, v{vT}, 6, v{vT+3}
    v_add_u32 v{vT+4}, s{sT2}, v{vT+4}
    v_add_u32 v{vT+5}, s{sT1}, v{vT+2}
    v_mad_u32_u24 v{vWs}, v{vT+5}, s{sT0}, v{vT+4}
    v_min_u32 v{vT+4}, 24, v{vT+3}
    v_mad_u32_u24 v{vT+6}, v{vT+5}, 40, v{vT+4}
    v_mov_b32 v{vT+7}, 0
    v_cmp_eq_u32 vcc, 0, v{vT}
    s_lshl_b32 s{sStr64}, s{sT0}, 6
    s_lshl_b32 s{sS32}, s{sT0}, 5
    s_mul_i32 s{WA+2}, s{sT0}, 640
    s_lshl_b32 s{sMx}, s{sR}, 10
    s_mov_b32 s{sI}, 0
    s_mov_b32 s{sSlot}, 0
    s_mov_b32 s{X+2}, {2048*1280}
    s_mov_b32 s{X+3}, 0x00020000
    s_mov_b32 s{WA+3}, 0x00020000
    s_cmp_lt_u32 s{sCB}, 5
    s_waitcnt lgkmcnt(0)
    s_mov_b32 s{X}, s8
    s_mov_b32 s{X+1}, s9
    s_cselect_b32 s{WA}, s10, s60
    s_cselect_b32 s{WA+1}, s11, s61
    v_mov_b32 v{vQb}, s14
    v_mov_b32 v{vQb+1}, s15
    v_mov_b32 v{vQa}, s12
    v_mov_b32 v{vQa+1}, s13
    v_cndmask_b32 v{vQb}, v{vQb}, v{vQa}, vcc
    v_cndmask_b32 v{vQb+1}, v{vQb+1}, v{vQa+1}, vcc
    v_lshl_add_u64 {vr(vQb,2)}, {vr(vT+6,2)}, 0, {vr(vQb,2)}
    v_mov_b32 v8, 2560
    """)
    stamp(a, 1)
    if PROF and 'lacc' in OPT: a("s_waitcnt lgkmcnt(0)\ns_mov_b32 s91, s72\ns_mov_b32 s95, 0\ns_mov_b32 s96, 0\ns_mov_b32 s97, 0")
    a("K1_issue:"); acc(a, 2)
    a(f"""
    s_lshl_b32 s{sT0}, s{sK}, 7
    s_add_u32 m0, s{sSlot}, s{sMx}
    s_mul_i32 s{sT1}, s{sK}, s{sStr64}
    """)
    for i in range(5):
        a(f"buffer_load_dwordx4 v{vXs}, {sr(X,4)}, s{sT0} offen lds\ns_add_u32 m0, m0, 4096\ns_add_u32 s{sT0}, s{sT0}, {32*1280}")
    a(f"""
    s_add_u32 s{sT2}, s{sT1}, s{sS32}
    s_cmp_eq_u32 s{sCB}, 17
    s_cbranch_scc1 K1_ikv
    buffer_load_dwordx4 v{vWs}, {sr(WA,4)}, s{sT1} offen lds
    s_add_u32 m0, m0, 4096
    s_nop 0
    buffer_load_dwordx4 v{vWs}, {sr(WA,4)}, s{sT2} offen lds
    s_add_u32 m0, m0, {4096-128}
    s_nop 0
    buffer_load_dwordx4 v{vWs}, {sr(WA,4)}, s{sT1} offen offset:128 lds
    s_add_u32 m0, m0, 4096
    s_nop 0
    buffer_load_dwordx4 v{vWs}, {sr(WA,4)}, s{sT2} offen offset:128 lds
    K1_i2:
    """); acc(a, 0); a(f"""
    s_add_u32 s{sK}, s{sK}, 1
    s_cmp_eq_u32 s{sK}, 10
    s_cselect_b32 s{sK}, 0, s{sK}
    s_add_u32 s{sSlot}, s{sSlot}, {SLOT}
    s_cmp_eq_u32 s{sSlot}, {4*SLOT}
    s_cselect_b32 s{sSlot}, 0, s{sSlot}
    s_add_u32 s{sI}, s{sI}, 1
    s_cmp_eq_u32 s{sI}, 1
    s_cbranch_scc1 K1_l1
    s_waitcnt vmcnt(9)
    s_barrier
    s_cmp_lg_u32 s{sI}, 10
    s_cbranch_scc1 K1_issue
    s_branch K1_g0
    K1_ikv:
    v_mad_u64_u32 {vr(vQa,2)}, s[58:59], v8, s{sK}, {vr(vQb,2)}
    global_load_lds_dwordx4 {vr(vQa,2)}, off
    s_add_u32 m0, m0, {4096-1280}
    s_nop 0
    global_load_lds_dwordx4 {vr(vQa,2)}, off offset:1280
    s_waitcnt vmcnt(7)
    s_branch K1_i2
    K1_l1:
    s_mov_b32 s{WS}, s6
    s_mov_b32 s{WS+1}, s7
    """)
    a(f"""
    s_cmp_eq_u32 s{sR}, 3
    s_mul_i32 s{sT0}, s{sRB}, 25600
    s_mul_i32 s{sT1}, s{sCB}, 10240
    s_movk_i32 s{sGs}, 2560
    s_cselect_b32 s{sGs}, 1024, s{sGs}
    s_cselect_b32 s{sT0}, s{sT1}, s{sT0}
    s_mov_b32 s{sT1}, {WS_SR}
    s_cselect_b32 s{sT1}, {WS_SC}, s{sT1}
    s_cselect_b32 s{sT2}, 0, s{sR}
    s_add_u32 s{sU}, s{sT0}, s{sT1}
    s_lshl_b32 s{sT2}, s{sT2}, 6
    v_add_u32 v20, s{sT2}, v{vL}
    v_min_u32 v20, 159, v20
    v_lshlrev_b32 v20, 4, v20
    v_mov_b32 v22, {XN}
    s_mul_i32 s62, s{sRB}, {5*96*1024}
    s_lshl_b32 s{sT0}, s{sCB}, 2
    s_add_u32 s{sT0}, s{sT0}, s{sR}
    s_lshl_b32 s{sT1}, s{sT0}, 11
    s_add_u32 s62, s62, s{sT1}
    s_add_u32 s62, s62, {WS_H - 5*8192}
    s_lshl_b32 s63, s{sT0}, 4
    s_add_u32 s63, s63, s{sRB}
    s_lshl_b32 s63, s63, 8
    s_add_u32 s63, s63, {WS_F1}
    s_sub_u32 s{sT0}, s{sCB}, 5
    s_cmp_lt_u32 s{sT0}, 12
    s_cselect_b32 s62, s62, 0
    s_branch K1_issue
    K1_g0:
    ds_read_b32 v21, v22
    """)
    G = 32
    a(f"""
    s_mov_b32 s{sI}, 0
    """)
    a(f"K1_gat:\ns_mov_b32 s{sT0}, s{sU}")
    for k in range(10):
        a(f"buffer_load_dwordx4 {vr(G+4*k,4)}, v20, {sr(WS,4)}, s{sT0} offen sc1\ns_add_u32 s{sT0}, s{sT0}, s{sGs}")
    a(f"""
    s_cmp_lg_u32 s{sI}, 0
    s_cbranch_scc1 K1_g2
    s_waitcnt vmcnt(10)
    s_barrier
    """)
    a(f"""
    K1_g2:
    s_add_u32 s{sI}, s{sI}, 1
    s_waitcnt vmcnt(0) lgkmcnt(0)
    v_cmp_eq_u32 vcc, 0, v21
    v_readfirstlane_b32 s{sN}, v21
    s_nop 0
    v_cndmask_b32 v6, 0, 1, vcc
    """)
    for k in range(10):
        a(f"v_xor_b32 v{G+4*k+1}, v{G+4*k+1}, v21\nv_xor_b32 v{G+4*k+3}, v{G+4*k+3}, v21\nv_or3_b32 v6, v{G+4*k+1}, v{G+4*k+3}, v6")
    a(f"""
    v_cmp_ne_u32 vcc, 0, v6
    s_cbranch_vccz K1_g3
    s_sleep {SLP}
    s_cmp_lt_u32 s{sI}, {SPINMAX}
    s_cbranch_scc1 K1_gat
    K1_g3:
    """)
    for k in range(1, 10):
        a(f"v_add_f32 v{G}, v{G}, v{G+4*k}\nv_add_f32 v{G+2}, v{G+2}, v{G+4*k+2}")
    a(f"""
    s_cmp_eq_u32 s{sR}, 3
    s_cbranch_scc1 K1_gc
    v_mul_f32 v{G}, {f32(1.0/640)}, v{G}
    v_mul_f32 v{G+2}, {f32(1.0/640)}, v{G+2}
    v_cvt_pk_bf16_f32 v{G+4}, -v{G}, -v{G}
    v_fma_f32 v{G+2}, -v{G}, v{G}, v{G+2}
    v_max_f32 v{G+2}, 0, v{G+2}
    """)
    round_bf16(a, G+2, G+2)
    a(f"v_add_f32 v{G+2}, {f32(1e-5)}, v{G+2}")
    round_bf16(a, G+2, G+2)
    a(f"v_sqrt_f32 v{G+6}, v{G+2}\nv_mov_b32 v{G+5}, 0")
    round_bf16(a, G+6, G+6)
    a(f"""
    v_rcp_f32 v{G+7}, v{G+6}
    v_add_u32 v5, {XB}, v20
    s_nop 0
    ds_write_b128 v5, {vr(G+4,4)}
    s_branch K1_gd
    K1_gc:
    v_and_b32 v{G+1}, 0xffff0000, v{G}
    v_and_b32 v{G+3}, 0xffff0000, v{G+2}
    v_sub_f32 v{G}, v{G}, v{G+1}
    v_sub_f32 v{G+2}, v{G+2}, v{G+3}
    v_cvt_pk_bf16_f32 v{G+4}, v{G+1}, v{G}
    v_cvt_pk_bf16_f32 v{G+5}, v{G+3}, v{G+2}
    v_lshlrev_b32 v5, 3, v{vL}
    v_add_u32 v5, {XFC}, v5
    ds_write_b64 v5, {vr(G+4,2)}
    K1_gd:
    """)
    a("s_waitcnt lgkmcnt(0)\ns_barrier\ns_branch K2_G")
    vN = 2
    a(f"""
    K1_C:
    """)
    common2()
    a(f"""
    s_memrealtime s[66:67]
    s_lshr_b32 s{sG}, s{sW}, 2
    s_mov_b32 s{sK0}, s{sK}
    s_mov_b32 s{DBG+2}, 256
    s_mov_b32 s{DBG+3}, 0x00020000
    v_mov_b32 v{vN+1}, 0
    v_and_b32 v{vT+4}, 31, v{vL}
    v_bfe_u32 v{vT+5}, v{vL}, 1, 3
    v_lshlrev_b32 v{vT+4}, 7, v{vT+4}
    s_waitcnt lgkmcnt(0)
    s_mov_b32 s{WS}, s6
    s_mov_b32 s{WS+1}, s7
    s_mov_b32 s{DBG}, s4
    s_mov_b32 s{DBG+1}, s5
    s_or_b32 s{sT0}, s2, s{sW}
    s_cbranch_scc1 K1_nn
    s_or_b32 s66, s66, 1
    v_mov_b32 v{vN}, s66
    s_mov_b64 exec, 1
    buffer_store_dword v{vN}, v{vN+1}, {sr(DBG,4)}, 0 offen sc1
    s_mov_b64 exec, -1
    K1_nn:
    """)
    if TSH:
        a(f"""
        s_lshl_b32 s{sT0}, s{sW}, {6 + TSH}
        v_lshlrev_b32 v4, {TSH}, v{vL}
        s_cmp_lt_u32 s{sT0}, {WS_F3 + 0x40000}
        s_cbranch_scc0 K1_nt1
        buffer_load_dword v163, v4, {sr(WS,4)}, s{sT0} offen
        K1_nt1:
        s_cmp_lg_u32 s{sW}, 7
        s_cbranch_scc1 K1_nt2
        s_mov_b32 s24, s18
        s_mov_b32 s25, s19
        s_mov_b32 s26, {2048*1280}
        s_mov_b32 s27, 0x00020000
        buffer_load_dword v163, v4, s[24:27], 0 offen
        K1_nt2:
        """)
    a(f"""
    s_lshl_b32 s{sT1}, s{sW}, 12
    v_lshlrev_b32 v{vT+6}, 2, v{vT}
    v_xor_b32 v{vT+6}, v{vT+6}, v{vT+5}
    v_lshl_add_u32 v4, v{vT+6}, 4, v{vT+4}
    v_add_u32 v4, s{sT1}, v4
    v_xor_b32 v5, 16, v4
    v_xor_b32 v6, 32, v4
    v_xor_b32 v7, 48, v4
    v_xor_b32 v{vT+5}, v{vT+5}, v{vT}
    s_mul_i32 s{sT1}, s{sG}, {3*4096}
    v_add_u32 v{vT+4}, s{sT1}, v{vT+4}
    """)
    for i in range(4):
        a(f"v_xor_b32 v{vT+6}, {2*i}, v{vT+5}\nv_lshl_add_u32 v{vAx+i}, v{vT+6}, 4, v{vT+4}")
    a(f"""
    s_mov_b32 s{sI}, 1
    s_mov_b32 s{sDelta}, {SLOT}
    s_sub_u32 s{sT0}, s{sW}, 2
    s_cmp_lt_u32 s{sT0}, 4
    s_cselect_b32 s{sIdle}, 1, 0
    s_cmp_eq_u32 s{sCB}, 17
    s_cselect_b32 s{sIdle}, s{sIdle}, 0
    v_mov_b32 v9, {XN}
    """)
    for i in range(48): a(f"v_mov_b32 v{AC+i}, 0")
    a(f"""
    s_cmp_lg_u32 s{sIdle}, 0
    s_cbranch_scc1 K1_idle
    s_mul_i32 s{sT2}, s{sRB}, 10
    s_add_u32 s{sT2}, s{sT2}, s{sK0}
    s_mul_i32 s{sT2}, s{sT2}, 2560
    s_lshl_b32 s{sT1}, s{sW}, 9
    s_add_u32 s{sT2}, s{sT2}, s{sT1}
    s_add_u32 s{sT2}, s{sT2}, {WS_SR}
    s_mul_i32 s{sU}, s{sCB}, 10
    s_add_u32 s{sU}, s{sU}, s{sK0}
    s_lshl_b32 s{sU}, s{sU}, 10
    s_add_u32 s{sU}, s{sU}, {WS_SC}
    s_lshl_b32 s{sT1}, s{sR}, 8
    s_add_u32 s{sU}, s{sU}, s{sT1}
    s_xor_b32 s{sT3}, s{sU}, 512
    s_cmp_eq_u32 s{sCB}, 17
    s_cselect_b32 s{sT3}, s{sT3}, {WS_END}
    s_cmp_lt_u32 s{sCB}, 10
    s_cselect_b32 s{sT0}, 5, 0
    s_cmp_lt_u32 s{sW}, s{sT0}
    s_cselect_b32 s{sT2}, s{sT2}, {WS_END}
    s_cmp_lt_u32 s{sRB}, 10
    s_cselect_b32 s{sU}, s{sU}, {WS_END}
    s_cselect_b32 s{sT3}, s{sT3}, {WS_END}
    v_mov_b32 v160, 0
    v_mov_b32 v162, 0
    v_mov_b32 v20, 0
    s_barrier
    """)
    stamp(a, 1)
    a(f"""
    buffer_load_dword v161, v{vN+1}, {sr(DBG,4)}, 0 offen sc1
    s_cmp_eq_u32 s{sT2}, {WS_END}
    s_cbranch_scc1 K1_nr
    """)
    for i in range(4): a(f"ds_read_b128 {vr(144+4*i,4)}, v{4+i}")
    a(f"s_waitcnt lgkmcnt(0)")
    for i in range(16): a(f"v_dot2c_f32_bf16 v160, s{sOnes}, v{144+i}\nv_dot2c_f32_bf16 v162, v{144+i}, v{144+i}")
    a(f"""
    s_nop 2
    v_mov_b32 v5, v160
    v_mov_b32 v6, v162
    s_nop 1
    v_permlane32_swap_b32 v5, v160
    v_permlane32_swap_b32 v6, v162
    v_add_f32 v160, v160, v5
    v_add_f32 v162, v162, v6
    K1_nr:
    s_cmp_eq_u32 s{sG}, 0
    s_cbranch_scc1 K1_start3
    s_cmp_ge_u32 s{sRB}, 10
    s_cbranch_scc1 K1_start2
    """)
    for k in range(4):
        for q in range(2): a(f"ds_read_b64_tr_b16 {vr(144+4*k+2*q,2)}, v{vAw} offset:{2048*k+256*q}")
    a(f"s_waitcnt lgkmcnt(0)")
    for i in range(16): a(f"v_dot2c_f32_bf16 v20, s{sOnes}, v{144+i}")
    a(f"""
    s_nop 2
    v_mov_b32 v5, v20
    s_nop 1
    v_permlane32_swap_b32 v5, v20
    v_add_f32 v20, v20, v5
    """)
    def publish(T):
        a(f"""
        v_lshlrev_b32 v4, 4, v{vL}
        v_lshlrev_b32 v5, 3, v{vL}
        s_mov_b32 s{sT0}, 0
        K1_n{T}:
        s_waitcnt vmcnt(0)
        v_readfirstlane_b32 s{sT1}, v161
        s_add_u32 s{sT0}, s{sT0}, 1
        s_cmp_lg_u32 s{sT1}, 0
        s_cbranch_scc1 K1_n{T}x
        buffer_load_dword v161, v{vN+1}, {sr(DBG,4)}, 0 offen sc1
        s_cmp_lt_u32 s{sT0}, {SPINMAX}
        s_cbranch_scc1 K1_n{T}
        K1_n{T}x:
        v_mov_b32 v163, v161
        v_mov_b32 v21, v161
        s_mov_b32 exec_hi, 0
        buffer_store_dwordx4 {vr(160,4)}, v4, {sr(WS,4)}, s{sT2} offen sc1
        """)
        if T == 2: a(f"""
        buffer_store_dwordx2 {vr(20,2)}, v5, {sr(WS,4)}, s{sU} offen sc1
        buffer_store_dwordx2 {vr(20,2)}, v5, {sr(WS,4)}, s{sT3} offen sc1
        s_waitcnt lgkmcnt(0)
        ds_write_b32 v9, v161
        """)
        a("s_mov_b32 exec_hi, -1")
    KR = dict(fW=fW, fX=fX, AC=AC, vAx=vAx, vAw=vAw, sDelta=sDelta)
    vFl = vT + 7
    def cloop(T):
        first, ba, bb, tail = kbody.streamC(KR, T)
        a(f"K1_start{T}:")
        for l in first: a(l)
        publish(T)
        a(f"s_branch K1_mid{T}\nK1_comp{T}:\ns_barrier")
        if os.environ.get('BSTAMP'): a(f"s_cmp_lg_u32 s{sI}, {int(os.environ['BSTAMP'])+1}\ns_cbranch_scc1 K1_bs{T}\ns_memtime s[72:73]\nK1_bs{T}:")
        if 'bt' in OPT: a(f"s_memtime s[92:93]\ns_waitcnt lgkmcnt(0)\ns_sub_u32 s92, s92, s70\nv_mov_b32 v22, s92\nv_cmp_eq_u32 vcc, s{sI}, v0\ns_nop 1\nv_cndmask_b32 v23, v23, v22, vcc")
        for l in ba: a(l)
        a(f"K1_mid{T}:")
        for l in bb: a(l)
        a(f"""
        s_and_b32 s{sT0}, s{sI}, 3
        s_cmp_eq_u32 s{sT0}, 3
        s_mov_b32 s{sDelta}, {SLOT}
        s_cselect_b32 s{sDelta}, {(-3*SLOT) & 0xffffffff}, s{sDelta}
        s_add_u32 s{sI}, s{sI}, 1
        s_cmp_lg_u32 s{sI}, 11
        s_waitcnt lgkmcnt(0)
        s_cbranch_scc1 K1_comp{T}
        """)
        a("s_barrier")
        for l in tail: a(l)
    cloop(2)
    a(f"""
    s_branch K1_cdone
    K1_idle:
    s_barrier
    s_add_u32 s{sI}, s{sI}, 1
    s_cmp_lg_u32 s{sI}, 12
    s_cbranch_scc1 K1_idle
    s_branch K1_cdone
    """)
    cloop(3)
    a("K1_cdone:")
    stamp(a, 2)
    if 'bt' in OPT:
        a(f"""
        s_lshl_b32 s92, s2, 4
        s_add_u32 s92, s92, s{sW}
        s_lshl_b32 s92, s92, 6
        s_add_u32 s92, s92, {WS_PROF + 0x40000}
        v_lshlrev_b32 v22, 2, v0
        s_mov_b64 exec, 0xffff
        buffer_store_dword v23, v22, {sr(WS,4)}, s92 offen
        s_mov_b64 exec, -1
        """)
    ST, vCA, E, PK = 144, 20, 112, 128
    vMq, vNe = 24, 30
    a(f"""
    v_and_b32 v3, 31, v{vL}
    s_mul_i32 s{sT0}, s{sG}, {96*16}
    s_add_u32 s{sT0}, s{sT0}, {XB}
    v_lshl_add_u32 v4, v3, 4, s{sT0}
    s_lshl_b32 s{sT0}, s{sR}, 7
    s_add_u32 s{sT0}, s{sT0}, {XFC}
    v_lshl_add_u32 v5, v3, 2, s{sT0}
    v_lshlrev_b32 v1, 4, v{vL}
    v_mov_b32 v{vCA+1}, 0
    s_mul_i32 s{sRT}, s{sRB}, 5
    s_mul_i32 s{sT0}, s{sG}, 3
    s_add_u32 s{sRT}, s{sRT}, s{sT0}
    s_sub_u32 s{sU}, 3, s{sG}
    s_add_u32 s{sU}, s{sU}, s{sRT}
    s_min_u32 s{sU}, s{sU}, 64
    s_lshl_b32 s{sT0}, s{sCB}, 13
    s_lshl_b32 s{sT1}, s{sR}, 11
    s_add_u32 s{sMx}, s{sT0}, s{sT1}
    v_cmp_gt_u32 vcc, 32, v{vL}
    v_mov_b32 v6, {XN}
    """)
    a(f"""
    ds_read_b32 v6, v6
    ds_read_b32 v{vCA}, v5
    ds_read_b128 {vr(ST,4)}, v4
    ds_read_b128 {vr(ST+4,4)}, v4 offset:512
    ds_read_b128 {vr(ST+8,4)}, v4 offset:1024
    s_mov_b32 s{sI}, 0
    s_waitcnt lgkmcnt(3)
    v_cndmask_b32 v{vCA}, 0, v{vCA}, vcc
    v_readfirstlane_b32 s{sN}, v6
    s_sub_u32 s{sT0}, s{sCB}, 5
    s_cmp_lt_u32 s{sT0}, 12
    s_waitcnt lgkmcnt(0)
    v_mfma_f32_32x32x8_bf16 {vr(AC,16)}, {vr(vCA,2)}, {vr(ST,2)}, {vr(AC,16)}
    v_mfma_f32_32x32x8_bf16 {vr(AC+16,16)}, {vr(vCA,2)}, {vr(ST+4,2)}, {vr(AC+16,16)}
    v_mfma_f32_32x32x8_bf16 {vr(AC+32,16)}, {vr(vCA,2)}, {vr(ST+8,2)}, {vr(AC+32,16)}
    s_cbranch_scc0 K1_lin
    s_mul_i32 s{sT3}, s{sR}, 10240
    s_mul_i32 s{sT0}, s{sG}, 6144
    s_add_u32 s{sT3}, s{sT3}, s{sT0}
    s_add_u32 s{sT3}, s{sT3}, {HS}
    v_add_u32 v1, s{sT3}, v1
    s_nop 3
    K1_epiH:
    v_mul_f32 v{vNe}, {f32(-LOG2E)}, v{ST+3}
    """)
    for i in range(8): a(f"v_pk_mul_f32 {vr(E+2*i,2)}, {vr(AC+2*i,2)}, {vr(vNe,2)} op_sel_hi:[1,0]")
    for i in range(16): a(f"v_exp_f32 v{E+i}, v{E+i}")
    for i in range(8): a(f"v_pk_fma_f32 {vr(E+2*i,2)}, {vr(E+2*i,2)}, {vr(ST+2,2)}, {vr(ST+2,2)} op_sel_hi:[1,0,0]")
    for i in range(16): a(f"v_rcp_f32 v{E+i}, v{E+i}")
    for i in range(8): a(f"v_pk_mul_f32 {vr(E+2*i,2)}, {vr(E+2*i,2)}, {vr(AC+2*i,2)}")
    for i in range(8): a(f"v_cvt_pk_bf16_f32 v{PK+i}, v{E+2*i}, v{E+2*i+1}")
    a(f"""
    ds_write_b128 v1, {vr(PK,4)}
    ds_write_b128 v1, {vr(PK+4,4)} offset:1024
    v_add_u32 v1, 2048, v1
    s_add_u32 s{sRT}, s{sRT}, 1
    s_cmp_eq_u32 s{sRT}, s{sU}
    s_cbranch_scc1 {"K1_hd" if PROF else "K2_A"}
    s_add_u32 s{sI}, s{sI}, 1
    s_cmp_eq_u32 s{sI}, 2
    s_cbranch_scc1 K1_e2
    """)
    for i in range(8): a(f"v_pk_mov_b32 {vr(AC+2*i,2)}, {vr(AC+16+2*i,2)}, {vr(AC+16+2*i,2)} op_sel:[0,1]")
    a(f"v_pk_mov_b32 {vr(ST+2,2)}, {vr(ST+6,2)}, {vr(ST+6,2)} op_sel:[0,1]\ns_branch K1_epiH\nK1_e2:")
    for i in range(8): a(f"v_pk_mov_b32 {vr(AC+2*i,2)}, {vr(AC+32+2*i,2)}, {vr(AC+32+2*i,2)} op_sel:[0,1]")
    a(f"v_pk_mov_b32 {vr(ST+2,2)}, {vr(ST+10,2)}, {vr(ST+10,2)} op_sel:[0,1]\ns_branch K1_epiH")
    if PROF:
        a("K1_hd:"); stamp(a, 3); a("s_branch K2_A")
    PQ = 96
    a(f"""
    K1_lin:
    s_cmp_lg_u32 s{sIdle}, 0
    s_cbranch_scc1 K2_A
    s_cmp_eq_u32 s{sCB}, 17
    s_mov_b32 s{sK}, {f32(20 ** -0.5 * LOG2E)}
    s_cselect_b32 s{sK}, 1.0, s{sK}
    v_mul_f32 v{vMq}, s{sK}, v{ST+3}
    v_mul_f32 v{vMq+2}, s{sK}, v{ST+7}
    v_mul_f32 v{vMq+4}, s{sK}, v{ST+11}
    s_mul_i32 s{sT3}, s{sRT}, 40960
    s_add_u32 s{sT3}, s{sT3}, s{sMx}
    s_cmp_eq_u32 s{sCB}, 17
    s_cbranch_scc1 K1_kv
    """)
    for j in range(3):
        for i in range(16): a(f"v_mul_f32 v{AC+16*j+i}, v{AC+16*j+i}, v{vMq+2*j}")
        for i in range(8): a(f"v_cvt_pk_bf16_f32 v{PQ+8*j+i}, v{AC+16*j+2*i}, v{AC+16*j+2*i+1}")
        a(f"""
        buffer_store_dwordx4 {vr(PQ+8*j,4)}, v1, {sr(WS,4)}, s{sT3} offen sc1
        buffer_store_dwordx4 {vr(PQ+8*j+4,4)}, v1, {sr(WS,4)}, s{sT3} offen offset:1024 sc1
        """)
        if j < 2:
            a(f"""
            s_add_u32 s{sT3}, s{sT3}, 40960
            s_add_u32 s{sT0}, s{sRT}, {j+1}
            s_cmp_lt_u32 s{sT0}, s{sU}
            s_cselect_b32 s{sT3}, s{sT3}, {WS_END}
            """)
    a(f"""
    s_branch K1_done
    K1_kv:
    """)
    for j in range(3):
        for i in range(12): a(f"v_mul_f32 v{AC+16*j+i}, v{AC+16*j+i}, v{vMq+2*j}")
        for i in range(6): a(f"v_cvt_pk_bf16_f32 v{PQ+8*j+i}, v{AC+16*j+2*i}, v{AC+16*j+2*i+1}")
    a(f"""
    v_lshrrev_b32 v5, 5, v{vL}
    s_bitcmp1_b32 s{sR}, 0
    s_cbranch_scc1 K1_vst
    v_mul_u32_u24 v4, 5120, v5
    v_lshl_add_u32 v4, v3, 4, v4
    v_lshlrev_b32 v5, 4, v3
    """)
    def kvbase(j):
        a(f"""
        s_add_u32 s{sT2}, s{sRT}, {j}
        s_lshr_b32 s{sT0}, s{sT2}, 2
        s_mul_i32 s{sT0}, s{sT0}, 10240
        s_add_u32 s{sT0}, s{sT0}, {WS_KV}
        s_cmp_lt_u32 s{sT2}, s{sU}
        s_cselect_b32 s{sT0}, s{sT0}, {WS_END}
        s_and_b32 s{sT2}, s{sT2}, 3
        """)
    for j in range(3):
        kvbase(j)
        a(f"""
        s_lshl_b32 s{sT1}, s{sT2}, 9
        s_add_u32 s{sT1}, s{sT1}, s{sT0}
        buffer_store_dwordx4 {vr(PQ+8*j,4)}, v4, {sr(WS,4)}, s{sT1} offen sc1
        s_and_b32 s{sT1}, s{sT2}, 1
        s_mul_i32 s{sT1}, s{sT1}, 5120
        s_add_u32 s{sT0}, s{sT0}, s{sT1}
        s_lshr_b32 s{sT1}, s{sT2}, 1
        s_lshl_b32 s{sT1}, s{sT1}, 3
        s_add_u32 s{sT0}, s{sT0}, s{sT1}
        s_mov_b32 exec_lo, 0
        buffer_store_dwordx2 {vr(PQ+8*j+4,2)}, v5, {sr(WS,4)}, s{sT0} offen offset:2048 sc1
        s_mov_b32 exec_lo, -1
        """)
    a(f"""
    s_branch K1_done
    K1_vst:
    s_lshl_b32 s{sT3}, s{sG}, 12
    s_add_u32 s{sT3}, s{sT3}, {XQ+2048}
    v_bfe_u32 v4, v3, 2, 1
    v_mul_u32_u24 v4, 640, v4
    v_lshl_add_u32 v4, v5, 6, v4
    v_lshrrev_b32 v5, 4, v3
    v_mul_u32_u24 v5, 320, v5
    v_add_u32 v4, v4, v5
    v_bfe_u32 v5, v3, 3, 1
    v_lshl_add_u32 v4, v5, 3, v4
    v_and_b32 v5, 3, v3
    v_lshl_add_u32 v4, v5, 1, v4
    v_add_u32 v4, s{sT3}, v4
    v_add_u32 v5, s{sT3}, v1
    """)
    for jj in range(3):
        if jj == 2: a("s_mov_b32 exec_lo, 0")
        for j in range(3):
            o = 1280 * j + 128 * jj - (64 if jj == 2 else 0); p = PQ + 8 * j + 2 * jj
            a(f"""
            ds_write_b16 v4, v{p} offset:{o}
            ds_write_b16_d16_hi v4, v{p} offset:{o+16}
            ds_write_b16 v4, v{p+1} offset:{o+32}
            ds_write_b16_d16_hi v4, v{p+1} offset:{o+48}
            """)
        a("s_waitcnt lgkmcnt(0)")
    a("s_mov_b32 exec_lo, -1\ns_mov_b32 exec_hi, 0xff")
    for j in range(6): a(f"ds_read_b128 {vr(AC+4*j,4)}, v5 offset:{640*j}")
    for j in range(3):
        kvbase(j)
        a(f"""
        s_mul_i32 s{sT1}, s{sT2}, 640
        s_add_u32 s{sT0}, s{sT0}, s{sT1}
        s_add_u32 s{sT1}, s{sT0}, 5120
        s_waitcnt lgkmcnt({4-2*j})
        buffer_store_dwordx4 {vr(AC+8*j,4)}, v1, {sr(WS,4)}, s{sT0} offen offset:2560 sc1
        buffer_store_dwordx4 {vr(AC+8*j+4,4)}, v1, {sr(WS,4)}, s{sT1} offen offset:2560 sc1
        """)
    a("s_mov_b32 exec_hi, -1\ns_branch K1_done")
    sJ, sL, sPst = 34, 35, 36
    WP = 24; vPs = 2
    a(f"""
    K1_aux:
    v_bfe_u32 v{vT+4}, v{vL}, 2, 2
    v_bfe_u32 v{vT+5}, v{vL}, 4, 1
    v_lshl_add_u32 v{vT+4}, v{vT+4}, 1, v{vT+5}
    v_lshl_add_u32 v{vT+4}, v{vT+4}, 2, v{vT+1}
    v_lshlrev_b32 v{vCom}, 3, v{vT+4}
    s_lshl_b32 s{sT0}, s{sT0}, 1
    s_add_u32 s{sT0}, s{sT0}, s{sT1}
    s_sub_u32 s{sT0}, s{sT0}, 30
    s_sub_u32 s{sT2}, s{sT2}, {234-16}
    s_cmp_ge_u32 s{sT1}, 30
    s_cselect_b32 s{sT0}, s{sT0}, s{sT2}
    s_mul_i32 s{sJ}, s{sT0}, 12
    s_add_u32 s{sJ}, s{sJ}, s{sW}
    s_mul_i32 s{sL}, s{sW}, 12288
    v_lshl_add_u32 v{vT+3}, v{vT}, 6, v{vT+3}
    v_lshrrev_b32 v{vT+6}, 2, v{vT+2}
    v_and_b32 v{vT+7}, 3, v{vT+2}
    s_mov_b32 m0, s{sL}
    s_mov_b32 s{WP+3}, 0x00020000
    s_mov_b32 s{sI}, s{sJ}
    s_waitcnt lgkmcnt(0)
    s_mov_b32 s{WS}, s6
    s_mov_b32 s{WS+1}, s7
    s_mov_b32 s{DBG}, s4
    s_mov_b32 s{DBG+1}, s5
    s_mov_b32 s{DBG+2}, 256
    s_mov_b32 s{DBG+3}, 0x00020000
    s_lshl_b32 s{sU}, s{sT0}, 7
    s_add_u32 s{sU}, s{sU}, {WS_F1 + 72*4096}
    s_mov_b64 s[58:59], 1
    K1_a0:
    """)
    def getnonce(lab):
        a(f"""
        v_mov_b32 v5, 0
        s_mov_b32 s{sT3}, 0
        {lab}:
        buffer_load_dword v4, v5, {sr(DBG,4)}, 0 offen sc1
        s_add_u32 s{sT3}, s{sT3}, 1
        s_waitcnt vmcnt(0)
        v_readfirstlane_b32 s{sN}, v4
        s_cmp_gt_u32 s{sT3}, {SPINMAX}
        s_cbranch_scc1 {lab}x
        s_cmp_lg_u32 s{sN}, 0
        s_cbranch_scc1 {lab}x
        s_sleep 8
        s_branch {lab}
        {lab}x:
        """)
    if 'adelay' in OPT:
        a(f"s_cmp_lg_u32 s{sW}, 0\ns_cbranch_scc1 K1_a5")
        getnonce("K1_a7")
        a(f"""
        s_mul_i32 s{sT0}, s{sJ}, 640
        s_add_u32 s{sT0}, s{sT0}, {WS_SC + 4}
        v_mov_b32 v4, s{sT0}
        """)
        poll(a, "K1_a6", 4, 5, WS, sT3)
        a("K1_a5:\ns_barrier")
    a(f"""
    K1_a1:
    s_mul_i32 s{sT0}, s{sI}, 6554
    s_lshr_b32 s{sT0}, s{sT0}, 16
    s_mul_i32 s{sT1}, s{sT0}, 10
    s_sub_u32 s{sT1}, s{sI}, s{sT1}
    s_lshl_b32 s{sT1}, s{sT1}, 7
    s_sub_u32 s{sT2}, s{sT0}, 96
    s_mul_i32 s{sT3}, s{sT2}, 205
    s_lshr_b32 s{sT3}, s{sT3}, 10
    s_mul_i32 s55, s{sT3}, 5
    s_sub_u32 s55, s{sT2}, s55
    s_mul_i32 s{sT3}, s{sT3}, 80
    s_mul_i32 s56, s55, 20
    s_cmp_eq_u32 s55, 4
    s_cselect_b32 s56, 16, s56
    s_cselect_b32 s55, 1, 0
    s_add_u32 s{sT3}, s{sT3}, s56
    s_lshl_b32 s{sT2}, s{sT0}, 4
    s_cmp_lt_u32 s{sT0}, 96
    s_cselect_b32 s{sT3}, s{sT2}, s{sT3}
    s_cselect_b32 s55, 0, s55
    s_cselect_b32 s{WP}, s62, s16
    s_cselect_b32 s{WP+1}, s63, s17
    s_mov_b32 s{WP+2}, {640*1280}
    s_cselect_b32 s{WP+2}, {1536*1280}, s{WP+2}
    s_mul_i32 s{sT3}, s{sT3}, 1280
    s_add_u32 s56, s{sT3}, s{sT1}
    s_cmp_eq_u32 s55, 0
    s_cselect_b32 s{sT2}, 4, 40
    s_movk_i32 s57, {20*1280}
    s_cselect_b32 s57, {8*1280}, s57
    s_add_u32 s57, s57, s56
    v_mad_u32_u24 v{vPs}, v{vT+6}, s{sT2}, v{vT+7}
    v_mul_u32_u24 v{vPs}, 1280, v{vPs}
    v_add_u32 v{vPs}, v{vPs}, v{vT+3}
    buffer_load_dwordx4 v{vPs}, {sr(WP,4)}, s56 offen lds
    s_add_u32 m0, m0, 1024
    s_add_u32 s{sI}, s{sI}, 264
    buffer_load_dwordx4 v{vPs}, {sr(WP,4)}, s57 offen lds
    s_add_u32 m0, m0, 1024
    s_cmp_lt_u32 s{sI}, 1360
    s_cbranch_scc1 K1_a1
    v_lshl_add_u32 v4, v{vT}, 8, v{vCom}
    v_add_u32 v4, s{sL}, v4
    v_and_b32 v5, 15, v{vL}
    v_lshlrev_b32 v5, 4, v5
    v_lshl_add_u32 v5, v{vT}, 8, v5
    v_lshl_add_u32 v5, v{vT+5}, 9, v5
    s_lshl_b32 s{sPst}, s{sJ}, 11
    s_add_u32 s{sPst}, s{sPst}, {WS_WP}
    s_waitcnt vmcnt(0)
    K1_a2:
    ds_read_b64_tr_b16 {vr(32,2)}, v4
    ds_read_b64_tr_b16 {vr(34,2)}, v4 offset:1024
    ds_read_b64_tr_b16 {vr(36,2)}, v4 offset:512
    ds_read_b64_tr_b16 {vr(38,2)}, v4 offset:1536
    v_add_u32 v4, 2048, v4
    s_add_u32 s{sJ}, s{sJ}, 264
    s_waitcnt lgkmcnt(0)
    buffer_store_dwordx4 {vr(32,4)}, v5, {sr(WS,4)}, s{sPst} offen sc1
    buffer_store_dwordx4 {vr(36,4)}, v5, {sr(WS,4)}, s{sPst} offen offset:1024 sc1
    s_add_u32 s{sPst}, s{sPst}, {264*2048}
    s_cmp_lt_u32 s{sJ}, 1360
    s_cbranch_scc1 K1_a2
    """)
    getnonce("K1_a3")
    a(f"""
    s_mov_b32 s62, 0
    s_barrier
    s_cmp_ge_u32 s{sW}, 8
    s_cbranch_scc1 K2_G
    s_cmp_lg_u32 s{sW}, 0
    s_cbranch_scc1 K2_A
    s_branch K1_flag
    K1_done:
    s_lshl_b32 s{sU}, s{sCB}, 2
    s_add_u32 s{sU}, s{sU}, s{sR}
    s_lshl_b32 s{sU}, s{sU}, 5
    s_lshl_b32 s{sT0}, s{sRB}, 1
    s_add_u32 s{sU}, s{sU}, s{sT0}
    s_add_u32 s{sU}, s{sU}, s{sG}
    s_lshl_b32 s{sU}, s{sU}, 7
    s_add_u32 s{sU}, s{sU}, {WS_F1}
    s_mov_b64 s[58:59], 1
    s_cmp_lg_u32 s{sCB}, 17
    s_cbranch_scc1 K1_flag
    v_mov_b32 v4, 1
    v_mov_b32 v5, 0
    {"s_memtime s[72:73]" if PROF and 'kvs' in OPT else ""}
    s_mov_b64 exec, 1
    s_waitcnt vmcnt(0)
    {"s_memtime s[76:77]" if PROF and 'kvs' in OPT else ""}
    buffer_atomic_add v4, v5, {sr(DBG,4)}, 0 offen offset:128 sc0
    s_mov_b32 s{sU}, {WS_FK}
    s_mov_b64 s[58:59], -1
    s_waitcnt vmcnt(0)
    {"s_memtime s[90:91]" if PROF and 'kvs' in OPT else ""}
    v_readfirstlane_b32 s{sT0}, v4
    s_mov_b64 exec, -1
    s_mul_hi_u32 s{sT1}, s{sT0}, {(1 << 32) // 52 + 1}
    s_mul_i32 s{sT1}, s{sT1}, 52
    s_sub_u32 s{sT0}, s{sT0}, s{sT1}
    s_cmp_lg_u32 s{sT0}, 51
    s_cbranch_scc1 K2_A
    """)
    'kvs' in OPT or stamp(a, 3)
    setflag(a, sU, WS, 4, 5, '-1')
    a("s_branch K2_A\nK1_flag:")
    stamp(a, 3)
    a(f"s_mov_b32 s64, s{sU}\ns_branch K2_A2")

def tile_ids(a, sRB, sNB, sT0):
    if 'map84' not in OPT:
        a(f"""
        s_and_b32 s{sT0}, s2, 7
        s_lshl_b32 s{sRB}, s{sT0}, 2
        s_bfe_u32 s{sT0}, s2, 0x20003
        s_add_u32 s{sRB}, s{sRB}, s{sT0}
        s_lshr_b32 s{sNB}, s2, 5
        """)
        return
    a(f"""
    s_and_b32 s{sT0}, s2, 3
    s_lshl_b32 s{sRB}, s{sT0}, 3
    s_bfe_u32 s{sT0}, s2, 0x30003
    s_add_u32 s{sRB}, s{sRB}, s{sT0}
    s_bfe_u32 s{sT0}, s2, 0x10002
    s_lshl_b32 s{sNB}, s{sT0}, 2
    s_lshr_b32 s{sT0}, s2, 6
    s_add_u32 s{sNB}, s{sNB}, s{sT0}
    """)
def wlane(a, vL, vW, vW2, t):
    a(f"""
    v_and_b32 v{vW2}, 15, v{vL}
    v_lshlrev_b32 v{vW2}, 4, v{vW2}
    v_lshrrev_b32 v{t}, 5, v{vL}
    v_lshl_add_u32 v{vW2}, v{t}, 8, v{vW2}
    v_bfe_u32 v{t}, v{vL}, 4, 1
    v_lshl_add_u32 v{vW}, v{t}, 9, v{vW2}
    {"" if 'nozp' in OPT else f"v_lshl_add_u32 v{vW2}, v{t}, 30, v{vW2}"}
    """)

def gen_k2(a):
    sW, sR, sG, sRB, sCB, sHD, sRT = 32, 33, 34, 35, 36, 37, 38
    sI, sT0, sT1, sT2, sSrc, sVm, sSeg, sT3 = 39, 40, 41, 42, 43, 44, 52, 53
    WS, X, OUT = 28, 20, 24
    vL, vA, vD = 0, 1, 2
    QM, QT, KM, KT, V, P, O, S = 4, 8, 12, 20, 24, 40, 56, 72
    R = dict(vA=vA, QM=QM, QT=QT, KM=KM, KT=KT, V=V, P=P, O=O, S=S)
    def aids():
        a(f"""
        s_and_b32 s{sT0}, s2, 3
        s_lshl_b32 s{sRB}, s{sT0}, 2
        s_bfe_u32 s{sT0}, s2, 0x20003
        s_add_u32 s{sRB}, s{sRB}, s{sT0}
        s_bfe_u32 s{sT0}, s2, 0x10002
        s_lshl_b32 s{sCB}, s{sT0}, 3
        s_lshr_b32 s{sT0}, s2, 5
        s_add_u32 s{sCB}, s{sCB}, s{sT0}
        s_and_b32 s{sR}, s{sW}, 3
        s_lshl_b32 s{sRT}, s{sRB}, 2
        s_add_u32 s{sRT}, s{sRT}, s{sR}
        v_lshlrev_b32 v{vD}, 4, v{vL}
        """)
    a(f"K2_A:\ns_mov_b32 s64, {WS_END}\ns_mov_b64 s[58:59], 1\nK2_A2:"); aids()
    a(f"""
    s_lshr_b32 s{sG}, s{sW}, 2
    s_lshl_b32 s{sHD}, s{sCB}, 1
    s_and_b32 s{sT1}, s{sHD}, 2
    s_add_u32 s{sHD}, s{sHD}, s{sG}
    s_mul_i32 s{sT2}, s{sG}, 5
    s_add_u32 s{sT1}, s{sT1}, s{sT2}
    s_mul_i32 s{sT2}, s{sR}, 3072
    s_add_u32 s{sT2}, s{sT2}, {XQ}
    v_and_b32 v{vA}, 31, v{vL}
    v_lshlrev_b32 v{vA}, 4, v{vA}
    v_lshrrev_b32 v3, 5, v{vL}
    v_add_u32 v{P}, s{sT1}, v3
    v_add_u32 v{P+1}, 2, v{P}
    s_add_u32 s{sT1}, s{sT1}, 4
    v_mov_b32 v{P+2}, s{sT1}
    v_add_u32 v{P+3}, s{sT2}, v{vA}
    """)
    for i in range(3):
        a(f"""
        v_lshrrev_b32 v{P+4}, 2, v{P+i}
        v_lshl_add_u32 v{P+5}, v{P+4}, 10, v{P+3}
        v_and_b32 v{P+4}, 1, v{P+i}
        v_lshl_add_u32 v{P+5}, v{P+4}, 9, v{P+5}
        v_and_b32 v{P+4}, 2, v{P+i}
        v_lshl_add_u32 v{P+i}, v{P+4}, 2, v{P+5}
        """)
    a(f"""
    s_mov_b32 s{sVm}, 0x000fffff
    s_mov_b32 s{sVm+1}, 0x000fffff
    v_mul_u32_u24 v3, 5120, v3
    v_add_u32 v{vA}, v{vA}, v3
    v_and_b32 v3, 27, v{vL}
    v_cmp_eq_u32 vcc, 24, v3
    v_mov_b32 v3, 0x3f803f80
    """)
    for i in range(16): a(f"v_mov_b32 v{O+i}, 0")
    for i in range(16): a(f"v_cndmask_b32 v{V+i}, 0, v3, vcc")
    for i in range(4): a(f"v_mov_b32 v{P+12+i}, 0")
    segw = sum(n << (4 * i) for i, n in enumerate(SEGS))
    a(f"""
    s_mov_b32 s{sSeg}, {segw >> 4}
    s_mov_b32 s{sI}, {SEGS[0]}
    """)
    a(f"""
    s_lshr_b32 s54, s{sHD}, 2
    s_mul_i32 s54, s54, 5
    s_mul_i32 s55, s{sRT}, 40
    s_add_u32 s54, s54, s55
    s_lshl_b32 s54, s54, 10
    s_add_u32 s54, s54, {WS_O}
    s_and_b32 s55, s{sHD}, 3
    s_lshl_b32 s55, s55, 10
    s_add_u32 s55, s55, s54
    s_bfe_u32 s{sT2}, s{sHD}, 0x10001
    s_lshl_b32 s{sT2}, s{sT2}, 9
    s_add_u32 s54, s54, s{sT2}
    s_and_b32 s{sT2}, s{sHD}, 1
    s_lshl_b32 s{sT2}, s{sT2}, 3
    s_add_u32 s54, s54, s{sT2}
    s_add_u32 s54, s54, 4096
    s_lshl_b32 s56, s{sRT}, 5
    s_add_u32 s56, s56, s{sHD}
    s_lshl_b32 s56, s56, 7
    s_add_u32 s56, s56, {WS_F3}
    v_mov_b32 v{S}, -1
    v_mov_b32 v{S+1}, -1
    v_mov_b32 v{S+2}, -1
    v_mov_b32 v{S+3}, -1
    """)
    setflag(a, 64, WS, 10, 11, 's[58:59]')
    if 'st1' in OPT: stamp(a, 1)
    a("s_waitcnt lgkmcnt(0)\ns_barrier"); stamp(a, 4); a(f"""
    buffer_store_dwordx4 {vr(S,4)}, v{vD}, {sr(WS,4)}, s55 offen sc1
    s_mov_b32 exec_hi, 0
    buffer_store_dwordx2 {vr(S,2)}, v{vD}, {sr(WS,4)}, s54 offen sc1
    {"s_mov_b32 exec_lo, 0xff" if 'pret' in OPT else ""}
    {f"buffer_store_dwordx4 {vr(O,4)}, v{vD}, {sr(WS,4)}, s56 offen sc1" if 'pret' in OPT else ""}
    s_mov_b64 exec, -1
    ds_read_b64 {vr(QT,2)}, v{P+2}
    ds_read_b128 {vr(KT,4)}, v{vA} offset:2048
    ds_read_b64 {vr(QM,2)}, v{P}
    ds_read_b64 {vr(QM+2,2)}, v{P+1}
    ds_read_b128 {vr(KM,4)}, v{vA} offset:0
    ds_read_b128 {vr(KM+4,4)}, v{vA} offset:512
    s_waitcnt lgkmcnt({0 if PROF else 4})
    v_mfma_f32_32x32x4_2b_bf16 {vr(S,32)}, {vr(KT,2)}, {vr(QT,2)}, 0
    s_waitcnt lgkmcnt(0)
    s_nop 15
    s_nop 2
    {MF(vr(S,16), vr(KM,4), vr(QM,4), vr(S,16))}
    {MF(vr(S+16,16), vr(KM+4,4), vr(QM,4), vr(S+16,16))}
    ds_read_b128 {vr(KM,4)}, v{vA} offset:1024
    ds_read_b128 {vr(KM+4,4)}, v{vA} offset:1536
    s_mov_b64 exec, {sr(sVm,2)}
    ds_read_b128 {vr(V,4)}, v{vA} offset:2560
    ds_read_b128 {vr(V+4,4)}, v{vA} offset:2880
    s_mov_b64 exec, -1
    s_nop 7
    .p2align 6
    K2_loop:
    """)
    for l in abody.body(R, 0, (3, 2, 1), sVm): a(l)
    a(f"""
    v_add_u32 v{vA}, 10240, v{vA}
    s_sub_u32 s{sI}, s{sI}, 1
    s_cmp_lg_u32 s{sI}, 0
    s_cbranch_scc1 K2_loop
    s_and_b32 s{sI}, s{sSeg}, 15
    s_cbranch_scc0 K2_exit
    s_lshr_b32 s{sSeg}, s{sSeg}, 4
    s_barrier
    s_branch K2_loop
    K2_exit:
    """); stamp(a, 5); a(f"""
    {MF(vr(O,16), vr(V+12,4), vr(P+12,4), vr(O,16))}
    s_mov_b32 s46, {f32(2.0**-64)}
    s_mov_b32 s47, {f32(2.0**64)}
    s_nop 9
    v_cmp_nle_f32 vcc, s46, v{O+12}
    v_cmp_nge_f32 s[46:47], s47, v{O+12}
    s_waitcnt lgkmcnt(0)
    s_or_b64 vcc, vcc, s[46:47]
    s_cbranch_scc1 K2_slow
    K2_fin:
    v_rcp_f32 v{P}, v{O+12}
    v_mov_b32 v4, s{sN}
    v_lshlrev_b32 v5, 2, v{vL}
    s_waitcnt vmcnt(0)
    """)
    for i in range(12): a(f"v_mul_f32 v{O+i}, v{O+i}, v{P}")
    for i in range(6): a(f"v_cvt_pk_bf16_f32 v{S+i}, v{O+2*i}, v{O+2*i+1}")
    a(f"""
    buffer_store_dwordx4 {vr(S,4)}, v{vD}, {sr(WS,4)}, s55 offen sc1
    s_mov_b32 exec_hi, 0
    buffer_store_dwordx2 {vr(S+4,2)}, v{vD}, {sr(WS,4)}, s54 offen sc1
    {"" if 'fline' in OPT else "s_mov_b64 exec, 1"}
    buffer_store_dword v4, v5, {sr(WS,4)}, s56 offen sc1
    s_mov_b64 exec, -1
    """)
    if 'p3' in OPT: stamp(a, 1)
    if 'p3' in OPT: stamp(a, 2)
    a("s_barrier")
    if 'p3' in OPT: stamp(a, 3)
    sKQ, sRB2, sNB, sH0, sH1, sWp = 33, 35, 36, 46, 47, 48
    XR = 104; RR = 108
    def fin_prep():
        tile_ids(a, sRB2, sNB, sT0)
        srd(a, X, 8, 2048*1280); srd(a, OUT, 18, 2048*1280)
        a(f"""
        s_lshl_b32 s{sT0}, s{sW}, 6
        v_add_u32 v4, s{sT0}, v{vL}
        v_mul_u32_u24 v5, 6554, v4
        v_lshrrev_b32 v5, 16, v5
        v_mul_u32_u24 v5, {1280-160}, v5
        v_lshlrev_b32 v4, 4, v4
        v_add_u32 v5, v5, v4
        s_mul_i32 s{sT3}, s{sRB2}, {64*1280}
        s_mul_i32 s{sT1}, s{sNB}, 160
        s_add_u32 s{sT3}, s{sT3}, s{sT1}
        v_add_u32 v6, 51200, v4
        buffer_load_dwordx4 {vr(XR,4)}, v5, {sr(X,4)}, s{sT3} offen
        """)
    fin_prep()
    a("K3_bar:\ns_barrier")
    if 'p3' in OPT: stamp(a, 4); a("s_waitcnt lgkmcnt(0)")
    for p in range(4):
        for h in range(2): a(f"ds_read_b128 {vr(RR+8*p+4*h,4)}, v{4 if p < 2 else 6} offset:{(p%2)*25600 + h*10240}")
    a("s_waitcnt vmcnt(0)")
    for i in range(4): a(f"v_lshlrev_b32 v{8+2*i}, 16, v{XR+i}\nv_and_b32 v{9+2*i}, 0xffff0000, v{XR+i}")
    for p in range(4):
        a(f"s_waitcnt lgkmcnt({6-2*p})")
        for i in range(4): a(f"v_pk_add_f32 {vr(8+2*i,2)}, {vr(8+2*i,2)}, {vr(RR+8*p+2*i,2)}")
    for i in range(4): a(f"v_cvt_pk_bf16_f32 v{XR+i}, v{8+2*i}, v{9+2*i}")
    a(f"buffer_store_dwordx4 {vr(XR,4)}, v5, {sr(OUT,4)}, s{sT3} offen {os.environ.get('OUTF', '')}\nK_pe:")
    prof_end(a, 0, WS, sW)
    a("K_end:\ns_endpgm")
    vW, vW2 = 1, 3
    ACC, FR = 8, 104
    a("K2_G:"); aids()
    def fill(n, lab):
        a(f"""
        s_mov_b32 s{sI}, {n}
        {lab}:
        buffer_load_dwordx4 v{vD}, {sr(WS,4)}, s{sSrc} offen sc1 lds
        s_add_u32 s{sSrc}, s{sSrc}, 4096
        s_add_u32 m0, m0, 4096
        s_sub_u32 s{sI}, s{sI}, 1
        s_cmp_lg_u32 s{sI}, 0
        s_cbranch_scc1 {lab}
        """)
    rowidx(a, sT1, sRT, sT0)
    a(f"""
    s_lshl_b32 s{sT0}, s{sR}, 10
    s_add_u32 s{sSrc}, s{sT0}, {WS_KV}
    s_mov_b32 m0, s{sT0}
    s_mul_i32 s{sT2}, s{sCB}, 10
    s_lshr_b32 s{sT2}, s{sT2}, 2
    v_and_b32 v4, 2, v{vL}
    v_add_u32 v4, s{sT2}, v4
    v_lshrrev_b32 v4, 1, v4
    v_lshl_add_u32 v4, v4, 5, s{sT1}
    v_lshlrev_b32 v4, 7, v4
    v_add_u32 v4, {WS_F1}, v4
    s_and_b32 s{sT0}, s2, 63
    s_lshl_b32 s{sT0}, s{sT0}, 8
    s_add_u32 s{sT0}, s{sT0}, {WS_FK}
    v_writelane_b32 v4, s{sT0}, 0
    s_mul_i32 s54, s{sRT}, 40
    s_add_u32 s54, s54, s{sT2}
    s_lshl_b32 s54, s54, 10
    s_mov_b32 s{sT3}, 0
    s_mov_b32 s{sSeg}, 1
    buffer_load_dword v5, v4, {sr(WS,4)}, 0 offen sc1
    """)
    for i in range(96): a(f"v_mov_b32 v{ACC+i}, 0")
    tile_ids(a, sRB2, sNB, sT0)
    wlane(a, vL, vW, vW2, 6)
    a(f"""
    K2_p1:
    s_waitcnt vmcnt(0)
    v_cmp_ne_u32 vcc, s{sN}, v5
    s_add_u32 s{sT3}, s{sT3}, 1
    s_cmp_ge_u32 s{sT3}, {SPINMAX}
    s_cselect_b64 vcc, 0, vcc
    s_andn2_b32 s{sT0}, s{sSeg}, vcc_lo
    s_cbranch_scc0 K2_p1b
    s_mov_b32 s{sSeg}, 0
    """)
    stamp(a, 2)
    fill(NF1, "K2_f1")
    a(f"""
    K2_p1b:
    s_cmp_eq_u64 vcc, 0
    s_cbranch_scc1 K2_p1x
    s_sleep {SLP}
    buffer_load_dword v5, v4, {sr(WS,4)}, 0 offen sc1
    s_branch K2_p1
    K2_p1x:
    s_mov_b32 s{sSeg}, m0
    s_mul_i32 s{sT1}, s{sR}, 3072
    s_add_u32 m0, s{sT1}, {XQ}
    s_nop 0
    """)
    for i in range(3): a(f"buffer_load_dwordx4 v{vD}, {sr(WS,4)}, s54 offen offset:{1024*i} sc1 lds")
    a(f"""
    s_mov_b32 m0, s{sSeg}
    s_setprio 3
    s_waitcnt vmcnt(0)
    s_barrier
    """); stamp(a, 3)
    a(f"""
    s_mul_i32 s{sT0}, s{sR}, 10240
    s_add_u32 s{sT0}, s{sT0}, {HS}
    v_add_u32 v4, s{sT0}, v{vD}
    """)
    for i in range(10): a(f"ds_read_b128 {vr(FR+4*i,4)}, v4 offset:{1024*i}")
    fill(10, "K2_f2")
    a(f"""
    s_waitcnt vmcnt(0) lgkmcnt(0)
    s_barrier
    s_cmp_eq_u32 s62, 0
    s_cbranch_scc1 K2_nh
    """)
    for j in range(5):
        if j == 4: a(f"s_cmp_lt_u32 s62, {WS_H + 64*96*1024}\ns_cselect_b32 s62, s62, {WS_END}")
        a(f"""
        buffer_store_dwordx4 {vr(FR+8*j,4)}, v{vD}, {sr(WS,4)}, s62 offen sc1
        buffer_store_dwordx4 {vr(FR+8*j+4,4)}, v{vD}, {sr(WS,4)}, s62 offen offset:1024 sc1
        s_add_u32 s62, s62, {96*1024}
        """)
    a("K2_nh:")
    fill(25, "K2_f3")
    a(f"""
    s_cmp_eq_u32 s62, 0
    s_cselect_b32 s63, {WS_END}, s63
    v_mov_b32 v4, s{sN}
    v_mov_b32 v5, 0
    s_mov_b64 exec, 1
    s_waitcnt vmcnt(25)
    buffer_store_dword v4, v5, {sr(WS,4)}, s63 offen sc1
    s_mov_b64 exec, -1
    s_waitcnt vmcnt(1)
    s_barrier
    """)
    a(f"s_lshl_b32 s{sT2}, s{sRB2}, 1")
    rowidx(a, sH0, sT2, sT0)
    a(f"s_add_u32 s{sT2}, s{sT2}, 1")
    rowidx(a, sH1, sT2, sT0)
    a(f"""
    v_and_b32 v4, 1, v{vL}
    v_cmp_eq_u32 vcc, 0, v4
    v_mov_b32 v4, s{sH0}
    v_mov_b32 v5, s{sH1}
    v_cndmask_b32 v4, v5, v4, vcc
    v_and_b32 v4, 30, v4
    v_lshrrev_b32 v5, 1, v{vL}
    v_min_u32 v5, 11, v5
    s_mul_i32 s{sT0}, s{sKQ}, 12
    s_add_u32 s{sT0}, s{sT0}, 20
    v_add_u32 v5, s{sT0}, v5
    v_lshl_add_u32 v4, v5, 5, v4
    v_cmp_gt_u32 vcc, 32, v{vL}
    v_min_u32 v5, 53, v{vL}
    v_add_u32 v5, {72*32 - 32}, v5
    v_cndmask_b32 v4, v5, v4, vcc
    v_lshlrev_b32 v4, 7, v4
    v_add_u32 v4, {WS_F1}, v4
    s_mul_i32 s{sH0}, s{sRB2}, 192
    s_mul_i32 s{sT0}, s{sKQ}, 24
    s_add_u32 s{sH0}, s{sH0}, s{sT0}
    s_lshl_b32 s{sH0}, s{sH0}, 10
    s_add_u32 s{sH0}, s{sH0}, {WS_H}
    s_add_u32 s{sH1}, s{sH0}, {96*1024}
    s_mul_i32 s{sWp}, s{sT0}, 20480
    s_mul_i32 s{sT0}, s{sNB}, 2560
    s_add_u32 s{sWp}, s{sWp}, s{sT0}
    s_add_u32 s{sWp}, s{sWp}, {WS_WP}
    """)
    if 'st3' in OPT: stamp(a, 2)
    poll(a, "K2_p3", 4, 5, WS, sT3)
    stamp(a, 1)
    def gload(j):
        b = FR + 20 * j
        a(f"""
        buffer_load_dwordx4 {vr(b,4)}, v{vD}, {sr(WS,4)}, s{sH0} offen offset:{1024*j} sc1
        buffer_load_dwordx4 {vr(b+4,4)}, v{vD}, {sr(WS,4)}, s{sH1} offen offset:{1024*j} sc1
        buffer_load_dwordx4 {vr(b+8,4)}, v{vW}, {sr(WS,4)}, s{sWp} offen sc1
        buffer_load_dwordx4 {vr(b+12,4)}, v{vW}, {sr(WS,4)}, s{sWp} offen offset:1024 sc1
        buffer_load_dwordx4 {vr(b+16,4)}, v{vW2}, {sr(WS,4)}, s{sWp} offen offset:2048 sc1
        s_add_u32 s{sWp}, s{sWp}, 20480
        """)
    for j in range(3): gload(j)
    a(f"""
    s_setprio {GPRIO}
    s_mov_b32 s{sI}, {8 - DEF}
    s_mov_b32 s{sSeg}, 0
    K2_Gl:
    s_add_u32 s{sH0}, s{sH0}, 3072
    s_add_u32 s{sH1}, s{sH1}, 3072
    """)
    def mm6(aw, bo):
        for t in range(3):
            for r in range(2):
                a(MF(vr(ACC+48*r+16*t,16), vr(aw+4*t,4), vr(bo+4*r,4), vr(ACC+48*r+16*t,16)))
    for j in range(3):
        b = FR + 20 * j
        a("s_waitcnt vmcnt(10)")
        mm6(b + 8, b)
        gload(j)
    a(f"""
    s_sub_u32 s{sI}, s{sI}, 1
    s_cmp_lg_u32 s{sI}, 0
    s_cbranch_scc1 K2_Gl
    s_cmp_lg_u32 s{sSeg}, 0
    s_cbranch_scc1 K2_Gt
    """); 'st2' in OPT or stamp(a, 4)
    sWo, sO0, sO1 = 54, 55, 56
    OA = 88
    def oaddr(j):
        a(f"""
        s_add_u32 s{OA+2*(j%4)}, s{sO0}, s49
        s_add_u32 s{OA+2*(j%4)+1}, s{sO1}, s49
        s_add_u32 s49, s49, 1024
        s_cmp_eq_u32 s49, 10240
        s_cselect_b32 s49, 0, s49
        """)
    a(f"""
    s_setprio 3
    s_mul_i32 s{sT2}, s{sKQ}, 25600
    s_mul_i32 s{sWo}, s{sKQ}, {10*20480}
    s_mul_i32 s{sT0}, s{sNB}, 2560
    s_add_u32 s{sWo}, s{sWo}, s{sT0}
    s_add_u32 s{sWo}, s{sWo}, {WS_WP + 96*20480}
    s_mov_b32 m0, s{sT2}
    v_add_u32 v4, s{sT2}, v{vW}
    v_add_u32 v6, s{sT2}, v{vW2}
    s_lshl_b32 s{sT0}, s{sRB2}, 3
    s_add_u32 s{sT0}, s{sT0}, s{sKQ}
    s_lshl_b32 s{sT0}, s{sT0}, 10
    s_add_u32 s{sT0}, s{sT0}, {WS_F3}
    v_and_b32 v7, 39, v{vL}
    v_lshl_add_u32 v7, v7, 7, s{sT0}
    s_mul_i32 s{sO0}, s{sRB2}, 80
    s_mul_i32 s{sT0}, s{sKQ}, 10
    s_add_u32 s{sO0}, s{sO0}, s{sT0}
    s_lshl_b32 s{sO0}, s{sO0}, 10
    s_add_u32 s{sO0}, s{sO0}, {WS_O}
    s_add_u32 s{sO1}, s{sO0}, 40960
    s_mul_i32 s49, s{sNB}, {ROT3}
    s_lshr_b32 s49, s49, 2
    s_mul_i32 s{sT0}, s49, 20480
    s_add_u32 s50, s{sWo}, {10*20480}
    s_add_u32 s{sWo}, s{sWo}, s{sT0}
    s_lshl_b32 s49, s49, 10
    s_mov_b32 s{sI}, 10
    s_barrier
    K2_f4:
    buffer_load_dwordx4 v{vD}, {sr(WS,4)}, s{sWo} offen sc1 lds
    buffer_load_dwordx4 v{vD}, {sr(WS,4)}, s{sWo} offen offset:1024 sc1 lds
    s_mov_b32 exec_hi, 0
    buffer_load_dwordx4 v{vD}, {sr(WS,4)}, s{sWo} offen offset:2048 sc1 lds
    s_mov_b32 exec_hi, -1
    s_add_u32 s{sWo}, s{sWo}, 20480
    s_cmp_eq_u32 s{sWo}, s50
    s_cselect_b32 s{sT0}, {10*20480}, 0
    s_sub_u32 s{sWo}, s{sWo}, s{sT0}
    s_add_u32 m0, m0, 2560
    s_sub_u32 s{sI}, s{sI}, 1
    s_cmp_lg_u32 s{sI}, 0
    s_cbranch_scc1 K2_f4
    """)
    FO, FW = 104, 140
    def wread(j):
        b = FW + 12 * (j % 2)
        a(f"""
        ds_read_b128 {vr(b,4)}, v4 offset:{2560*j}
        ds_read_b128 {vr(b+4,4)}, v4 offset:{2560*j+1024}
        ds_read_b128 {vr(b+8,4)}, v6 offset:{2560*j+2048}
        """)
    def oissue(j):
        b = FO + 8 * (j % 4)
        a(f"""
        buffer_load_dwordx4 {vr(b,4)}, v{vD}, {sr(WS,4)}, s{OA+2*(j%4)} offen sc1
        buffer_load_dwordx4 {vr(b+4,4)}, v{vD}, {sr(WS,4)}, s{OA+2*(j%4)+1} offen sc1
        """)
    for j in range(4): oaddr(j)
    a(f"""
    s_mov_b32 s51, {SPINMAX}
    s_mov_b32 s{sI}, {DEF - 1}
    s_mov_b32 s{sSeg}, 1
    s_waitcnt vmcnt(0)
    s_barrier
    """)
    if 'p3' in OPT: stamp(a, 1)
    if DEF > 1: a("s_branch K2_Gl")
    a(f"K2_Gt:\nbuffer_load_dword v5, v7, {sr(WS,4)}, 0 offen sc1")
    for j in range(3):
        a(f"s_waitcnt vmcnt({11 - 5*j})")
        mm6(FR + 20 * j + 8, FR + 20 * j)
    wread(0); wread(1)
    a(f"""
    s_waitcnt vmcnt(0)
    v_cmp_ne_u32 vcc, s{sN}, v5
    s_cbranch_vccz K2_p4x
    """)
    poll(a, "K2_p4", 7, 5, WS, sT3)
    'st2' in OPT or stamp(a, 5)
    for j in range(4): oissue(j)
    retry = []
    for j in range(10):
        later = min(j + 3, 9) - j
        b = FO + 8 * (j % 4)
        a(f"""
        s_waitcnt vmcnt({2*later}) lgkmcnt({0 if (j == 9 or PROF) else 3})
        K3_c{j}:
        v_max3_u32 v5, v{b}, v{b+2}, v{b+4}
        v_max_u32 v5, v5, v{b+6}
        v_cmp_eq_u32 vcc, -1, v5
        s_cbranch_vccnz K3_r{j}
        K3_m{j}:
        """)
        mm6(FW + 12 * (j % 2), b)
        if j + 4 < 10: oaddr(j + 4); oissue(j + 4)
        if j + 2 < 10: wread(j + 2)
    def retries():
        for j in range(10):
            a(f"K3_r{j}:\ns_cmp_eq_u32 s51, 0\ns_cbranch_scc1 K3_m{j}\ns_sub_u32 s51, s51, 1")
            oissue(j)
            a(f"s_waitcnt vmcnt(0)\ns_branch K3_c{j}")
    if 'p3' in OPT: stamp(a, 2)
    fin_prep()
    a(f"""
    v_and_b32 v7, 31, v{vL}
    v_mul_u32_u24 v7, 160, v7
    v_lshrrev_b32 v{RR}, 5, v{vL}
    v_mul_u32_u24 v{RR}, 10240, v{RR}
    v_add3_u32 v7, v7, v{RR}, s{sT2}
    """)
    for r in range(2):
        for o in range(10): a(f"ds_write_b128 v7, {vr(ACC+48*r+4*o,4)} offset:{5120*r+16*o}")
    a(f"""
    s_waitcnt lgkmcnt(0)
    {"s_memtime s[76:77]" if PROF and 'p3' in OPT else ""}
    s_cmp_lt_u32 s{sW}, 10
    s_cbranch_scc1 K3_bar
    s_barrier
    {"s_branch K_pe" if PROF else "s_endpgm"}
    """)
    retries()
    vMx = 3
    sP, sO1, sO2, sO3 = 48, 49, 50, 51
    a(f"""
    K_last:
    K2_slow:
    v_subrev_u32 v{vA}, {16*10240}, v{vA}
    v_mov_b32 v{vMx}, 0xff800000
    s_mov_b32 s{sP}, 0
    """)
    for i in range(16): a(f"v_mov_b32 v{O+i}, 0")
    a(f"""
    K2_sp:
    s_mov_b32 s{sI}, 0
    K2_sl:
    s_lshr_b32 s{sT0}, s{sI}, 1
    s_mul_i32 s{sT0}, s{sT0}, 10240
    s_add_u32 s{sT0}, s{sT0}, {WS_KV}
    s_and_b32 s{sT1}, s{sI}, 1
    s_lshl_b32 s{sO1}, s{sT1}, 10
    s_add_u32 s{sO1}, s{sO1}, s{sT0}
    s_lshl_b32 s{sO2}, s{sT1}, 3
    s_add_u32 s{sO2}, s{sO2}, s{sT0}
    s_mul_i32 s{sO3}, s{sT1}, 1280
    s_add_u32 s{sO3}, s{sO3}, s{sT0}
    buffer_load_dwordx4 {vr(KM,4)}, v{vA}, {sr(WS,4)}, s{sO1} offen sc1
    buffer_load_dwordx4 {vr(KM+4,4)}, v{vA}, {sr(WS,4)}, s{sO1} offen offset:512 sc1
    buffer_load_dwordx2 {vr(KT,2)}, v{vA}, {sr(WS,4)}, s{sO2} offen offset:2048 sc1
    s_mov_b64 exec, {sr(sVm,2)}
    """)
    for f in range(4): a(f"buffer_load_dwordx4 {vr(V+4*f,4)}, v{vA}, {sr(WS,4)}, s{sO3} offen offset:{2560+320*f} sc1")
    a(f"""
    s_mov_b64 exec, -1
    s_waitcnt vmcnt(0)
    v_mfma_f32_32x32x4_2b_bf16 {vr(S,32)}, {vr(KT,2)}, {vr(QT,2)}, 0
    s_nop 15
    s_nop 3
    {MF(vr(S,16), vr(KM,4), vr(QM,4), vr(S,16))}
    {MF(vr(S+16,16), vr(KM+4,4), vr(QM,4), vr(S+16,16))}
    s_cmp_lg_u32 s{sP}, 0
    s_nop 12
    s_cbranch_scc1 K2_sp2
    """)
    for i in range(16): a(f"v_max3_f32 v{vMx}, v{S+2*i}, v{S+2*i+1}, v{vMx}")
    a("s_branch K2_snext\nK2_sp2:")
    for i in range(32): a(f"v_sub_f32 v{S+i}, v{S+i}, v{vMx}")
    for i in range(32): a(f"v_exp_f32 v{S+i}, v{S+i}")
    a("s_nop 0")
    for i in range(16): a(f"v_cvt_pk_bf16_f32 v{P+i}, v{S+2*i}, v{S+2*i+1}")
    a("s_nop 1")
    for f in range(4): a(MF(vr(O,16), vr(V+4*f,4), vr(P+4*f,4), vr(O,16)))
    a(f"""
    s_nop 15
    K2_snext:
    s_add_u32 s{sI}, s{sI}, 1
    s_cmp_lt_u32 s{sI}, 32
    s_cbranch_scc1 K2_sl
    s_cmp_lg_u32 s{sP}, 0
    s_cbranch_scc1 K2_fin
    v_mov_b32 v{P}, v{vMx}
    s_nop 1
    v_permlane32_swap_b32 v{P}, v{vMx}
    s_mov_b32 s{sP}, 1
    v_max_f32 v{vMx}, v{vMx}, v{P}
    s_branch K2_sp
    """)
    return 164

def main(out):
    a = Asm()
    gen_k1(a); n = gen_k2(a)
    head = f"""; LayerNorm + MQA attention + SiLU FFN in one launch (generated by work/gen7.py)
; @launch grid=(256,1,1) block=(768,1,1) lds=163840
.amdgcn_target "amdgcn-amd-amdhsa--gfx950"
.text
"""
    tail = '.section .rodata,"a"\n' + kdesc(KN, n)
    txt = a.text()
    import re
    if 'pollsys' in OPT: txt = re.sub(r"(buffer_load_dword v\d+, v\d+, s\[28:31\], 0 offen) sc1", r"\1 sc0 sc1", txt)
    if 'flagsys' in OPT: txt = re.sub(r"(buffer_store_dword v\d+, v\d+, s\[28:31\], s\d+ offen) sc1", r"\1 sc0 sc1", txt)
    if 'flagatom' in OPT: txt = re.sub(r"buffer_store_dword (v\d+, v\d+, s\[28:31\], s\d+ offen) sc1", r"buffer_atomic_swap \1", txt)
    if 'allsys' in OPT: txt = re.sub(r"(?<!sc0) sc1", " sc0 sc1", txt)
    if 'rt' in OPT: txt = txt.replace("s_memtime", "s_memrealtime")
    open(out, "w").write(head + txt + tail)

if __name__ == "__main__":
    if "--prof" in sys.argv:
        PROF = True; sys.argv.remove("--prof")
    main(sys.argv[1] if len(sys.argv) > 1 else f"cdna_kernels/{NAME}.s")
```

```python
import sys, math, os, struct
import abody, kbody
OPT = set(os.environ.get('OPT', '').split(','))
NAME = "parallel_sum__grouped_kv_mqa__dense_activation_silu__prompt"
WS_Q, WS_KV, WS_H, WS_O, WS_WP, WS_Y, WS_PROF, WS_END = 0, 0x300000, 0x340000, 0x940000, 0xD00000, 0x1000000, 0xC00000, 0x1500000
WS_SR, WS_SC = 0x280000, 0x2D2000
WS_F1, WS_F3, WS_FK = 0x1000000, 0x1080000, 0x1060000
SLP = int(os.environ.get('SLP', '4'))
XB = 147456; XFC, XN, XQ = XB + 2560, XB + 3072, XB + 4096
sN = 68
KN = NAME + '_kernel'
SPINMAX = 20000
ROTR, ROTC = (int(c) for c in os.environ.get('ROT', '3,3').split(','))
PRE = int(os.environ.get('PRE', '2'))
PRE_CTRL = """s_or_b32 s{sT0}, s{sI}, 2
    s_cmp_eq_u32 s{sT0}, 3
    s_cbranch_scc1 K1_issue
    s_cmp_lg_u32 s{sI}, 2
    s_cbranch_scc1 K1_w18""" if PRE == 2 else """s_cmp_lt_u32 s{sI}, %d
    s_cbranch_scc1 K1_issue
    s_cmp_lg_u32 s{sI}, %d
    s_cbranch_scc1 K1_w18""" % (PRE, PRE)
CSAT = int(os.environ.get('CSAT', '2'))
NF1 = 5
HS = 102400
SEGS = eval(os.environ.get('SEGS', '[1, 3, 10, 2]'))
DEEP = int(os.environ.get('DEEP', '99'))
GPRIO = int(os.environ.get('GPRIO', '0'))
ROT3 = int(os.environ.get('ROT3', '5'))
RW = int(os.environ.get('RW', '10')); RMUL = int(os.environ.get('RMUL', '3'))
TSH = int(os.environ.get('TSH', '0'))
DEF = int(os.environ.get('DEF', '2'))
HOOK = int(os.environ.get('HOOK', '2'))
LOG2E = 1.4426950408889634
def f32(x): return "0x%08x" % struct.unpack("<I", struct.pack("<f", x))[0]

class Asm:
    def __init__(self): self.l = []
    def __call__(self, s):
        for x in s.strip("\n").split("\n"):
            x = x.strip()
            if x: self.l.append(("" if x.endswith(":") else "    ") + x)
    def text(self): return "\n".join(self.l) + "\n"
def vr(a, n): return "v[%d:%d]" % (a, a + n - 1)
def ar(a, n): return "a[%d:%d]" % (a, a + n - 1)
def sr(a, n): return "s[%d:%d]" % (a, a + n - 1)
def srd(a, d, base, nbytes):
    a(f"s_mov_b32 s{d}, s{base}\ns_mov_b32 s{d+1}, s{base+1}\ns_mov_b32 s{d+2}, {nbytes}\ns_mov_b32 s{d+3}, 0x00020000")
def kdesc(name, vgpr, agpr=0, sgpr=102):
    acc = (vgpr + 3) // 4 * 4
    return f""".p2align 6
.amdhsa_kernel {name}
  .amdhsa_next_free_vgpr {acc + agpr if agpr else vgpr}
  .amdhsa_next_free_sgpr {sgpr}
  .amdhsa_accum_offset {acc}
  .amdhsa_group_segment_fixed_size 0
  .amdhsa_kernarg_size 88
  .amdhsa_user_sgpr_count 2
  .amdhsa_user_sgpr_kernarg_segment_ptr 1
  .amdhsa_system_sgpr_workgroup_id_x 1
.end_amdhsa_kernel
"""
def khead(a, name): a.l.append(f".globl {name}\n.p2align 8\n.type {name},@function\n{name}:")
PROF = False
DIAGX = int(os.environ.get('DIAGX', '0'))
DIAGC = os.environ.get('DIAGC', '')
def stamp(a, i):
    if DIAGX:
        a(f"{'s_memtime' if DIAGC else 's_memrealtime'} s[{70+2*i}:{71+2*i}]")
        return
    if 'dbgt' in OPT:
        a(f"s_memrealtime s[{70+2*i}:{71+2*i}]")
        if i == 0: a("s_mov_b32 s72, 0\ns_mov_b32 s74, 0\ns_mov_b32 s76, 0")
        return
    if PROF:
        a(f"s_memtime s[{70+2*i}:{71+2*i}]")
        if i == 0: a("s_memrealtime s[84:85]")
def prof_end(a, kidx, WS, sW):
    if DIAGX:
        a(f"""
        s_cmp_lg_u32 s{sW}, {DIAGC.split(',')[1] if DIAGC else 0}
        s_cbranch_scc1 K_end
        s_cmp_lg_u32 s2, {int(os.environ.get('DIAGWG', '40'))}
        s_cbranch_scc1 K_end
        s_waitcnt vmcnt(0)
        s_memrealtime s[82:83]
        s_waitcnt lgkmcnt(0)
        {f"s_sub_u32 s84, s{70+2*DIAGX}, s70" if DIAGX < 7 else f"s_sub_u32 s84, s70, s{sN}"}
        {"s_add_u32 s84, s84, 1500" if DIAGX == 7 else ""}
        s_lshl_b32 s84, s84, 2
        {f"s_sub_u32 s84, s{70+2*DIAGX}, s{70+2*int(DIAGC.split(',')[0])}" if DIAGC else ""}
        {"s_lshr_b32 s84, s84, 2" if DIAGC else ""}
        K_dl:
        s_memrealtime s[86:87]
        s_waitcnt lgkmcnt(0)
        s_sub_u32 s86, s86, s82
        s_cmp_lt_u32 s86, s84
        s_cbranch_scc1 K_dl
        """)
        return
    if 'dbgt' in OPT:
        a(f"""
        s_cmp_lg_u32 s{sW}, 0
        s_cbranch_scc1 K_end
        s_waitcnt vmcnt(0)
        s_memrealtime s[82:83]
        s_mov_b32 s20, s4
        s_mov_b32 s21, s5
        s_mov_b32 s22, 256
        s_mov_b32 s23, 0x00020000
        s_mov_b64 exec, 1
        v_mov_b32 v0, 0
        s_waitcnt lgkmcnt(0)
        s_not_b32 s84, s70
        v_mov_b32 v1, s84
        buffer_atomic_umax v1, v0, s[20:23], 0 offen offset:4
        """)
        for i in range(7):
            a(f"v_mov_b32 v{2+i}, s{70+2*i}\nbuffer_atomic_umax v{2+i}, v0, s[20:23], 0 offen offset:{8+4*i}")
        return
    if not PROF: return
    a(f"""
    s_waitcnt vmcnt(0)
    s_memtime s[82:83]
    s_memrealtime s[86:87]
    s_mov_b64 exec, -1
    s_waitcnt lgkmcnt(0)
    s_lshl_b32 s88, s2, 4
    s_add_u32 s88, s88, s{sW}
    s_lshl_b32 s88, s88, 6
    s_add_u32 s88, s88, {WS_PROF + kidx * 0x40000}
    v_mov_b32 v0, 0
    """)
    if 'kvs' in OPT: a("s_mov_b32 s80, s90")
    if 'lacc' in OPT: a(f"s_cmp_lt_u32 s{sW}, 8\ns_cbranch_scc1 K_pe2\ns_add_u32 s76, s70, s95\ns_add_u32 s78, s70, s96\ns_add_u32 s80, s70, s97\nK_pe2:")
    for i in range(7): a(f"v_mov_b32 v{4+i}, s{70+2*i}")
    a(f"""
    v_mov_b32 v11, s84
    v_mov_b32 v12, s86
    v_mov_b32 v13, 0
    v_mov_b32 v14, 0
    v_mov_b32 v15, 0
    s_mov_b64 exec, 1
    buffer_store_dwordx4 v[4:7], v0, {sr(WS,4)}, s88 offen
    buffer_store_dwordx4 v[8:11], v0, {sr(WS,4)}, s88 offen offset:16
    buffer_store_dwordx4 v[12:15], v0, {sr(WS,4)}, s88 offen offset:32
    """)
def poll(a, lab, vaddr, vtmp, WS, sCnt):
    a(f"""
    s_mov_b32 s{sCnt}, 0
    {lab}:
    buffer_load_dword v{vtmp}, v{vaddr}, {sr(WS,4)}, 0 offen sc1
    s_add_u32 s{sCnt}, s{sCnt}, 1
    s_waitcnt vmcnt(0)
    v_cmp_ne_u32 vcc, s{sN}, v{vtmp}
    s_cbranch_vccz {lab}x
    s_sleep {SLP}
    s_cmp_lt_u32 s{sCnt}, {SPINMAX}
    s_cbranch_scc1 {lab}
    {lab}x:
    """)
def setflag(a, soff, WS, v0, v1, emask="1"):
    a(f"""
    v_mov_b32 v{v0}, s{sN}
    v_lshlrev_b32 v{v1}, 8, v0
    s_mov_b64 exec, {emask}
    s_waitcnt vmcnt(0)
    buffer_store_dword v{v0}, v{v1}, {sr(WS,4)}, s{soff} offen sc1
    s_mov_b64 exec, -1
    """)
def rowidx(a, d, rt, t):
    a(f"""
    s_mul_i32 s{d}, s{rt}, 205
    s_lshr_b32 s{d}, s{d}, 10
    s_mul_i32 s{t}, s{d}, 5
    s_sub_u32 s{t}, s{rt}, s{t}
    s_lshl_b32 s{d}, s{d}, 1
    s_cmp_ge_u32 s{t}, 3
    s_addc_u32 s{d}, s{d}, 0
    """)
def round_bf16(a, d, s): a(f"v_cvt_pk_bf16_f32 v{d}, v{s}, v{s}\nv_lshlrev_b32 v{d}, 16, v{d}")
def MF(d, A, B, C): return f"v_mfma_f32_32x32x16_bf16 {d}, {A}, {B}, {C}"

def ldswait(a, lab, vaddr, vtmp, sTmp, sNeed, off=0):
    a(f"""
    {lab}:
    ds_read_b32 v{vtmp}, v{vaddr} offset:{off}
    s_waitcnt lgkmcnt(0)
    v_readfirstlane_b32 s{sTmp}, v{vtmp}
    s_cmp_ge_u32 s{sTmp}, {sNeed}
    s_cbranch_scc1 {lab}x
    {'s_sleep 1' if 'nosl' not in OPT else ''}
    s_sub_u32 s65, s65, 1
    s_cbranch_scc0 {lab}
    s_mov_b32 s65, 0
    {lab}x:
    """)
def ldsadd(a, vaddr, vone, off=0):
    a(f"s_mov_b64 exec, 1\nds_add_u32 v{vaddr}, v{vone} offset:{off}\ns_mov_b64 exec, -1")

def acc(a, i):
    if PROF and 'lacc' in OPT:
        a(f"s_memtime s[92:93]\ns_waitcnt lgkmcnt(0)\ns_sub_u32 s94, s92, s91\ns_mov_b32 s91, s92\ns_add_u32 s{95+i}, s{95+i}, s94")
def gen_k1(a):
    khead(a, KN)
    SLOT = 36864
    CNT = XN + 16
    sW, sR, sG, sRB, sCB = 32, 33, 34, 35, 36
    sI, sK, sSlot, sT0, sT1, sMx, sNeed, sStr64, sDelta, sRd, sT2, sT3, sK0, sMB, sU, sTyp, sRT, sS32, sOnes = 38, 39, 40, 41, 42, 43, 44, 45, 46, 47, 48, 49, 50, 51, 52, 53, 54, 55, 37
    sHr, sIdle, sGs, DB2, sHc = 56, 69, 57, 12, 57
    X, WA, WS, DBG = 20, 24, 28, 20
    vL, vXs, vWs, vCom, vOne, vC, vF = 0, 1, 2, 11, 10, 17, 18
    vAx, vAw = 12, 16
    vT = 24
    AC = 32; fW, fX = 80, 96
    a(f"""
    s_cmp_ge_u32 s2, 256
    s_cbranch_scc1 K_end
    """); stamp(a, 0); a(f"""
    s_load_dwordx8 s[8:15], s[0:1], 0
    s_load_dwordx4 s[60:63], s[0:1], 48
    s_load_dwordx4 s[4:7], s[0:1], 72
    s_load_dwordx2 s[16:17], s[0:1], 32
    s_load_dwordx2 s[18:19], s[0:1], 64
    v_lshrrev_b32 v1, 6, v0
    v_and_b32 v{vL}, 63, v0
    v_readfirstlane_b32 s{sW}, v1
    s_and_b32 s{sT0}, s2, 7
    s_lshr_b32 s{sT1}, s2, 3
    s_mul_i32 s{sT2}, s{sT0}, 30
    s_add_u32 s{sT2}, s{sT2}, s{sT1}
    v_lshrrev_b32 v{vT}, 5, v{vL}
    v_and_b32 v{vT+1}, 3, v{vL}
    v_bfe_u32 v{vT+2}, v{vL}, 2, 3
    v_lshlrev_b32 v{vT+3}, 4, v{vT+1}
    s_mov_b32 s{WS+2}, {WS_END}
    s_mov_b32 s{WS+3}, 0x00020000
    s_lshl_b32 s{sT3}, s{sW}, 8
    s_add_u32 s{sT3}, s{sT3}, s{sT1}
    s_cmp_lg_u32 s{sT3}, {(1 << 8) + 30}
    s_cbranch_scc1 K1_npf
    s_getpc_b64 s[66:67]
    K1_pc:
    v_lshlrev_b32 v2, 7, v{vL}
    v_add_u32 v3, 8192, v2
    v_min_u32 v3, K_last-K1_pc, v3
    {"" if 'nocpf' in OPT else "global_load_dword v60, v2, s[66:67]"}
    {"" if 'nocpf' in OPT else "global_load_dword v61, v3, s[66:67]"}
    K1_npf:
    s_cmp_ge_u32 s{sT1}, 30
    s_cbranch_scc1 K1_aux
    s_cmp_ge_u32 s{sT2}, 234
    s_cbranch_scc1 K1_aux
    s_cmp_lt_u32 s{sT2}, 126
    s_cselect_b32 s{sT0}, 0, 126
    s_cselect_b32 s{sT1}, 7, 6
    s_movk_i32 s{sT3}, 10923
    s_cselect_b32 s{sT3}, 9363, s{sT3}
    s_cselect_b32 s{sRB}, 0, 7
    s_sub_u32 s{sT2}, s{sT2}, s{sT0}
    s_mul_i32 s{sCB}, s{sT2}, s{sT3}
    s_lshr_b32 s{sCB}, s{sCB}, 16
    s_mul_i32 s{sT1}, s{sT1}, s{sCB}
    s_sub_u32 s{sT2}, s{sT2}, s{sT1}
    s_add_u32 s{sRB}, s{sRB}, s{sT2}
    s_and_b32 s{sR}, s{sW}, 3
    s_add_u32 s{sK}, s{sRB}, s{sCB}
    s_mul_i32 s{sK}, s{sK}, {RMUL}
    s_mul_i32 s{sT0}, s{sK}, {65536 // RW + 1}
    s_lshr_b32 s{sT0}, s{sT0}, 16
    s_mul_i32 s{sT0}, s{sT0}, {RW}
    s_sub_u32 s{sK}, s{sK}, s{sT0}
    s_mul_i32 s{sK}, s{sK}, {10 // RW}
    s_cmp_lt_u32 s{sW}, 8
    s_cbranch_scc1 K1_C
    """)
    def common2():
        a(f"""
        v_bfe_u32 v{vT+4}, v{vL}, 2, 2
        v_bfe_u32 v{vT+5}, v{vL}, 4, 1
        v_lshl_add_u32 v{vT+4}, v{vT+4}, 1, v{vT+5}
        v_lshl_add_u32 v{vT+4}, v{vT+4}, 2, v{vT+1}
        v_lshlrev_b32 v{vCom}, 3, v{vT+4}
        s_mov_b32 s{sOnes}, 0x3f803f80
        s_cmp_eq_u32 s{sCB}, 17
        s_cselect_b32 s{sT0}, 1, 3
        s_and_b32 s{sT0}, s{sT0}, s{sR}
        s_lshr_b32 s{sT1}, s{sT0}, 1
        s_lshl_b32 s{sT1}, s{sT1}, 13
        s_and_b32 s{sT0}, s{sT0}, 1
        s_lshl_b32 s{sT0}, s{sT0}, 9
        s_add_u32 s{sT0}, s{sT0}, s{sT1}
        s_add_u32 s{sT0}, s{sT0}, 20480
        v_lshl_add_u32 v{vAw}, v{vT}, 10, v{vCom}
        v_add_u32 v{vAw}, s{sT0}, v{vAw}
        """)
    vQb, vQa = 4, 6
    a(f"""
    s_mul_i32 s{sT0}, s{sRB}, 160
    s_lshl_b32 s{sT1}, s{sR}, 3
    s_add_u32 s{sT0}, s{sT0}, s{sT1}
    s_mul_i32 s{sT0}, s{sT0}, 1280
    v_lshrrev_b32 v{vT+4}, 3, v{vL}
    v_mul_u32_u24 v{vT+4}, 1280, v{vT+4}
    v_add_u32 v{vT+4}, s{sT0}, v{vT+4}
    v_and_b32 v{vT+5}, 7, v{vL}
    v_lshrrev_b32 v{vT+6}, 4, v{vL}
    v_xor_b32 v{vT+5}, v{vT+5}, v{vT+6}
    s_and_b32 s{sT0}, s{sR}, 1
    s_lshl_b32 s{sT0}, s{sT0}, 2
    v_xor_b32 v{vT+5}, s{sT0}, v{vT+5}
    v_lshl_add_u32 v{vXs}, v{vT+5}, 4, v{vT+4}
    s_cmp_lt_u32 s{sCB}, 5
    s_movk_i32 s{sT0}, 3072
    s_cselect_b32 s{sT0}, 1280, s{sT0}
    s_cselect_b32 s{sT2}, 0, 5
    s_sub_u32 s{sT2}, s{sCB}, s{sT2}
    s_lshl_b32 s{sT2}, s{sT2}, 8
    v_lshl_add_u32 v{vT+4}, v{vT}, 6, v{vT+3}
    v_add_u32 v{vT+4}, s{sT2}, v{vT+4}
    v_add_u32 v{vT+5}, s{sT1}, v{vT+2}
    v_mad_u32_u24 v{vWs}, v{vT+5}, s{sT0}, v{vT+4}
    v_min_u32 v{vT+4}, 24, v{vT+3}
    v_mad_u32_u24 v{vT+6}, v{vT+5}, 40, v{vT+4}
    v_mov_b32 v{vT+7}, 0
    v_cmp_eq_u32 vcc, 0, v{vT}
    s_lshl_b32 s{sStr64}, s{sT0}, 6
    s_lshl_b32 s{sS32}, s{sT0}, 5
    s_mul_i32 s{WA+2}, s{sT0}, 640
    s_lshl_b32 s{sMx}, s{sR}, 10
    s_mov_b32 s{sI}, 0
    s_mov_b32 s{sSlot}, 0
    s_mov_b32 s{X+2}, {2048*1280}
    s_mov_b32 s{X+3}, 0x00020000
    s_mov_b32 s{WA+3}, 0x00020000
    s_cmp_lt_u32 s{sCB}, 5
    s_waitcnt lgkmcnt(0)
    s_mov_b32 s{X}, s8
    s_mov_b32 s{X+1}, s9
    s_cselect_b32 s{WA}, s10, s60
    s_cselect_b32 s{WA+1}, s11, s61
    v_mov_b32 v{vQb}, s14
    v_mov_b32 v{vQb+1}, s15
    v_mov_b32 v{vQa}, s12
    v_mov_b32 v{vQa+1}, s13
    v_cndmask_b32 v{vQb}, v{vQb}, v{vQa}, vcc
    v_cndmask_b32 v{vQb+1}, v{vQb+1}, v{vQa+1}, vcc
    v_lshl_add_u64 {vr(vQb,2)}, {vr(vT+6,2)}, 0, {vr(vQb,2)}
    v_mov_b32 v8, 2560
    """)
    stamp(a, 1)
    if PROF and 'lacc' in OPT: a("s_waitcnt lgkmcnt(0)\ns_mov_b32 s91, s72\ns_mov_b32 s95, 0\ns_mov_b32 s96, 0\ns_mov_b32 s97, 0")
    a("K1_issue:"); acc(a, 2)
    a(f"""
    s_lshl_b32 s{sT0}, s{sK}, 7
    s_add_u32 m0, s{sSlot}, s{sMx}
    s_mul_i32 s{sT1}, s{sK}, s{sStr64}
    """)
    for i in range(5):
        a(f"buffer_load_dwordx4 v{vXs}, {sr(X,4)}, s{sT0} offen lds\ns_add_u32 m0, m0, 4096\ns_add_u32 s{sT0}, s{sT0}, {32*1280}")
    a(f"""
    s_add_u32 s{sT2}, s{sT1}, s{sS32}
    s_cmp_eq_u32 s{sCB}, 17
    s_cbranch_scc1 K1_ikv
    buffer_load_dwordx4 v{vWs}, {sr(WA,4)}, s{sT1} offen lds
    s_add_u32 m0, m0, 4096
    s_nop 0
    buffer_load_dwordx4 v{vWs}, {sr(WA,4)}, s{sT2} offen lds
    s_add_u32 m0, m0, {4096-128}
    s_nop 0
    buffer_load_dwordx4 v{vWs}, {sr(WA,4)}, s{sT1} offen offset:128 lds
    s_add_u32 m0, m0, 4096
    s_nop 0
    buffer_load_dwordx4 v{vWs}, {sr(WA,4)}, s{sT2} offen offset:128 lds
    K1_i2:
    """); acc(a, 0); a(f"""
    s_add_u32 s{sK}, s{sK}, 1
    s_cmp_eq_u32 s{sK}, 10
    s_cselect_b32 s{sK}, 0, s{sK}
    s_add_u32 s{sSlot}, s{sSlot}, {SLOT}
    s_cmp_eq_u32 s{sSlot}, {4*SLOT}
    s_cselect_b32 s{sSlot}, 0, s{sSlot}
    s_add_u32 s{sI}, s{sI}, 1
    s_cmp_eq_u32 s{sI}, 1
    s_cbranch_scc1 K1_l1
    s_waitcnt vmcnt(9)
    s_barrier
    s_cmp_lg_u32 s{sI}, 10
    s_cbranch_scc1 K1_issue
    s_branch K1_g0
    K1_ikv:
    v_mad_u64_u32 {vr(vQa,2)}, s[58:59], v8, s{sK}, {vr(vQb,2)}
    global_load_lds_dwordx4 {vr(vQa,2)}, off
    s_add_u32 m0, m0, {4096-1280}
    s_nop 0
    global_load_lds_dwordx4 {vr(vQa,2)}, off offset:1280
    s_waitcnt vmcnt(7)
    s_branch K1_i2
    K1_l1:
    s_mov_b32 s{WS}, s6
    s_mov_b32 s{WS+1}, s7
    """)
    a(f"""
    s_cmp_eq_u32 s{sR}, 3
    s_mul_i32 s{sT0}, s{sRB}, 25600
    s_mul_i32 s{sT1}, s{sCB}, 10240
    s_movk_i32 s{sGs}, 2560
    s_cselect_b32 s{sGs}, 1024, s{sGs}
    s_cselect_b32 s{sT0}, s{sT1}, s{sT0}
    s_mov_b32 s{sT1}, {WS_SR}
    s_cselect_b32 s{sT1}, {WS_SC}, s{sT1}
    s_cselect_b32 s{sT2}, 0, s{sR}
    s_add_u32 s{sU}, s{sT0}, s{sT1}
    s_lshl_b32 s{sT2}, s{sT2}, 6
    v_add_u32 v20, s{sT2}, v{vL}
    v_min_u32 v20, 159, v20
    v_lshlrev_b32 v20, 4, v20
    v_mov_b32 v22, {XN}
    s_mul_i32 s62, s{sRB}, {5*96*1024}
    s_lshl_b32 s{sT0}, s{sCB}, 2
    s_add_u32 s{sT0}, s{sT0}, s{sR}
    s_lshl_b32 s{sT1}, s{sT0}, 11
    s_add_u32 s62, s62, s{sT1}
    s_add_u32 s62, s62, {WS_H - 5*8192}
    s_lshl_b32 s63, s{sT0}, 4
    s_add_u32 s63, s63, s{sRB}
    s_lshl_b32 s63, s63, 8
    s_add_u32 s63, s63, {WS_F1}
    s_sub_u32 s{sT0}, s{sCB}, 5
    s_cmp_lt_u32 s{sT0}, 12
    s_cselect_b32 s62, s62, 0
    s_branch K1_issue
    K1_g0:
    ds_read_b32 v21, v22
    """)
    G = 32
    a(f"""
    s_mov_b32 s{sI}, 0
    """)
    a(f"K1_gat:\ns_mov_b32 s{sT0}, s{sU}")
    for k in range(10):
        a(f"buffer_load_dwordx4 {vr(G+4*k,4)}, v20, {sr(WS,4)}, s{sT0} offen sc1\ns_add_u32 s{sT0}, s{sT0}, s{sGs}")
    a(f"""
    s_cmp_lg_u32 s{sI}, 0
    s_cbranch_scc1 K1_g2
    s_waitcnt vmcnt(10)
    s_barrier
    """)
    a(f"""
    K1_g2:
    s_add_u32 s{sI}, s{sI}, 1
    s_waitcnt vmcnt(0) lgkmcnt(0)
    v_cmp_eq_u32 vcc, 0, v21
    v_readfirstlane_b32 s{sN}, v21
    s_nop 0
    v_cndmask_b32 v6, 0, 1, vcc
    """)
    for k in range(10):
        a(f"v_xor_b32 v{G+4*k+1}, v{G+4*k+1}, v21\nv_xor_b32 v{G+4*k+3}, v{G+4*k+3}, v21\nv_or3_b32 v6, v{G+4*k+1}, v{G+4*k+3}, v6")
    a(f"""
    v_cmp_ne_u32 vcc, 0, v6
    s_cbranch_vccz K1_g3
    s_sleep {SLP}
    s_cmp_lt_u32 s{sI}, {SPINMAX}
    s_cbranch_scc1 K1_gat
    K1_g3:
    """)
    for k in range(1, 10):
        a(f"v_add_f32 v{G}, v{G}, v{G+4*k}\nv_add_f32 v{G+2}, v{G+2}, v{G+4*k+2}")
    a(f"""
    s_cmp_eq_u32 s{sR}, 3
    s_cbranch_scc1 K1_gc
    v_mul_f32 v{G}, {f32(1.0/640)}, v{G}
    v_mul_f32 v{G+2}, {f32(1.0/640)}, v{G+2}
    v_cvt_pk_bf16_f32 v{G+4}, -v{G}, -v{G}
    v_fma_f32 v{G+2}, -v{G}, v{G}, v{G+2}
    v_max_f32 v{G+2}, 0, v{G+2}
    """)
    round_bf16(a, G+2, G+2)
    a(f"v_add_f32 v{G+2}, {f32(1e-5)}, v{G+2}")
    round_bf16(a, G+2, G+2)
    a(f"v_sqrt_f32 v{G+6}, v{G+2}\nv_mov_b32 v{G+5}, 0")
    round_bf16(a, G+6, G+6)
    a(f"""
    v_rcp_f32 v{G+7}, v{G+6}
    v_add_u32 v5, {XB}, v20
    s_nop 0
    ds_write_b128 v5, {vr(G+4,4)}
    s_branch K1_gd
    K1_gc:
    v_and_b32 v{G+1}, 0xffff0000, v{G}
    v_and_b32 v{G+3}, 0xffff0000, v{G+2}
    v_sub_f32 v{G}, v{G}, v{G+1}
    v_sub_f32 v{G+2}, v{G+2}, v{G+3}
    v_cvt_pk_bf16_f32 v{G+4}, v{G+1}, v{G}
    v_cvt_pk_bf16_f32 v{G+5}, v{G+3}, v{G+2}
    v_lshlrev_b32 v5, 3, v{vL}
    v_add_u32 v5, {XFC}, v5
    ds_write_b64 v5, {vr(G+4,2)}
    K1_gd:
    """)
    a("s_waitcnt lgkmcnt(0)\ns_barrier\ns_branch K2_G")
    vN = 2
    a(f"""
    K1_C:
    """)
    common2()
    a(f"""
    s_memrealtime s[66:67]
    s_lshr_b32 s{sG}, s{sW}, 2
    s_mov_b32 s{sK0}, s{sK}
    s_mov_b32 s{DBG+2}, 256
    s_mov_b32 s{DBG+3}, 0x00020000
    v_mov_b32 v{vN+1}, 0
    v_and_b32 v{vT+4}, 31, v{vL}
    v_bfe_u32 v{vT+5}, v{vL}, 1, 3
    v_lshlrev_b32 v{vT+4}, 7, v{vT+4}
    s_waitcnt lgkmcnt(0)
    s_mov_b32 s{WS}, s6
    s_mov_b32 s{WS+1}, s7
    s_mov_b32 s{DBG}, s4
    s_mov_b32 s{DBG+1}, s5
    s_or_b32 s{sT0}, s2, s{sW}
    s_cbranch_scc1 K1_nn
    s_or_b32 s66, s66, 1
    v_mov_b32 v{vN}, s66
    s_mov_b64 exec, 1
    buffer_store_dword v{vN}, v{vN+1}, {sr(DBG,4)}, 0 offen sc1
    s_mov_b64 exec, -1
    K1_nn:
    """)
    if TSH:
        a(f"""
        s_lshl_b32 s{sT0}, s{sW}, {6 + TSH}
        v_lshlrev_b32 v4, {TSH}, v{vL}
        s_cmp_lt_u32 s{sT0}, {WS_F3 + 0x40000}
        s_cbranch_scc0 K1_nt1
        buffer_load_dword v163, v4, {sr(WS,4)}, s{sT0} offen
        K1_nt1:
        s_cmp_lg_u32 s{sW}, 7
        s_cbranch_scc1 K1_nt2
        s_mov_b32 s24, s18
        s_mov_b32 s25, s19
        s_mov_b32 s26, {2048*1280}
        s_mov_b32 s27, 0x00020000
        buffer_load_dword v163, v4, s[24:27], 0 offen
        K1_nt2:
        """)
    a(f"""
    s_lshl_b32 s{sT1}, s{sW}, 12
    v_lshlrev_b32 v{vT+6}, 2, v{vT}
    v_xor_b32 v{vT+6}, v{vT+6}, v{vT+5}
    v_lshl_add_u32 v4, v{vT+6}, 4, v{vT+4}
    v_add_u32 v4, s{sT1}, v4
    v_xor_b32 v5, 16, v4
    v_xor_b32 v6, 32, v4
    v_xor_b32 v7, 48, v4
    v_xor_b32 v{vT+5}, v{vT+5}, v{vT}
    s_mul_i32 s{sT1}, s{sG}, {3*4096}
    v_add_u32 v{vT+4}, s{sT1}, v{vT+4}
    """)
    for i in range(4):
        a(f"v_xor_b32 v{vT+6}, {2*i}, v{vT+5}\nv_lshl_add_u32 v{vAx+i}, v{vT+6}, 4, v{vT+4}")
    a(f"""
    s_mov_b32 s{sI}, 1
    s_mov_b32 s{sDelta}, {SLOT}
    s_sub_u32 s{sT0}, s{sW}, 2
    s_cmp_lt_u32 s{sT0}, 4
    s_cselect_b32 s{sIdle}, 1, 0
    s_cmp_eq_u32 s{sCB}, 17
    s_cselect_b32 s{sIdle}, s{sIdle}, 0
    v_mov_b32 v9, {XN}
    """)
    for i in range(48): a(f"v_mov_b32 v{AC+i}, 0")
    a(f"""
    s_cmp_lg_u32 s{sIdle}, 0
    s_cbranch_scc1 K1_idle
    s_mul_i32 s{sT2}, s{sRB}, 10
    s_add_u32 s{sT2}, s{sT2}, s{sK0}
    s_mul_i32 s{sT2}, s{sT2}, 2560
    s_lshl_b32 s{sT1}, s{sW}, 9
    s_add_u32 s{sT2}, s{sT2}, s{sT1}
    s_add_u32 s{sT2}, s{sT2}, {WS_SR}
    s_mul_i32 s{sU}, s{sCB}, 10
    s_add_u32 s{sU}, s{sU}, s{sK0}
    s_lshl_b32 s{sU}, s{sU}, 10
    s_add_u32 s{sU}, s{sU}, {WS_SC}
    s_lshl_b32 s{sT1}, s{sR}, 8
    s_add_u32 s{sU}, s{sU}, s{sT1}
    s_xor_b32 s{sT3}, s{sU}, 512
    s_cmp_eq_u32 s{sCB}, 17
    s_cselect_b32 s{sT3}, s{sT3}, {WS_END}
    s_cmp_lt_u32 s{sCB}, 10
    s_cselect_b32 s{sT0}, 5, 0
    s_cmp_lt_u32 s{sW}, s{sT0}
    s_cselect_b32 s{sT2}, s{sT2}, {WS_END}
    s_cmp_lt_u32 s{sRB}, 10
    s_cselect_b32 s{sU}, s{sU}, {WS_END}
    s_cselect_b32 s{sT3}, s{sT3}, {WS_END}
    v_mov_b32 v160, 0
    v_mov_b32 v162, 0
    v_mov_b32 v20, 0
    s_barrier
    """)
    stamp(a, 1)
    a(f"""
    buffer_load_dword v161, v{vN+1}, {sr(DBG,4)}, 0 offen sc1
    s_cmp_eq_u32 s{sT2}, {WS_END}
    s_cbranch_scc1 K1_nr
    """)
    for i in range(4): a(f"ds_read_b128 {vr(144+4*i,4)}, v{4+i}")
    a(f"s_waitcnt lgkmcnt(0)")
    for i in range(16): a(f"v_dot2c_f32_bf16 v160, s{sOnes}, v{144+i}\nv_dot2c_f32_bf16 v162, v{144+i}, v{144+i}")
    a(f"""
    s_nop 2
    v_mov_b32 v5, v160
    v_mov_b32 v6, v162
    s_nop 1
    v_permlane32_swap_b32 v5, v160
    v_permlane32_swap_b32 v6, v162
    v_add_f32 v160, v160, v5
    v_add_f32 v162, v162, v6
    K1_nr:
    s_cmp_eq_u32 s{sG}, 0
    s_cbranch_scc1 K1_start3
    s_cmp_ge_u32 s{sRB}, 10
    s_cbranch_scc1 K1_start2
    """)
    for k in range(4):
        for q in range(2): a(f"ds_read_b64_tr_b16 {vr(144+4*k+2*q,2)}, v{vAw} offset:{2048*k+256*q}")
    a(f"s_waitcnt lgkmcnt(0)")
    for i in range(16): a(f"v_dot2c_f32_bf16 v20, s{sOnes}, v{144+i}")
    a(f"""
    s_nop 2
    v_mov_b32 v5, v20
    s_nop 1
    v_permlane32_swap_b32 v5, v20
    v_add_f32 v20, v20, v5
    """)
    def publish(T):
        a(f"""
        v_lshlrev_b32 v4, 4, v{vL}
        v_lshlrev_b32 v5, 3, v{vL}
        s_mov_b32 s{sT0}, 0
        K1_n{T}:
        s_waitcnt vmcnt(0)
        v_readfirstlane_b32 s{sT1}, v161
        s_add_u32 s{sT0}, s{sT0}, 1
        s_cmp_lg_u32 s{sT1}, 0
        s_cbranch_scc1 K1_n{T}x
        buffer_load_dword v161, v{vN+1}, {sr(DBG,4)}, 0 offen sc1
        s_cmp_lt_u32 s{sT0}, {SPINMAX}
        s_cbranch_scc1 K1_n{T}
        K1_n{T}x:
        v_mov_b32 v163, v161
        v_mov_b32 v21, v161
        s_mov_b32 exec_hi, 0
        buffer_store_dwordx4 {vr(160,4)}, v4, {sr(WS,4)}, s{sT2} offen sc1
        """)
        if T == 2: a(f"""
        buffer_store_dwordx2 {vr(20,2)}, v5, {sr(WS,4)}, s{sU} offen sc1
        buffer_store_dwordx2 {vr(20,2)}, v5, {sr(WS,4)}, s{sT3} offen sc1
        s_waitcnt lgkmcnt(0)
        ds_write_b32 v9, v161
        """)
        a("s_mov_b32 exec_hi, -1")
    KR = dict(fW=fW, fX=fX, AC=AC, vAx=vAx, vAw=vAw, sDelta=sDelta)
    vFl = vT + 7
    def cloop(T):
        first, ba, bb, tail = kbody.streamC(KR, T)
        a(f"K1_start{T}:")
        for l in first: a(l)
        publish(T)
        a(f"s_branch K1_mid{T}\nK1_comp{T}:\ns_barrier")
        if os.environ.get('BSTAMP'): a(f"s_cmp_lg_u32 s{sI}, {int(os.environ['BSTAMP'])+1}\ns_cbranch_scc1 K1_bs{T}\ns_memtime s[72:73]\nK1_bs{T}:")
        if 'bt' in OPT: a(f"s_memtime s[92:93]\ns_waitcnt lgkmcnt(0)\ns_sub_u32 s92, s92, s70\nv_mov_b32 v22, s92\nv_cmp_eq_u32 vcc, s{sI}, v0\ns_nop 1\nv_cndmask_b32 v23, v23, v22, vcc")
        for l in ba: a(l)
        a(f"K1_mid{T}:")
        for l in bb: a(l)
        a(f"""
        s_and_b32 s{sT0}, s{sI}, 3
        s_cmp_eq_u32 s{sT0}, 3
        s_mov_b32 s{sDelta}, {SLOT}
        s_cselect_b32 s{sDelta}, {(-3*SLOT) & 0xffffffff}, s{sDelta}
        s_add_u32 s{sI}, s{sI}, 1
        s_cmp_lg_u32 s{sI}, 11
        s_waitcnt lgkmcnt(0)
        s_cbranch_scc1 K1_comp{T}
        """)
        a("s_barrier")
        for l in tail: a(l)
    cloop(2)
    a(f"""
    s_branch K1_cdone
    K1_idle:
    s_barrier
    s_add_u32 s{sI}, s{sI}, 1
    s_cmp_lg_u32 s{sI}, 12
    s_cbranch_scc1 K1_idle
    s_branch K1_cdone
    """)
    cloop(3)
    a("K1_cdone:")
    stamp(a, 2)
    if 'bt' in OPT:
        a(f"""
        s_lshl_b32 s92, s2, 4
        s_add_u32 s92, s92, s{sW}
        s_lshl_b32 s92, s92, 6
        s_add_u32 s92, s92, {WS_PROF + 0x40000}
        v_lshlrev_b32 v22, 2, v0
        s_mov_b64 exec, 0xffff
        buffer_store_dword v23, v22, {sr(WS,4)}, s92 offen
        s_mov_b64 exec, -1
        """)
    ST, vCA, E, PK = 144, 20, 112, 128
    vMq, vNe = 24, 30
    a(f"""
    v_and_b32 v3, 31, v{vL}
    s_mul_i32 s{sT0}, s{sG}, {96*16}
    s_add_u32 s{sT0}, s{sT0}, {XB}
    v_lshl_add_u32 v4, v3, 4, s{sT0}
    s_lshl_b32 s{sT0}, s{sR}, 7
    s_add_u32 s{sT0}, s{sT0}, {XFC}
    v_lshl_add_u32 v5, v3, 2, s{sT0}
    v_lshlrev_b32 v1, 4, v{vL}
    v_mov_b32 v{vCA+1}, 0
    s_mul_i32 s{sRT}, s{sRB}, 5
    s_mul_i32 s{sT0}, s{sG}, 3
    s_add_u32 s{sRT}, s{sRT}, s{sT0}
    s_sub_u32 s{sU}, 3, s{sG}
    s_add_u32 s{sU}, s{sU}, s{sRT}
    s_min_u32 s{sU}, s{sU}, 64
    s_lshl_b32 s{sT0}, s{sCB}, 13
    s_lshl_b32 s{sT1}, s{sR}, 11
    s_add_u32 s{sMx}, s{sT0}, s{sT1}
    v_cmp_gt_u32 vcc, 32, v{vL}
    v_mov_b32 v6, {XN}
    """)
    a(f"""
    ds_read_b32 v6, v6
    ds_read_b32 v{vCA}, v5
    ds_read_b128 {vr(ST,4)}, v4
    ds_read_b128 {vr(ST+4,4)}, v4 offset:512
    ds_read_b128 {vr(ST+8,4)}, v4 offset:1024
    s_mov_b32 s{sI}, 0
    s_waitcnt lgkmcnt(3)
    v_cndmask_b32 v{vCA}, 0, v{vCA}, vcc
    v_readfirstlane_b32 s{sN}, v6
    s_sub_u32 s{sT0}, s{sCB}, 5
    s_cmp_lt_u32 s{sT0}, 12
    s_waitcnt lgkmcnt(0)
    v_mfma_f32_32x32x8_bf16 {vr(AC,16)}, {vr(vCA,2)}, {vr(ST,2)}, {vr(AC,16)}
    v_mfma_f32_32x32x8_bf16 {vr(AC+16,16)}, {vr(vCA,2)}, {vr(ST+4,2)}, {vr(AC+16,16)}
    v_mfma_f32_32x32x8_bf16 {vr(AC+32,16)}, {vr(vCA,2)}, {vr(ST+8,2)}, {vr(AC+32,16)}
    s_cbranch_scc0 K1_lin
    s_mul_i32 s{sT3}, s{sR}, 10240
    s_mul_i32 s{sT0}, s{sG}, 6144
    s_add_u32 s{sT3}, s{sT3}, s{sT0}
    s_add_u32 s{sT3}, s{sT3}, {HS}
    v_add_u32 v1, s{sT3}, v1
    s_nop 3
    K1_epiH:
    v_mul_f32 v{vNe}, {f32(-LOG2E)}, v{ST+3}
    """)
    for i in range(8): a(f"v_pk_mul_f32 {vr(E+2*i,2)}, {vr(AC+2*i,2)}, {vr(vNe,2)} op_sel_hi:[1,0]")
    for i in range(16): a(f"v_exp_f32 v{E+i}, v{E+i}")
    for i in range(8): a(f"v_pk_fma_f32 {vr(E+2*i,2)}, {vr(E+2*i,2)}, {vr(ST+2,2)}, {vr(ST+2,2)} op_sel_hi:[1,0,0]")
    for i in range(16): a(f"v_rcp_f32 v{E+i}, v{E+i}")
    for i in range(8): a(f"v_pk_mul_f32 {vr(E+2*i,2)}, {vr(E+2*i,2)}, {vr(AC+2*i,2)}")
    for i in range(8): a(f"v_cvt_pk_bf16_f32 v{PK+i}, v{E+2*i}, v{E+2*i+1}")
    a(f"""
    ds_write_b128 v1, {vr(PK,4)}
    ds_write_b128 v1, {vr(PK+4,4)} offset:1024
    v_add_u32 v1, 2048, v1
    s_add_u32 s{sRT}, s{sRT}, 1
    s_cmp_eq_u32 s{sRT}, s{sU}
    s_cbranch_scc1 {"K1_hd" if PROF else "K2_A"}
    s_add_u32 s{sI}, s{sI}, 1
    s_cmp_eq_u32 s{sI}, 2
    s_cbranch_scc1 K1_e2
    """)
    for i in range(8): a(f"v_pk_mov_b32 {vr(AC+2*i,2)}, {vr(AC+16+2*i,2)}, {vr(AC+16+2*i,2)} op_sel:[0,1]")
    a(f"v_pk_mov_b32 {vr(ST+2,2)}, {vr(ST+6,2)}, {vr(ST+6,2)} op_sel:[0,1]\ns_branch K1_epiH\nK1_e2:")
    for i in range(8): a(f"v_pk_mov_b32 {vr(AC+2*i,2)}, {vr(AC+32+2*i,2)}, {vr(AC+32+2*i,2)} op_sel:[0,1]")
    a(f"v_pk_mov_b32 {vr(ST+2,2)}, {vr(ST+10,2)}, {vr(ST+10,2)} op_sel:[0,1]\ns_branch K1_epiH")
    if PROF:
        a("K1_hd:"); stamp(a, 3); a("s_branch K2_A")
    PQ = 96
    a(f"""
    K1_lin:
    s_cmp_lg_u32 s{sIdle}, 0
    s_cbranch_scc1 K2_A
    s_cmp_eq_u32 s{sCB}, 17
    s_mov_b32 s{sK}, {f32(20 ** -0.5 * LOG2E)}
    s_cselect_b32 s{sK}, 1.0, s{sK}
    v_mul_f32 v{vMq}, s{sK}, v{ST+3}
    v_mul_f32 v{vMq+2}, s{sK}, v{ST+7}
    v_mul_f32 v{vMq+4}, s{sK}, v{ST+11}
    s_mul_i32 s{sT3}, s{sRT}, 40960
    s_add_u32 s{sT3}, s{sT3}, s{sMx}
    s_cmp_eq_u32 s{sCB}, 17
    s_cbranch_scc1 K1_kv
    """)
    for j in range(3):
        for i in range(16): a(f"v_mul_f32 v{AC+16*j+i}, v{AC+16*j+i}, v{vMq+2*j}")
        for i in range(8): a(f"v_cvt_pk_bf16_f32 v{PQ+8*j+i}, v{AC+16*j+2*i}, v{AC+16*j+2*i+1}")
        a(f"""
        buffer_store_dwordx4 {vr(PQ+8*j,4)}, v1, {sr(WS,4)}, s{sT3} offen sc1
        buffer_store_dwordx4 {vr(PQ+8*j+4,4)}, v1, {sr(WS,4)}, s{sT3} offen offset:1024 sc1
        """)
        if j < 2:
            a(f"""
            s_add_u32 s{sT3}, s{sT3}, 40960
            s_add_u32 s{sT0}, s{sRT}, {j+1}
            s_cmp_lt_u32 s{sT0}, s{sU}
            s_cselect_b32 s{sT3}, s{sT3}, {WS_END}
            """)
    a(f"""
    s_branch K1_done
    K1_kv:
    """)
    for j in range(3):
        for i in range(12): a(f"v_mul_f32 v{AC+16*j+i}, v{AC+16*j+i}, v{vMq+2*j}")
        for i in range(6): a(f"v_cvt_pk_bf16_f32 v{PQ+8*j+i}, v{AC+16*j+2*i}, v{AC+16*j+2*i+1}")
    a(f"""
    v_lshrrev_b32 v5, 5, v{vL}
    s_bitcmp1_b32 s{sR}, 0
    s_cbranch_scc1 K1_vst
    v_mul_u32_u24 v4, 5120, v5
    v_lshl_add_u32 v4, v3, 4, v4
    v_lshlrev_b32 v5, 4, v3
    """)
    def kvbase(j):
        a(f"""
        s_add_u32 s{sT2}, s{sRT}, {j}
        s_lshr_b32 s{sT0}, s{sT2}, 2
        s_mul_i32 s{sT0}, s{sT0}, 10240
        s_add_u32 s{sT0}, s{sT0}, {WS_KV}
        s_cmp_lt_u32 s{sT2}, s{sU}
        s_cselect_b32 s{sT0}, s{sT0}, {WS_END}
        s_and_b32 s{sT2}, s{sT2}, 3
        """)
    for j in range(3):
        kvbase(j)
        a(f"""
        s_lshl_b32 s{sT1}, s{sT2}, 9
        s_add_u32 s{sT1}, s{sT1}, s{sT0}
        buffer_store_dwordx4 {vr(PQ+8*j,4)}, v4, {sr(WS,4)}, s{sT1} offen sc1
        s_and_b32 s{sT1}, s{sT2}, 1
        s_mul_i32 s{sT1}, s{sT1}, 5120
        s_add_u32 s{sT0}, s{sT0}, s{sT1}
        s_lshr_b32 s{sT1}, s{sT2}, 1
        s_lshl_b32 s{sT1}, s{sT1}, 3
        s_add_u32 s{sT0}, s{sT0}, s{sT1}
        s_mov_b32 exec_lo, 0
        buffer_store_dwordx2 {vr(PQ+8*j+4,2)}, v5, {sr(WS,4)}, s{sT0} offen offset:2048 sc1
        s_mov_b32 exec_lo, -1
        """)
    a(f"""
    s_branch K1_done
    K1_vst:
    s_lshl_b32 s{sT3}, s{sG}, 12
    s_add_u32 s{sT3}, s{sT3}, {XQ+2048}
    v_bfe_u32 v4, v3, 2, 1
    v_mul_u32_u24 v4, 640, v4
    v_lshl_add_u32 v4, v5, 6, v4
    v_lshrrev_b32 v5, 4, v3
    v_mul_u32_u24 v5, 320, v5
    v_add_u32 v4, v4, v5
    v_bfe_u32 v5, v3, 3, 1
    v_lshl_add_u32 v4, v5, 3, v4
    v_and_b32 v5, 3, v3
    v_lshl_add_u32 v4, v5, 1, v4
    v_add_u32 v4, s{sT3}, v4
    v_add_u32 v5, s{sT3}, v1
    """)
    for jj in range(3):
        if jj == 2: a("s_mov_b32 exec_lo, 0")
        for j in range(3):
            o = 1280 * j + 128 * jj - (64 if jj == 2 else 0); p = PQ + 8 * j + 2 * jj
            a(f"""
            ds_write_b16 v4, v{p} offset:{o}
            ds_write_b16_d16_hi v4, v{p} offset:{o+16}
            ds_write_b16 v4, v{p+1} offset:{o+32}
            ds_write_b16_d16_hi v4, v{p+1} offset:{o+48}
            """)
        a("s_waitcnt lgkmcnt(0)")
    a("s_mov_b32 exec_lo, -1\ns_mov_b32 exec_hi, 0xff")
    for j in range(6): a(f"ds_read_b128 {vr(AC+4*j,4)}, v5 offset:{640*j}")
    for j in range(3):
        kvbase(j)
        a(f"""
        s_mul_i32 s{sT1}, s{sT2}, 640
        s_add_u32 s{sT0}, s{sT0}, s{sT1}
        s_add_u32 s{sT1}, s{sT0}, 5120
        s_waitcnt lgkmcnt({4-2*j})
        buffer_store_dwordx4 {vr(AC+8*j,4)}, v1, {sr(WS,4)}, s{sT0} offen offset:2560 sc1
        buffer_store_dwordx4 {vr(AC+8*j+4,4)}, v1, {sr(WS,4)}, s{sT1} offen offset:2560 sc1
        """)
    a("s_mov_b32 exec_hi, -1\ns_branch K1_done")
    sJ, sL, sPst = 34, 35, 36
    WP = 24; vPs = 2
    a(f"""
    K1_aux:
    v_bfe_u32 v{vT+4}, v{vL}, 2, 2
    v_bfe_u32 v{vT+5}, v{vL}, 4, 1
    v_lshl_add_u32 v{vT+4}, v{vT+4}, 1, v{vT+5}
    v_lshl_add_u32 v{vT+4}, v{vT+4}, 2, v{vT+1}
    v_lshlrev_b32 v{vCom}, 3, v{vT+4}
    s_lshl_b32 s{sT0}, s{sT0}, 1
    s_add_u32 s{sT0}, s{sT0}, s{sT1}
    s_sub_u32 s{sT0}, s{sT0}, 30
    s_sub_u32 s{sT2}, s{sT2}, {234-16}
    s_cmp_ge_u32 s{sT1}, 30
    s_cselect_b32 s{sT0}, s{sT0}, s{sT2}
    s_mul_i32 s{sJ}, s{sT0}, 12
    s_add_u32 s{sJ}, s{sJ}, s{sW}
    s_mul_i32 s{sL}, s{sW}, 12288
    v_lshl_add_u32 v{vT+3}, v{vT}, 6, v{vT+3}
    v_lshrrev_b32 v{vT+6}, 2, v{vT+2}
    v_and_b32 v{vT+7}, 3, v{vT+2}
    s_mov_b32 m0, s{sL}
    s_mov_b32 s{WP+3}, 0x00020000
    s_mov_b32 s{sI}, s{sJ}
    s_waitcnt lgkmcnt(0)
    s_mov_b32 s{WS}, s6
    s_mov_b32 s{WS+1}, s7
    s_mov_b32 s{DBG}, s4
    s_mov_b32 s{DBG+1}, s5
    s_mov_b32 s{DBG+2}, 256
    s_mov_b32 s{DBG+3}, 0x00020000
    s_lshl_b32 s{sU}, s{sT0}, 7
    s_add_u32 s{sU}, s{sU}, {WS_F1 + 72*4096}
    s_mov_b64 s[58:59], 1
    K1_a0:
    """)
    def getnonce(lab):
        a(f"""
        v_mov_b32 v5, 0
        s_mov_b32 s{sT3}, 0
        {lab}:
        buffer_load_dword v4, v5, {sr(DBG,4)}, 0 offen sc1
        s_add_u32 s{sT3}, s{sT3}, 1
        s_waitcnt vmcnt(0)
        v_readfirstlane_b32 s{sN}, v4
        s_cmp_gt_u32 s{sT3}, {SPINMAX}
        s_cbranch_scc1 {lab}x
        s_cmp_lg_u32 s{sN}, 0
        s_cbranch_scc1 {lab}x
        s_sleep 8
        s_branch {lab}
        {lab}x:
        """)
    if 'adelay' in OPT:
        a(f"s_cmp_lg_u32 s{sW}, 0\ns_cbranch_scc1 K1_a5")
        getnonce("K1_a7")
        a(f"""
        s_mul_i32 s{sT0}, s{sJ}, 640
        s_add_u32 s{sT0}, s{sT0}, {WS_SC + 4}
        v_mov_b32 v4, s{sT0}
        """)
        poll(a, "K1_a6", 4, 5, WS, sT3)
        a("K1_a5:\ns_barrier")
    a(f"""
    K1_a1:
    s_mul_i32 s{sT0}, s{sI}, 6554
    s_lshr_b32 s{sT0}, s{sT0}, 16
    s_mul_i32 s{sT1}, s{sT0}, 10
    s_sub_u32 s{sT1}, s{sI}, s{sT1}
    s_lshl_b32 s{sT1}, s{sT1}, 7
    s_sub_u32 s{sT2}, s{sT0}, 96
    s_mul_i32 s{sT3}, s{sT2}, 205
    s_lshr_b32 s{sT3}, s{sT3}, 10
    s_mul_i32 s55, s{sT3}, 5
    s_sub_u32 s55, s{sT2}, s55
    s_mul_i32 s{sT3}, s{sT3}, 80
    s_mul_i32 s56, s55, 20
    s_cmp_eq_u32 s55, 4
    s_cselect_b32 s56, 16, s56
    s_cselect_b32 s55, 1, 0
    s_add_u32 s{sT3}, s{sT3}, s56
    s_lshl_b32 s{sT2}, s{sT0}, 4
    s_cmp_lt_u32 s{sT0}, 96
    s_cselect_b32 s{sT3}, s{sT2}, s{sT3}
    s_cselect_b32 s55, 0, s55
    s_cselect_b32 s{WP}, s62, s16
    s_cselect_b32 s{WP+1}, s63, s17
    s_mov_b32 s{WP+2}, {640*1280}
    s_cselect_b32 s{WP+2}, {1536*1280}, s{WP+2}
    s_mul_i32 s{sT3}, s{sT3}, 1280
    s_add_u32 s56, s{sT3}, s{sT1}
    s_cmp_eq_u32 s55, 0
    s_cselect_b32 s{sT2}, 4, 40
    s_movk_i32 s57, {20*1280}
    s_cselect_b32 s57, {8*1280}, s57
    s_add_u32 s57, s57, s56
    v_mad_u32_u24 v{vPs}, v{vT+6}, s{sT2}, v{vT+7}
    v_mul_u32_u24 v{vPs}, 1280, v{vPs}
    v_add_u32 v{vPs}, v{vPs}, v{vT+3}
    buffer_load_dwordx4 v{vPs}, {sr(WP,4)}, s56 offen lds
    s_add_u32 m0, m0, 1024
    s_add_u32 s{sI}, s{sI}, 264
    buffer_load_dwordx4 v{vPs}, {sr(WP,4)}, s57 offen lds
    s_add_u32 m0, m0, 1024
    s_cmp_lt_u32 s{sI}, 1360
    s_cbranch_scc1 K1_a1
    v_lshl_add_u32 v4, v{vT}, 8, v{vCom}
    v_add_u32 v4, s{sL}, v4
    v_and_b32 v5, 15, v{vL}
    v_lshlrev_b32 v5, 4, v5
    v_lshl_add_u32 v5, v{vT}, 8, v5
    v_lshl_add_u32 v5, v{vT+5}, 9, v5
    s_lshl_b32 s{sPst}, s{sJ}, 11
    s_add_u32 s{sPst}, s{sPst}, {WS_WP}
    s_waitcnt vmcnt(0)
    K1_a2:
    ds_read_b64_tr_b16 {vr(32,2)}, v4
    ds_read_b64_tr_b16 {vr(34,2)}, v4 offset:1024
    ds_read_b64_tr_b16 {vr(36,2)}, v4 offset:512
    ds_read_b64_tr_b16 {vr(38,2)}, v4 offset:1536
    v_add_u32 v4, 2048, v4
    s_add_u32 s{sJ}, s{sJ}, 264
    s_waitcnt lgkmcnt(0)
    buffer_store_dwordx4 {vr(32,4)}, v5, {sr(WS,4)}, s{sPst} offen sc1
    buffer_store_dwordx4 {vr(36,4)}, v5, {sr(WS,4)}, s{sPst} offen offset:1024 sc1
    s_add_u32 s{sPst}, s{sPst}, {264*2048}
    s_cmp_lt_u32 s{sJ}, 1360
    s_cbranch_scc1 K1_a2
    """)
    getnonce("K1_a3")
    a(f"""
    s_mov_b32 s62, 0
    s_barrier
    s_cmp_ge_u32 s{sW}, 8
    s_cbranch_scc1 K2_G
    s_cmp_lg_u32 s{sW}, 0
    s_cbranch_scc1 K2_A
    s_branch K1_flag
    K1_done:
    s_lshl_b32 s{sU}, s{sCB}, 2
    s_add_u32 s{sU}, s{sU}, s{sR}
    s_lshl_b32 s{sU}, s{sU}, 5
    s_lshl_b32 s{sT0}, s{sRB}, 1
    s_add_u32 s{sU}, s{sU}, s{sT0}
    s_add_u32 s{sU}, s{sU}, s{sG}
    s_lshl_b32 s{sU}, s{sU}, 7
    s_add_u32 s{sU}, s{sU}, {WS_F1}
    s_mov_b64 s[58:59], 1
    s_cmp_lg_u32 s{sCB}, 17
    s_cbranch_scc1 K1_flag
    v_mov_b32 v4, 1
    v_mov_b32 v5, 0
    {"s_memtime s[72:73]" if PROF and 'kvs' in OPT else ""}
    s_mov_b64 exec, 1
    s_waitcnt vmcnt(0)
    {"s_memtime s[76:77]" if PROF and 'kvs' in OPT else ""}
    buffer_atomic_add v4, v5, {sr(DBG,4)}, 0 offen offset:128 sc0
    s_mov_b32 s{sU}, {WS_FK}
    s_mov_b64 s[58:59], -1
    s_waitcnt vmcnt(0)
    {"s_memtime s[90:91]" if PROF and 'kvs' in OPT else ""}
    v_readfirstlane_b32 s{sT0}, v4
    s_mov_b64 exec, -1
    s_mul_hi_u32 s{sT1}, s{sT0}, {(1 << 32) // 52 + 1}
    s_mul_i32 s{sT1}, s{sT1}, 52
    s_sub_u32 s{sT0}, s{sT0}, s{sT1}
    s_cmp_lg_u32 s{sT0}, 51
    s_cbranch_scc1 K2_A
    """)
    'kvs' in OPT or stamp(a, 3)
    setflag(a, sU, WS, 4, 5, '-1')
    a("s_branch K2_A\nK1_flag:")
    stamp(a, 3)
    a(f"s_mov_b32 s64, s{sU}\ns_branch K2_A2")

def tile_ids(a, sRB, sNB, sT0):
    if 'map84' not in OPT:
        a(f"""
        s_and_b32 s{sT0}, s2, 7
        s_lshl_b32 s{sRB}, s{sT0}, 2
        s_bfe_u32 s{sT0}, s2, 0x20003
        s_add_u32 s{sRB}, s{sRB}, s{sT0}
        s_lshr_b32 s{sNB}, s2, 5
        """)
        return
    a(f"""
    s_and_b32 s{sT0}, s2, 3
    s_lshl_b32 s{sRB}, s{sT0}, 3
    s_bfe_u32 s{sT0}, s2, 0x30003
    s_add_u32 s{sRB}, s{sRB}, s{sT0}
    s_bfe_u32 s{sT0}, s2, 0x10002
    s_lshl_b32 s{sNB}, s{sT0}, 2
    s_lshr_b32 s{sT0}, s2, 6
    s_add_u32 s{sNB}, s{sNB}, s{sT0}
    """)
def wlane(a, vL, vW, vW2, t):
    a(f"""
    v_and_b32 v{vW2}, 15, v{vL}
    v_lshlrev_b32 v{vW2}, 4, v{vW2}
    v_lshrrev_b32 v{t}, 5, v{vL}
    v_lshl_add_u32 v{vW2}, v{t}, 8, v{vW2}
    v_bfe_u32 v{t}, v{vL}, 4, 1
    v_lshl_add_u32 v{vW}, v{t}, 9, v{vW2}
    {"" if 'nozp' in OPT else f"v_lshl_add_u32 v{vW2}, v{t}, 30, v{vW2}"}
    """)

def gen_k2(a):
    sW, sR, sG, sRB, sCB, sHD, sRT = 32, 33, 34, 35, 36, 37, 38
    sI, sT0, sT1, sT2, sSrc, sVm, sSeg, sT3 = 39, 40, 41, 42, 43, 44, 52, 53
    WS, X, OUT = 28, 20, 24
    vL, vA, vD = 0, 1, 2
    QM, QT, KM, KT, V, P, O, S = 4, 8, 12, 20, 24, 40, 56, 72
    R = dict(vA=vA, QM=QM, QT=QT, KM=KM, KT=KT, V=V, P=P, O=O, S=S)
    def aids():
        a(f"""
        s_and_b32 s{sT0}, s2, 3
        s_lshl_b32 s{sRB}, s{sT0}, 2
        s_bfe_u32 s{sT0}, s2, 0x20003
        s_add_u32 s{sRB}, s{sRB}, s{sT0}
        s_bfe_u32 s{sT0}, s2, 0x10002
        s_lshl_b32 s{sCB}, s{sT0}, 3
        s_lshr_b32 s{sT0}, s2, 5
        s_add_u32 s{sCB}, s{sCB}, s{sT0}
        s_and_b32 s{sR}, s{sW}, 3
        s_lshl_b32 s{sRT}, s{sRB}, 2
        s_add_u32 s{sRT}, s{sRT}, s{sR}
        v_lshlrev_b32 v{vD}, 4, v{vL}
        """)
    a(f"K2_A:\ns_mov_b32 s64, {WS_END}\ns_mov_b64 s[58:59], 1\nK2_A2:"); aids()
    a(f"""
    s_lshr_b32 s{sG}, s{sW}, 2
    s_lshl_b32 s{sHD}, s{sCB}, 1
    s_and_b32 s{sT1}, s{sHD}, 2
    s_add_u32 s{sHD}, s{sHD}, s{sG}
    s_mul_i32 s{sT2}, s{sG}, 5
    s_add_u32 s{sT1}, s{sT1}, s{sT2}
    s_mul_i32 s{sT2}, s{sR}, 3072
    s_add_u32 s{sT2}, s{sT2}, {XQ}
    v_and_b32 v{vA}, 31, v{vL}
    v_lshlrev_b32 v{vA}, 4, v{vA}
    v_lshrrev_b32 v3, 5, v{vL}
    v_add_u32 v{P}, s{sT1}, v3
    v_add_u32 v{P+1}, 2, v{P}
    s_add_u32 s{sT1}, s{sT1}, 4
    v_mov_b32 v{P+2}, s{sT1}
    v_add_u32 v{P+3}, s{sT2}, v{vA}
    """)
    for i in range(3):
        a(f"""
        v_lshrrev_b32 v{P+4}, 2, v{P+i}
        v_lshl_add_u32 v{P+5}, v{P+4}, 10, v{P+3}
        v_and_b32 v{P+4}, 1, v{P+i}
        v_lshl_add_u32 v{P+5}, v{P+4}, 9, v{P+5}
        v_and_b32 v{P+4}, 2, v{P+i}
        v_lshl_add_u32 v{P+i}, v{P+4}, 2, v{P+5}
        """)
    a(f"""
    s_mov_b32 s{sVm}, 0x000fffff
    s_mov_b32 s{sVm+1}, 0x000fffff
    v_mul_u32_u24 v3, 5120, v3
    v_add_u32 v{vA}, v{vA}, v3
    v_and_b32 v3, 27, v{vL}
    v_cmp_eq_u32 vcc, 24, v3
    v_mov_b32 v3, 0x3f803f80
    """)
    for i in range(16): a(f"v_mov_b32 v{O+i}, 0")
    for i in range(16): a(f"v_cndmask_b32 v{V+i}, 0, v3, vcc")
    for i in range(4): a(f"v_mov_b32 v{P+12+i}, 0")
    segw = sum(n << (4 * i) for i, n in enumerate(SEGS))
    a(f"""
    s_mov_b32 s{sSeg}, {segw >> 4}
    s_mov_b32 s{sI}, {SEGS[0]}
    """)
    a(f"""
    s_lshr_b32 s54, s{sHD}, 2
    s_mul_i32 s54, s54, 5
    s_mul_i32 s55, s{sRT}, 40
    s_add_u32 s54, s54, s55
    s_lshl_b32 s54, s54, 10
    s_add_u32 s54, s54, {WS_O}
    s_and_b32 s55, s{sHD}, 3
    s_lshl_b32 s55, s55, 10
    s_add_u32 s55, s55, s54
    s_bfe_u32 s{sT2}, s{sHD}, 0x10001
    s_lshl_b32 s{sT2}, s{sT2}, 9
    s_add_u32 s54, s54, s{sT2}
    s_and_b32 s{sT2}, s{sHD}, 1
    s_lshl_b32 s{sT2}, s{sT2}, 3
    s_add_u32 s54, s54, s{sT2}
    s_add_u32 s54, s54, 4096
    s_lshl_b32 s56, s{sRT}, 5
    s_add_u32 s56, s56, s{sHD}
    s_lshl_b32 s56, s56, 7
    s_add_u32 s56, s56, {WS_F3}
    v_mov_b32 v{S}, -1
    v_mov_b32 v{S+1}, -1
    v_mov_b32 v{S+2}, -1
    v_mov_b32 v{S+3}, -1
    """)
    setflag(a, 64, WS, 10, 11, 's[58:59]')
    if 'st1' in OPT: stamp(a, 1)
    a("s_waitcnt lgkmcnt(0)\ns_barrier"); stamp(a, 4); a(f"""
    buffer_store_dwordx4 {vr(S,4)}, v{vD}, {sr(WS,4)}, s55 offen sc1
    s_mov_b32 exec_hi, 0
    buffer_store_dwordx2 {vr(S,2)}, v{vD}, {sr(WS,4)}, s54 offen sc1
    {"s_mov_b32 exec_lo, 0xff" if 'pret' in OPT else ""}
    {f"buffer_store_dwordx4 {vr(O,4)}, v{vD}, {sr(WS,4)}, s56 offen sc1" if 'pret' in OPT else ""}
    s_mov_b64 exec, -1
    ds_read_b64 {vr(QT,2)}, v{P+2}
    ds_read_b128 {vr(KT,4)}, v{vA} offset:2048
    ds_read_b64 {vr(QM,2)}, v{P}
    ds_read_b64 {vr(QM+2,2)}, v{P+1}
    ds_read_b128 {vr(KM,4)}, v{vA} offset:0
    ds_read_b128 {vr(KM+4,4)}, v{vA} offset:512
    s_waitcnt lgkmcnt({0 if PROF else 4})
    v_mfma_f32_32x32x4_2b_bf16 {vr(S,32)}, {vr(KT,2)}, {vr(QT,2)}, 0
    s_waitcnt lgkmcnt(0)
    s_nop 15
    s_nop 2
    {MF(vr(S,16), vr(KM,4), vr(QM,4), vr(S,16))}
    {MF(vr(S+16,16), vr(KM+4,4), vr(QM,4), vr(S+16,16))}
    ds_read_b128 {vr(KM,4)}, v{vA} offset:1024
    ds_read_b128 {vr(KM+4,4)}, v{vA} offset:1536
    s_mov_b64 exec, {sr(sVm,2)}
    ds_read_b128 {vr(V,4)}, v{vA} offset:2560
    ds_read_b128 {vr(V+4,4)}, v{vA} offset:2880
    s_mov_b64 exec, -1
    s_nop 7
    .p2align 6
    K2_loop:
    """)
    for l in abody.body(R, 0, (3, 2, 1), sVm): a(l)
    a(f"""
    v_add_u32 v{vA}, 10240, v{vA}
    s_sub_u32 s{sI}, s{sI}, 1
    s_cmp_lg_u32 s{sI}, 0
    s_cbranch_scc1 K2_loop
    s_and_b32 s{sI}, s{sSeg}, 15
    s_cbranch_scc0 K2_exit
    s_lshr_b32 s{sSeg}, s{sSeg}, 4
    s_barrier
    s_branch K2_loop
    K2_exit:
    """); stamp(a, 5); a(f"""
    {MF(vr(O,16), vr(V+12,4), vr(P+12,4), vr(O,16))}
    s_mov_b32 s46, {f32(2.0**-64)}
    s_mov_b32 s47, {f32(2.0**64)}
    s_nop 9
    v_cmp_nle_f32 vcc, s46, v{O+12}
    v_cmp_nge_f32 s[46:47], s47, v{O+12}
    s_waitcnt lgkmcnt(0)
    s_or_b64 vcc, vcc, s[46:47]
    s_cbranch_scc1 K2_slow
    K2_fin:
    v_rcp_f32 v{P}, v{O+12}
    v_mov_b32 v4, s{sN}
    v_lshlrev_b32 v5, 2, v{vL}
    s_waitcnt vmcnt(0)
    """)
    for i in range(12): a(f"v_mul_f32 v{O+i}, v{O+i}, v{P}")
    for i in range(6): a(f"v_cvt_pk_bf16_f32 v{S+i}, v{O+2*i}, v{O+2*i+1}")
    a(f"""
    buffer_store_dwordx4 {vr(S,4)}, v{vD}, {sr(WS,4)}, s55 offen sc1
    s_mov_b32 exec_hi, 0
    buffer_store_dwordx2 {vr(S+4,2)}, v{vD}, {sr(WS,4)}, s54 offen sc1
    {"" if 'fline' in OPT else "s_mov_b64 exec, 1"}
    buffer_store_dword v4, v5, {sr(WS,4)}, s56 offen sc1
    s_mov_b64 exec, -1
    """)
    if 'p3' in OPT: stamp(a, 1)
    if 'p3' in OPT: stamp(a, 2)
    a("s_barrier")
    if 'p3' in OPT: stamp(a, 3)
    sKQ, sRB2, sNB, sH0, sH1, sWp = 33, 35, 36, 46, 47, 48
    XR = 104; RR = 108
    def fin_prep():
        tile_ids(a, sRB2, sNB, sT0)
        srd(a, X, 8, 2048*1280); srd(a, OUT, 18, 2048*1280)
        a(f"""
        s_lshl_b32 s{sT0}, s{sW}, 6
        v_add_u32 v4, s{sT0}, v{vL}
        v_mul_u32_u24 v5, 6554, v4
        v_lshrrev_b32 v5, 16, v5
        v_mul_u32_u24 v5, {1280-160}, v5
        v_lshlrev_b32 v4, 4, v4
        v_add_u32 v5, v5, v4
        s_mul_i32 s{sT3}, s{sRB2}, {64*1280}
        s_mul_i32 s{sT1}, s{sNB}, 160
        s_add_u32 s{sT3}, s{sT3}, s{sT1}
        v_add_u32 v6, 51200, v4
        buffer_load_dwordx4 {vr(XR,4)}, v5, {sr(X,4)}, s{sT3} offen
        """)
    fin_prep()
    a("K3_bar:\ns_barrier")
    if 'p3' in OPT: stamp(a, 4); a("s_waitcnt lgkmcnt(0)")
    for p in range(4):
        for h in range(2): a(f"ds_read_b128 {vr(RR+8*p+4*h,4)}, v{4 if p < 2 else 6} offset:{(p%2)*25600 + h*10240}")
    a("s_waitcnt vmcnt(0)")
    for i in range(4): a(f"v_lshlrev_b32 v{8+2*i}, 16, v{XR+i}\nv_and_b32 v{9+2*i}, 0xffff0000, v{XR+i}")
    for p in range(4):
        a(f"s_waitcnt lgkmcnt({6-2*p})")
        for i in range(4): a(f"v_pk_add_f32 {vr(8+2*i,2)}, {vr(8+2*i,2)}, {vr(RR+8*p+2*i,2)}")
    for i in range(4): a(f"v_cvt_pk_bf16_f32 v{XR+i}, v{8+2*i}, v{9+2*i}")
    a(f"buffer_store_dwordx4 {vr(XR,4)}, v5, {sr(OUT,4)}, s{sT3} offen {os.environ.get('OUTF', '')}\nK_pe:")
    prof_end(a, 0, WS, sW)
    a("K_end:\ns_endpgm")
    vW, vW2 = 1, 3
    ACC, FR = 8, 104
    a("K2_G:"); aids()
    def fill(n, lab):
        a(f"""
        s_mov_b32 s{sI}, {n}
        {lab}:
        buffer_load_dwordx4 v{vD}, {sr(WS,4)}, s{sSrc} offen sc1 lds
        s_add_u32 s{sSrc}, s{sSrc}, 4096
        s_add_u32 m0, m0, 4096
        s_sub_u32 s{sI}, s{sI}, 1
        s_cmp_lg_u32 s{sI}, 0
        s_cbranch_scc1 {lab}
        """)
    rowidx(a, sT1, sRT, sT0)
    a(f"""
    s_lshl_b32 s{sT0}, s{sR}, 10
    s_add_u32 s{sSrc}, s{sT0}, {WS_KV}
    s_mov_b32 m0, s{sT0}
    s_mul_i32 s{sT2}, s{sCB}, 10
    s_lshr_b32 s{sT2}, s{sT2}, 2
    v_and_b32 v4, 2, v{vL}
    v_add_u32 v4, s{sT2}, v4
    v_lshrrev_b32 v4, 1, v4
    v_lshl_add_u32 v4, v4, 5, s{sT1}
    v_lshlrev_b32 v4, 7, v4
    v_add_u32 v4, {WS_F1}, v4
    s_and_b32 s{sT0}, s2, 63
    s_lshl_b32 s{sT0}, s{sT0}, 8
    s_add_u32 s{sT0}, s{sT0}, {WS_FK}
    v_writelane_b32 v4, s{sT0}, 0
    s_mul_i32 s54, s{sRT}, 40
    s_add_u32 s54, s54, s{sT2}
    s_lshl_b32 s54, s54, 10
    s_mov_b32 s{sT3}, 0
    s_mov_b32 s{sSeg}, 1
    buffer_load_dword v5, v4, {sr(WS,4)}, 0 offen sc1
    """)
    for i in range(96): a(f"v_mov_b32 v{ACC+i}, 0")
    tile_ids(a, sRB2, sNB, sT0)
    wlane(a, vL, vW, vW2, 6)
    a(f"""
    K2_p1:
    s_waitcnt vmcnt(0)
    v_cmp_ne_u32 vcc, s{sN}, v5
    s_add_u32 s{sT3}, s{sT3}, 1
    s_cmp_ge_u32 s{sT3}, {SPINMAX}
    s_cselect_b64 vcc, 0, vcc
    s_andn2_b32 s{sT0}, s{sSeg}, vcc_lo
    s_cbranch_scc0 K2_p1b
    s_mov_b32 s{sSeg}, 0
    """)
    stamp(a, 2)
    fill(NF1, "K2_f1")
    a(f"""
    K2_p1b:
    s_cmp_eq_u64 vcc, 0
    s_cbranch_scc1 K2_p1x
    s_sleep {SLP}
    buffer_load_dword v5, v4, {sr(WS,4)}, 0 offen sc1
    s_branch K2_p1
    K2_p1x:
    s_mov_b32 s{sSeg}, m0
    s_mul_i32 s{sT1}, s{sR}, 3072
    s_add_u32 m0, s{sT1}, {XQ}
    s_nop 0
    """)
    for i in range(3): a(f"buffer_load_dwordx4 v{vD}, {sr(WS,4)}, s54 offen offset:{1024*i} sc1 lds")
    a(f"""
    s_mov_b32 m0, s{sSeg}
    s_setprio 3
    s_waitcnt vmcnt(0)
    s_barrier
    """); stamp(a, 3)
    a(f"""
    s_mul_i32 s{sT0}, s{sR}, 10240
    s_add_u32 s{sT0}, s{sT0}, {HS}
    v_add_u32 v4, s{sT0}, v{vD}
    """)
    for i in range(10): a(f"ds_read_b128 {vr(FR+4*i,4)}, v4 offset:{1024*i}")
    fill(10, "K2_f2")
    a(f"""
    s_waitcnt vmcnt(0) lgkmcnt(0)
    s_barrier
    s_cmp_eq_u32 s62, 0
    s_cbranch_scc1 K2_nh
    """)
    for j in range(5):
        if j == 4: a(f"s_cmp_lt_u32 s62, {WS_H + 64*96*1024}\ns_cselect_b32 s62, s62, {WS_END}")
        a(f"""
        buffer_store_dwordx4 {vr(FR+8*j,4)}, v{vD}, {sr(WS,4)}, s62 offen sc1
        buffer_store_dwordx4 {vr(FR+8*j+4,4)}, v{vD}, {sr(WS,4)}, s62 offen offset:1024 sc1
        s_add_u32 s62, s62, {96*1024}
        """)
    a("K2_nh:")
    fill(25, "K2_f3")
    a(f"""
    s_cmp_eq_u32 s62, 0
    s_cselect_b32 s63, {WS_END}, s63
    v_mov_b32 v4, s{sN}
    v_mov_b32 v5, 0
    s_mov_b64 exec, 1
    s_waitcnt vmcnt(25)
    buffer_store_dword v4, v5, {sr(WS,4)}, s63 offen sc1
    s_mov_b64 exec, -1
    s_waitcnt vmcnt(1)
    s_barrier
    """)
    a(f"s_lshl_b32 s{sT2}, s{sRB2}, 1")
    rowidx(a, sH0, sT2, sT0)
    a(f"s_add_u32 s{sT2}, s{sT2}, 1")
    rowidx(a, sH1, sT2, sT0)
    a(f"""
    v_and_b32 v4, 1, v{vL}
    v_cmp_eq_u32 vcc, 0, v4
    v_mov_b32 v4, s{sH0}
    v_mov_b32 v5, s{sH1}
    v_cndmask_b32 v4, v5, v4, vcc
    v_and_b32 v4, 30, v4
    v_lshrrev_b32 v5, 1, v{vL}
    v_min_u32 v5, 11, v5
    s_mul_i32 s{sT0}, s{sKQ}, 12
    s_add_u32 s{sT0}, s{sT0}, 20
    v_add_u32 v5, s{sT0}, v5
    v_lshl_add_u32 v4, v5, 5, v4
    v_cmp_gt_u32 vcc, 32, v{vL}
    v_min_u32 v5, 53, v{vL}
    v_add_u32 v5, {72*32 - 32}, v5
    v_cndmask_b32 v4, v5, v4, vcc
    v_lshlrev_b32 v4, 7, v4
    v_add_u32 v4, {WS_F1}, v4
    s_mul_i32 s{sH0}, s{sRB2}, 192
    s_mul_i32 s{sT0}, s{sKQ}, 24
    s_add_u32 s{sH0}, s{sH0}, s{sT0}
    s_lshl_b32 s{sH0}, s{sH0}, 10
    s_add_u32 s{sH0}, s{sH0}, {WS_H}
    s_add_u32 s{sH1}, s{sH0}, {96*1024}
    s_mul_i32 s{sWp}, s{sT0}, 20480
    s_mul_i32 s{sT0}, s{sNB}, 2560
    s_add_u32 s{sWp}, s{sWp}, s{sT0}
    s_add_u32 s{sWp}, s{sWp}, {WS_WP}
    """)
    if 'st3' in OPT: stamp(a, 2)
    poll(a, "K2_p3", 4, 5, WS, sT3)
    stamp(a, 1)
    def gload(j):
        b = FR + 20 * j
        a(f"""
        buffer_load_dwordx4 {vr(b,4)}, v{vD}, {sr(WS,4)}, s{sH0} offen offset:{1024*j} sc1
        buffer_load_dwordx4 {vr(b+4,4)}, v{vD}, {sr(WS,4)}, s{sH1} offen offset:{1024*j} sc1
        buffer_load_dwordx4 {vr(b+8,4)}, v{vW}, {sr(WS,4)}, s{sWp} offen sc1
        buffer_load_dwordx4 {vr(b+12,4)}, v{vW}, {sr(WS,4)}, s{sWp} offen offset:1024 sc1
        buffer_load_dwordx4 {vr(b+16,4)}, v{vW2}, {sr(WS,4)}, s{sWp} offen offset:2048 sc1
        s_add_u32 s{sWp}, s{sWp}, 20480
        """)
    for j in range(3): gload(j)
    a(f"""
    s_lshl_b32 s{sT0}, s{sRB2}, 3
    s_add_u32 s{sT0}, s{sT0}, s{sKQ}
    s_lshl_b32 s{sT0}, s{sT0}, 10
    s_add_u32 s{sT0}, s{sT0}, {WS_F3}
    v_and_b32 v7, 39, v{vL}
    v_lshl_add_u32 v7, v7, 7, s{sT0}
    s_setprio {GPRIO}
    s_mov_b32 s{sI}, {8 - DEF}
    s_mov_b32 s{sSeg}, 0
    K2_Gl:
    s_add_u32 s{sH0}, s{sH0}, 3072
    s_add_u32 s{sH1}, s{sH1}, 3072
    """)
    def mm6(aw, bo):
        for t in range(3):
            for r in range(2):
                a(MF(vr(ACC+48*r+16*t,16), vr(aw+4*t,4), vr(bo+4*r,4), vr(ACC+48*r+16*t,16)))
    for j in range(3):
        b = FR + 20 * j
        a("s_waitcnt vmcnt(10)")
        mm6(b + 8, b)
        gload(j)
    a(f"""
    s_sub_u32 s{sI}, s{sI}, 1
    s_cmp_lg_u32 s{sI}, 0
    s_cbranch_scc1 K2_Gl
    s_cmp_lg_u32 s{sSeg}, 0
    s_cbranch_scc1 K2_Gt
    """); 'st2' in OPT or stamp(a, 4)
    sWo, sO0, sO1 = 54, 55, 56
    OA = 88
    def oaddr(j):
        a(f"""
        s_add_u32 s{OA+2*(j%4)}, s{sO0}, s49
        s_add_u32 s{OA+2*(j%4)+1}, s{sO1}, s49
        s_add_u32 s49, s49, 1024
        s_cmp_eq_u32 s49, 10240
        s_cselect_b32 s49, 0, s49
        """)
    a(f"""
    s_setprio 3
    s_mul_i32 s{sT2}, s{sKQ}, 25600
    s_mul_i32 s{sWo}, s{sKQ}, {10*20480}
    s_mul_i32 s{sT0}, s{sNB}, 2560
    s_add_u32 s{sWo}, s{sWo}, s{sT0}
    s_add_u32 s{sWo}, s{sWo}, {WS_WP + 96*20480}
    s_mov_b32 m0, s{sT2}
    v_add_u32 v4, s{sT2}, v{vW}
    v_add_u32 v6, s{sT2}, v{vW2}
    s_mul_i32 s{sO0}, s{sRB2}, 80
    s_mul_i32 s{sT0}, s{sKQ}, 10
    s_add_u32 s{sO0}, s{sO0}, s{sT0}
    s_lshl_b32 s{sO0}, s{sO0}, 10
    s_add_u32 s{sO0}, s{sO0}, {WS_O}
    s_add_u32 s{sO1}, s{sO0}, 40960
    s_mul_i32 s49, s{sNB}, {ROT3}
    s_lshr_b32 s49, s49, 2
    s_mul_i32 s{sT0}, s49, 20480
    s_add_u32 s50, s{sWo}, {10*20480}
    s_add_u32 s{sWo}, s{sWo}, s{sT0}
    s_lshl_b32 s49, s49, 10
    s_mov_b32 s{sI}, 10
    s_barrier
    K2_f4:
    buffer_load_dwordx4 v{vD}, {sr(WS,4)}, s{sWo} offen sc1 lds
    buffer_load_dwordx4 v{vD}, {sr(WS,4)}, s{sWo} offen offset:1024 sc1 lds
    s_mov_b32 exec_hi, 0
    buffer_load_dwordx4 v{vD}, {sr(WS,4)}, s{sWo} offen offset:2048 sc1 lds
    s_mov_b32 exec_hi, -1
    s_add_u32 s{sWo}, s{sWo}, 20480
    s_cmp_eq_u32 s{sWo}, s50
    s_cselect_b32 s{sT0}, {10*20480}, 0
    s_sub_u32 s{sWo}, s{sWo}, s{sT0}
    s_add_u32 m0, m0, 2560
    s_sub_u32 s{sI}, s{sI}, 1
    s_cmp_lg_u32 s{sI}, 0
    s_cbranch_scc1 K2_f4
    """)
    FO, FW = 104, 140
    def wread(j):
        b = FW + 12 * (j % 2)
        a(f"""
        ds_read_b128 {vr(b,4)}, v4 offset:{2560*j}
        ds_read_b128 {vr(b+4,4)}, v4 offset:{2560*j+1024}
        ds_read_b128 {vr(b+8,4)}, v6 offset:{2560*j+2048}
        """)
    def oissue(j):
        b = FO + 8 * (j % 4)
        a(f"""
        buffer_load_dwordx4 {vr(b,4)}, v{vD}, {sr(WS,4)}, s{OA+2*(j%4)} offen sc1
        buffer_load_dwordx4 {vr(b+4,4)}, v{vD}, {sr(WS,4)}, s{OA+2*(j%4)+1} offen sc1
        """)
    for j in range(4): oaddr(j)
    a(f"""
    s_mov_b32 s51, {SPINMAX}
    s_mov_b32 s{sI}, {DEF - 1}
    s_mov_b32 s{sSeg}, 1
    s_waitcnt vmcnt(0)
    s_barrier
    """)
    if 'p3' in OPT: stamp(a, 1)
    if DEF > 1: a("s_branch K2_Gl")
    a(f"K2_Gt:\nbuffer_load_dword v5, v7, {sr(WS,4)}, 0 offen sc1")
    for j in range(3):
        a(f"s_waitcnt vmcnt({11 - 5*j})")
        mm6(FR + 20 * j + 8, FR + 20 * j)
    wread(0); wread(1)
    a(f"""
    s_waitcnt vmcnt(0)
    v_cmp_ne_u32 vcc, s{sN}, v5
    s_cbranch_vccz K2_p4x
    """)
    poll(a, "K2_p4", 7, 5, WS, sT3)
    'st2' in OPT or stamp(a, 5)
    for j in range(4): oissue(j)
    retry = []
    for j in range(10):
        later = min(j + 3, 9) - j
        b = FO + 8 * (j % 4)
        a(f"""
        s_waitcnt vmcnt({2*later}) lgkmcnt({0 if (j == 9 or PROF) else 3})
        K3_c{j}:
        v_max3_u32 v5, v{b}, v{b+2}, v{b+4}
        v_max_u32 v5, v5, v{b+6}
        v_cmp_eq_u32 vcc, -1, v5
        s_cbranch_vccnz K3_r{j}
        K3_m{j}:
        """)
        mm6(FW + 12 * (j % 2), b)
        if j + 4 < 10: oaddr(j + 4); oissue(j + 4)
        if j + 2 < 10: wread(j + 2)
    def retries():
        for j in range(10):
            a(f"K3_r{j}:\ns_cmp_eq_u32 s51, 0\ns_cbranch_scc1 K3_m{j}\ns_sub_u32 s51, s51, 1")
            oissue(j)
            a(f"s_waitcnt vmcnt(0)\ns_branch K3_c{j}")
    if 'p3' in OPT: stamp(a, 2)
    fin_prep()
    a(f"""
    v_and_b32 v7, 31, v{vL}
    v_mul_u32_u24 v7, 160, v7
    v_lshrrev_b32 v{RR}, 5, v{vL}
    v_mul_u32_u24 v{RR}, 10240, v{RR}
    v_add3_u32 v7, v7, v{RR}, s{sT2}
    """)
    for r in range(2):
        for o in range(10): a(f"ds_write_b128 v7, {vr(ACC+48*r+4*o,4)} offset:{5120*r+16*o}")
    a(f"""
    s_waitcnt lgkmcnt(0)
    {"s_memtime s[76:77]" if PROF and 'p3' in OPT else ""}
    s_cmp_lt_u32 s{sW}, 10
    s_cbranch_scc1 K3_bar
    s_barrier
    {"s_branch K_pe" if PROF else "s_endpgm"}
    """)
    retries()
    vMx = 3
    sP, sO1, sO2, sO3 = 48, 49, 50, 51
    a(f"""
    K_last:
    K2_slow:
    v_subrev_u32 v{vA}, {16*10240}, v{vA}
    v_mov_b32 v{vMx}, 0xff800000
    s_mov_b32 s{sP}, 0
    """)
    for i in range(16): a(f"v_mov_b32 v{O+i}, 0")
    a(f"""
    K2_sp:
    s_mov_b32 s{sI}, 0
    K2_sl:
    s_lshr_b32 s{sT0}, s{sI}, 1
    s_mul_i32 s{sT0}, s{sT0}, 10240
    s_add_u32 s{sT0}, s{sT0}, {WS_KV}
    s_and_b32 s{sT1}, s{sI}, 1
    s_lshl_b32 s{sO1}, s{sT1}, 10
    s_add_u32 s{sO1}, s{sO1}, s{sT0}
    s_lshl_b32 s{sO2}, s{sT1}, 3
    s_add_u32 s{sO2}, s{sO2}, s{sT0}
    s_mul_i32 s{sO3}, s{sT1}, 1280
    s_add_u32 s{sO3}, s{sO3}, s{sT0}
    buffer_load_dwordx4 {vr(KM,4)}, v{vA}, {sr(WS,4)}, s{sO1} offen sc1
    buffer_load_dwordx4 {vr(KM+4,4)}, v{vA}, {sr(WS,4)}, s{sO1} offen offset:512 sc1
    buffer_load_dwordx2 {vr(KT,2)}, v{vA}, {sr(WS,4)}, s{sO2} offen offset:2048 sc1
    s_mov_b64 exec, {sr(sVm,2)}
    """)
    for f in range(4): a(f"buffer_load_dwordx4 {vr(V+4*f,4)}, v{vA}, {sr(WS,4)}, s{sO3} offen offset:{2560+320*f} sc1")
    a(f"""
    s_mov_b64 exec, -1
    s_waitcnt vmcnt(0)
    v_mfma_f32_32x32x4_2b_bf16 {vr(S,32)}, {vr(KT,2)}, {vr(QT,2)}, 0
    s_nop 15
    s_nop 3
    {MF(vr(S,16), vr(KM,4), vr(QM,4), vr(S,16))}
    {MF(vr(S+16,16), vr(KM+4,4), vr(QM,4), vr(S+16,16))}
    s_cmp_lg_u32 s{sP}, 0
    s_nop 12
    s_cbranch_scc1 K2_sp2
    """)
    for i in range(16): a(f"v_max3_f32 v{vMx}, v{S+2*i}, v{S+2*i+1}, v{vMx}")
    a("s_branch K2_snext\nK2_sp2:")
    for i in range(32): a(f"v_sub_f32 v{S+i}, v{S+i}, v{vMx}")
    for i in range(32): a(f"v_exp_f32 v{S+i}, v{S+i}")
    a("s_nop 0")
    for i in range(16): a(f"v_cvt_pk_bf16_f32 v{P+i}, v{S+2*i}, v{S+2*i+1}")
    a("s_nop 1")
    for f in range(4): a(MF(vr(O,16), vr(V+4*f,4), vr(P+4*f,4), vr(O,16)))
    a(f"""
    s_nop 15
    K2_snext:
    s_add_u32 s{sI}, s{sI}, 1
    s_cmp_lt_u32 s{sI}, 32
    s_cbranch_scc1 K2_sl
    s_cmp_lg_u32 s{sP}, 0
    s_cbranch_scc1 K2_fin
    v_mov_b32 v{P}, v{vMx}
    s_nop 1
    v_permlane32_swap_b32 v{P}, v{vMx}
    s_mov_b32 s{sP}, 1
    v_max_f32 v{vMx}, v{vMx}, v{P}
    s_branch K2_sp
    """)
    return 164

def main(out):
    a = Asm()
    gen_k1(a); n = gen_k2(a)
    head = f"""; LayerNorm + MQA attention + SiLU FFN in one launch (generated by work/gen7.py)
; @launch grid=(256,1,1) block=(768,1,1) lds=163840
.amdgcn_target "amdgcn-amd-amdhsa--gfx950"
.text
"""
    tail = '.section .rodata,"a"\n' + kdesc(KN, n)
    txt = a.text()
    import re
    if 'pollsys' in OPT: txt = re.sub(r"(buffer_load_dword v\d+, v\d+, s\[28:31\], 0 offen) sc1", r"\1 sc0 sc1", txt)
    if 'flagsys' in OPT: txt = re.sub(r"(buffer_store_dword v\d+, v\d+, s\[28:31\], s\d+ offen) sc1", r"\1 sc0 sc1", txt)
    if 'flagatom' in OPT: txt = re.sub(r"buffer_store_dword (v\d+, v\d+, s\[28:31\], s\d+ offen) sc1", r"buffer_atomic_swap \1", txt)
    if 'allsys' in OPT: txt = re.sub(r"(?<!sc0) sc1", " sc0 sc1", txt)
    if 'rt' in OPT: txt = txt.replace("s_memtime", "s_memrealtime")
    open(out, "w").write(head + txt + tail)

if __name__ == "__main__":
    if "--prof" in sys.argv:
        PROF = True; sys.argv.remove("--prof")
    main(sys.argv[1] if len(sys.argv) > 1 else f"cdna_kernels/{NAME}.s")
```

```python
import sys, math, os, struct
import abody, kbody
OPT = set(os.environ.get('OPT', '').split(','))
NAME = "parallel_sum__grouped_kv_mqa__dense_activation_silu__prompt"
WS_Q, WS_KV, WS_H, WS_O, WS_WP, WS_Y, WS_PROF, WS_END = 0, 0x300000, 0x340000, 0x940000, 0xD00000, 0x1000000, 0xC00000, 0x1500000
WS_SR, WS_SC = 0x280000, 0x2D2000
WS_F1, WS_F3, WS_FK = 0x1000000, 0x1080000, 0x1060000
SLP = int(os.environ.get('SLP', '4'))
XB = 147456; XFC, XN, XQ = XB + 2560, XB + 3072, XB + 4096
sN = 68
KN = NAME + '_kernel'
SPINMAX = 20000
ROTR, ROTC = (int(c) for c in os.environ.get('ROT', '3,3').split(','))
PRE = int(os.environ.get('PRE', '2'))
PRE_CTRL = """s_or_b32 s{sT0}, s{sI}, 2
    s_cmp_eq_u32 s{sT0}, 3
    s_cbranch_scc1 K1_issue
    s_cmp_lg_u32 s{sI}, 2
    s_cbranch_scc1 K1_w18""" if PRE == 2 else """s_cmp_lt_u32 s{sI}, %d
    s_cbranch_scc1 K1_issue
    s_cmp_lg_u32 s{sI}, %d
    s_cbranch_scc1 K1_w18""" % (PRE, PRE)
CSAT = int(os.environ.get('CSAT', '2'))
NF1 = 5
HS = 102400
SEGS = eval(os.environ.get('SEGS', '[1, 3, 10, 2]'))
DEEP = int(os.environ.get('DEEP', '99'))
GPRIO = int(os.environ.get('GPRIO', '0'))
ROT3 = int(os.environ.get('ROT3', '5'))
RW = int(os.environ.get('RW', '10')); RMUL = int(os.environ.get('RMUL', '3'))
TSH = int(os.environ.get('TSH', '0'))
DEF = int(os.environ.get('DEF', '2'))
HDLY = int(os.environ.get('HDLY', '0'))
HOOK = int(os.environ.get('HOOK', '2'))
LOG2E = 1.4426950408889634
def f32(x): return "0x%08x" % struct.unpack("<I", struct.pack("<f", x))[0]

class Asm:
    def __init__(self): self.l = []
    def __call__(self, s):
        for x in s.strip("\n").split("\n"):
            x = x.strip()
            if x: self.l.append(("" if x.endswith(":") else "    ") + x)
    def text(self): return "\n".join(self.l) + "\n"
def vr(a, n): return "v[%d:%d]" % (a, a + n - 1)
def ar(a, n): return "a[%d:%d]" % (a, a + n - 1)
def sr(a, n): return "s[%d:%d]" % (a, a + n - 1)
def srd(a, d, base, nbytes):
    a(f"s_mov_b32 s{d}, s{base}\ns_mov_b32 s{d+1}, s{base+1}\ns_mov_b32 s{d+2}, {nbytes}\ns_mov_b32 s{d+3}, 0x00020000")
def kdesc(name, vgpr, agpr=0, sgpr=102):
    acc = (vgpr + 3) // 4 * 4
    return f""".p2align 6
.amdhsa_kernel {name}
  .amdhsa_next_free_vgpr {acc + agpr if agpr else vgpr}
  .amdhsa_next_free_sgpr {sgpr}
  .amdhsa_accum_offset {acc}
  .amdhsa_group_segment_fixed_size 0
  .amdhsa_kernarg_size 88
  .amdhsa_user_sgpr_count 2
  .amdhsa_user_sgpr_kernarg_segment_ptr 1
  .amdhsa_system_sgpr_workgroup_id_x 1
.end_amdhsa_kernel
"""
def khead(a, name): a.l.append(f".globl {name}\n.p2align 8\n.type {name},@function\n{name}:")
PROF = False
DIAGX = int(os.environ.get('DIAGX', '0'))
DIAGC = os.environ.get('DIAGC', '')
def stamp(a, i):
    if DIAGX:
        a(f"{'s_memtime' if DIAGC else 's_memrealtime'} s[{70+2*i}:{71+2*i}]")
        return
    if 'dbgt' in OPT:
        a(f"s_memrealtime s[{70+2*i}:{71+2*i}]")
        if i == 0: a("s_mov_b32 s72, 0\ns_mov_b32 s74, 0\ns_mov_b32 s76, 0")
        return
    if PROF:
        a(f"s_memtime s[{70+2*i}:{71+2*i}]")
        if i == 0: a("s_memrealtime s[84:85]")
def prof_end(a, kidx, WS, sW):
    if DIAGX:
        a(f"""
        s_cmp_lg_u32 s{sW}, {DIAGC.split(',')[1] if DIAGC else 0}
        s_cbranch_scc1 K_end
        s_cmp_lg_u32 s2, {int(os.environ.get('DIAGWG', '40'))}
        s_cbranch_scc1 K_end
        s_waitcnt vmcnt(0)
        s_memrealtime s[82:83]
        s_waitcnt lgkmcnt(0)
        {f"s_sub_u32 s84, s{70+2*DIAGX}, s70" if DIAGX < 7 else f"s_sub_u32 s84, s70, s{sN}"}
        {"s_add_u32 s84, s84, 1500" if DIAGX == 7 else ""}
        s_lshl_b32 s84, s84, 2
        {f"s_sub_u32 s84, s{70+2*DIAGX}, s{70+2*int(DIAGC.split(',')[0])}" if DIAGC else ""}
        {"s_lshr_b32 s84, s84, 2" if DIAGC else ""}
        K_dl:
        s_memrealtime s[86:87]
        s_waitcnt lgkmcnt(0)
        s_sub_u32 s86, s86, s82
        s_cmp_lt_u32 s86, s84
        s_cbranch_scc1 K_dl
        """)
        return
    if 'dbgt' in OPT:
        a(f"""
        s_cmp_lg_u32 s{sW}, 0
        s_cbranch_scc1 K_end
        s_waitcnt vmcnt(0)
        s_memrealtime s[82:83]
        s_mov_b32 s20, s4
        s_mov_b32 s21, s5
        s_mov_b32 s22, 256
        s_mov_b32 s23, 0x00020000
        s_mov_b64 exec, 1
        v_mov_b32 v0, 0
        s_waitcnt lgkmcnt(0)
        s_not_b32 s84, s70
        v_mov_b32 v1, s84
        buffer_atomic_umax v1, v0, s[20:23], 0 offen offset:4
        """)
        for i in range(7):
            a(f"v_mov_b32 v{2+i}, s{70+2*i}\nbuffer_atomic_umax v{2+i}, v0, s[20:23], 0 offen offset:{8+4*i}")
        return
    if not PROF: return
    a(f"""
    s_waitcnt vmcnt(0)
    s_memtime s[82:83]
    s_memrealtime s[86:87]
    s_mov_b64 exec, -1
    s_waitcnt lgkmcnt(0)
    s_lshl_b32 s88, s2, 4
    s_add_u32 s88, s88, s{sW}
    s_lshl_b32 s88, s88, 6
    s_add_u32 s88, s88, {WS_PROF + kidx * 0x40000}
    v_mov_b32 v0, 0
    """)
    if 'kvs' in OPT: a("s_mov_b32 s80, s90")
    if 'lacc' in OPT: a(f"s_cmp_lt_u32 s{sW}, 8\ns_cbranch_scc1 K_pe2\ns_add_u32 s76, s70, s95\ns_add_u32 s78, s70, s96\ns_add_u32 s80, s70, s97\nK_pe2:")
    for i in range(7): a(f"v_mov_b32 v{4+i}, s{70+2*i}")
    a(f"""
    v_mov_b32 v11, s84
    v_mov_b32 v12, s86
    v_mov_b32 v13, 0
    v_mov_b32 v14, 0
    v_mov_b32 v15, 0
    s_mov_b64 exec, 1
    buffer_store_dwordx4 v[4:7], v0, {sr(WS,4)}, s88 offen
    buffer_store_dwordx4 v[8:11], v0, {sr(WS,4)}, s88 offen offset:16
    buffer_store_dwordx4 v[12:15], v0, {sr(WS,4)}, s88 offen offset:32
    """)
def poll(a, lab, vaddr, vtmp, WS, sCnt):
    a(f"""
    s_mov_b32 s{sCnt}, 0
    {lab}:
    buffer_load_dword v{vtmp}, v{vaddr}, {sr(WS,4)}, 0 offen sc1
    s_add_u32 s{sCnt}, s{sCnt}, 1
    s_waitcnt vmcnt(0)
    v_cmp_ne_u32 vcc, s{sN}, v{vtmp}
    s_cbranch_vccz {lab}x
    s_sleep {SLP}
    s_cmp_lt_u32 s{sCnt}, {SPINMAX}
    s_cbranch_scc1 {lab}
    {lab}x:
    """)
def setflag(a, soff, WS, v0, v1, emask="1"):
    a(f"""
    v_mov_b32 v{v0}, s{sN}
    v_lshlrev_b32 v{v1}, 8, v0
    s_mov_b64 exec, {emask}
    s_waitcnt vmcnt(0)
    buffer_store_dword v{v0}, v{v1}, {sr(WS,4)}, s{soff} offen sc1
    s_mov_b64 exec, -1
    """)
def rowidx(a, d, rt, t):
    a(f"""
    s_mul_i32 s{d}, s{rt}, 205
    s_lshr_b32 s{d}, s{d}, 10
    s_mul_i32 s{t}, s{d}, 5
    s_sub_u32 s{t}, s{rt}, s{t}
    s_lshl_b32 s{d}, s{d}, 1
    s_cmp_ge_u32 s{t}, 3
    s_addc_u32 s{d}, s{d}, 0
    """)
def round_bf16(a, d, s): a(f"v_cvt_pk_bf16_f32 v{d}, v{s}, v{s}\nv_lshlrev_b32 v{d}, 16, v{d}")
def MF(d, A, B, C): return f"v_mfma_f32_32x32x16_bf16 {d}, {A}, {B}, {C}"

def ldswait(a, lab, vaddr, vtmp, sTmp, sNeed, off=0):
    a(f"""
    {lab}:
    ds_read_b32 v{vtmp}, v{vaddr} offset:{off}
    s_waitcnt lgkmcnt(0)
    v_readfirstlane_b32 s{sTmp}, v{vtmp}
    s_cmp_ge_u32 s{sTmp}, {sNeed}
    s_cbranch_scc1 {lab}x
    {'s_sleep 1' if 'nosl' not in OPT else ''}
    s_sub_u32 s65, s65, 1
    s_cbranch_scc0 {lab}
    s_mov_b32 s65, 0
    {lab}x:
    """)
def ldsadd(a, vaddr, vone, off=0):
    a(f"s_mov_b64 exec, 1\nds_add_u32 v{vaddr}, v{vone} offset:{off}\ns_mov_b64 exec, -1")

def acc(a, i):
    if PROF and 'lacc' in OPT:
        a(f"s_memtime s[92:93]\ns_waitcnt lgkmcnt(0)\ns_sub_u32 s94, s92, s91\ns_mov_b32 s91, s92\ns_add_u32 s{95+i}, s{95+i}, s94")
def gen_k1(a):
    khead(a, KN)
    SLOT = 36864
    CNT = XN + 16
    sW, sR, sG, sRB, sCB = 32, 33, 34, 35, 36
    sI, sK, sSlot, sT0, sT1, sMx, sNeed, sStr64, sDelta, sRd, sT2, sT3, sK0, sMB, sU, sTyp, sRT, sS32, sOnes = 38, 39, 40, 41, 42, 43, 44, 45, 46, 47, 48, 49, 50, 51, 52, 53, 54, 55, 37
    sHr, sIdle, sGs, DB2, sHc = 56, 69, 57, 12, 57
    X, WA, WS, DBG = 20, 24, 28, 20
    vL, vXs, vWs, vCom, vOne, vC, vF = 0, 1, 2, 11, 10, 17, 18
    vAx, vAw = 12, 16
    vT = 24
    AC = 32; fW, fX = 80, 96
    a(f"""
    s_cmp_ge_u32 s2, 256
    s_cbranch_scc1 K_end
    """); stamp(a, 0); a(f"""
    s_load_dwordx8 s[8:15], s[0:1], 0
    s_load_dwordx4 s[60:63], s[0:1], 48
    s_load_dwordx4 s[4:7], s[0:1], 72
    s_load_dwordx2 s[16:17], s[0:1], 32
    s_load_dwordx2 s[18:19], s[0:1], 64
    v_lshrrev_b32 v1, 6, v0
    v_and_b32 v{vL}, 63, v0
    v_readfirstlane_b32 s{sW}, v1
    s_and_b32 s{sT0}, s2, 7
    s_lshr_b32 s{sT1}, s2, 3
    s_mul_i32 s{sT2}, s{sT0}, 30
    s_add_u32 s{sT2}, s{sT2}, s{sT1}
    v_lshrrev_b32 v{vT}, 5, v{vL}
    v_and_b32 v{vT+1}, 3, v{vL}
    v_bfe_u32 v{vT+2}, v{vL}, 2, 3
    v_lshlrev_b32 v{vT+3}, 4, v{vT+1}
    s_mov_b32 s{WS+2}, {WS_END}
    s_mov_b32 s{WS+3}, 0x00020000
    s_lshl_b32 s{sT3}, s{sW}, 8
    s_add_u32 s{sT3}, s{sT3}, s{sT1}
    s_cmp_lg_u32 s{sT3}, {(1 << 8) + 30}
    s_cbranch_scc1 K1_npf
    s_getpc_b64 s[66:67]
    K1_pc:
    v_lshlrev_b32 v2, 7, v{vL}
    v_add_u32 v3, 8192, v2
    v_min_u32 v3, K_last-K1_pc, v3
    {"" if 'nocpf' in OPT else "global_load_dword v60, v2, s[66:67]"}
    {"" if 'nocpf' in OPT else "global_load_dword v61, v3, s[66:67]"}
    K1_npf:
    s_cmp_ge_u32 s{sT1}, 30
    s_cbranch_scc1 K1_aux
    s_cmp_ge_u32 s{sT2}, 234
    s_cbranch_scc1 K1_aux
    s_cmp_lt_u32 s{sT2}, 126
    s_cselect_b32 s{sT0}, 0, 126
    s_cselect_b32 s{sT1}, 7, 6
    s_movk_i32 s{sT3}, 10923
    s_cselect_b32 s{sT3}, 9363, s{sT3}
    s_cselect_b32 s{sRB}, 0, 7
    s_sub_u32 s{sT2}, s{sT2}, s{sT0}
    s_mul_i32 s{sCB}, s{sT2}, s{sT3}
    s_lshr_b32 s{sCB}, s{sCB}, 16
    s_mul_i32 s{sT1}, s{sT1}, s{sCB}
    s_sub_u32 s{sT2}, s{sT2}, s{sT1}
    s_add_u32 s{sRB}, s{sRB}, s{sT2}
    s_and_b32 s{sR}, s{sW}, 3
    s_add_u32 s{sK}, s{sRB}, s{sCB}
    s_mul_i32 s{sK}, s{sK}, {RMUL}
    s_mul_i32 s{sT0}, s{sK}, {65536 // RW + 1}
    s_lshr_b32 s{sT0}, s{sT0}, 16
    s_mul_i32 s{sT0}, s{sT0}, {RW}
    s_sub_u32 s{sK}, s{sK}, s{sT0}
    s_mul_i32 s{sK}, s{sK}, {10 // RW}
    s_cmp_lt_u32 s{sW}, 8
    s_cbranch_scc1 K1_C
    """)
    def common2():
        a(f"""
        v_bfe_u32 v{vT+4}, v{vL}, 2, 2
        v_bfe_u32 v{vT+5}, v{vL}, 4, 1
        v_lshl_add_u32 v{vT+4}, v{vT+4}, 1, v{vT+5}
        v_lshl_add_u32 v{vT+4}, v{vT+4}, 2, v{vT+1}
        v_lshlrev_b32 v{vCom}, 3, v{vT+4}
        s_mov_b32 s{sOnes}, 0x3f803f80
        s_cmp_eq_u32 s{sCB}, 17
        s_cselect_b32 s{sT0}, 1, 3
        s_and_b32 s{sT0}, s{sT0}, s{sR}
        s_lshr_b32 s{sT1}, s{sT0}, 1
        s_lshl_b32 s{sT1}, s{sT1}, 13
        s_and_b32 s{sT0}, s{sT0}, 1
        s_lshl_b32 s{sT0}, s{sT0}, 9
        s_add_u32 s{sT0}, s{sT0}, s{sT1}
        s_add_u32 s{sT0}, s{sT0}, 20480
        v_lshl_add_u32 v{vAw}, v{vT}, 10, v{vCom}
        v_add_u32 v{vAw}, s{sT0}, v{vAw}
        """)
    vQb, vQa = 4, 6
    a(f"""
    s_mul_i32 s{sT0}, s{sRB}, 160
    s_lshl_b32 s{sT1}, s{sR}, 3
    s_add_u32 s{sT0}, s{sT0}, s{sT1}
    s_mul_i32 s{sT0}, s{sT0}, 1280
    v_lshrrev_b32 v{vT+4}, 3, v{vL}
    v_mul_u32_u24 v{vT+4}, 1280, v{vT+4}
    v_add_u32 v{vT+4}, s{sT0}, v{vT+4}
    v_and_b32 v{vT+5}, 7, v{vL}
    v_lshrrev_b32 v{vT+6}, 4, v{vL}
    v_xor_b32 v{vT+5}, v{vT+5}, v{vT+6}
    s_and_b32 s{sT0}, s{sR}, 1
    s_lshl_b32 s{sT0}, s{sT0}, 2
    v_xor_b32 v{vT+5}, s{sT0}, v{vT+5}
    v_lshl_add_u32 v{vXs}, v{vT+5}, 4, v{vT+4}
    s_cmp_lt_u32 s{sCB}, 5
    s_movk_i32 s{sT0}, 3072
    s_cselect_b32 s{sT0}, 1280, s{sT0}
    s_cselect_b32 s{sT2}, 0, 5
    s_sub_u32 s{sT2}, s{sCB}, s{sT2}
    s_lshl_b32 s{sT2}, s{sT2}, 8
    v_lshl_add_u32 v{vT+4}, v{vT}, 6, v{vT+3}
    v_add_u32 v{vT+4}, s{sT2}, v{vT+4}
    v_add_u32 v{vT+5}, s{sT1}, v{vT+2}
    v_mad_u32_u24 v{vWs}, v{vT+5}, s{sT0}, v{vT+4}
    v_min_u32 v{vT+4}, 24, v{vT+3}
    v_mad_u32_u24 v{vT+6}, v{vT+5}, 40, v{vT+4}
    v_mov_b32 v{vT+7}, 0
    v_cmp_eq_u32 vcc, 0, v{vT}
    s_lshl_b32 s{sStr64}, s{sT0}, 6
    s_lshl_b32 s{sS32}, s{sT0}, 5
    s_mul_i32 s{WA+2}, s{sT0}, 640
    s_lshl_b32 s{sMx}, s{sR}, 10
    s_mov_b32 s{sI}, 0
    s_mov_b32 s{sSlot}, 0
    s_mov_b32 s{X+2}, {2048*1280}
    s_mov_b32 s{X+3}, 0x00020000
    s_mov_b32 s{WA+3}, 0x00020000
    s_cmp_lt_u32 s{sCB}, 5
    s_waitcnt lgkmcnt(0)
    s_mov_b32 s{X}, s8
    s_mov_b32 s{X+1}, s9
    s_cselect_b32 s{WA}, s10, s60
    s_cselect_b32 s{WA+1}, s11, s61
    v_mov_b32 v{vQb}, s14
    v_mov_b32 v{vQb+1}, s15
    v_mov_b32 v{vQa}, s12
    v_mov_b32 v{vQa+1}, s13
    v_cndmask_b32 v{vQb}, v{vQb}, v{vQa}, vcc
    v_cndmask_b32 v{vQb+1}, v{vQb+1}, v{vQa+1}, vcc
    v_lshl_add_u64 {vr(vQb,2)}, {vr(vT+6,2)}, 0, {vr(vQb,2)}
    v_mov_b32 v8, 2560
    """)
    stamp(a, 1)
    if PROF and 'lacc' in OPT: a("s_waitcnt lgkmcnt(0)\ns_mov_b32 s91, s72\ns_mov_b32 s95, 0\ns_mov_b32 s96, 0\ns_mov_b32 s97, 0")
    if HDLY: a(f"s_sub_u32 s{sT0}, s{sCB}, 5\ns_cmp_lt_u32 s{sT0}, 12\ns_cbranch_scc0 K1_issue\ns_sleep {HDLY}")
    a("K1_issue:"); acc(a, 2)
    a(f"""
    s_lshl_b32 s{sT0}, s{sK}, 7
    s_add_u32 m0, s{sSlot}, s{sMx}
    s_mul_i32 s{sT1}, s{sK}, s{sStr64}
    """)
    for i in range(5):
        a(f"buffer_load_dwordx4 v{vXs}, {sr(X,4)}, s{sT0} offen lds\ns_add_u32 m0, m0, 4096\ns_add_u32 s{sT0}, s{sT0}, {32*1280}")
    a(f"""
    s_add_u32 s{sT2}, s{sT1}, s{sS32}
    s_cmp_eq_u32 s{sCB}, 17
    s_cbranch_scc1 K1_ikv
    buffer_load_dwordx4 v{vWs}, {sr(WA,4)}, s{sT1} offen lds
    s_add_u32 m0, m0, 4096
    s_nop 0
    buffer_load_dwordx4 v{vWs}, {sr(WA,4)}, s{sT2} offen lds
    s_add_u32 m0, m0, {4096-128}
    s_nop 0
    buffer_load_dwordx4 v{vWs}, {sr(WA,4)}, s{sT1} offen offset:128 lds
    s_add_u32 m0, m0, 4096
    s_nop 0
    buffer_load_dwordx4 v{vWs}, {sr(WA,4)}, s{sT2} offen offset:128 lds
    K1_i2:
    """); acc(a, 0); a(f"""
    s_add_u32 s{sK}, s{sK}, 1
    s_cmp_eq_u32 s{sK}, 10
    s_cselect_b32 s{sK}, 0, s{sK}
    s_add_u32 s{sSlot}, s{sSlot}, {SLOT}
    s_cmp_eq_u32 s{sSlot}, {4*SLOT}
    s_cselect_b32 s{sSlot}, 0, s{sSlot}
    s_add_u32 s{sI}, s{sI}, 1
    s_cmp_eq_u32 s{sI}, 1
    s_cbranch_scc1 K1_l1
    s_waitcnt vmcnt(9)
    s_barrier
    s_cmp_lg_u32 s{sI}, 10
    s_cbranch_scc1 K1_issue
    s_branch K1_g0
    K1_ikv:
    v_mad_u64_u32 {vr(vQa,2)}, s[58:59], v8, s{sK}, {vr(vQb,2)}
    global_load_lds_dwordx4 {vr(vQa,2)}, off
    s_add_u32 m0, m0, {4096-1280}
    s_nop 0
    global_load_lds_dwordx4 {vr(vQa,2)}, off offset:1280
    s_waitcnt vmcnt(7)
    s_branch K1_i2
    K1_l1:
    s_mov_b32 s{WS}, s6
    s_mov_b32 s{WS+1}, s7
    """)
    a(f"""
    s_cmp_eq_u32 s{sR}, 3
    s_mul_i32 s{sT0}, s{sRB}, 25600
    s_mul_i32 s{sT1}, s{sCB}, 10240
    s_movk_i32 s{sGs}, 2560
    s_cselect_b32 s{sGs}, 1024, s{sGs}
    s_cselect_b32 s{sT0}, s{sT1}, s{sT0}
    s_mov_b32 s{sT1}, {WS_SR}
    s_cselect_b32 s{sT1}, {WS_SC}, s{sT1}
    s_cselect_b32 s{sT2}, 0, s{sR}
    s_add_u32 s{sU}, s{sT0}, s{sT1}
    s_lshl_b32 s{sT2}, s{sT2}, 6
    v_add_u32 v20, s{sT2}, v{vL}
    v_min_u32 v20, 159, v20
    v_lshlrev_b32 v20, 4, v20
    v_mov_b32 v22, {XN}
    s_mul_i32 s62, s{sRB}, {5*96*1024}
    s_lshl_b32 s{sT0}, s{sCB}, 2
    s_add_u32 s{sT0}, s{sT0}, s{sR}
    s_lshl_b32 s{sT1}, s{sT0}, 11
    s_add_u32 s62, s62, s{sT1}
    s_add_u32 s62, s62, {WS_H - 5*8192}
    s_lshl_b32 s63, s{sT0}, 4
    s_add_u32 s63, s63, s{sRB}
    s_lshl_b32 s63, s63, 8
    s_add_u32 s63, s63, {WS_F1}
    s_sub_u32 s{sT0}, s{sCB}, 5
    s_cmp_lt_u32 s{sT0}, 12
    s_cselect_b32 s62, s62, 0
    s_branch K1_issue
    K1_g0:
    ds_read_b32 v21, v22
    """)
    G = 32
    a(f"""
    s_mov_b32 s{sI}, 0
    """)
    a(f"K1_gat:\ns_mov_b32 s{sT0}, s{sU}")
    for k in range(10):
        a(f"buffer_load_dwordx4 {vr(G+4*k,4)}, v20, {sr(WS,4)}, s{sT0} offen sc1\ns_add_u32 s{sT0}, s{sT0}, s{sGs}")
    a(f"""
    s_cmp_lg_u32 s{sI}, 0
    s_cbranch_scc1 K1_g2
    s_waitcnt vmcnt(10)
    s_barrier
    """)
    a(f"""
    K1_g2:
    s_add_u32 s{sI}, s{sI}, 1
    s_waitcnt vmcnt(0) lgkmcnt(0)
    v_cmp_eq_u32 vcc, 0, v21
    v_readfirstlane_b32 s{sN}, v21
    s_nop 0
    v_cndmask_b32 v6, 0, 1, vcc
    """)
    for k in range(10):
        a(f"v_xor_b32 v{G+4*k+1}, v{G+4*k+1}, v21\nv_xor_b32 v{G+4*k+3}, v{G+4*k+3}, v21\nv_or3_b32 v6, v{G+4*k+1}, v{G+4*k+3}, v6")
    a(f"""
    v_cmp_ne_u32 vcc, 0, v6
    s_cbranch_vccz K1_g3
    s_sleep {SLP}
    s_cmp_lt_u32 s{sI}, {SPINMAX}
    s_cbranch_scc1 K1_gat
    K1_g3:
    """)
    for k in range(1, 10):
        a(f"v_add_f32 v{G}, v{G}, v{G+4*k}\nv_add_f32 v{G+2}, v{G+2}, v{G+4*k+2}")
    a(f"""
    s_cmp_eq_u32 s{sR}, 3
    s_cbranch_scc1 K1_gc
    v_mul_f32 v{G}, {f32(1.0/640)}, v{G}
    v_mul_f32 v{G+2}, {f32(1.0/640)}, v{G+2}
    v_cvt_pk_bf16_f32 v{G+4}, -v{G}, -v{G}
    v_fma_f32 v{G+2}, -v{G}, v{G}, v{G+2}
    v_max_f32 v{G+2}, 0, v{G+2}
    """)
    round_bf16(a, G+2, G+2)
    a(f"v_add_f32 v{G+2}, {f32(1e-5)}, v{G+2}")
    round_bf16(a, G+2, G+2)
    a(f"v_sqrt_f32 v{G+6}, v{G+2}\nv_mov_b32 v{G+5}, 0")
    round_bf16(a, G+6, G+6)
    a(f"""
    v_rcp_f32 v{G+7}, v{G+6}
    v_add_u32 v5, {XB}, v20
    s_nop 0
    ds_write_b128 v5, {vr(G+4,4)}
    s_branch K1_gd
    K1_gc:
    v_and_b32 v{G+1}, 0xffff0000, v{G}
    v_and_b32 v{G+3}, 0xffff0000, v{G+2}
    v_sub_f32 v{G}, v{G}, v{G+1}
    v_sub_f32 v{G+2}, v{G+2}, v{G+3}
    v_cvt_pk_bf16_f32 v{G+4}, v{G+1}, v{G}
    v_cvt_pk_bf16_f32 v{G+5}, v{G+3}, v{G+2}
    v_lshlrev_b32 v5, 3, v{vL}
    v_add_u32 v5, {XFC}, v5
    ds_write_b64 v5, {vr(G+4,2)}
    K1_gd:
    """)
    a("s_waitcnt lgkmcnt(0)\ns_barrier\ns_branch K2_G")
    vN = 2
    a(f"""
    K1_C:
    """)
    common2()
    a(f"""
    s_memrealtime s[66:67]
    s_lshr_b32 s{sG}, s{sW}, 2
    s_mov_b32 s{sK0}, s{sK}
    s_mov_b32 s{DBG+2}, 256
    s_mov_b32 s{DBG+3}, 0x00020000
    v_mov_b32 v{vN+1}, 0
    v_and_b32 v{vT+4}, 31, v{vL}
    v_bfe_u32 v{vT+5}, v{vL}, 1, 3
    v_lshlrev_b32 v{vT+4}, 7, v{vT+4}
    s_waitcnt lgkmcnt(0)
    s_mov_b32 s{WS}, s6
    s_mov_b32 s{WS+1}, s7
    s_mov_b32 s{DBG}, s4
    s_mov_b32 s{DBG+1}, s5
    s_or_b32 s{sT0}, s2, s{sW}
    s_cbranch_scc1 K1_nn
    s_or_b32 s66, s66, 1
    v_mov_b32 v{vN}, s66
    s_mov_b64 exec, 1
    buffer_store_dword v{vN}, v{vN+1}, {sr(DBG,4)}, 0 offen sc1
    s_mov_b64 exec, -1
    K1_nn:
    """)
    if TSH:
        a(f"""
        s_lshl_b32 s{sT0}, s{sW}, {6 + TSH}
        v_lshlrev_b32 v4, {TSH}, v{vL}
        s_cmp_lt_u32 s{sT0}, {WS_F3 + 0x40000}
        s_cbranch_scc0 K1_nt1
        buffer_load_dword v163, v4, {sr(WS,4)}, s{sT0} offen
        K1_nt1:
        s_cmp_lg_u32 s{sW}, 7
        s_cbranch_scc1 K1_nt2
        s_mov_b32 s24, s18
        s_mov_b32 s25, s19
        s_mov_b32 s26, {2048*1280}
        s_mov_b32 s27, 0x00020000
        buffer_load_dword v163, v4, s[24:27], 0 offen
        K1_nt2:
        """)
    a(f"""
    s_lshl_b32 s{sT1}, s{sW}, 12
    v_lshlrev_b32 v{vT+6}, 2, v{vT}
    v_xor_b32 v{vT+6}, v{vT+6}, v{vT+5}
    v_lshl_add_u32 v4, v{vT+6}, 4, v{vT+4}
    v_add_u32 v4, s{sT1}, v4
    v_xor_b32 v5, 16, v4
    v_xor_b32 v6, 32, v4
    v_xor_b32 v7, 48, v4
    v_xor_b32 v{vT+5}, v{vT+5}, v{vT}
    s_mul_i32 s{sT1}, s{sG}, {3*4096}
    v_add_u32 v{vT+4}, s{sT1}, v{vT+4}
    """)
    for i in range(4):
        a(f"v_xor_b32 v{vT+6}, {2*i}, v{vT+5}\nv_lshl_add_u32 v{vAx+i}, v{vT+6}, 4, v{vT+4}")
    a(f"""
    s_mov_b32 s{sI}, 1
    s_mov_b32 s{sDelta}, {SLOT}
    s_sub_u32 s{sT0}, s{sW}, 2
    s_cmp_lt_u32 s{sT0}, 4
    s_cselect_b32 s{sIdle}, 1, 0
    s_cmp_eq_u32 s{sCB}, 17
    s_cselect_b32 s{sIdle}, s{sIdle}, 0
    v_mov_b32 v9, {XN}
    """)
    for i in range(48): a(f"v_mov_b32 v{AC+i}, 0")
    a(f"""
    s_cmp_lg_u32 s{sIdle}, 0
    s_cbranch_scc1 K1_idle
    s_mul_i32 s{sT2}, s{sRB}, 10
    s_add_u32 s{sT2}, s{sT2}, s{sK0}
    s_mul_i32 s{sT2}, s{sT2}, 2560
    s_lshl_b32 s{sT1}, s{sW}, 9
    s_add_u32 s{sT2}, s{sT2}, s{sT1}
    s_add_u32 s{sT2}, s{sT2}, {WS_SR}
    s_mul_i32 s{sU}, s{sCB}, 10
    s_add_u32 s{sU}, s{sU}, s{sK0}
    s_lshl_b32 s{sU}, s{sU}, 10
    s_add_u32 s{sU}, s{sU}, {WS_SC}
    s_lshl_b32 s{sT1}, s{sR}, 8
    s_add_u32 s{sU}, s{sU}, s{sT1}
    s_xor_b32 s{sT3}, s{sU}, 512
    s_cmp_eq_u32 s{sCB}, 17
    s_cselect_b32 s{sT3}, s{sT3}, {WS_END}
    s_cmp_lt_u32 s{sCB}, 10
    s_cselect_b32 s{sT0}, 5, 0
    s_cmp_lt_u32 s{sW}, s{sT0}
    s_cselect_b32 s{sT2}, s{sT2}, {WS_END}
    s_cmp_lt_u32 s{sRB}, 10
    s_cselect_b32 s{sU}, s{sU}, {WS_END}
    s_cselect_b32 s{sT3}, s{sT3}, {WS_END}
    v_mov_b32 v160, 0
    v_mov_b32 v162, 0
    v_mov_b32 v20, 0
    s_barrier
    """)
    stamp(a, 1)
    a(f"""
    buffer_load_dword v161, v{vN+1}, {sr(DBG,4)}, 0 offen sc1
    s_cmp_eq_u32 s{sT2}, {WS_END}
    s_cbranch_scc1 K1_nr
    """)
    for i in range(4): a(f"ds_read_b128 {vr(144+4*i,4)}, v{4+i}")
    a(f"s_waitcnt lgkmcnt(0)")
    for i in range(16): a(f"v_dot2c_f32_bf16 v160, s{sOnes}, v{144+i}\nv_dot2c_f32_bf16 v162, v{144+i}, v{144+i}")
    a(f"""
    s_nop 2
    v_mov_b32 v5, v160
    v_mov_b32 v6, v162
    s_nop 1
    v_permlane32_swap_b32 v5, v160
    v_permlane32_swap_b32 v6, v162
    v_add_f32 v160, v160, v5
    v_add_f32 v162, v162, v6
    K1_nr:
    s_cmp_eq_u32 s{sG}, 0
    s_cbranch_scc1 K1_start3
    s_cmp_ge_u32 s{sRB}, 10
    s_cbranch_scc1 K1_start2
    """)
    for k in range(4):
        for q in range(2): a(f"ds_read_b64_tr_b16 {vr(144+4*k+2*q,2)}, v{vAw} offset:{2048*k+256*q}")
    a(f"s_waitcnt lgkmcnt(0)")
    for i in range(16): a(f"v_dot2c_f32_bf16 v20, s{sOnes}, v{144+i}")
    a(f"""
    s_nop 2
    v_mov_b32 v5, v20
    s_nop 1
    v_permlane32_swap_b32 v5, v20
    v_add_f32 v20, v20, v5
    """)
    def publish(T):
        a(f"""
        v_lshlrev_b32 v4, 4, v{vL}
        v_lshlrev_b32 v5, 3, v{vL}
        s_mov_b32 s{sT0}, 0
        K1_n{T}:
        s_waitcnt vmcnt(0)
        v_readfirstlane_b32 s{sT1}, v161
        s_add_u32 s{sT0}, s{sT0}, 1
        s_cmp_lg_u32 s{sT1}, 0
        s_cbranch_scc1 K1_n{T}x
        buffer_load_dword v161, v{vN+1}, {sr(DBG,4)}, 0 offen sc1
        s_cmp_lt_u32 s{sT0}, {SPINMAX}
        s_cbranch_scc1 K1_n{T}
        K1_n{T}x:
        v_mov_b32 v163, v161
        v_mov_b32 v21, v161
        s_mov_b32 exec_hi, 0
        buffer_store_dwordx4 {vr(160,4)}, v4, {sr(WS,4)}, s{sT2} offen sc1
        """)
        if T == 2: a(f"""
        buffer_store_dwordx2 {vr(20,2)}, v5, {sr(WS,4)}, s{sU} offen sc1
        buffer_store_dwordx2 {vr(20,2)}, v5, {sr(WS,4)}, s{sT3} offen sc1
        s_waitcnt lgkmcnt(0)
        ds_write_b32 v9, v161
        """)
        a("s_mov_b32 exec_hi, -1")
    KR = dict(fW=fW, fX=fX, AC=AC, vAx=vAx, vAw=vAw, sDelta=sDelta)
    vFl = vT + 7
    def cloop(T):
        first, ba, bb, tail = kbody.streamC(KR, T)
        a(f"K1_start{T}:")
        for l in first: a(l)
        publish(T)
        a(f"s_branch K1_mid{T}\nK1_comp{T}:\ns_barrier")
        if os.environ.get('BSTAMP'): a(f"s_cmp_lg_u32 s{sI}, {int(os.environ['BSTAMP'])+1}\ns_cbranch_scc1 K1_bs{T}\ns_memtime s[72:73]\nK1_bs{T}:")
        if 'bt' in OPT: a(f"s_memtime s[92:93]\ns_waitcnt lgkmcnt(0)\ns_sub_u32 s92, s92, s70\nv_mov_b32 v22, s92\nv_cmp_eq_u32 vcc, s{sI}, v0\ns_nop 1\nv_cndmask_b32 v23, v23, v22, vcc")
        for l in ba: a(l)
        a(f"K1_mid{T}:")
        for l in bb: a(l)
        a(f"""
        s_and_b32 s{sT0}, s{sI}, 3
        s_cmp_eq_u32 s{sT0}, 3
        s_mov_b32 s{sDelta}, {SLOT}
        s_cselect_b32 s{sDelta}, {(-3*SLOT) & 0xffffffff}, s{sDelta}
        s_add_u32 s{sI}, s{sI}, 1
        s_cmp_lg_u32 s{sI}, 11
        s_waitcnt lgkmcnt(0)
        s_cbranch_scc1 K1_comp{T}
        """)
        a("s_barrier")
        for l in tail: a(l)
    cloop(2)
    a(f"""
    s_branch K1_cdone
    K1_idle:
    s_barrier
    s_add_u32 s{sI}, s{sI}, 1
    s_cmp_lg_u32 s{sI}, 12
    s_cbranch_scc1 K1_idle
    s_branch K1_cdone
    """)
    cloop(3)
    a("K1_cdone:")
    stamp(a, 2)
    if 'bt' in OPT:
        a(f"""
        s_lshl_b32 s92, s2, 4
        s_add_u32 s92, s92, s{sW}
        s_lshl_b32 s92, s92, 6
        s_add_u32 s92, s92, {WS_PROF + 0x40000}
        v_lshlrev_b32 v22, 2, v0
        s_mov_b64 exec, 0xffff
        buffer_store_dword v23, v22, {sr(WS,4)}, s92 offen
        s_mov_b64 exec, -1
        """)
    ST, vCA, E, PK = 144, 20, 112, 128
    vMq, vNe = 24, 30
    a(f"""
    v_and_b32 v3, 31, v{vL}
    s_mul_i32 s{sT0}, s{sG}, {96*16}
    s_add_u32 s{sT0}, s{sT0}, {XB}
    v_lshl_add_u32 v4, v3, 4, s{sT0}
    s_lshl_b32 s{sT0}, s{sR}, 7
    s_add_u32 s{sT0}, s{sT0}, {XFC}
    v_lshl_add_u32 v5, v3, 2, s{sT0}
    v_lshlrev_b32 v1, 4, v{vL}
    v_mov_b32 v{vCA+1}, 0
    s_mul_i32 s{sRT}, s{sRB}, 5
    s_mul_i32 s{sT0}, s{sG}, 3
    s_add_u32 s{sRT}, s{sRT}, s{sT0}
    s_sub_u32 s{sU}, 3, s{sG}
    s_add_u32 s{sU}, s{sU}, s{sRT}
    s_min_u32 s{sU}, s{sU}, 64
    s_lshl_b32 s{sT0}, s{sCB}, 13
    s_lshl_b32 s{sT1}, s{sR}, 11
    s_add_u32 s{sMx}, s{sT0}, s{sT1}
    v_cmp_gt_u32 vcc, 32, v{vL}
    v_mov_b32 v6, {XN}
    """)
    a(f"""
    ds_read_b32 v6, v6
    ds_read_b32 v{vCA}, v5
    ds_read_b128 {vr(ST,4)}, v4
    ds_read_b128 {vr(ST+4,4)}, v4 offset:512
    ds_read_b128 {vr(ST+8,4)}, v4 offset:1024
    s_mov_b32 s{sI}, 0
    s_waitcnt lgkmcnt(3)
    v_cndmask_b32 v{vCA}, 0, v{vCA}, vcc
    v_readfirstlane_b32 s{sN}, v6
    s_sub_u32 s{sT0}, s{sCB}, 5
    s_cmp_lt_u32 s{sT0}, 12
    s_waitcnt lgkmcnt(0)
    v_mfma_f32_32x32x8_bf16 {vr(AC,16)}, {vr(vCA,2)}, {vr(ST,2)}, {vr(AC,16)}
    v_mfma_f32_32x32x8_bf16 {vr(AC+16,16)}, {vr(vCA,2)}, {vr(ST+4,2)}, {vr(AC+16,16)}
    v_mfma_f32_32x32x8_bf16 {vr(AC+32,16)}, {vr(vCA,2)}, {vr(ST+8,2)}, {vr(AC+32,16)}
    s_cbranch_scc0 K1_lin
    s_mul_i32 s{sT3}, s{sR}, 10240
    s_mul_i32 s{sT0}, s{sG}, 6144
    s_add_u32 s{sT3}, s{sT3}, s{sT0}
    s_add_u32 s{sT3}, s{sT3}, {HS}
    v_add_u32 v1, s{sT3}, v1
    s_nop 3
    K1_epiH:
    v_mul_f32 v{vNe}, {f32(-LOG2E)}, v{ST+3}
    """)
    for i in range(8): a(f"v_pk_mul_f32 {vr(E+2*i,2)}, {vr(AC+2*i,2)}, {vr(vNe,2)} op_sel_hi:[1,0]")
    for i in range(16): a(f"v_exp_f32 v{E+i}, v{E+i}")
    for i in range(8): a(f"v_pk_fma_f32 {vr(E+2*i,2)}, {vr(E+2*i,2)}, {vr(ST+2,2)}, {vr(ST+2,2)} op_sel_hi:[1,0,0]")
    for i in range(16): a(f"v_rcp_f32 v{E+i}, v{E+i}")
    for i in range(8): a(f"v_pk_mul_f32 {vr(E+2*i,2)}, {vr(E+2*i,2)}, {vr(AC+2*i,2)}")
    for i in range(8): a(f"v_cvt_pk_bf16_f32 v{PK+i}, v{E+2*i}, v{E+2*i+1}")
    a(f"""
    ds_write_b128 v1, {vr(PK,4)}
    ds_write_b128 v1, {vr(PK+4,4)} offset:1024
    v_add_u32 v1, 2048, v1
    s_add_u32 s{sRT}, s{sRT}, 1
    s_cmp_eq_u32 s{sRT}, s{sU}
    s_cbranch_scc1 {"K1_hd" if PROF else "K2_A"}
    s_add_u32 s{sI}, s{sI}, 1
    s_cmp_eq_u32 s{sI}, 2
    s_cbranch_scc1 K1_e2
    """)
    for i in range(8): a(f"v_pk_mov_b32 {vr(AC+2*i,2)}, {vr(AC+16+2*i,2)}, {vr(AC+16+2*i,2)} op_sel:[0,1]")
    a(f"v_pk_mov_b32 {vr(ST+2,2)}, {vr(ST+6,2)}, {vr(ST+6,2)} op_sel:[0,1]\ns_branch K1_epiH\nK1_e2:")
    for i in range(8): a(f"v_pk_mov_b32 {vr(AC+2*i,2)}, {vr(AC+32+2*i,2)}, {vr(AC+32+2*i,2)} op_sel:[0,1]")
    a(f"v_pk_mov_b32 {vr(ST+2,2)}, {vr(ST+10,2)}, {vr(ST+10,2)} op_sel:[0,1]\ns_branch K1_epiH")
    if PROF:
        a("K1_hd:"); stamp(a, 3); a("s_branch K2_A")
    PQ = 96
    a(f"""
    K1_lin:
    s_cmp_lg_u32 s{sIdle}, 0
    s_cbranch_scc1 K2_A
    s_cmp_eq_u32 s{sCB}, 17
    s_mov_b32 s{sK}, {f32(20 ** -0.5 * LOG2E)}
    s_cselect_b32 s{sK}, 1.0, s{sK}
    v_mul_f32 v{vMq}, s{sK}, v{ST+3}
    v_mul_f32 v{vMq+2}, s{sK}, v{ST+7}
    v_mul_f32 v{vMq+4}, s{sK}, v{ST+11}
    s_mul_i32 s{sT3}, s{sRT}, 40960
    s_add_u32 s{sT3}, s{sT3}, s{sMx}
    s_cmp_eq_u32 s{sCB}, 17
    s_cbranch_scc1 K1_kv
    """)
    a(f"""
    s_lshl_b32 s{sT2}, s{sCB}, 2
    s_add_u32 s{sT2}, s{sT2}, s{sR}
    s_lshl_b32 s{sT2}, s{sT2}, 5
    s_lshl_b32 s{sT0}, s{sRB}, 1
    s_add_u32 s{sT2}, s{sT2}, s{sT0}
    s_add_u32 s{sT2}, s{sT2}, s{sG}
    s_lshl_b32 s{sT2}, s{sT2}, 7
    s_add_u32 s{sT2}, s{sT2}, {WS_F1}
    """)
    for j in range(3):
        if 'qpk' in OPT:
            for i in range(8): a(f"v_pk_mul_f32 {vr(AC+16*j+2*i,2)}, {vr(AC+16*j+2*i,2)}, {vr(vMq+2*j,2)} op_sel_hi:[1,0]")
        else:
            for i in range(16): a(f"v_mul_f32 v{AC+16*j+i}, v{AC+16*j+i}, v{vMq+2*j}")
        for i in range(8): a(f"v_cvt_pk_bf16_f32 v{PQ+8*j+i}, v{AC+16*j+2*i}, v{AC+16*j+2*i+1}")
        a(f"""
        buffer_store_dwordx4 {vr(PQ+8*j,4)}, v1, {sr(WS,4)}, s{sT3} offen sc1
        buffer_store_dwordx4 {vr(PQ+8*j+4,4)}, v1, {sr(WS,4)}, s{sT3} offen offset:1024 sc1
        """)
        if j < 2:
            a(f"""
            s_add_u32 s{sT3}, s{sT3}, 40960
            s_add_u32 s{sT0}, s{sRT}, {j+1}
            s_cmp_ge_u32 s{sT0}, s{sU}
            s_cbranch_scc1 K1_qf
            """)
    a(f"""
    K1_qf:
    s_mov_b32 s64, s{sT2}
    """)
    stamp(a, 3)
    a(f"""
    s_branch K2_A2
    K1_kv:
    """)
    for j in range(3):
        for i in range(12): a(f"v_mul_f32 v{AC+16*j+i}, v{AC+16*j+i}, v{vMq+2*j}")
        for i in range(6): a(f"v_cvt_pk_bf16_f32 v{PQ+8*j+i}, v{AC+16*j+2*i}, v{AC+16*j+2*i+1}")
    a(f"""
    v_lshrrev_b32 v5, 5, v{vL}
    s_bitcmp1_b32 s{sR}, 0
    s_cbranch_scc1 K1_vst
    v_mul_u32_u24 v4, 5120, v5
    v_lshl_add_u32 v4, v3, 4, v4
    v_lshlrev_b32 v5, 4, v3
    """)
    def kvbase(j):
        a(f"""
        s_add_u32 s{sT2}, s{sRT}, {j}
        s_lshr_b32 s{sT0}, s{sT2}, 2
        s_mul_i32 s{sT0}, s{sT0}, 10240
        s_add_u32 s{sT0}, s{sT0}, {WS_KV}
        s_cmp_lt_u32 s{sT2}, s{sU}
        s_cselect_b32 s{sT0}, s{sT0}, {WS_END}
        s_and_b32 s{sT2}, s{sT2}, 3
        """)
    for j in range(3):
        kvbase(j)
        a(f"""
        s_lshl_b32 s{sT1}, s{sT2}, 9
        s_add_u32 s{sT1}, s{sT1}, s{sT0}
        buffer_store_dwordx4 {vr(PQ+8*j,4)}, v4, {sr(WS,4)}, s{sT1} offen sc1
        s_and_b32 s{sT1}, s{sT2}, 1
        s_mul_i32 s{sT1}, s{sT1}, 5120
        s_add_u32 s{sT0}, s{sT0}, s{sT1}
        s_lshr_b32 s{sT1}, s{sT2}, 1
        s_lshl_b32 s{sT1}, s{sT1}, 3
        s_add_u32 s{sT0}, s{sT0}, s{sT1}
        s_mov_b32 exec_lo, 0
        buffer_store_dwordx2 {vr(PQ+8*j+4,2)}, v5, {sr(WS,4)}, s{sT0} offen offset:2048 sc1
        s_mov_b32 exec_lo, -1
        """)
    a(f"""
    s_branch K1_done
    K1_vst:
    s_lshl_b32 s{sT3}, s{sG}, 12
    s_add_u32 s{sT3}, s{sT3}, {XQ+2048}
    v_bfe_u32 v4, v3, 2, 1
    v_mul_u32_u24 v4, 640, v4
    v_lshl_add_u32 v4, v5, 6, v4
    v_lshrrev_b32 v5, 4, v3
    v_mul_u32_u24 v5, 320, v5
    v_add_u32 v4, v4, v5
    v_bfe_u32 v5, v3, 3, 1
    v_lshl_add_u32 v4, v5, 3, v4
    v_and_b32 v5, 3, v3
    v_lshl_add_u32 v4, v5, 1, v4
    v_add_u32 v4, s{sT3}, v4
    v_add_u32 v5, s{sT3}, v1
    """)
    for jj in range(3):
        if jj == 2: a("s_mov_b32 exec_lo, 0")
        for j in range(3):
            o = 1280 * j + 128 * jj - (64 if jj == 2 else 0); p = PQ + 8 * j + 2 * jj
            a(f"""
            ds_write_b16 v4, v{p} offset:{o}
            ds_write_b16_d16_hi v4, v{p} offset:{o+16}
            ds_write_b16 v4, v{p+1} offset:{o+32}
            ds_write_b16_d16_hi v4, v{p+1} offset:{o+48}
            """)
        a("s_waitcnt lgkmcnt(0)")
    a("s_mov_b32 exec_lo, -1\ns_mov_b32 exec_hi, 0xff")
    for j in range(6): a(f"ds_read_b128 {vr(AC+4*j,4)}, v5 offset:{640*j}")
    for j in range(3):
        kvbase(j)
        a(f"""
        s_mul_i32 s{sT1}, s{sT2}, 640
        s_add_u32 s{sT0}, s{sT0}, s{sT1}
        s_add_u32 s{sT1}, s{sT0}, 5120
        s_waitcnt lgkmcnt({4-2*j})
        buffer_store_dwordx4 {vr(AC+8*j,4)}, v1, {sr(WS,4)}, s{sT0} offen offset:2560 sc1
        buffer_store_dwordx4 {vr(AC+8*j+4,4)}, v1, {sr(WS,4)}, s{sT1} offen offset:2560 sc1
        """)
    a("s_mov_b32 exec_hi, -1\ns_branch K1_done")
    sJ, sL, sPst = 34, 35, 36
    WP = 24; vPs = 2
    a(f"""
    K1_aux:
    v_bfe_u32 v{vT+4}, v{vL}, 2, 2
    v_bfe_u32 v{vT+5}, v{vL}, 4, 1
    v_lshl_add_u32 v{vT+4}, v{vT+4}, 1, v{vT+5}
    v_lshl_add_u32 v{vT+4}, v{vT+4}, 2, v{vT+1}
    v_lshlrev_b32 v{vCom}, 3, v{vT+4}
    s_lshl_b32 s{sT0}, s{sT0}, 1
    s_add_u32 s{sT0}, s{sT0}, s{sT1}
    s_sub_u32 s{sT0}, s{sT0}, 30
    s_sub_u32 s{sT2}, s{sT2}, {234-16}
    s_cmp_ge_u32 s{sT1}, 30
    s_cselect_b32 s{sT0}, s{sT0}, s{sT2}
    s_mul_i32 s{sJ}, s{sT0}, 12
    s_add_u32 s{sJ}, s{sJ}, s{sW}
    s_mul_i32 s{sL}, s{sW}, 12288
    v_lshl_add_u32 v{vT+3}, v{vT}, 6, v{vT+3}
    v_lshrrev_b32 v{vT+6}, 2, v{vT+2}
    v_and_b32 v{vT+7}, 3, v{vT+2}
    s_mov_b32 m0, s{sL}
    s_mov_b32 s{WP+3}, 0x00020000
    s_mov_b32 s{sI}, s{sJ}
    s_waitcnt lgkmcnt(0)
    s_mov_b32 s{WS}, s6
    s_mov_b32 s{WS+1}, s7
    s_mov_b32 s{DBG}, s4
    s_mov_b32 s{DBG+1}, s5
    s_mov_b32 s{DBG+2}, 256
    s_mov_b32 s{DBG+3}, 0x00020000
    s_lshl_b32 s{sU}, s{sT0}, 7
    s_add_u32 s{sU}, s{sU}, {WS_F1 + 72*4096}
    s_mov_b64 s[58:59], 1
    K1_a0:
    """)
    def getnonce(lab):
        a(f"""
        v_mov_b32 v5, 0
        s_mov_b32 s{sT3}, 0
        {lab}:
        buffer_load_dword v4, v5, {sr(DBG,4)}, 0 offen sc1
        s_add_u32 s{sT3}, s{sT3}, 1
        s_waitcnt vmcnt(0)
        v_readfirstlane_b32 s{sN}, v4
        s_cmp_gt_u32 s{sT3}, {SPINMAX}
        s_cbranch_scc1 {lab}x
        s_cmp_lg_u32 s{sN}, 0
        s_cbranch_scc1 {lab}x
        s_sleep 8
        s_branch {lab}
        {lab}x:
        """)
    if 'adelay' in OPT:
        a(f"s_cmp_lg_u32 s{sW}, 0\ns_cbranch_scc1 K1_a5")
        getnonce("K1_a7")
        a(f"""
        s_mul_i32 s{sT0}, s{sJ}, 640
        s_add_u32 s{sT0}, s{sT0}, {WS_SC + 4}
        v_mov_b32 v4, s{sT0}
        """)
        poll(a, "K1_a6", 4, 5, WS, sT3)
        a("K1_a5:\ns_barrier")
    a(f"""
    K1_a1:
    s_mul_i32 s{sT0}, s{sI}, 6554
    s_lshr_b32 s{sT0}, s{sT0}, 16
    s_mul_i32 s{sT1}, s{sT0}, 10
    s_sub_u32 s{sT1}, s{sI}, s{sT1}
    s_lshl_b32 s{sT1}, s{sT1}, 7
    s_sub_u32 s{sT2}, s{sT0}, 96
    s_mul_i32 s{sT3}, s{sT2}, 205
    s_lshr_b32 s{sT3}, s{sT3}, 10
    s_mul_i32 s55, s{sT3}, 5
    s_sub_u32 s55, s{sT2}, s55
    s_mul_i32 s{sT3}, s{sT3}, 80
    s_mul_i32 s56, s55, 20
    s_cmp_eq_u32 s55, 4
    s_cselect_b32 s56, 16, s56
    s_cselect_b32 s55, 1, 0
    s_add_u32 s{sT3}, s{sT3}, s56
    s_lshl_b32 s{sT2}, s{sT0}, 4
    s_cmp_lt_u32 s{sT0}, 96
    s_cselect_b32 s{sT3}, s{sT2}, s{sT3}
    s_cselect_b32 s55, 0, s55
    s_cselect_b32 s{WP}, s62, s16
    s_cselect_b32 s{WP+1}, s63, s17
    s_mov_b32 s{WP+2}, {640*1280}
    s_cselect_b32 s{WP+2}, {1536*1280}, s{WP+2}
    s_mul_i32 s{sT3}, s{sT3}, 1280
    s_add_u32 s56, s{sT3}, s{sT1}
    s_cmp_eq_u32 s55, 0
    s_cselect_b32 s{sT2}, 4, 40
    s_movk_i32 s57, {20*1280}
    s_cselect_b32 s57, {8*1280}, s57
    s_add_u32 s57, s57, s56
    v_mad_u32_u24 v{vPs}, v{vT+6}, s{sT2}, v{vT+7}
    v_mul_u32_u24 v{vPs}, 1280, v{vPs}
    v_add_u32 v{vPs}, v{vPs}, v{vT+3}
    buffer_load_dwordx4 v{vPs}, {sr(WP,4)}, s56 offen lds
    s_add_u32 m0, m0, 1024
    s_add_u32 s{sI}, s{sI}, 264
    buffer_load_dwordx4 v{vPs}, {sr(WP,4)}, s57 offen lds
    s_add_u32 m0, m0, 1024
    s_cmp_lt_u32 s{sI}, 1360
    s_cbranch_scc1 K1_a1
    v_lshl_add_u32 v4, v{vT}, 8, v{vCom}
    v_add_u32 v4, s{sL}, v4
    v_and_b32 v5, 15, v{vL}
    v_lshlrev_b32 v5, 4, v5
    v_lshl_add_u32 v5, v{vT}, 8, v5
    v_lshl_add_u32 v5, v{vT+5}, 9, v5
    s_lshl_b32 s{sPst}, s{sJ}, 11
    s_add_u32 s{sPst}, s{sPst}, {WS_WP}
    s_waitcnt vmcnt(0)
    K1_a2:
    ds_read_b64_tr_b16 {vr(32,2)}, v4
    ds_read_b64_tr_b16 {vr(34,2)}, v4 offset:1024
    ds_read_b64_tr_b16 {vr(36,2)}, v4 offset:512
    ds_read_b64_tr_b16 {vr(38,2)}, v4 offset:1536
    v_add_u32 v4, 2048, v4
    s_add_u32 s{sJ}, s{sJ}, 264
    s_waitcnt lgkmcnt(0)
    buffer_store_dwordx4 {vr(32,4)}, v5, {sr(WS,4)}, s{sPst} offen sc1
    buffer_store_dwordx4 {vr(36,4)}, v5, {sr(WS,4)}, s{sPst} offen offset:1024 sc1
    s_add_u32 s{sPst}, s{sPst}, {264*2048}
    s_cmp_lt_u32 s{sJ}, 1360
    s_cbranch_scc1 K1_a2
    """)
    getnonce("K1_a3")
    a(f"""
    s_mov_b32 s62, 0
    s_barrier
    s_cmp_ge_u32 s{sW}, 8
    s_cbranch_scc1 K2_G
    s_cmp_lg_u32 s{sW}, 0
    s_cbranch_scc1 K2_A
    s_branch K1_flag
    K1_done:
    v_mov_b32 v4, 1
    v_mov_b32 v5, 0
    {"s_memtime s[72:73]" if PROF and 'kvs' in OPT else ""}
    s_mov_b64 exec, 1
    s_waitcnt vmcnt(0)
    {"s_memtime s[76:77]" if PROF and 'kvs' in OPT else ""}
    buffer_atomic_add v4, v5, {sr(DBG,4)}, 0 offen offset:128 sc0
    s_mov_b32 s{sU}, {WS_FK}
    s_mov_b64 s[58:59], -1
    s_waitcnt vmcnt(0)
    {"s_memtime s[90:91]" if PROF and 'kvs' in OPT else ""}
    v_readfirstlane_b32 s{sT0}, v4
    s_mov_b64 exec, -1
    s_mul_hi_u32 s{sT1}, s{sT0}, {(1 << 32) // 52 + 1}
    s_mul_i32 s{sT1}, s{sT1}, 52
    s_sub_u32 s{sT0}, s{sT0}, s{sT1}
    s_cmp_lg_u32 s{sT0}, 51
    s_cbranch_scc1 K2_A
    """)
    'kvs' in OPT or stamp(a, 3)
    setflag(a, sU, WS, 4, 5, '-1')
    a("s_branch K2_A\nK1_flag:")
    setflag(a, sU, WS, 4, 5)

def tile_ids(a, sRB, sNB, sT0):
    if 'map84' not in OPT:
        a(f"""
        s_and_b32 s{sT0}, s2, 7
        s_lshl_b32 s{sRB}, s{sT0}, 2
        s_bfe_u32 s{sT0}, s2, 0x20003
        s_add_u32 s{sRB}, s{sRB}, s{sT0}
        s_lshr_b32 s{sNB}, s2, 5
        """)
        return
    a(f"""
    s_and_b32 s{sT0}, s2, 3
    s_lshl_b32 s{sRB}, s{sT0}, 3
    s_bfe_u32 s{sT0}, s2, 0x30003
    s_add_u32 s{sRB}, s{sRB}, s{sT0}
    s_bfe_u32 s{sT0}, s2, 0x10002
    s_lshl_b32 s{sNB}, s{sT0}, 2
    s_lshr_b32 s{sT0}, s2, 6
    s_add_u32 s{sNB}, s{sNB}, s{sT0}
    """)
def wlane(a, vL, vW, vW2, t):
    a(f"""
    v_and_b32 v{vW2}, 15, v{vL}
    v_lshlrev_b32 v{vW2}, 4, v{vW2}
    v_lshrrev_b32 v{t}, 5, v{vL}
    v_lshl_add_u32 v{vW2}, v{t}, 8, v{vW2}
    v_bfe_u32 v{t}, v{vL}, 4, 1
    v_lshl_add_u32 v{vW}, v{t}, 9, v{vW2}
    {"" if 'nozp' in OPT else f"v_lshl_add_u32 v{vW2}, v{t}, 30, v{vW2}"}
    """)

def gen_k2(a):
    sW, sR, sG, sRB, sCB, sHD, sRT = 32, 33, 34, 35, 36, 37, 38
    sI, sT0, sT1, sT2, sSrc, sVm, sSeg, sT3 = 39, 40, 41, 42, 43, 44, 52, 53
    WS, X, OUT = 28, 20, 24
    vL, vA, vD = 0, 1, 2
    QM, QT, KM, KT, V, P, O, S = 4, 8, 12, 20, 24, 40, 56, 72
    R = dict(vA=vA, QM=QM, QT=QT, KM=KM, KT=KT, V=V, P=P, O=O, S=S)
    def aids():
        a(f"""
        s_and_b32 s{sT0}, s2, 3
        s_lshl_b32 s{sRB}, s{sT0}, 2
        s_bfe_u32 s{sT0}, s2, 0x20003
        s_add_u32 s{sRB}, s{sRB}, s{sT0}
        s_bfe_u32 s{sT0}, s2, 0x10002
        s_lshl_b32 s{sCB}, s{sT0}, 3
        s_lshr_b32 s{sT0}, s2, 5
        s_add_u32 s{sCB}, s{sCB}, s{sT0}
        s_and_b32 s{sR}, s{sW}, 3
        s_lshl_b32 s{sRT}, s{sRB}, 2
        s_add_u32 s{sRT}, s{sRT}, s{sR}
        v_lshlrev_b32 v{vD}, 4, v{vL}
        """)
    a(f"K2_A:\ns_mov_b32 s64, {WS_END}\nK2_A2:"); aids()
    a(f"""
    s_lshr_b32 s{sG}, s{sW}, 2
    s_lshl_b32 s{sHD}, s{sCB}, 1
    s_and_b32 s{sT1}, s{sHD}, 2
    s_add_u32 s{sHD}, s{sHD}, s{sG}
    s_mul_i32 s{sT2}, s{sG}, 5
    s_add_u32 s{sT1}, s{sT1}, s{sT2}
    s_mul_i32 s{sT2}, s{sR}, 3072
    s_add_u32 s{sT2}, s{sT2}, {XQ}
    v_and_b32 v{vA}, 31, v{vL}
    v_lshlrev_b32 v{vA}, 4, v{vA}
    v_lshrrev_b32 v3, 5, v{vL}
    v_add_u32 v{P}, s{sT1}, v3
    v_add_u32 v{P+1}, 2, v{P}
    s_add_u32 s{sT1}, s{sT1}, 4
    v_mov_b32 v{P+2}, s{sT1}
    v_add_u32 v{P+3}, s{sT2}, v{vA}
    """)
    for i in range(3):
        a(f"""
        v_lshrrev_b32 v{P+4}, 2, v{P+i}
        v_lshl_add_u32 v{P+5}, v{P+4}, 10, v{P+3}
        v_and_b32 v{P+4}, 1, v{P+i}
        v_lshl_add_u32 v{P+5}, v{P+4}, 9, v{P+5}
        v_and_b32 v{P+4}, 2, v{P+i}
        v_lshl_add_u32 v{P+i}, v{P+4}, 2, v{P+5}
        """)
    a(f"""
    s_mov_b32 s{sVm}, 0x000fffff
    s_mov_b32 s{sVm+1}, 0x000fffff
    v_mul_u32_u24 v3, 5120, v3
    v_add_u32 v{vA}, v{vA}, v3
    v_and_b32 v3, 27, v{vL}
    v_cmp_eq_u32 vcc, 24, v3
    v_mov_b32 v3, 0x3f803f80
    """)
    for i in range(16): a(f"v_mov_b32 v{O+i}, 0")
    for i in range(16): a(f"v_cndmask_b32 v{V+i}, 0, v3, vcc")
    for i in range(4): a(f"v_mov_b32 v{P+12+i}, 0")
    segw = sum(n << (4 * i) for i, n in enumerate(SEGS))
    a(f"""
    s_mov_b32 s{sSeg}, {segw >> 4}
    s_mov_b32 s{sI}, {SEGS[0]}
    s_mov_b32 s{sT3}, 0
    """)
    a(f"""
    s_lshr_b32 s54, s{sHD}, 2
    s_mul_i32 s54, s54, 5
    s_mul_i32 s55, s{sRT}, 40
    s_add_u32 s54, s54, s55
    s_lshl_b32 s54, s54, 10
    s_add_u32 s54, s54, {WS_O}
    s_and_b32 s55, s{sHD}, 3
    s_lshl_b32 s55, s55, 10
    s_add_u32 s55, s55, s54
    s_bfe_u32 s{sT2}, s{sHD}, 0x10001
    s_lshl_b32 s{sT2}, s{sT2}, 9
    s_add_u32 s54, s54, s{sT2}
    s_and_b32 s{sT2}, s{sHD}, 1
    s_lshl_b32 s{sT2}, s{sT2}, 3
    s_add_u32 s54, s54, s{sT2}
    s_add_u32 s54, s54, 4096
    s_lshl_b32 s56, s{sRT}, 5
    s_add_u32 s56, s56, s{sHD}
    s_lshl_b32 s56, s56, 7
    s_add_u32 s56, s56, {WS_F3}
    v_mov_b32 v{S}, -1
    v_mov_b32 v{S+1}, -1
    v_mov_b32 v{S+2}, -1
    v_mov_b32 v{S+3}, -1
    """)
    setflag(a, 64, WS, 10, 11)
    if 'st1' in OPT: stamp(a, 1)
    a("s_waitcnt lgkmcnt(0)\ns_barrier"); stamp(a, 4); a(f"""
    buffer_store_dwordx4 {vr(S,4)}, v{vD}, {sr(WS,4)}, s55 offen sc1
    s_mov_b32 exec_hi, 0
    buffer_store_dwordx2 {vr(S,2)}, v{vD}, {sr(WS,4)}, s54 offen sc1
    {"s_mov_b32 exec_lo, 0xff" if 'pret' in OPT else ""}
    {f"buffer_store_dwordx4 {vr(O,4)}, v{vD}, {sr(WS,4)}, s56 offen sc1" if 'pret' in OPT else ""}
    s_mov_b64 exec, -1
    ds_read_b64 {vr(QT,2)}, v{P+2}
    ds_read_b128 {vr(KT,4)}, v{vA} offset:2048
    ds_read_b64 {vr(QM,2)}, v{P}
    ds_read_b64 {vr(QM+2,2)}, v{P+1}
    ds_read_b128 {vr(KM,4)}, v{vA} offset:0
    ds_read_b128 {vr(KM+4,4)}, v{vA} offset:512
    s_waitcnt lgkmcnt({0 if PROF else 4})
    v_mfma_f32_32x32x4_2b_bf16 {vr(S,32)}, {vr(KT,2)}, {vr(QT,2)}, 0
    s_waitcnt lgkmcnt(0)
    s_nop 15
    s_nop 2
    {MF(vr(S,16), vr(KM,4), vr(QM,4), vr(S,16))}
    {MF(vr(S+16,16), vr(KM+4,4), vr(QM,4), vr(S+16,16))}
    ds_read_b128 {vr(KM,4)}, v{vA} offset:1024
    ds_read_b128 {vr(KM+4,4)}, v{vA} offset:1536
    s_mov_b64 exec, {sr(sVm,2)}
    ds_read_b128 {vr(V,4)}, v{vA} offset:2560
    ds_read_b128 {vr(V+4,4)}, v{vA} offset:2880
    s_mov_b64 exec, -1
    s_nop 7
    .p2align 6
    K2_loop:
    """)
    for l in abody.body(R, 0, (3, 2, 1), sVm): a(l)
    a(f"""
    v_add_u32 v{vA}, 10240, v{vA}
    s_sub_u32 s{sI}, s{sI}, 1
    s_cmp_lg_u32 s{sI}, 0
    s_cbranch_scc1 K2_loop
    s_and_b32 s{sI}, s{sSeg}, 15
    s_cbranch_scc0 K2_exit
    s_lshr_b32 s{sSeg}, s{sSeg}, 4
    s_barrier
    s_branch K2_loop
    K2_exit:
    """); stamp(a, 5); a(f"""
    {MF(vr(O,16), vr(V+12,4), vr(P+12,4), vr(O,16))}
    s_mov_b32 s46, {f32(2.0**-64)}
    s_mov_b32 s47, {f32(2.0**64)}
    s_nop 9
    v_cmp_nle_f32 vcc, s46, v{O+12}
    v_cmp_nge_f32 s[46:47], s47, v{O+12}
    s_waitcnt lgkmcnt(0)
    s_or_b64 vcc, vcc, s[46:47]
    s_cbranch_scc1 K2_slow
    K2_fin:
    v_rcp_f32 v{P}, v{O+12}
    v_mov_b32 v4, s{sN}
    v_lshlrev_b32 v5, 2, v{vL}
    s_waitcnt vmcnt(0)
    """)
    if 'flagfirst' in OPT: a(f"s_mov_b64 exec, 1\nbuffer_store_dword v4, v5, {sr(WS,4)}, s56 offen sc1\ns_mov_b64 exec, -1\ns_and_b32 s{sT0}, s2, 1\ns_cbranch_scc1 K2_ff\ns_sleep 127\ns_sleep 127\nK2_ff:")
    for i in range(12): a(f"v_mul_f32 v{O+i}, v{O+i}, v{P}")
    for i in range(6): a(f"v_cvt_pk_bf16_f32 v{S+i}, v{O+2*i}, v{O+2*i+1}")
    a(f"""
    buffer_store_dwordx4 {vr(S,4)}, v{vD}, {sr(WS,4)}, s55 offen sc1
    s_mov_b32 exec_hi, 0
    buffer_store_dwordx2 {vr(S+4,2)}, v{vD}, {sr(WS,4)}, s54 offen sc1
    {"" if 'fline' in OPT else "s_mov_b64 exec, 1"}
    buffer_store_dword v4, v5, {sr(WS,4)}, s56 offen sc1
    s_mov_b64 exec, -1
    """)
    if 'p3' in OPT: stamp(a, 1)
    if 'p3' in OPT: stamp(a, 2)
    a("s_barrier")
    if 'p3' in OPT: stamp(a, 3)
    sKQ, sRB2, sNB, sH0, sH1, sWp = 33, 35, 36, 46, 47, 48
    XR = 104; RR = 108
    def fin_prep():
        tile_ids(a, sRB2, sNB, sT0)
        srd(a, X, 8, 2048*1280); srd(a, OUT, 18, 2048*1280)
        a(f"""
        s_lshl_b32 s{sT0}, s{sW}, 6
        v_add_u32 v4, s{sT0}, v{vL}
        v_mul_u32_u24 v5, 6554, v4
        v_lshrrev_b32 v5, 16, v5
        v_mul_u32_u24 v5, {1280-160}, v5
        v_lshlrev_b32 v4, 4, v4
        v_add_u32 v5, v5, v4
        s_mul_i32 s{sT3}, s{sRB2}, {64*1280}
        s_mul_i32 s{sT1}, s{sNB}, 160
        s_add_u32 s{sT3}, s{sT3}, s{sT1}
        v_add_u32 v6, 51200, v4
        buffer_load_dwordx4 {vr(XR,4)}, v5, {sr(X,4)}, s{sT3} offen
        """)
    fin_prep()
    a("K3_bar:\ns_barrier")
    if 'p3' in OPT: stamp(a, 4); a("s_waitcnt lgkmcnt(0)")
    for p in range(4):
        for h in range(2): a(f"ds_read_b128 {vr(RR+8*p+4*h,4)}, v{4 if p < 2 else 6} offset:{(p%2)*25600 + h*10240}")
    a("s_waitcnt vmcnt(0)")
    for i in range(4): a(f"v_lshlrev_b32 v{8+2*i}, 16, v{XR+i}\nv_and_b32 v{9+2*i}, 0xffff0000, v{XR+i}")
    for p in range(4):
        a(f"s_waitcnt lgkmcnt({6-2*p})")
        for i in range(4): a(f"v_pk_add_f32 {vr(8+2*i,2)}, {vr(8+2*i,2)}, {vr(RR+8*p+2*i,2)}")
    for i in range(4): a(f"v_cvt_pk_bf16_f32 v{XR+i}, v{8+2*i}, v{9+2*i}")
    a(f"buffer_store_dwordx4 {vr(XR,4)}, v5, {sr(OUT,4)}, s{sT3} offen {os.environ.get('OUTF', '')}\nK_pe:")
    prof_end(a, 0, WS, sW)
    a("K_end:\ns_endpgm")
    vW, vW2 = 1, 3
    ACC, FR = 8, 104
    a("K2_G:"); aids()
    def fill(n, lab):
        a(f"""
        s_mov_b32 s{sI}, {n}
        {lab}:
        buffer_load_dwordx4 v{vD}, {sr(WS,4)}, s{sSrc} offen sc1 lds
        s_add_u32 s{sSrc}, s{sSrc}, 4096
        s_add_u32 m0, m0, 4096
        s_sub_u32 s{sI}, s{sI}, 1
        s_cmp_lg_u32 s{sI}, 0
        s_cbranch_scc1 {lab}
        """)
    rowidx(a, sT1, sRT, sT0)
    a(f"""
    s_lshl_b32 s{sT0}, s{sR}, 10
    s_add_u32 s{sSrc}, s{sT0}, {WS_KV}
    s_mov_b32 m0, s{sT0}
    s_mul_i32 s{sT2}, s{sCB}, 10
    s_lshr_b32 s{sT2}, s{sT2}, 2
    v_and_b32 v4, 2, v{vL}
    v_add_u32 v4, s{sT2}, v4
    v_lshrrev_b32 v4, 1, v4
    v_lshl_add_u32 v4, v4, 5, s{sT1}
    v_lshlrev_b32 v4, 7, v4
    v_add_u32 v4, {WS_F1}, v4
    s_and_b32 s{sT0}, s2, 63
    s_lshl_b32 s{sT0}, s{sT0}, 8
    s_add_u32 s{sT0}, s{sT0}, {WS_FK}
    v_writelane_b32 v4, s{sT0}, 0
    s_mul_i32 s54, s{sRT}, 40
    s_add_u32 s54, s54, s{sT2}
    s_lshl_b32 s54, s54, 10
    s_mov_b32 s{sT3}, 0
    s_mov_b32 s{sSeg}, 1
    buffer_load_dword v5, v4, {sr(WS,4)}, 0 offen sc1
    """)
    tile_ids(a, sRB2, sNB, sT0)
    wlane(a, vL, vW, vW2, 6)
    a(f"""
    K2_p1:
    s_waitcnt vmcnt(0)
    v_cmp_ne_u32 vcc, s{sN}, v5
    s_add_u32 s{sT3}, s{sT3}, 1
    s_cmp_ge_u32 s{sT3}, {SPINMAX}
    s_cselect_b64 vcc, 0, vcc
    s_andn2_b32 s{sT0}, s{sSeg}, vcc_lo
    s_cbranch_scc0 K2_p1b
    s_mov_b32 s{sSeg}, 0
    """)
    stamp(a, 2)
    fill(NF1, "K2_f1")
    a(f"""
    K2_p1b:
    s_cmp_eq_u64 vcc, 0
    s_cbranch_scc1 K2_p1x
    s_sleep {SLP}
    buffer_load_dword v5, v4, {sr(WS,4)}, 0 offen sc1
    s_branch K2_p1
    K2_p1x:
    s_mov_b32 s{sSeg}, m0
    s_mul_i32 s{sT1}, s{sR}, 3072
    s_add_u32 m0, s{sT1}, {XQ}
    s_nop 0
    """)
    for i in range(3): a(f"buffer_load_dwordx4 v{vD}, {sr(WS,4)}, s54 offen offset:{1024*i} sc1 lds")
    a(f"""
    s_mov_b32 m0, s{sSeg}
    s_setprio 3
    s_waitcnt vmcnt(0)
    s_barrier
    """); stamp(a, 3)
    a(f"""
    s_mul_i32 s{sT0}, s{sR}, 10240
    s_add_u32 s{sT0}, s{sT0}, {HS}
    v_add_u32 v4, s{sT0}, v{vD}
    """)
    for i in range(10): a(f"ds_read_b128 {vr(FR+4*i,4)}, v4 offset:{1024*i}")
    fill(10, "K2_f2")
    a(f"""
    s_waitcnt vmcnt(0) lgkmcnt(0)
    s_barrier
    s_cmp_eq_u32 s62, 0
    s_cbranch_scc1 K2_nh
    """)
    for j in range(5):
        if j == 4: a(f"s_cmp_lt_u32 s62, {WS_H + 64*96*1024}\ns_cselect_b32 s62, s62, {WS_END}")
        a(f"""
        buffer_store_dwordx4 {vr(FR+8*j,4)}, v{vD}, {sr(WS,4)}, s62 offen sc1
        buffer_store_dwordx4 {vr(FR+8*j+4,4)}, v{vD}, {sr(WS,4)}, s62 offen offset:1024 sc1
        s_add_u32 s62, s62, {96*1024}
        """)
    a("K2_nh:")
    fill(25, "K2_f3")
    a(f"""
    s_cmp_eq_u32 s62, 0
    s_cselect_b32 s63, {WS_END}, s63
    v_mov_b32 v4, s{sN}
    v_mov_b32 v5, 0
    s_mov_b64 exec, 1
    s_waitcnt vmcnt(25)
    buffer_store_dword v4, v5, {sr(WS,4)}, s63 offen sc1
    s_mov_b64 exec, -1
    s_waitcnt vmcnt(1)
    s_barrier
    """)
    a(f"s_lshl_b32 s{sT2}, s{sRB2}, 1")
    rowidx(a, sH0, sT2, sT0)
    a(f"s_add_u32 s{sT2}, s{sT2}, 1")
    rowidx(a, sH1, sT2, sT0)
    a(f"""
    v_and_b32 v4, 1, v{vL}
    v_cmp_eq_u32 vcc, 0, v4
    v_mov_b32 v4, s{sH0}
    v_mov_b32 v5, s{sH1}
    v_cndmask_b32 v4, v5, v4, vcc
    v_and_b32 v4, 30, v4
    v_lshrrev_b32 v5, 1, v{vL}
    v_min_u32 v5, 11, v5
    s_mul_i32 s{sT0}, s{sKQ}, 12
    s_add_u32 s{sT0}, s{sT0}, 20
    v_add_u32 v5, s{sT0}, v5
    v_lshl_add_u32 v4, v5, 5, v4
    v_cmp_gt_u32 vcc, 32, v{vL}
    v_min_u32 v5, 53, v{vL}
    v_add_u32 v5, {72*32 - 32}, v5
    v_cndmask_b32 v4, v5, v4, vcc
    v_lshlrev_b32 v4, 7, v4
    v_add_u32 v4, {WS_F1}, v4
    s_mul_i32 s{sH0}, s{sRB2}, 192
    s_mul_i32 s{sT0}, s{sKQ}, 24
    s_add_u32 s{sH0}, s{sH0}, s{sT0}
    s_lshl_b32 s{sH0}, s{sH0}, 10
    s_add_u32 s{sH0}, s{sH0}, {WS_H}
    s_add_u32 s{sH1}, s{sH0}, {96*1024}
    s_mul_i32 s{sWp}, s{sT0}, 20480
    s_mul_i32 s{sT0}, s{sNB}, 2560
    s_add_u32 s{sWp}, s{sWp}, s{sT0}
    s_add_u32 s{sWp}, s{sWp}, {WS_WP}
    """)
    if 'st3' in OPT: stamp(a, 2)
    poll(a, "K2_p3", 4, 5, WS, sT3)
    stamp(a, 1)
    def gload(j):
        b = FR + 20 * j
        a(f"""
        buffer_load_dwordx4 {vr(b,4)}, v{vD}, {sr(WS,4)}, s{sH0} offen offset:{1024*j} sc1
        buffer_load_dwordx4 {vr(b+4,4)}, v{vD}, {sr(WS,4)}, s{sH1} offen offset:{1024*j} sc1
        buffer_load_dwordx4 {vr(b+8,4)}, v{vW}, {sr(WS,4)}, s{sWp} offen sc1
        buffer_load_dwordx4 {vr(b+12,4)}, v{vW}, {sr(WS,4)}, s{sWp} offen offset:1024 sc1
        buffer_load_dwordx4 {vr(b+16,4)}, v{vW2}, {sr(WS,4)}, s{sWp} offen offset:2048 sc1
        s_add_u32 s{sWp}, s{sWp}, 20480
        """)
    for j in range(3): gload(j)
    a(f"""
    s_lshl_b32 s{sT0}, s{sRB2}, 3
    s_add_u32 s{sT0}, s{sT0}, s{sKQ}
    s_lshl_b32 s{sT0}, s{sT0}, 10
    s_add_u32 s{sT0}, s{sT0}, {WS_F3}
    v_and_b32 v7, 39, v{vL}
    v_lshl_add_u32 v7, v7, 7, s{sT0}
    s_setprio {GPRIO}
    s_mov_b32 s{sI}, {8 - DEF}
    s_mov_b32 s{sSeg}, 0
    s_waitcnt vmcnt(10)
    """)
    def mm6(aw, bo, zero=False):
        for t in range(3):
            for r in range(2):
                a(MF(vr(ACC+48*r+16*t,16), vr(aw+4*t,4), vr(bo+4*r,4), "0" if zero else vr(ACC+48*r+16*t,16)))
    mm6(FR + 8, FR, True)
    a("s_branch K2_Gm\nK2_Gl:")
    for j in range(3):
        b = FR + 20 * j
        a("s_waitcnt vmcnt(10)")
        mm6(b + 8, b)
        if j == 0: a(f"K2_Gm:\ns_add_u32 s{sH0}, s{sH0}, 3072\ns_add_u32 s{sH1}, s{sH1}, 3072")
        gload(j)
    a(f"""
    s_sub_u32 s{sI}, s{sI}, 1
    s_cmp_lg_u32 s{sI}, 0
    s_cbranch_scc1 K2_Gl
    s_cmp_lg_u32 s{sSeg}, 0
    s_cbranch_scc1 K2_Gt
    """); 'st2' in OPT or stamp(a, 4)
    sWo, sO0, sO1 = 54, 55, 56
    OA = 88
    def oaddr(j):
        a(f"""
        s_add_u32 s{OA+2*(j%4)}, s{sO0}, s49
        s_add_u32 s{OA+2*(j%4)+1}, s{sO1}, s49
        s_add_u32 s49, s49, 1024
        s_cmp_eq_u32 s49, 10240
        s_cselect_b32 s49, 0, s49
        """)
    a(f"""
    s_setprio 3
    s_mul_i32 s{sT2}, s{sKQ}, 25600
    s_mul_i32 s{sWo}, s{sKQ}, {10*20480}
    s_mul_i32 s{sT0}, s{sNB}, 2560
    s_add_u32 s{sWo}, s{sWo}, s{sT0}
    s_add_u32 s{sWo}, s{sWo}, {WS_WP + 96*20480}
    s_mov_b32 m0, s{sT2}
    v_add_u32 v4, s{sT2}, v{vW}
    v_add_u32 v6, s{sT2}, v{vW2}
    s_mul_i32 s{sO0}, s{sRB2}, 80
    s_mul_i32 s{sT0}, s{sKQ}, 10
    s_add_u32 s{sO0}, s{sO0}, s{sT0}
    s_lshl_b32 s{sO0}, s{sO0}, 10
    s_add_u32 s{sO0}, s{sO0}, {WS_O}
    s_add_u32 s{sO1}, s{sO0}, 40960
    s_mul_i32 s49, s{sNB}, {ROT3}
    s_lshr_b32 s49, s49, 2
    s_mul_i32 s{sT0}, s49, 20480
    s_add_u32 s50, s{sWo}, {10*20480}
    s_add_u32 s{sWo}, s{sWo}, s{sT0}
    s_lshl_b32 s49, s49, 10
    s_mov_b32 s{sI}, 10
    s_barrier
    K2_f4:
    buffer_load_dwordx4 v{vD}, {sr(WS,4)}, s{sWo} offen sc1 lds
    buffer_load_dwordx4 v{vD}, {sr(WS,4)}, s{sWo} offen offset:1024 sc1 lds
    s_mov_b32 exec_hi, 0
    buffer_load_dwordx4 v{vD}, {sr(WS,4)}, s{sWo} offen offset:2048 sc1 lds
    s_mov_b32 exec_hi, -1
    s_add_u32 s{sWo}, s{sWo}, 20480
    s_cmp_eq_u32 s{sWo}, s50
    s_cselect_b32 s{sT0}, {10*20480}, 0
    s_sub_u32 s{sWo}, s{sWo}, s{sT0}
    s_add_u32 m0, m0, 2560
    s_sub_u32 s{sI}, s{sI}, 1
    s_cmp_lg_u32 s{sI}, 0
    s_cbranch_scc1 K2_f4
    """)
    FO, FW = 104, 140
    def wread(j):
        b = FW + 12 * (j % 2)
        a(f"""
        ds_read_b128 {vr(b,4)}, v4 offset:{2560*j}
        ds_read_b128 {vr(b+4,4)}, v4 offset:{2560*j+1024}
        ds_read_b128 {vr(b+8,4)}, v6 offset:{2560*j+2048}
        """)
    def oissue(j):
        b = FO + 8 * (j % 4)
        a(f"""
        buffer_load_dwordx4 {vr(b,4)}, v{vD}, {sr(WS,4)}, s{OA+2*(j%4)} offen sc1
        buffer_load_dwordx4 {vr(b+4,4)}, v{vD}, {sr(WS,4)}, s{OA+2*(j%4)+1} offen sc1
        """)
    for j in range(4): oaddr(j)
    a(f"""
    s_mov_b32 s51, {SPINMAX}
    s_mov_b32 s{sI}, {DEF - 1}
    s_mov_b32 s{sSeg}, 1
    s_waitcnt vmcnt(0)
    s_barrier
    """)
    if 'p3' in OPT: stamp(a, 1)
    if DEF > 1: a("s_branch K2_Gl")
    a(f"K2_Gt:\nbuffer_load_dword v5, v7, {sr(WS,4)}, 0 offen sc1")
    for j in range(3):
        a(f"s_waitcnt vmcnt({11 - 5*j})")
        mm6(FR + 20 * j + 8, FR + 20 * j)
    wread(0); wread(1)
    a(f"""
    s_waitcnt vmcnt(0)
    v_cmp_ne_u32 vcc, s{sN}, v5
    s_cbranch_vccz K2_p4x
    """)
    poll(a, "K2_p4", 7, 5, WS, sT3)
    'st2' in OPT or stamp(a, 5)
    for j in range(4): oissue(j)
    retry = []
    for j in range(10):
        later = min(j + 3, 9) - j
        b = FO + 8 * (j % 4)
        a(f"""
        s_waitcnt vmcnt({2*later}) lgkmcnt({0 if (j == 9 or PROF) else 3})
        K3_c{j}:
        v_max3_u32 v5, v{b}, v{b+2}, v{b+4}
        v_max_u32 v5, v5, v{b+6}
        v_cmp_eq_u32 vcc, -1, v5
        s_cbranch_vccnz K3_r{j}
        K3_m{j}:
        """)
        mm6(FW + 12 * (j % 2), b)
        if j + 4 < 10: oaddr(j + 4); oissue(j + 4)
        if j + 2 < 10: wread(j + 2)
    def retries():
        for j in range(10):
            a(f"K3_r{j}:\ns_cmp_eq_u32 s51, 0\ns_cbranch_scc1 K3_m{j}\ns_sub_u32 s51, s51, 1")
            oissue(j)
            a(f"s_waitcnt vmcnt(0)\ns_branch K3_c{j}")
    if 'p3' in OPT: stamp(a, 2)
    fin_prep()
    a(f"""
    v_and_b32 v7, 31, v{vL}
    v_mul_u32_u24 v7, 160, v7
    v_lshrrev_b32 v{RR}, 5, v{vL}
    v_mul_u32_u24 v{RR}, 10240, v{RR}
    v_add3_u32 v7, v7, v{RR}, s{sT2}
    """)
    for r in range(2):
        for o in range(10): a(f"ds_write_b128 v7, {vr(ACC+48*r+4*o,4)} offset:{5120*r+16*o}")
    a(f"""
    s_waitcnt lgkmcnt(0)
    {"s_memtime s[76:77]" if PROF and 'p3' in OPT else ""}
    s_cmp_lt_u32 s{sW}, 10
    s_cbranch_scc1 K3_bar
    s_barrier
    {"s_branch K_pe" if PROF else "s_endpgm"}
    """)
    retries()
    vMx = 3
    sP, sO1, sO2, sO3 = 48, 49, 50, 51
    a(f"""
    K_last:
    K2_slow:
    v_subrev_u32 v{vA}, {16*10240}, v{vA}
    v_mov_b32 v{vMx}, 0xff800000
    s_mov_b32 s{sP}, 0
    """)
    for i in range(16): a(f"v_mov_b32 v{O+i}, 0")
    a(f"""
    K2_sp:
    s_mov_b32 s{sI}, 0
    K2_sl:
    s_lshr_b32 s{sT0}, s{sI}, 1
    s_mul_i32 s{sT0}, s{sT0}, 10240
    s_add_u32 s{sT0}, s{sT0}, {WS_KV}
    s_and_b32 s{sT1}, s{sI}, 1
    s_lshl_b32 s{sO1}, s{sT1}, 10
    s_add_u32 s{sO1}, s{sO1}, s{sT0}
    s_lshl_b32 s{sO2}, s{sT1}, 3
    s_add_u32 s{sO2}, s{sO2}, s{sT0}
    s_mul_i32 s{sO3}, s{sT1}, 1280
    s_add_u32 s{sO3}, s{sO3}, s{sT0}
    buffer_load_dwordx4 {vr(KM,4)}, v{vA}, {sr(WS,4)}, s{sO1} offen sc1
    buffer_load_dwordx4 {vr(KM+4,4)}, v{vA}, {sr(WS,4)}, s{sO1} offen offset:512 sc1
    buffer_load_dwordx2 {vr(KT,2)}, v{vA}, {sr(WS,4)}, s{sO2} offen offset:2048 sc1
    s_mov_b64 exec, {sr(sVm,2)}
    """)
    for f in range(4): a(f"buffer_load_dwordx4 {vr(V+4*f,4)}, v{vA}, {sr(WS,4)}, s{sO3} offen offset:{2560+320*f} sc1")
    a(f"""
    s_mov_b64 exec, -1
    s_waitcnt vmcnt(0)
    v_mfma_f32_32x32x4_2b_bf16 {vr(S,32)}, {vr(KT,2)}, {vr(QT,2)}, 0
    s_nop 15
    s_nop 3
    {MF(vr(S,16), vr(KM,4), vr(QM,4), vr(S,16))}
    {MF(vr(S+16,16), vr(KM+4,4), vr(QM,4), vr(S+16,16))}
    s_cmp_lg_u32 s{sP}, 0
    s_nop 12
    s_cbranch_scc1 K2_sp2
    """)
    for i in range(16): a(f"v_max3_f32 v{vMx}, v{S+2*i}, v{S+2*i+1}, v{vMx}")
    a("s_branch K2_snext\nK2_sp2:")
    for i in range(32): a(f"v_sub_f32 v{S+i}, v{S+i}, v{vMx}")
    for i in range(32): a(f"v_exp_f32 v{S+i}, v{S+i}")
    a("s_nop 0")
    for i in range(16): a(f"v_cvt_pk_bf16_f32 v{P+i}, v{S+2*i}, v{S+2*i+1}")
    a("s_nop 1")
    for f in range(4): a(MF(vr(O,16), vr(V+4*f,4), vr(P+4*f,4), vr(O,16)))
    a(f"""
    s_nop 15
    K2_snext:
    s_add_u32 s{sI}, s{sI}, 1
    s_cmp_lt_u32 s{sI}, 32
    s_cbranch_scc1 K2_sl
    s_cmp_lg_u32 s{sP}, 0
    s_cbranch_scc1 K2_fin
    v_mov_b32 v{P}, v{vMx}
    s_nop 1
    v_permlane32_swap_b32 v{P}, v{vMx}
    s_mov_b32 s{sP}, 1
    v_max_f32 v{vMx}, v{vMx}, v{P}
    s_branch K2_sp
    """)
    return 164

def main(out):
    a = Asm()
    gen_k1(a); n = gen_k2(a)
    head = f"""; LayerNorm + MQA attention + SiLU FFN in one launch (generated by work/gen8.py)
; @launch grid=(256,1,1) block=(768,1,1) lds=163840
.amdgcn_target "amdgcn-amd-amdhsa--gfx950"
.text
"""
    tail = '.section .rodata,"a"\n' + kdesc(KN, n)
    txt = a.text()
    import re
    if 'pollsys' in OPT: txt = re.sub(r"(buffer_load_dword v\d+, v\d+, s\[28:31\], 0 offen) sc1", r"\1 sc0 sc1", txt)
    if 'flagsys' in OPT: txt = re.sub(r"(buffer_store_dword v\d+, v\d+, s\[28:31\], s\d+ offen) sc1", r"\1 sc0 sc1", txt)
    if 'flagatom' in OPT: txt = re.sub(r"buffer_store_dword (v\d+, v\d+, s\[28:31\], s\d+ offen) sc1", r"buffer_atomic_swap \1", txt)
    if 'allsys' in OPT: txt = re.sub(r"(?<!sc0) sc1", " sc0 sc1", txt)
    if 'rt' in OPT: txt = txt.replace("s_memtime", "s_memrealtime")
    open(out, "w").write(head + txt + tail)

if __name__ == "__main__":
    if "--prof" in sys.argv:
        PROF = True; sys.argv.remove("--prof")
    main(sys.argv[1] if len(sys.argv) > 1 else f"cdna_kernels/{NAME}.s")
```

```python
import sys, math, os, struct
import abody, kbody
OPT = set(os.environ.get('OPT', '').split(','))
NAME = "parallel_sum__grouped_kv_mqa__dense_activation_silu__prompt"
WS_Q, WS_KV, WS_H, WS_O, WS_WP, WS_Y, WS_PROF, WS_END = 0, 0x300000, 0x340000, 0x940000, 0xD00000, 0x1000000, 0xC00000, 0x1500000
WS_SR, WS_SC = 0x280000, 0x2D2000
WS_F1, WS_F3, WS_FK = 0x1000000, 0x1080000, 0x1060000
SLP = int(os.environ.get('SLP', '4'))
XB = 147456; XFC, XN, XQ = XB + 2560, XB + 3072, XB + 4096
sN = 68
KN = NAME + '_kernel'
SPINMAX = 20000
ROTR, ROTC = (int(c) for c in os.environ.get('ROT', '3,3').split(','))
PRE = int(os.environ.get('PRE', '2'))
PRE_CTRL = """s_or_b32 s{sT0}, s{sI}, 2
    s_cmp_eq_u32 s{sT0}, 3
    s_cbranch_scc1 K1_issue
    s_cmp_lg_u32 s{sI}, 2
    s_cbranch_scc1 K1_w18""" if PRE == 2 else """s_cmp_lt_u32 s{sI}, %d
    s_cbranch_scc1 K1_issue
    s_cmp_lg_u32 s{sI}, %d
    s_cbranch_scc1 K1_w18""" % (PRE, PRE)
CSAT = int(os.environ.get('CSAT', '2'))
NF1 = 5
HS = 102400
SEGS = eval(os.environ.get('SEGS', '[1, 3, 10, 2]'))
DEEP = int(os.environ.get('DEEP', '99'))
GPRIO = int(os.environ.get('GPRIO', '0'))
ROT3 = int(os.environ.get('ROT3', '5'))
RW = int(os.environ.get('RW', '10')); RMUL = int(os.environ.get('RMUL', '3'))
TSH = int(os.environ.get('TSH', '0'))
DEF = int(os.environ.get('DEF', '2'))
HDLY = int(os.environ.get('HDLY', '0'))
HOOK = int(os.environ.get('HOOK', '2'))
LOG2E = 1.4426950408889634
def f32(x): return "0x%08x" % struct.unpack("<I", struct.pack("<f", x))[0]

class Asm:
    def __init__(self): self.l = []
    def __call__(self, s):
        for x in s.strip("\n").split("\n"):
            x = x.strip()
            if x: self.l.append(("" if x.endswith(":") else "    ") + x)
    def text(self): return "\n".join(self.l) + "\n"
def vr(a, n): return "v[%d:%d]" % (a, a + n - 1)
def ar(a, n): return "a[%d:%d]" % (a, a + n - 1)
def sr(a, n): return "s[%d:%d]" % (a, a + n - 1)
def srd(a, d, base, nbytes):
    a(f"s_mov_b32 s{d}, s{base}\ns_mov_b32 s{d+1}, s{base+1}\ns_mov_b32 s{d+2}, {nbytes}\ns_mov_b32 s{d+3}, 0x00020000")
def kdesc(name, vgpr, agpr=0, sgpr=102):
    acc = (vgpr + 3) // 4 * 4
    return f""".p2align 6
.amdhsa_kernel {name}
  .amdhsa_next_free_vgpr {acc + agpr if agpr else vgpr}
  .amdhsa_next_free_sgpr {sgpr}
  .amdhsa_accum_offset {acc}
  .amdhsa_group_segment_fixed_size 0
  .amdhsa_kernarg_size 88
  .amdhsa_user_sgpr_count 2
  .amdhsa_user_sgpr_kernarg_segment_ptr 1
  .amdhsa_system_sgpr_workgroup_id_x 1
.end_amdhsa_kernel
"""
def khead(a, name): a.l.append(f".globl {name}\n.p2align 8\n.type {name},@function\n{name}:")
PROF = False
DIAGX = int(os.environ.get('DIAGX', '0'))
DIAGC = os.environ.get('DIAGC', '')
def stamp(a, i):
    if DIAGX:
        a(f"{'s_memtime' if DIAGC else 's_memrealtime'} s[{70+2*i}:{71+2*i}]")
        return
    if 'dbgt' in OPT:
        a(f"s_memrealtime s[{70+2*i}:{71+2*i}]")
        if i == 0: a("s_mov_b32 s72, 0\ns_mov_b32 s74, 0\ns_mov_b32 s76, 0")
        return
    if PROF:
        a(f"s_memtime s[{70+2*i}:{71+2*i}]")
        if i == 0: a("s_memrealtime s[84:85]")
def prof_end(a, kidx, WS, sW):
    if DIAGX:
        a(f"""
        s_cmp_lg_u32 s{sW}, {DIAGC.split(',')[1] if DIAGC else 0}
        s_cbranch_scc1 K_end
        s_cmp_lg_u32 s2, {int(os.environ.get('DIAGWG', '40'))}
        s_cbranch_scc1 K_end
        s_waitcnt vmcnt(0)
        s_memrealtime s[82:83]
        s_waitcnt lgkmcnt(0)
        {f"s_sub_u32 s84, s{70+2*DIAGX}, s70" if DIAGX < 7 else f"s_sub_u32 s84, s70, s{sN}"}
        {"s_add_u32 s84, s84, 1500" if DIAGX == 7 else ""}
        s_lshl_b32 s84, s84, 2
        {f"s_sub_u32 s84, s{70+2*DIAGX}, s{70+2*int(DIAGC.split(',')[0])}" if DIAGC else ""}
        {"s_lshr_b32 s84, s84, 2" if DIAGC else ""}
        K_dl:
        s_memrealtime s[86:87]
        s_waitcnt lgkmcnt(0)
        s_sub_u32 s86, s86, s82
        s_cmp_lt_u32 s86, s84
        s_cbranch_scc1 K_dl
        """)
        return
    if 'dbgt' in OPT:
        a(f"""
        s_cmp_lg_u32 s{sW}, 0
        s_cbranch_scc1 K_end
        s_waitcnt vmcnt(0)
        s_memrealtime s[82:83]
        s_mov_b32 s20, s4
        s_mov_b32 s21, s5
        s_mov_b32 s22, 256
        s_mov_b32 s23, 0x00020000
        s_mov_b64 exec, 1
        v_mov_b32 v0, 0
        s_waitcnt lgkmcnt(0)
        s_not_b32 s84, s70
        v_mov_b32 v1, s84
        buffer_atomic_umax v1, v0, s[20:23], 0 offen offset:4
        """)
        for i in range(7):
            a(f"v_mov_b32 v{2+i}, s{70+2*i}\nbuffer_atomic_umax v{2+i}, v0, s[20:23], 0 offen offset:{8+4*i}")
        return
    if not PROF: return
    a(f"""
    s_waitcnt vmcnt(0)
    s_memtime s[82:83]
    s_memrealtime s[86:87]
    s_mov_b64 exec, -1
    s_waitcnt lgkmcnt(0)
    s_lshl_b32 s88, s2, 4
    s_add_u32 s88, s88, s{sW}
    s_lshl_b32 s88, s88, 6
    s_add_u32 s88, s88, {WS_PROF + kidx * 0x40000}
    v_mov_b32 v0, 0
    """)
    if 'kvs' in OPT: a("s_mov_b32 s80, s90")
    if 'lacc' in OPT: a(f"s_cmp_lt_u32 s{sW}, 8\ns_cbranch_scc1 K_pe2\ns_add_u32 s76, s70, s95\ns_add_u32 s78, s70, s96\ns_add_u32 s80, s70, s97\nK_pe2:")
    for i in range(7): a(f"v_mov_b32 v{4+i}, s{70+2*i}")
    a(f"""
    v_mov_b32 v11, s84
    v_mov_b32 v12, s86
    v_mov_b32 v13, 0
    v_mov_b32 v14, 0
    v_mov_b32 v15, 0
    s_mov_b64 exec, 1
    buffer_store_dwordx4 v[4:7], v0, {sr(WS,4)}, s88 offen
    buffer_store_dwordx4 v[8:11], v0, {sr(WS,4)}, s88 offen offset:16
    buffer_store_dwordx4 v[12:15], v0, {sr(WS,4)}, s88 offen offset:32
    """)
def poll(a, lab, vaddr, vtmp, WS, sCnt):
    a(f"""
    s_mov_b32 s{sCnt}, 0
    {lab}:
    buffer_load_dword v{vtmp}, v{vaddr}, {sr(WS,4)}, 0 offen sc1
    s_add_u32 s{sCnt}, s{sCnt}, 1
    s_waitcnt vmcnt(0)
    v_cmp_ne_u32 vcc, s{sN}, v{vtmp}
    s_cbranch_vccz {lab}x
    s_sleep {SLP}
    s_cmp_lt_u32 s{sCnt}, {SPINMAX}
    s_cbranch_scc1 {lab}
    {lab}x:
    """)
def setflag(a, soff, WS, v0, v1, emask="1"):
    a(f"""
    v_mov_b32 v{v0}, s{sN}
    v_lshlrev_b32 v{v1}, 8, v0
    s_mov_b64 exec, {emask}
    s_waitcnt vmcnt(0)
    buffer_store_dword v{v0}, v{v1}, {sr(WS,4)}, s{soff} offen sc1
    s_mov_b64 exec, -1
    """)
def rowidx(a, d, rt, t):
    a(f"""
    s_mul_i32 s{d}, s{rt}, 205
    s_lshr_b32 s{d}, s{d}, 10
    s_mul_i32 s{t}, s{d}, 5
    s_sub_u32 s{t}, s{rt}, s{t}
    s_lshl_b32 s{d}, s{d}, 1
    s_cmp_ge_u32 s{t}, 3
    s_addc_u32 s{d}, s{d}, 0
    """)
def round_bf16(a, d, s): a(f"v_cvt_pk_bf16_f32 v{d}, v{s}, v{s}\nv_lshlrev_b32 v{d}, 16, v{d}")
def MF(d, A, B, C): return f"v_mfma_f32_32x32x16_bf16 {d}, {A}, {B}, {C}"

def ldswait(a, lab, vaddr, vtmp, sTmp, sNeed, off=0):
    a(f"""
    {lab}:
    ds_read_b32 v{vtmp}, v{vaddr} offset:{off}
    s_waitcnt lgkmcnt(0)
    v_readfirstlane_b32 s{sTmp}, v{vtmp}
    s_cmp_ge_u32 s{sTmp}, {sNeed}
    s_cbranch_scc1 {lab}x
    {'s_sleep 1' if 'nosl' not in OPT else ''}
    s_sub_u32 s65, s65, 1
    s_cbranch_scc0 {lab}
    s_mov_b32 s65, 0
    {lab}x:
    """)
def ldsadd(a, vaddr, vone, off=0):
    a(f"s_mov_b64 exec, 1\nds_add_u32 v{vaddr}, v{vone} offset:{off}\ns_mov_b64 exec, -1")

def acc(a, i):
    if PROF and 'lacc' in OPT:
        a(f"s_memtime s[92:93]\ns_waitcnt lgkmcnt(0)\ns_sub_u32 s94, s92, s91\ns_mov_b32 s91, s92\ns_add_u32 s{95+i}, s{95+i}, s94")
def gen_k1(a):
    khead(a, KN)
    SLOT = 36864
    CNT = XN + 16
    sW, sR, sG, sRB, sCB = 32, 33, 34, 35, 36
    sI, sK, sSlot, sT0, sT1, sMx, sNeed, sStr64, sDelta, sRd, sT2, sT3, sK0, sMB, sU, sTyp, sRT, sS32, sOnes = 38, 39, 40, 41, 42, 43, 44, 45, 46, 47, 48, 49, 50, 51, 52, 53, 54, 55, 37
    sHr, sIdle, sGs, DB2, sHc = 56, 69, 57, 12, 57
    X, WA, WS, DBG = 20, 24, 28, 20
    vL, vXs, vWs, vCom, vOne, vC, vF = 0, 1, 2, 11, 10, 17, 18
    vAx, vAw = 12, 16
    vT = 24
    AC = 32; fW, fX = 80, 96
    a(f"""
    s_cmp_ge_u32 s2, 256
    s_cbranch_scc1 K_end
    """); stamp(a, 0); a(f"""
    s_load_dwordx8 s[8:15], s[0:1], 0
    s_load_dwordx4 s[60:63], s[0:1], 48
    s_load_dwordx4 s[4:7], s[0:1], 72
    s_load_dwordx2 s[16:17], s[0:1], 32
    s_load_dwordx2 s[18:19], s[0:1], 64
    v_lshrrev_b32 v1, 6, v0
    v_and_b32 v{vL}, 63, v0
    v_readfirstlane_b32 s{sW}, v1
    s_and_b32 s{sT0}, s2, 7
    s_lshr_b32 s{sT1}, s2, 3
    s_and_b32 s{sT2}, s2, 3
    s_mul_i32 s{sT2}, s{sT2}, 30
    s_add_u32 s{sT2}, s{sT2}, s{sT1}
    v_lshrrev_b32 v{vT}, 5, v{vL}
    v_and_b32 v{vT+1}, 3, v{vL}
    v_bfe_u32 v{vT+2}, v{vL}, 2, 3
    v_lshlrev_b32 v{vT+3}, 4, v{vT+1}
    s_mov_b32 s{WS+2}, {WS_END}
    s_mov_b32 s{WS+3}, 0x00020000
    s_lshl_b32 s{sT3}, s{sW}, 8
    s_add_u32 s{sT3}, s{sT3}, s{sT1}
    s_cmp_lg_u32 s{sT3}, {(1 << 8) + 30}
    s_cbranch_scc1 K1_npf
    s_getpc_b64 s[66:67]
    K1_pc:
    v_lshlrev_b32 v2, 7, v{vL}
    v_add_u32 v3, 8192, v2
    v_min_u32 v3, K_last-K1_pc, v3
    {"" if 'nocpf' in OPT else "global_load_dword v60, v2, s[66:67]"}
    {"" if 'nocpf' in OPT else "global_load_dword v61, v3, s[66:67]"}
    K1_npf:
    s_cmp_ge_u32 s{sT1}, 30
    s_cbranch_scc1 K1_aux
    s_cmp_ge_u32 s{sT2}, 117
    s_cbranch_scc1 K1_aux
    s_mul_i32 s{sRB}, s{sT2}, 7282
    s_lshr_b32 s{sRB}, s{sRB}, 16
    s_mul_i32 s{sT1}, s{sRB}, 9
    s_sub_u32 s{sT2}, s{sT2}, s{sT1}
    s_lshr_b32 s{sT0}, s{sT0}, 2
    s_mul_i32 s{sT1}, s{sT0}, 3
    s_add_u32 s{sCB}, s{sT2}, s{sT1}
    s_cmp_eq_u32 s{sCB}, 5
    s_cselect_b32 s{sCB}, 17, s{sCB}
    s_lshl_b32 s{sT1}, s{sT1}, 1
    s_add_u32 s{sT1}, s{sT1}, s{sT2}
    s_add_u32 s{sT1}, s{sT1}, 2
    s_cmp_ge_u32 s{sT2}, 3
    s_cselect_b32 s{sCB}, s{sT1}, s{sCB}
    s_and_b32 s{sR}, s{sW}, 3
    s_add_u32 s{sK}, s{sRB}, s{sCB}
    s_mul_i32 s{sK}, s{sK}, {RMUL}
    s_mul_i32 s{sT0}, s{sK}, {65536 // RW + 1}
    s_lshr_b32 s{sT0}, s{sT0}, 16
    s_mul_i32 s{sT0}, s{sT0}, {RW}
    s_sub_u32 s{sK}, s{sK}, s{sT0}
    s_mul_i32 s{sK}, s{sK}, {10 // RW}
    s_cmp_lt_u32 s{sW}, 8
    s_cbranch_scc1 K1_C
    """)
    def common2():
        a(f"""
        v_bfe_u32 v{vT+4}, v{vL}, 2, 2
        v_bfe_u32 v{vT+5}, v{vL}, 4, 1
        v_lshl_add_u32 v{vT+4}, v{vT+4}, 1, v{vT+5}
        v_lshl_add_u32 v{vT+4}, v{vT+4}, 2, v{vT+1}
        v_lshlrev_b32 v{vCom}, 3, v{vT+4}
        s_mov_b32 s{sOnes}, 0x3f803f80
        s_cmp_eq_u32 s{sCB}, 17
        s_cselect_b32 s{sT0}, 1, 3
        s_and_b32 s{sT0}, s{sT0}, s{sR}
        s_lshr_b32 s{sT1}, s{sT0}, 1
        s_lshl_b32 s{sT1}, s{sT1}, 13
        s_and_b32 s{sT0}, s{sT0}, 1
        s_lshl_b32 s{sT0}, s{sT0}, 9
        s_add_u32 s{sT0}, s{sT0}, s{sT1}
        s_add_u32 s{sT0}, s{sT0}, 20480
        v_lshl_add_u32 v{vAw}, v{vT}, 10, v{vCom}
        v_add_u32 v{vAw}, s{sT0}, v{vAw}
        """)
    vQb, vQa = 4, 6
    a(f"""
    s_mul_i32 s{sT0}, s{sRB}, 160
    s_lshl_b32 s{sT1}, s{sR}, 3
    s_add_u32 s{sT0}, s{sT0}, s{sT1}
    s_mul_i32 s{sT0}, s{sT0}, 1280
    v_lshrrev_b32 v{vT+4}, 3, v{vL}
    v_mul_u32_u24 v{vT+4}, 1280, v{vT+4}
    v_add_u32 v{vT+4}, s{sT0}, v{vT+4}
    v_and_b32 v{vT+5}, 7, v{vL}
    v_lshrrev_b32 v{vT+6}, 4, v{vL}
    v_xor_b32 v{vT+5}, v{vT+5}, v{vT+6}
    s_and_b32 s{sT0}, s{sR}, 1
    s_lshl_b32 s{sT0}, s{sT0}, 2
    v_xor_b32 v{vT+5}, s{sT0}, v{vT+5}
    v_lshl_add_u32 v{vXs}, v{vT+5}, 4, v{vT+4}
    s_cmp_lt_u32 s{sCB}, 5
    s_movk_i32 s{sT0}, 3072
    s_cselect_b32 s{sT0}, 1280, s{sT0}
    s_cselect_b32 s{sT2}, 0, 5
    s_sub_u32 s{sT2}, s{sCB}, s{sT2}
    s_lshl_b32 s{sT2}, s{sT2}, 8
    v_lshl_add_u32 v{vT+4}, v{vT}, 6, v{vT+3}
    v_add_u32 v{vT+4}, s{sT2}, v{vT+4}
    v_add_u32 v{vT+5}, s{sT1}, v{vT+2}
    v_mad_u32_u24 v{vWs}, v{vT+5}, s{sT0}, v{vT+4}
    v_min_u32 v{vT+4}, 24, v{vT+3}
    v_mad_u32_u24 v{vT+6}, v{vT+5}, 40, v{vT+4}
    v_mov_b32 v{vT+7}, 0
    v_cmp_eq_u32 vcc, 0, v{vT}
    s_lshl_b32 s{sStr64}, s{sT0}, 6
    s_lshl_b32 s{sS32}, s{sT0}, 5
    s_mul_i32 s{WA+2}, s{sT0}, 640
    s_lshl_b32 s{sMx}, s{sR}, 10
    s_mov_b32 s{sI}, 0
    s_mov_b32 s{sSlot}, 0
    s_mov_b32 s{X+2}, {2048*1280}
    s_mov_b32 s{X+3}, 0x00020000
    s_mov_b32 s{WA+3}, 0x00020000
    s_cmp_lt_u32 s{sCB}, 5
    s_waitcnt lgkmcnt(0)
    s_mov_b32 s{X}, s8
    s_mov_b32 s{X+1}, s9
    s_cselect_b32 s{WA}, s10, s60
    s_cselect_b32 s{WA+1}, s11, s61
    v_mov_b32 v{vQb}, s14
    v_mov_b32 v{vQb+1}, s15
    v_mov_b32 v{vQa}, s12
    v_mov_b32 v{vQa+1}, s13
    v_cndmask_b32 v{vQb}, v{vQb}, v{vQa}, vcc
    v_cndmask_b32 v{vQb+1}, v{vQb+1}, v{vQa+1}, vcc
    v_lshl_add_u64 {vr(vQb,2)}, {vr(vT+6,2)}, 0, {vr(vQb,2)}
    v_mov_b32 v8, 2560
    """)
    stamp(a, 1)
    if PROF and 'lacc' in OPT: a("s_waitcnt lgkmcnt(0)\ns_mov_b32 s91, s72\ns_mov_b32 s95, 0\ns_mov_b32 s96, 0\ns_mov_b32 s97, 0")
    if HDLY: a(f"s_sub_u32 s{sT0}, s{sCB}, 5\ns_cmp_lt_u32 s{sT0}, 12\ns_cbranch_scc0 K1_issue\ns_sleep {HDLY}")
    a("K1_issue:"); acc(a, 2)
    a(f"""
    s_lshl_b32 s{sT0}, s{sK}, 7
    s_add_u32 m0, s{sSlot}, s{sMx}
    s_mul_i32 s{sT1}, s{sK}, s{sStr64}
    """)
    for i in range(5):
        a(f"buffer_load_dwordx4 v{vXs}, {sr(X,4)}, s{sT0} offen lds\ns_add_u32 m0, m0, 4096\ns_add_u32 s{sT0}, s{sT0}, {32*1280}")
    a(f"""
    s_add_u32 s{sT2}, s{sT1}, s{sS32}
    s_cmp_eq_u32 s{sCB}, 17
    s_cbranch_scc1 K1_ikv
    buffer_load_dwordx4 v{vWs}, {sr(WA,4)}, s{sT1} offen lds
    s_add_u32 m0, m0, 4096
    s_nop 0
    buffer_load_dwordx4 v{vWs}, {sr(WA,4)}, s{sT2} offen lds
    s_add_u32 m0, m0, {4096-128}
    s_nop 0
    buffer_load_dwordx4 v{vWs}, {sr(WA,4)}, s{sT1} offen offset:128 lds
    s_add_u32 m0, m0, 4096
    s_nop 0
    buffer_load_dwordx4 v{vWs}, {sr(WA,4)}, s{sT2} offen offset:128 lds
    K1_i2:
    """); acc(a, 0); a(f"""
    s_add_u32 s{sK}, s{sK}, 1
    s_cmp_eq_u32 s{sK}, 10
    s_cselect_b32 s{sK}, 0, s{sK}
    s_add_u32 s{sSlot}, s{sSlot}, {SLOT}
    s_cmp_eq_u32 s{sSlot}, {4*SLOT}
    s_cselect_b32 s{sSlot}, 0, s{sSlot}
    s_add_u32 s{sI}, s{sI}, 1
    s_cmp_eq_u32 s{sI}, 1
    s_cbranch_scc1 K1_l1
    s_waitcnt vmcnt(9)
    s_barrier
    s_cmp_lg_u32 s{sI}, 10
    s_cbranch_scc1 K1_issue
    s_branch K1_g0
    K1_ikv:
    v_mad_u64_u32 {vr(vQa,2)}, s[58:59], v8, s{sK}, {vr(vQb,2)}
    global_load_lds_dwordx4 {vr(vQa,2)}, off
    s_add_u32 m0, m0, {4096-1280}
    s_nop 0
    global_load_lds_dwordx4 {vr(vQa,2)}, off offset:1280
    s_waitcnt vmcnt(7)
    s_branch K1_i2
    K1_l1:
    s_mov_b32 s{WS}, s6
    s_mov_b32 s{WS+1}, s7
    """)
    a(f"""
    s_cmp_eq_u32 s{sR}, 3
    s_mul_i32 s{sT0}, s{sRB}, 25600
    s_mul_i32 s{sT1}, s{sCB}, 10240
    s_movk_i32 s{sGs}, 2560
    s_cselect_b32 s{sGs}, 1024, s{sGs}
    s_cselect_b32 s{sT0}, s{sT1}, s{sT0}
    s_mov_b32 s{sT1}, {WS_SR}
    s_cselect_b32 s{sT1}, {WS_SC}, s{sT1}
    s_cselect_b32 s{sT2}, 0, s{sR}
    s_add_u32 s{sU}, s{sT0}, s{sT1}
    s_lshl_b32 s{sT2}, s{sT2}, 6
    v_add_u32 v20, s{sT2}, v{vL}
    v_min_u32 v20, 159, v20
    v_lshlrev_b32 v20, 4, v20
    v_mov_b32 v22, {XN}
    s_mul_i32 s62, s{sRB}, {5*96*1024}
    s_lshl_b32 s{sT0}, s{sCB}, 2
    s_add_u32 s{sT0}, s{sT0}, s{sR}
    s_lshl_b32 s{sT1}, s{sT0}, 11
    s_add_u32 s62, s62, s{sT1}
    s_add_u32 s62, s62, {WS_H - 5*8192}
    s_lshl_b32 s63, s{sT0}, 4
    s_add_u32 s63, s63, s{sRB}
    s_lshl_b32 s63, s63, 8
    s_add_u32 s63, s63, {WS_F1}
    s_sub_u32 s{sT0}, s{sCB}, 5
    s_cmp_lt_u32 s{sT0}, 12
    s_cselect_b32 s62, s62, 0
    s_branch K1_issue
    K1_g0:
    ds_read_b32 v21, v22
    """)
    G = 32
    a(f"""
    s_mov_b32 s{sI}, 0
    """)
    a(f"K1_gat:\ns_mov_b32 s{sT0}, s{sU}")
    for k in range(10):
        a(f"buffer_load_dwordx4 {vr(G+4*k,4)}, v20, {sr(WS,4)}, s{sT0} offen sc1\ns_add_u32 s{sT0}, s{sT0}, s{sGs}")
    a(f"""
    s_cmp_lg_u32 s{sI}, 0
    s_cbranch_scc1 K1_g2
    s_waitcnt vmcnt(10)
    s_barrier
    """)
    a(f"""
    K1_g2:
    s_add_u32 s{sI}, s{sI}, 1
    s_waitcnt vmcnt(0) lgkmcnt(0)
    v_cmp_eq_u32 vcc, 0, v21
    v_readfirstlane_b32 s{sN}, v21
    s_nop 0
    v_cndmask_b32 v6, 0, 1, vcc
    """)
    for k in range(10):
        a(f"v_xor_b32 v{G+4*k+1}, v{G+4*k+1}, v21\nv_xor_b32 v{G+4*k+3}, v{G+4*k+3}, v21\nv_or3_b32 v6, v{G+4*k+1}, v{G+4*k+3}, v6")
    a(f"""
    v_cmp_ne_u32 vcc, 0, v6
    s_cbranch_vccz K1_g3
    s_sleep {SLP}
    s_cmp_lt_u32 s{sI}, {SPINMAX}
    s_cbranch_scc1 K1_gat
    K1_g3:
    """)
    for k in range(1, 10):
        a(f"v_add_f32 v{G}, v{G}, v{G+4*k}\nv_add_f32 v{G+2}, v{G+2}, v{G+4*k+2}")
    a(f"""
    s_cmp_eq_u32 s{sR}, 3
    s_cbranch_scc1 K1_gc
    v_mul_f32 v{G}, {f32(1.0/640)}, v{G}
    v_mul_f32 v{G+2}, {f32(1.0/640)}, v{G+2}
    v_cvt_pk_bf16_f32 v{G+4}, -v{G}, -v{G}
    v_fma_f32 v{G+2}, -v{G}, v{G}, v{G+2}
    v_max_f32 v{G+2}, 0, v{G+2}
    """)
    round_bf16(a, G+2, G+2)
    a(f"v_add_f32 v{G+2}, {f32(1e-5)}, v{G+2}")
    round_bf16(a, G+2, G+2)
    a(f"v_sqrt_f32 v{G+6}, v{G+2}\nv_mov_b32 v{G+5}, 0")
    round_bf16(a, G+6, G+6)
    a(f"""
    v_rcp_f32 v{G+7}, v{G+6}
    v_add_u32 v5, {XB}, v20
    s_nop 0
    ds_write_b128 v5, {vr(G+4,4)}
    s_branch K1_gd
    K1_gc:
    v_and_b32 v{G+1}, 0xffff0000, v{G}
    v_and_b32 v{G+3}, 0xffff0000, v{G+2}
    v_sub_f32 v{G}, v{G}, v{G+1}
    v_sub_f32 v{G+2}, v{G+2}, v{G+3}
    v_cvt_pk_bf16_f32 v{G+4}, v{G+1}, v{G}
    v_cvt_pk_bf16_f32 v{G+5}, v{G+3}, v{G+2}
    v_lshlrev_b32 v5, 3, v{vL}
    v_add_u32 v5, {XFC}, v5
    ds_write_b64 v5, {vr(G+4,2)}
    K1_gd:
    """)
    a("s_waitcnt lgkmcnt(0)\ns_barrier\ns_branch K2_G")
    vN = 2
    a(f"""
    K1_C:
    """)
    common2()
    a(f"""
    s_memrealtime s[66:67]
    s_lshr_b32 s{sG}, s{sW}, 2
    s_mov_b32 s{sK0}, s{sK}
    s_mov_b32 s{DBG+2}, 256
    s_mov_b32 s{DBG+3}, 0x00020000
    v_mov_b32 v{vN+1}, 0
    v_and_b32 v{vT+4}, 31, v{vL}
    v_bfe_u32 v{vT+5}, v{vL}, 1, 3
    v_lshlrev_b32 v{vT+4}, 7, v{vT+4}
    s_waitcnt lgkmcnt(0)
    s_mov_b32 s{WS}, s6
    s_mov_b32 s{WS+1}, s7
    s_mov_b32 s{DBG}, s4
    s_mov_b32 s{DBG+1}, s5
    s_or_b32 s{sT0}, s2, s{sW}
    s_cbranch_scc1 K1_nn
    s_or_b32 s66, s66, 1
    v_mov_b32 v{vN}, s66
    s_mov_b64 exec, 1
    buffer_store_dword v{vN}, v{vN+1}, {sr(DBG,4)}, 0 offen sc1
    s_mov_b64 exec, -1
    K1_nn:
    """)
    if TSH:
        a(f"""
        s_lshl_b32 s{sT0}, s{sW}, {6 + TSH}
        v_lshlrev_b32 v4, {TSH}, v{vL}
        s_cmp_lt_u32 s{sT0}, {WS_F3 + 0x40000}
        s_cbranch_scc0 K1_nt1
        buffer_load_dword v163, v4, {sr(WS,4)}, s{sT0} offen
        K1_nt1:
        s_cmp_lg_u32 s{sW}, 7
        s_cbranch_scc1 K1_nt2
        s_mov_b32 s24, s18
        s_mov_b32 s25, s19
        s_mov_b32 s26, {2048*1280}
        s_mov_b32 s27, 0x00020000
        buffer_load_dword v163, v4, s[24:27], 0 offen
        K1_nt2:
        """)
    a(f"""
    s_lshl_b32 s{sT1}, s{sW}, 12
    v_lshlrev_b32 v{vT+6}, 2, v{vT}
    v_xor_b32 v{vT+6}, v{vT+6}, v{vT+5}
    v_lshl_add_u32 v4, v{vT+6}, 4, v{vT+4}
    v_add_u32 v4, s{sT1}, v4
    v_xor_b32 v5, 16, v4
    v_xor_b32 v6, 32, v4
    v_xor_b32 v7, 48, v4
    v_xor_b32 v{vT+5}, v{vT+5}, v{vT}
    s_mul_i32 s{sT1}, s{sG}, {3*4096}
    v_add_u32 v{vT+4}, s{sT1}, v{vT+4}
    """)
    for i in range(4):
        a(f"v_xor_b32 v{vT+6}, {2*i}, v{vT+5}\nv_lshl_add_u32 v{vAx+i}, v{vT+6}, 4, v{vT+4}")
    a(f"""
    s_mov_b32 s{sI}, 1
    s_mov_b32 s{sDelta}, {SLOT}
    s_sub_u32 s{sT0}, s{sW}, 2
    s_cmp_lt_u32 s{sT0}, 4
    s_cselect_b32 s{sIdle}, 1, 0
    s_cmp_eq_u32 s{sCB}, 17
    s_cselect_b32 s{sIdle}, s{sIdle}, 0
    v_mov_b32 v9, {XN}
    """)
    for i in range(48): a(f"v_mov_b32 v{AC+i}, 0")
    a(f"""
    s_cmp_lg_u32 s{sIdle}, 0
    s_cbranch_scc1 K1_idle
    s_mul_i32 s{sT2}, s{sRB}, 10
    s_add_u32 s{sT2}, s{sT2}, s{sK0}
    s_mul_i32 s{sT2}, s{sT2}, 2560
    s_lshl_b32 s{sT1}, s{sW}, 9
    s_add_u32 s{sT2}, s{sT2}, s{sT1}
    s_add_u32 s{sT2}, s{sT2}, {WS_SR}
    s_mul_i32 s{sU}, s{sCB}, 10
    s_add_u32 s{sU}, s{sU}, s{sK0}
    s_lshl_b32 s{sU}, s{sU}, 10
    s_add_u32 s{sU}, s{sU}, {WS_SC}
    s_lshl_b32 s{sT1}, s{sR}, 8
    s_add_u32 s{sU}, s{sU}, s{sT1}
    s_xor_b32 s{sT3}, s{sU}, 512
    s_cmp_eq_u32 s{sCB}, 17
    s_cselect_b32 s{sT3}, s{sT3}, {WS_END}
    s_cmp_lt_u32 s{sCB}, 10
    s_cselect_b32 s{sT0}, 5, 0
    s_cmp_lt_u32 s{sW}, s{sT0}
    s_cselect_b32 s{sT2}, s{sT2}, {WS_END}
    s_cmp_lt_u32 s{sRB}, 10
    s_cselect_b32 s{sU}, s{sU}, {WS_END}
    s_cselect_b32 s{sT3}, s{sT3}, {WS_END}
    v_mov_b32 v160, 0
    v_mov_b32 v162, 0
    v_mov_b32 v20, 0
    s_barrier
    """)
    stamp(a, 1)
    a(f"""
    buffer_load_dword v161, v{vN+1}, {sr(DBG,4)}, 0 offen sc1
    s_cmp_eq_u32 s{sT2}, {WS_END}
    s_cbranch_scc1 K1_nr
    """)
    for i in range(4): a(f"ds_read_b128 {vr(144+4*i,4)}, v{4+i}")
    a(f"s_waitcnt lgkmcnt(0)")
    for i in range(16): a(f"v_dot2c_f32_bf16 v160, s{sOnes}, v{144+i}\nv_dot2c_f32_bf16 v162, v{144+i}, v{144+i}")
    a(f"""
    s_nop 2
    v_mov_b32 v5, v160
    v_mov_b32 v6, v162
    s_nop 1
    v_permlane32_swap_b32 v5, v160
    v_permlane32_swap_b32 v6, v162
    v_add_f32 v160, v160, v5
    v_add_f32 v162, v162, v6
    K1_nr:
    s_cmp_eq_u32 s{sG}, 0
    s_cbranch_scc1 K1_start3
    s_cmp_ge_u32 s{sRB}, 10
    s_cbranch_scc1 K1_start2
    """)
    for k in range(4):
        for q in range(2): a(f"ds_read_b64_tr_b16 {vr(144+4*k+2*q,2)}, v{vAw} offset:{2048*k+256*q}")
    a(f"s_waitcnt lgkmcnt(0)")
    for i in range(16): a(f"v_dot2c_f32_bf16 v20, s{sOnes}, v{144+i}")
    a(f"""
    s_nop 2
    v_mov_b32 v5, v20
    s_nop 1
    v_permlane32_swap_b32 v5, v20
    v_add_f32 v20, v20, v5
    """)
    def publish(T):
        a(f"""
        v_lshlrev_b32 v4, 4, v{vL}
        v_lshlrev_b32 v5, 3, v{vL}
        s_mov_b32 s{sT0}, 0
        K1_n{T}:
        s_waitcnt vmcnt(0)
        v_readfirstlane_b32 s{sT1}, v161
        s_add_u32 s{sT0}, s{sT0}, 1
        s_cmp_lg_u32 s{sT1}, 0
        s_cbranch_scc1 K1_n{T}x
        buffer_load_dword v161, v{vN+1}, {sr(DBG,4)}, 0 offen sc1
        s_cmp_lt_u32 s{sT0}, {SPINMAX}
        s_cbranch_scc1 K1_n{T}
        K1_n{T}x:
        v_mov_b32 v163, v161
        v_mov_b32 v21, v161
        s_mov_b32 exec_hi, 0
        buffer_store_dwordx4 {vr(160,4)}, v4, {sr(WS,4)}, s{sT2} offen sc1
        """)
        if T == 2: a(f"""
        buffer_store_dwordx2 {vr(20,2)}, v5, {sr(WS,4)}, s{sU} offen sc1
        buffer_store_dwordx2 {vr(20,2)}, v5, {sr(WS,4)}, s{sT3} offen sc1
        s_waitcnt lgkmcnt(0)
        ds_write_b32 v9, v161
        """)
        a("s_mov_b32 exec_hi, -1")
    KR = dict(fW=fW, fX=fX, AC=AC, vAx=vAx, vAw=vAw, sDelta=sDelta)
    vFl = vT + 7
    def cloop(T):
        first, ba, bb, tail = kbody.streamC(KR, T)
        a(f"K1_start{T}:")
        for l in first: a(l)
        publish(T)
        a(f"s_branch K1_mid{T}\nK1_comp{T}:\ns_barrier")
        if os.environ.get('BSTAMP'): a(f"s_cmp_lg_u32 s{sI}, {int(os.environ['BSTAMP'])+1}\ns_cbranch_scc1 K1_bs{T}\ns_memtime s[72:73]\nK1_bs{T}:")
        if 'bt' in OPT: a(f"s_memtime s[92:93]\ns_waitcnt lgkmcnt(0)\ns_sub_u32 s92, s92, s70\nv_mov_b32 v22, s92\nv_cmp_eq_u32 vcc, s{sI}, v0\ns_nop 1\nv_cndmask_b32 v23, v23, v22, vcc")
        for l in ba: a(l)
        a(f"K1_mid{T}:")
        for l in bb: a(l)
        a(f"""
        s_and_b32 s{sT0}, s{sI}, 3
        s_cmp_eq_u32 s{sT0}, 3
        s_mov_b32 s{sDelta}, {SLOT}
        s_cselect_b32 s{sDelta}, {(-3*SLOT) & 0xffffffff}, s{sDelta}
        s_add_u32 s{sI}, s{sI}, 1
        s_cmp_lg_u32 s{sI}, 11
        s_waitcnt lgkmcnt(0)
        s_cbranch_scc1 K1_comp{T}
        """)
        a("s_barrier")
        for l in tail: a(l)
    cloop(2)
    a(f"""
    s_branch K1_cdone
    K1_idle:
    s_barrier
    s_add_u32 s{sI}, s{sI}, 1
    s_cmp_lg_u32 s{sI}, 12
    s_cbranch_scc1 K1_idle
    s_branch K1_cdone
    """)
    cloop(3)
    a("K1_cdone:")
    stamp(a, 2)
    if 'bt' in OPT:
        a(f"""
        s_lshl_b32 s92, s2, 4
        s_add_u32 s92, s92, s{sW}
        s_lshl_b32 s92, s92, 6
        s_add_u32 s92, s92, {WS_PROF + 0x40000}
        v_lshlrev_b32 v22, 2, v0
        s_mov_b64 exec, 0xffff
        buffer_store_dword v23, v22, {sr(WS,4)}, s92 offen
        s_mov_b64 exec, -1
        """)
    ST, vCA, E, PK = 144, 20, 112, 128
    vMq, vNe = 24, 30
    a(f"""
    v_and_b32 v3, 31, v{vL}
    s_mul_i32 s{sT0}, s{sG}, {96*16}
    s_add_u32 s{sT0}, s{sT0}, {XB}
    v_lshl_add_u32 v4, v3, 4, s{sT0}
    s_lshl_b32 s{sT0}, s{sR}, 7
    s_add_u32 s{sT0}, s{sT0}, {XFC}
    v_lshl_add_u32 v5, v3, 2, s{sT0}
    v_lshlrev_b32 v1, 4, v{vL}
    v_mov_b32 v{vCA+1}, 0
    s_mul_i32 s{sRT}, s{sRB}, 5
    s_mul_i32 s{sT0}, s{sG}, 3
    s_add_u32 s{sRT}, s{sRT}, s{sT0}
    s_sub_u32 s{sU}, 3, s{sG}
    s_add_u32 s{sU}, s{sU}, s{sRT}
    s_min_u32 s{sU}, s{sU}, 64
    s_lshl_b32 s{sT0}, s{sCB}, 13
    s_lshl_b32 s{sT1}, s{sR}, 11
    s_add_u32 s{sMx}, s{sT0}, s{sT1}
    v_cmp_gt_u32 vcc, 32, v{vL}
    v_mov_b32 v6, {XN}
    """)
    a(f"""
    ds_read_b32 v6, v6
    ds_read_b32 v{vCA}, v5
    ds_read_b128 {vr(ST,4)}, v4
    ds_read_b128 {vr(ST+4,4)}, v4 offset:512
    ds_read_b128 {vr(ST+8,4)}, v4 offset:1024
    s_mov_b32 s{sI}, 0
    s_waitcnt lgkmcnt(3)
    v_cndmask_b32 v{vCA}, 0, v{vCA}, vcc
    v_readfirstlane_b32 s{sN}, v6
    s_sub_u32 s{sT0}, s{sCB}, 5
    s_cmp_lt_u32 s{sT0}, 12
    s_waitcnt lgkmcnt(0)
    v_mfma_f32_32x32x8_bf16 {vr(AC,16)}, {vr(vCA,2)}, {vr(ST,2)}, {vr(AC,16)}
    v_mfma_f32_32x32x8_bf16 {vr(AC+16,16)}, {vr(vCA,2)}, {vr(ST+4,2)}, {vr(AC+16,16)}
    v_mfma_f32_32x32x8_bf16 {vr(AC+32,16)}, {vr(vCA,2)}, {vr(ST+8,2)}, {vr(AC+32,16)}
    s_cbranch_scc0 K1_lin
    s_mul_i32 s{sT3}, s{sR}, 10240
    s_mul_i32 s{sT0}, s{sG}, 6144
    s_add_u32 s{sT3}, s{sT3}, s{sT0}
    s_add_u32 s{sT3}, s{sT3}, {HS}
    v_add_u32 v1, s{sT3}, v1
    s_nop 3
    K1_epiH:
    v_mul_f32 v{vNe}, {f32(-LOG2E)}, v{ST+3}
    """)
    for i in range(8): a(f"v_pk_mul_f32 {vr(E+2*i,2)}, {vr(AC+2*i,2)}, {vr(vNe,2)} op_sel_hi:[1,0]")
    for i in range(16): a(f"v_exp_f32 v{E+i}, v{E+i}")
    for i in range(8): a(f"v_pk_fma_f32 {vr(E+2*i,2)}, {vr(E+2*i,2)}, {vr(ST+2,2)}, {vr(ST+2,2)} op_sel_hi:[1,0,0]")
    for i in range(16): a(f"v_rcp_f32 v{E+i}, v{E+i}")
    for i in range(8): a(f"v_pk_mul_f32 {vr(E+2*i,2)}, {vr(E+2*i,2)}, {vr(AC+2*i,2)}")
    for i in range(8): a(f"v_cvt_pk_bf16_f32 v{PK+i}, v{E+2*i}, v{E+2*i+1}")
    a(f"""
    ds_write_b128 v1, {vr(PK,4)}
    ds_write_b128 v1, {vr(PK+4,4)} offset:1024
    v_add_u32 v1, 2048, v1
    s_add_u32 s{sRT}, s{sRT}, 1
    s_cmp_eq_u32 s{sRT}, s{sU}
    s_cbranch_scc1 {"K1_hd" if PROF else "K2_A"}
    s_add_u32 s{sI}, s{sI}, 1
    s_cmp_eq_u32 s{sI}, 2
    s_cbranch_scc1 K1_e2
    """)
    for i in range(8): a(f"v_pk_mov_b32 {vr(AC+2*i,2)}, {vr(AC+16+2*i,2)}, {vr(AC+16+2*i,2)} op_sel:[0,1]")
    a(f"v_pk_mov_b32 {vr(ST+2,2)}, {vr(ST+6,2)}, {vr(ST+6,2)} op_sel:[0,1]\ns_branch K1_epiH\nK1_e2:")
    for i in range(8): a(f"v_pk_mov_b32 {vr(AC+2*i,2)}, {vr(AC+32+2*i,2)}, {vr(AC+32+2*i,2)} op_sel:[0,1]")
    a(f"v_pk_mov_b32 {vr(ST+2,2)}, {vr(ST+10,2)}, {vr(ST+10,2)} op_sel:[0,1]\ns_branch K1_epiH")
    if PROF:
        a("K1_hd:"); stamp(a, 3); a("s_branch K2_A")
    PQ = 96
    a(f"""
    K1_lin:
    s_cmp_lg_u32 s{sIdle}, 0
    s_cbranch_scc1 K2_A
    s_cmp_eq_u32 s{sCB}, 17
    s_mov_b32 s{sK}, {f32(20 ** -0.5 * LOG2E)}
    s_cselect_b32 s{sK}, 1.0, s{sK}
    v_mul_f32 v{vMq}, s{sK}, v{ST+3}
    v_mul_f32 v{vMq+2}, s{sK}, v{ST+7}
    v_mul_f32 v{vMq+4}, s{sK}, v{ST+11}
    s_mul_i32 s{sT3}, s{sRT}, 40960
    s_add_u32 s{sT3}, s{sT3}, s{sMx}
    s_cmp_eq_u32 s{sCB}, 17
    s_cbranch_scc1 K1_kv
    """)
    a(f"""
    s_lshl_b32 s{sT2}, s{sCB}, 2
    s_add_u32 s{sT2}, s{sT2}, s{sR}
    s_lshl_b32 s{sT2}, s{sT2}, 5
    s_lshl_b32 s{sT0}, s{sRB}, 1
    s_add_u32 s{sT2}, s{sT2}, s{sT0}
    s_add_u32 s{sT2}, s{sT2}, s{sG}
    s_lshl_b32 s{sT2}, s{sT2}, 7
    s_add_u32 s{sT2}, s{sT2}, {WS_F1}
    """)
    for j in range(3):
        if 'qpk' in OPT:
            for i in range(8): a(f"v_pk_mul_f32 {vr(AC+16*j+2*i,2)}, {vr(AC+16*j+2*i,2)}, {vr(vMq+2*j,2)} op_sel_hi:[1,0]")
        else:
            for i in range(16): a(f"v_mul_f32 v{AC+16*j+i}, v{AC+16*j+i}, v{vMq+2*j}")
        for i in range(8): a(f"v_cvt_pk_bf16_f32 v{PQ+8*j+i}, v{AC+16*j+2*i}, v{AC+16*j+2*i+1}")
        a(f"""
        buffer_store_dwordx4 {vr(PQ+8*j,4)}, v1, {sr(WS,4)}, s{sT3} offen sc1
        buffer_store_dwordx4 {vr(PQ+8*j+4,4)}, v1, {sr(WS,4)}, s{sT3} offen offset:1024 sc1
        """)
        if j < 2:
            a(f"""
            s_add_u32 s{sT3}, s{sT3}, 40960
            s_add_u32 s{sT0}, s{sRT}, {j+1}
            s_cmp_ge_u32 s{sT0}, s{sU}
            s_cbranch_scc1 K1_qf
            """)
    a(f"""
    K1_qf:
    s_mov_b32 s64, s{sT2}
    """)
    stamp(a, 3)
    a(f"""
    s_branch K2_A2
    K1_kv:
    """)
    for j in range(3):
        for i in range(12): a(f"v_mul_f32 v{AC+16*j+i}, v{AC+16*j+i}, v{vMq+2*j}")
        for i in range(6): a(f"v_cvt_pk_bf16_f32 v{PQ+8*j+i}, v{AC+16*j+2*i}, v{AC+16*j+2*i+1}")
    a(f"""
    v_lshrrev_b32 v5, 5, v{vL}
    s_bitcmp1_b32 s{sR}, 0
    s_cbranch_scc1 K1_vst
    v_mul_u32_u24 v4, 5120, v5
    v_lshl_add_u32 v4, v3, 4, v4
    v_lshlrev_b32 v5, 4, v3
    """)
    def kvbase(j):
        a(f"""
        s_add_u32 s{sT2}, s{sRT}, {j}
        s_lshr_b32 s{sT0}, s{sT2}, 2
        s_mul_i32 s{sT0}, s{sT0}, 10240
        s_add_u32 s{sT0}, s{sT0}, {WS_KV}
        s_cmp_lt_u32 s{sT2}, s{sU}
        s_cselect_b32 s{sT0}, s{sT0}, {WS_END}
        s_and_b32 s{sT2}, s{sT2}, 3
        """)
    for j in range(3):
        kvbase(j)
        a(f"""
        s_lshl_b32 s{sT1}, s{sT2}, 9
        s_add_u32 s{sT1}, s{sT1}, s{sT0}
        buffer_store_dwordx4 {vr(PQ+8*j,4)}, v4, {sr(WS,4)}, s{sT1} offen sc1
        s_and_b32 s{sT1}, s{sT2}, 1
        s_mul_i32 s{sT1}, s{sT1}, 5120
        s_add_u32 s{sT0}, s{sT0}, s{sT1}
        s_lshr_b32 s{sT1}, s{sT2}, 1
        s_lshl_b32 s{sT1}, s{sT1}, 3
        s_add_u32 s{sT0}, s{sT0}, s{sT1}
        s_mov_b32 exec_lo, 0
        buffer_store_dwordx2 {vr(PQ+8*j+4,2)}, v5, {sr(WS,4)}, s{sT0} offen offset:2048 sc1
        s_mov_b32 exec_lo, -1
        """)
    a(f"""
    s_branch K1_done
    K1_vst:
    s_lshl_b32 s{sT3}, s{sG}, 12
    s_add_u32 s{sT3}, s{sT3}, {XQ+2048}
    v_bfe_u32 v4, v3, 2, 1
    v_mul_u32_u24 v4, 640, v4
    v_lshl_add_u32 v4, v5, 6, v4
    v_lshrrev_b32 v5, 4, v3
    v_mul_u32_u24 v5, 320, v5
    v_add_u32 v4, v4, v5
    v_bfe_u32 v5, v3, 3, 1
    v_lshl_add_u32 v4, v5, 3, v4
    v_and_b32 v5, 3, v3
    v_lshl_add_u32 v4, v5, 1, v4
    v_add_u32 v4, s{sT3}, v4
    v_add_u32 v5, s{sT3}, v1
    """)
    for jj in range(3):
        if jj == 2: a("s_mov_b32 exec_lo, 0")
        for j in range(3):
            o = 1280 * j + 128 * jj - (64 if jj == 2 else 0); p = PQ + 8 * j + 2 * jj
            a(f"""
            ds_write_b16 v4, v{p} offset:{o}
            ds_write_b16_d16_hi v4, v{p} offset:{o+16}
            ds_write_b16 v4, v{p+1} offset:{o+32}
            ds_write_b16_d16_hi v4, v{p+1} offset:{o+48}
            """)
        a("s_waitcnt lgkmcnt(0)")
    a("s_mov_b32 exec_lo, -1\ns_mov_b32 exec_hi, 0xff")
    for j in range(6): a(f"ds_read_b128 {vr(AC+4*j,4)}, v5 offset:{640*j}")
    for j in range(3):
        kvbase(j)
        a(f"""
        s_mul_i32 s{sT1}, s{sT2}, 640
        s_add_u32 s{sT0}, s{sT0}, s{sT1}
        s_add_u32 s{sT1}, s{sT0}, 5120
        s_waitcnt lgkmcnt({4-2*j})
        buffer_store_dwordx4 {vr(AC+8*j,4)}, v1, {sr(WS,4)}, s{sT0} offen offset:2560 sc1
        buffer_store_dwordx4 {vr(AC+8*j+4,4)}, v1, {sr(WS,4)}, s{sT1} offen offset:2560 sc1
        """)
    a("s_mov_b32 exec_hi, -1\ns_branch K1_done")
    sJ, sL, sPst = 34, 35, 36
    WP = 24; vPs = 2
    a(f"""
    K1_aux:
    v_bfe_u32 v{vT+4}, v{vL}, 2, 2
    v_bfe_u32 v{vT+5}, v{vL}, 4, 1
    v_lshl_add_u32 v{vT+4}, v{vT+4}, 1, v{vT+5}
    v_lshl_add_u32 v{vT+4}, v{vT+4}, 2, v{vT+1}
    v_lshlrev_b32 v{vCom}, 3, v{vT+4}
    s_lshr_b32 s{sT3}, s{sT0}, 2
    s_mul_i32 s{sT3}, s{sT3}, 3
    s_add_u32 s{sT2}, s{sT2}, s{sT3}
    s_lshl_b32 s{sT0}, s{sT0}, 1
    s_add_u32 s{sT0}, s{sT0}, s{sT1}
    s_sub_u32 s{sT0}, s{sT0}, 30
    s_sub_u32 s{sT2}, s{sT2}, {117-16}
    s_cmp_ge_u32 s{sT1}, 30
    s_cselect_b32 s{sT0}, s{sT0}, s{sT2}
    s_mul_i32 s{sJ}, s{sT0}, 12
    s_add_u32 s{sJ}, s{sJ}, s{sW}
    s_mul_i32 s{sL}, s{sW}, 12288
    v_lshl_add_u32 v{vT+3}, v{vT}, 6, v{vT+3}
    v_lshrrev_b32 v{vT+6}, 2, v{vT+2}
    v_and_b32 v{vT+7}, 3, v{vT+2}
    s_mov_b32 m0, s{sL}
    s_mov_b32 s{WP+3}, 0x00020000
    s_mov_b32 s{sI}, s{sJ}
    s_waitcnt lgkmcnt(0)
    s_mov_b32 s{WS}, s6
    s_mov_b32 s{WS+1}, s7
    s_mov_b32 s{DBG}, s4
    s_mov_b32 s{DBG+1}, s5
    s_mov_b32 s{DBG+2}, 256
    s_mov_b32 s{DBG+3}, 0x00020000
    s_lshl_b32 s{sU}, s{sT0}, 7
    s_add_u32 s{sU}, s{sU}, {WS_F1 + 72*4096}
    s_mov_b64 s[58:59], 1
    K1_a0:
    """)
    def getnonce(lab):
        a(f"""
        v_mov_b32 v5, 0
        s_mov_b32 s{sT3}, 0
        {lab}:
        buffer_load_dword v4, v5, {sr(DBG,4)}, 0 offen sc1
        s_add_u32 s{sT3}, s{sT3}, 1
        s_waitcnt vmcnt(0)
        v_readfirstlane_b32 s{sN}, v4
        s_cmp_gt_u32 s{sT3}, {SPINMAX}
        s_cbranch_scc1 {lab}x
        s_cmp_lg_u32 s{sN}, 0
        s_cbranch_scc1 {lab}x
        s_sleep 8
        s_branch {lab}
        {lab}x:
        """)
    if 'adelay' in OPT:
        a(f"s_cmp_lg_u32 s{sW}, 0\ns_cbranch_scc1 K1_a5")
        getnonce("K1_a7")
        a(f"""
        s_mul_i32 s{sT0}, s{sJ}, 640
        s_add_u32 s{sT0}, s{sT0}, {WS_SC + 4}
        v_mov_b32 v4, s{sT0}
        """)
        poll(a, "K1_a6", 4, 5, WS, sT3)
        a("K1_a5:\ns_barrier")
    a(f"""
    K1_a1:
    s_mul_i32 s{sT0}, s{sI}, 6554
    s_lshr_b32 s{sT0}, s{sT0}, 16
    s_mul_i32 s{sT1}, s{sT0}, 10
    s_sub_u32 s{sT1}, s{sI}, s{sT1}
    s_lshl_b32 s{sT1}, s{sT1}, 7
    s_sub_u32 s{sT2}, s{sT0}, 96
    s_mul_i32 s{sT3}, s{sT2}, 205
    s_lshr_b32 s{sT3}, s{sT3}, 10
    s_mul_i32 s55, s{sT3}, 5
    s_sub_u32 s55, s{sT2}, s55
    s_mul_i32 s{sT3}, s{sT3}, 80
    s_mul_i32 s56, s55, 20
    s_cmp_eq_u32 s55, 4
    s_cselect_b32 s56, 16, s56
    s_cselect_b32 s55, 1, 0
    s_add_u32 s{sT3}, s{sT3}, s56
    s_lshl_b32 s{sT2}, s{sT0}, 4
    s_cmp_lt_u32 s{sT0}, 96
    s_cselect_b32 s{sT3}, s{sT2}, s{sT3}
    s_cselect_b32 s55, 0, s55
    s_cselect_b32 s{WP}, s62, s16
    s_cselect_b32 s{WP+1}, s63, s17
    s_mov_b32 s{WP+2}, {640*1280}
    s_cselect_b32 s{WP+2}, {1536*1280}, s{WP+2}
    s_mul_i32 s{sT3}, s{sT3}, 1280
    s_add_u32 s56, s{sT3}, s{sT1}
    s_cmp_eq_u32 s55, 0
    s_cselect_b32 s{sT2}, 4, 40
    s_movk_i32 s57, {20*1280}
    s_cselect_b32 s57, {8*1280}, s57
    s_add_u32 s57, s57, s56
    v_mad_u32_u24 v{vPs}, v{vT+6}, s{sT2}, v{vT+7}
    v_mul_u32_u24 v{vPs}, 1280, v{vPs}
    v_add_u32 v{vPs}, v{vPs}, v{vT+3}
    buffer_load_dwordx4 v{vPs}, {sr(WP,4)}, s56 offen lds
    s_add_u32 m0, m0, 1024
    s_add_u32 s{sI}, s{sI}, 264
    buffer_load_dwordx4 v{vPs}, {sr(WP,4)}, s57 offen lds
    s_add_u32 m0, m0, 1024
    s_cmp_lt_u32 s{sI}, 1360
    s_cbranch_scc1 K1_a1
    v_lshl_add_u32 v4, v{vT}, 8, v{vCom}
    v_add_u32 v4, s{sL}, v4
    v_and_b32 v5, 15, v{vL}
    v_lshlrev_b32 v5, 4, v5
    v_lshl_add_u32 v5, v{vT}, 8, v5
    v_lshl_add_u32 v5, v{vT+5}, 9, v5
    s_lshl_b32 s{sPst}, s{sJ}, 11
    s_add_u32 s{sPst}, s{sPst}, {WS_WP}
    s_waitcnt vmcnt(0)
    K1_a2:
    ds_read_b64_tr_b16 {vr(32,2)}, v4
    ds_read_b64_tr_b16 {vr(34,2)}, v4 offset:1024
    ds_read_b64_tr_b16 {vr(36,2)}, v4 offset:512
    ds_read_b64_tr_b16 {vr(38,2)}, v4 offset:1536
    v_add_u32 v4, 2048, v4
    s_add_u32 s{sJ}, s{sJ}, 264
    s_waitcnt lgkmcnt(0)
    buffer_store_dwordx4 {vr(32,4)}, v5, {sr(WS,4)}, s{sPst} offen sc1
    buffer_store_dwordx4 {vr(36,4)}, v5, {sr(WS,4)}, s{sPst} offen offset:1024 sc1
    s_add_u32 s{sPst}, s{sPst}, {264*2048}
    s_cmp_lt_u32 s{sJ}, 1360
    s_cbranch_scc1 K1_a2
    """)
    getnonce("K1_a3")
    a(f"""
    s_mov_b32 s62, 0
    s_barrier
    s_cmp_ge_u32 s{sW}, 8
    s_cbranch_scc1 K2_G
    s_cmp_lg_u32 s{sW}, 0
    s_cbranch_scc1 K2_A
    s_branch K1_flag
    K1_done:
    v_mov_b32 v4, 1
    v_mov_b32 v5, 0
    {"s_memtime s[72:73]" if PROF and 'kvs' in OPT else ""}
    s_mov_b64 exec, 1
    s_waitcnt vmcnt(0)
    {"s_memtime s[76:77]" if PROF and 'kvs' in OPT else ""}
    buffer_atomic_add v4, v5, {sr(DBG,4)}, 0 offen offset:128 sc0
    s_mov_b32 s{sU}, {WS_FK}
    s_mov_b64 s[58:59], -1
    s_waitcnt vmcnt(0)
    {"s_memtime s[90:91]" if PROF and 'kvs' in OPT else ""}
    v_readfirstlane_b32 s{sT0}, v4
    s_mov_b64 exec, -1
    s_mul_hi_u32 s{sT1}, s{sT0}, {(1 << 32) // 52 + 1}
    s_mul_i32 s{sT1}, s{sT1}, 52
    s_sub_u32 s{sT0}, s{sT0}, s{sT1}
    s_cmp_lg_u32 s{sT0}, 51
    s_cbranch_scc1 K2_A
    """)
    'kvs' in OPT or stamp(a, 3)
    setflag(a, sU, WS, 4, 5, '-1')
    a("s_branch K2_A\nK1_flag:")
    setflag(a, sU, WS, 4, 5)

def tile_ids(a, sRB, sNB, sT0):
    if 'map84' not in OPT:
        a(f"""
        s_and_b32 s{sT0}, s2, 7
        s_lshl_b32 s{sRB}, s{sT0}, 2
        s_bfe_u32 s{sT0}, s2, 0x20003
        s_add_u32 s{sRB}, s{sRB}, s{sT0}
        s_lshr_b32 s{sNB}, s2, 5
        """)
        return
    a(f"""
    s_and_b32 s{sT0}, s2, 3
    s_lshl_b32 s{sRB}, s{sT0}, 3
    s_bfe_u32 s{sT0}, s2, 0x30003
    s_add_u32 s{sRB}, s{sRB}, s{sT0}
    s_bfe_u32 s{sT0}, s2, 0x10002
    s_lshl_b32 s{sNB}, s{sT0}, 2
    s_lshr_b32 s{sT0}, s2, 6
    s_add_u32 s{sNB}, s{sNB}, s{sT0}
    """)
def wlane(a, vL, vW, vW2, t):
    a(f"""
    v_and_b32 v{vW2}, 15, v{vL}
    v_lshlrev_b32 v{vW2}, 4, v{vW2}
    v_lshrrev_b32 v{t}, 5, v{vL}
    v_lshl_add_u32 v{vW2}, v{t}, 8, v{vW2}
    v_bfe_u32 v{t}, v{vL}, 4, 1
    v_lshl_add_u32 v{vW}, v{t}, 9, v{vW2}
    {"" if 'nozp' in OPT else f"v_lshl_add_u32 v{vW2}, v{t}, 30, v{vW2}"}
    """)

def gen_k2(a):
    sW, sR, sG, sRB, sCB, sHD, sRT = 32, 33, 34, 35, 36, 37, 38
    sI, sT0, sT1, sT2, sSrc, sVm, sSeg, sT3 = 39, 40, 41, 42, 43, 44, 52, 53
    WS, X, OUT = 28, 20, 24
    vL, vA, vD = 0, 1, 2
    QM, QT, KM, KT, V, P, O, S = 4, 8, 12, 20, 24, 40, 56, 72
    R = dict(vA=vA, QM=QM, QT=QT, KM=KM, KT=KT, V=V, P=P, O=O, S=S)
    def aids():
        a(f"""
        s_and_b32 s{sT0}, s2, 3
        s_lshl_b32 s{sRB}, s{sT0}, 2
        s_bfe_u32 s{sT0}, s2, 0x20003
        s_add_u32 s{sRB}, s{sRB}, s{sT0}
        s_bfe_u32 s{sT0}, s2, 0x10002
        s_lshl_b32 s{sCB}, s{sT0}, 3
        s_lshr_b32 s{sT0}, s2, 5
        s_add_u32 s{sCB}, s{sCB}, s{sT0}
        s_and_b32 s{sR}, s{sW}, 3
        s_lshl_b32 s{sRT}, s{sRB}, 2
        s_add_u32 s{sRT}, s{sRT}, s{sR}
        v_lshlrev_b32 v{vD}, 4, v{vL}
        """)
    a(f"K2_A:\ns_mov_b32 s64, {WS_END}\nK2_A2:"); aids()
    a(f"""
    s_lshr_b32 s{sG}, s{sW}, 2
    s_lshl_b32 s{sHD}, s{sCB}, 1
    s_and_b32 s{sT1}, s{sHD}, 2
    s_add_u32 s{sHD}, s{sHD}, s{sG}
    s_mul_i32 s{sT2}, s{sG}, 5
    s_add_u32 s{sT1}, s{sT1}, s{sT2}
    s_mul_i32 s{sT2}, s{sR}, 3072
    s_add_u32 s{sT2}, s{sT2}, {XQ}
    v_and_b32 v{vA}, 31, v{vL}
    v_lshlrev_b32 v{vA}, 4, v{vA}
    v_lshrrev_b32 v3, 5, v{vL}
    v_add_u32 v{P}, s{sT1}, v3
    v_add_u32 v{P+1}, 2, v{P}
    s_add_u32 s{sT1}, s{sT1}, 4
    v_mov_b32 v{P+2}, s{sT1}
    v_add_u32 v{P+3}, s{sT2}, v{vA}
    """)
    for i in range(3):
        a(f"""
        v_lshrrev_b32 v{P+4}, 2, v{P+i}
        v_lshl_add_u32 v{P+5}, v{P+4}, 10, v{P+3}
        v_and_b32 v{P+4}, 1, v{P+i}
        v_lshl_add_u32 v{P+5}, v{P+4}, 9, v{P+5}
        v_and_b32 v{P+4}, 2, v{P+i}
        v_lshl_add_u32 v{P+i}, v{P+4}, 2, v{P+5}
        """)
    a(f"""
    s_mov_b32 s{sVm}, 0x000fffff
    s_mov_b32 s{sVm+1}, 0x000fffff
    v_mul_u32_u24 v3, 5120, v3
    v_add_u32 v{vA}, v{vA}, v3
    v_and_b32 v3, 27, v{vL}
    v_cmp_eq_u32 vcc, 24, v3
    v_mov_b32 v3, 0x3f803f80
    """)
    for i in range(16): a(f"v_mov_b32 v{O+i}, 0")
    for i in range(16): a(f"v_cndmask_b32 v{V+i}, 0, v3, vcc")
    for i in range(4): a(f"v_mov_b32 v{P+12+i}, 0")
    segw = sum(n << (4 * i) for i, n in enumerate(SEGS))
    a(f"""
    s_mov_b32 s{sSeg}, {segw >> 4}
    s_mov_b32 s{sI}, {SEGS[0]}
    s_mov_b32 s{sT3}, 0
    """)
    a(f"""
    s_lshr_b32 s54, s{sHD}, 2
    s_mul_i32 s54, s54, 5
    s_mul_i32 s55, s{sRT}, 40
    s_add_u32 s54, s54, s55
    s_lshl_b32 s54, s54, 10
    s_add_u32 s54, s54, {WS_O}
    s_and_b32 s55, s{sHD}, 3
    s_lshl_b32 s55, s55, 10
    s_add_u32 s55, s55, s54
    s_bfe_u32 s{sT2}, s{sHD}, 0x10001
    s_lshl_b32 s{sT2}, s{sT2}, 9
    s_add_u32 s54, s54, s{sT2}
    s_and_b32 s{sT2}, s{sHD}, 1
    s_lshl_b32 s{sT2}, s{sT2}, 3
    s_add_u32 s54, s54, s{sT2}
    s_add_u32 s54, s54, 4096
    s_lshl_b32 s56, s{sRT}, 5
    s_add_u32 s56, s56, s{sHD}
    s_lshl_b32 s56, s56, 7
    s_add_u32 s56, s56, {WS_F3}
    v_mov_b32 v{S}, -1
    v_mov_b32 v{S+1}, -1
    v_mov_b32 v{S+2}, -1
    v_mov_b32 v{S+3}, -1
    """)
    setflag(a, 64, WS, 10, 11)
    if 'st1' in OPT: stamp(a, 1)
    a("s_waitcnt lgkmcnt(0)\ns_barrier"); stamp(a, 4); a(f"""
    buffer_store_dwordx4 {vr(S,4)}, v{vD}, {sr(WS,4)}, s55 offen sc1
    s_mov_b32 exec_hi, 0
    buffer_store_dwordx2 {vr(S,2)}, v{vD}, {sr(WS,4)}, s54 offen sc1
    {"s_mov_b32 exec_lo, 0xff" if 'pret' in OPT else ""}
    {f"buffer_store_dwordx4 {vr(O,4)}, v{vD}, {sr(WS,4)}, s56 offen sc1" if 'pret' in OPT else ""}
    s_mov_b64 exec, -1
    ds_read_b64 {vr(QT,2)}, v{P+2}
    ds_read_b128 {vr(KT,4)}, v{vA} offset:2048
    ds_read_b64 {vr(QM,2)}, v{P}
    ds_read_b64 {vr(QM+2,2)}, v{P+1}
    ds_read_b128 {vr(KM,4)}, v{vA} offset:0
    ds_read_b128 {vr(KM+4,4)}, v{vA} offset:512
    s_waitcnt lgkmcnt({0 if PROF else 4})
    v_mfma_f32_32x32x4_2b_bf16 {vr(S,32)}, {vr(KT,2)}, {vr(QT,2)}, 0
    s_waitcnt lgkmcnt(0)
    s_nop 15
    s_nop 2
    {MF(vr(S,16), vr(KM,4), vr(QM,4), vr(S,16))}
    {MF(vr(S+16,16), vr(KM+4,4), vr(QM,4), vr(S+16,16))}
    ds_read_b128 {vr(KM,4)}, v{vA} offset:1024
    ds_read_b128 {vr(KM+4,4)}, v{vA} offset:1536
    s_mov_b64 exec, {sr(sVm,2)}
    ds_read_b128 {vr(V,4)}, v{vA} offset:2560
    ds_read_b128 {vr(V+4,4)}, v{vA} offset:2880
    s_mov_b64 exec, -1
    s_nop 7
    .p2align 6
    K2_loop:
    """)
    for l in abody.body(R, 0, (3, 2, 1), sVm): a(l)
    a(f"""
    v_add_u32 v{vA}, 10240, v{vA}
    s_sub_u32 s{sI}, s{sI}, 1
    s_cmp_lg_u32 s{sI}, 0
    s_cbranch_scc1 K2_loop
    s_and_b32 s{sI}, s{sSeg}, 15
    s_cbranch_scc0 K2_exit
    s_lshr_b32 s{sSeg}, s{sSeg}, 4
    s_barrier
    s_branch K2_loop
    K2_exit:
    """); stamp(a, 5); a(f"""
    {MF(vr(O,16), vr(V+12,4), vr(P+12,4), vr(O,16))}
    s_mov_b32 s46, {f32(2.0**-64)}
    s_mov_b32 s47, {f32(2.0**64)}
    s_nop 9
    v_cmp_nle_f32 vcc, s46, v{O+12}
    v_cmp_nge_f32 s[46:47], s47, v{O+12}
    s_waitcnt lgkmcnt(0)
    s_or_b64 vcc, vcc, s[46:47]
    s_cbranch_scc1 K2_slow
    K2_fin:
    v_rcp_f32 v{P}, v{O+12}
    v_mov_b32 v4, s{sN}
    v_lshlrev_b32 v5, 2, v{vL}
    s_waitcnt vmcnt(0)
    """)
    if 'flagfirst' in OPT: a(f"s_mov_b64 exec, 1\nbuffer_store_dword v4, v5, {sr(WS,4)}, s56 offen sc1\ns_mov_b64 exec, -1\ns_and_b32 s{sT0}, s2, 1\ns_cbranch_scc1 K2_ff\ns_sleep 127\ns_sleep 127\nK2_ff:")
    for i in range(12): a(f"v_mul_f32 v{O+i}, v{O+i}, v{P}")
    for i in range(6): a(f"v_cvt_pk_bf16_f32 v{S+i}, v{O+2*i}, v{O+2*i+1}")
    a(f"""
    buffer_store_dwordx4 {vr(S,4)}, v{vD}, {sr(WS,4)}, s55 offen sc1
    s_mov_b32 exec_hi, 0
    buffer_store_dwordx2 {vr(S+4,2)}, v{vD}, {sr(WS,4)}, s54 offen sc1
    {"" if 'fline' in OPT else "s_mov_b64 exec, 1"}
    buffer_store_dword v4, v5, {sr(WS,4)}, s56 offen sc1
    s_mov_b64 exec, -1
    """)
    if 'p3' in OPT: stamp(a, 1)
    if 'p3' in OPT: stamp(a, 2)
    a("s_barrier")
    if 'p3' in OPT: stamp(a, 3)
    sKQ, sRB2, sNB, sH0, sH1, sWp = 33, 35, 36, 46, 47, 48
    XR = 104; RR = 108
    def fin_prep():
        tile_ids(a, sRB2, sNB, sT0)
        srd(a, X, 8, 2048*1280); srd(a, OUT, 18, 2048*1280)
        a(f"""
        s_lshl_b32 s{sT0}, s{sW}, 6
        v_add_u32 v4, s{sT0}, v{vL}
        v_mul_u32_u24 v5, 6554, v4
        v_lshrrev_b32 v5, 16, v5
        v_mul_u32_u24 v5, {1280-160}, v5
        v_lshlrev_b32 v4, 4, v4
        v_add_u32 v5, v5, v4
        s_mul_i32 s{sT3}, s{sRB2}, {64*1280}
        s_mul_i32 s{sT1}, s{sNB}, 160
        s_add_u32 s{sT3}, s{sT3}, s{sT1}
        v_add_u32 v6, 51200, v4
        buffer_load_dwordx4 {vr(XR,4)}, v5, {sr(X,4)}, s{sT3} offen
        """)
    fin_prep()
    a("K3_bar:\ns_barrier")
    if 'p3' in OPT: stamp(a, 4); a("s_waitcnt lgkmcnt(0)")
    for p in range(4):
        for h in range(2): a(f"ds_read_b128 {vr(RR+8*p+4*h,4)}, v{4 if p < 2 else 6} offset:{(p%2)*25600 + h*10240}")
    a("s_waitcnt vmcnt(0)")
    for i in range(4): a(f"v_lshlrev_b32 v{8+2*i}, 16, v{XR+i}\nv_and_b32 v{9+2*i}, 0xffff0000, v{XR+i}")
    for p in range(4):
        a(f"s_waitcnt lgkmcnt({6-2*p})")
        for i in range(4): a(f"v_pk_add_f32 {vr(8+2*i,2)}, {vr(8+2*i,2)}, {vr(RR+8*p+2*i,2)}")
    for i in range(4): a(f"v_cvt_pk_bf16_f32 v{XR+i}, v{8+2*i}, v{9+2*i}")
    a(f"buffer_store_dwordx4 {vr(XR,4)}, v5, {sr(OUT,4)}, s{sT3} offen {os.environ.get('OUTF', '')}\nK_pe:")
    prof_end(a, 0, WS, sW)
    a("K_end:\ns_endpgm")
    vW, vW2 = 1, 3
    ACC, FR = 8, 104
    a("K2_G:"); aids()
    def fill(n, lab):
        a(f"""
        s_mov_b32 s{sI}, {n}
        {lab}:
        buffer_load_dwordx4 v{vD}, {sr(WS,4)}, s{sSrc} offen sc1 lds
        s_add_u32 s{sSrc}, s{sSrc}, 4096
        s_add_u32 m0, m0, 4096
        s_sub_u32 s{sI}, s{sI}, 1
        s_cmp_lg_u32 s{sI}, 0
        s_cbranch_scc1 {lab}
        """)
    rowidx(a, sT1, sRT, sT0)
    a(f"""
    s_lshl_b32 s{sT0}, s{sR}, 10
    s_add_u32 s{sSrc}, s{sT0}, {WS_KV}
    s_mov_b32 m0, s{sT0}
    s_mul_i32 s{sT2}, s{sCB}, 10
    s_lshr_b32 s{sT2}, s{sT2}, 2
    v_and_b32 v4, 2, v{vL}
    v_add_u32 v4, s{sT2}, v4
    v_lshrrev_b32 v4, 1, v4
    v_lshl_add_u32 v4, v4, 5, s{sT1}
    v_lshlrev_b32 v4, 7, v4
    v_add_u32 v4, {WS_F1}, v4
    s_and_b32 s{sT0}, s2, 63
    s_lshl_b32 s{sT0}, s{sT0}, 8
    s_add_u32 s{sT0}, s{sT0}, {WS_FK}
    v_writelane_b32 v4, s{sT0}, 0
    s_mul_i32 s54, s{sRT}, 40
    s_add_u32 s54, s54, s{sT2}
    s_lshl_b32 s54, s54, 10
    s_mov_b32 s{sT3}, 0
    s_mov_b32 s{sSeg}, 1
    buffer_load_dword v5, v4, {sr(WS,4)}, 0 offen sc1
    """)
    tile_ids(a, sRB2, sNB, sT0)
    wlane(a, vL, vW, vW2, 6)
    a(f"""
    K2_p1:
    s_waitcnt vmcnt(0)
    v_cmp_ne_u32 vcc, s{sN}, v5
    s_add_u32 s{sT3}, s{sT3}, 1
    s_cmp_ge_u32 s{sT3}, {SPINMAX}
    s_cselect_b64 vcc, 0, vcc
    s_andn2_b32 s{sT0}, s{sSeg}, vcc_lo
    s_cbranch_scc0 K2_p1b
    s_mov_b32 s{sSeg}, 0
    """)
    stamp(a, 2)
    fill(NF1, "K2_f1")
    a(f"""
    K2_p1b:
    s_cmp_eq_u64 vcc, 0
    s_cbranch_scc1 K2_p1x
    s_sleep {SLP}
    buffer_load_dword v5, v4, {sr(WS,4)}, 0 offen sc1
    s_branch K2_p1
    K2_p1x:
    s_mov_b32 s{sSeg}, m0
    s_mul_i32 s{sT1}, s{sR}, 3072
    s_add_u32 m0, s{sT1}, {XQ}
    s_nop 0
    """)
    for i in range(3): a(f"buffer_load_dwordx4 v{vD}, {sr(WS,4)}, s54 offen offset:{1024*i} sc1 lds")
    a(f"""
    s_mov_b32 m0, s{sSeg}
    s_setprio 3
    s_waitcnt vmcnt(0)
    s_barrier
    """); stamp(a, 3)
    a(f"""
    s_mul_i32 s{sT0}, s{sR}, 10240
    s_add_u32 s{sT0}, s{sT0}, {HS}
    v_add_u32 v4, s{sT0}, v{vD}
    """)
    for i in range(10): a(f"ds_read_b128 {vr(FR+4*i,4)}, v4 offset:{1024*i}")
    fill(10, "K2_f2")
    a(f"""
    s_waitcnt vmcnt(0) lgkmcnt(0)
    s_barrier
    s_cmp_eq_u32 s62, 0
    s_cbranch_scc1 K2_nh
    """)
    for j in range(5):
        if j == 4: a(f"s_cmp_lt_u32 s62, {WS_H + 64*96*1024}\ns_cselect_b32 s62, s62, {WS_END}")
        a(f"""
        buffer_store_dwordx4 {vr(FR+8*j,4)}, v{vD}, {sr(WS,4)}, s62 offen sc1
        buffer_store_dwordx4 {vr(FR+8*j+4,4)}, v{vD}, {sr(WS,4)}, s62 offen offset:1024 sc1
        s_add_u32 s62, s62, {96*1024}
        """)
    a("K2_nh:")
    fill(25, "K2_f3")
    a(f"""
    s_cmp_eq_u32 s62, 0
    s_cselect_b32 s63, {WS_END}, s63
    v_mov_b32 v4, s{sN}
    v_mov_b32 v5, 0
    s_mov_b64 exec, 1
    s_waitcnt vmcnt(25)
    buffer_store_dword v4, v5, {sr(WS,4)}, s63 offen sc1
    s_mov_b64 exec, -1
    s_waitcnt vmcnt(1)
    s_barrier
    """)
    a(f"s_lshl_b32 s{sT2}, s{sRB2}, 1")
    rowidx(a, sH0, sT2, sT0)
    a(f"s_add_u32 s{sT2}, s{sT2}, 1")
    rowidx(a, sH1, sT2, sT0)
    a(f"""
    v_and_b32 v4, 1, v{vL}
    v_cmp_eq_u32 vcc, 0, v4
    v_mov_b32 v4, s{sH0}
    v_mov_b32 v5, s{sH1}
    v_cndmask_b32 v4, v5, v4, vcc
    v_and_b32 v4, 30, v4
    v_lshrrev_b32 v5, 1, v{vL}
    v_min_u32 v5, 11, v5
    s_mul_i32 s{sT0}, s{sKQ}, 12
    s_add_u32 s{sT0}, s{sT0}, 20
    v_add_u32 v5, s{sT0}, v5
    v_lshl_add_u32 v4, v5, 5, v4
    v_cmp_gt_u32 vcc, 32, v{vL}
    v_min_u32 v5, 53, v{vL}
    v_add_u32 v5, {72*32 - 32}, v5
    v_cndmask_b32 v4, v5, v4, vcc
    v_lshlrev_b32 v4, 7, v4
    v_add_u32 v4, {WS_F1}, v4
    s_mul_i32 s{sH0}, s{sRB2}, 192
    s_mul_i32 s{sT0}, s{sKQ}, 24
    s_add_u32 s{sH0}, s{sH0}, s{sT0}
    s_lshl_b32 s{sH0}, s{sH0}, 10
    s_add_u32 s{sH0}, s{sH0}, {WS_H}
    s_add_u32 s{sH1}, s{sH0}, {96*1024}
    s_mul_i32 s{sWp}, s{sT0}, 20480
    s_mul_i32 s{sT0}, s{sNB}, 2560
    s_add_u32 s{sWp}, s{sWp}, s{sT0}
    s_add_u32 s{sWp}, s{sWp}, {WS_WP}
    """)
    if 'st3' in OPT: stamp(a, 2)
    poll(a, "K2_p3", 4, 5, WS, sT3)
    stamp(a, 1)
    def gload(j):
        b = FR + 20 * j
        a(f"""
        buffer_load_dwordx4 {vr(b,4)}, v{vD}, {sr(WS,4)}, s{sH0} offen offset:{1024*j} sc1
        buffer_load_dwordx4 {vr(b+4,4)}, v{vD}, {sr(WS,4)}, s{sH1} offen offset:{1024*j} sc1
        buffer_load_dwordx4 {vr(b+8,4)}, v{vW}, {sr(WS,4)}, s{sWp} offen sc1
        buffer_load_dwordx4 {vr(b+12,4)}, v{vW}, {sr(WS,4)}, s{sWp} offen offset:1024 sc1
        buffer_load_dwordx4 {vr(b+16,4)}, v{vW2}, {sr(WS,4)}, s{sWp} offen offset:2048 sc1
        s_add_u32 s{sWp}, s{sWp}, 20480
        """)
    for j in range(3): gload(j)
    a(f"""
    s_lshl_b32 s{sT0}, s{sRB2}, 3
    s_add_u32 s{sT0}, s{sT0}, s{sKQ}
    s_lshl_b32 s{sT0}, s{sT0}, 10
    s_add_u32 s{sT0}, s{sT0}, {WS_F3}
    v_and_b32 v7, 39, v{vL}
    v_lshl_add_u32 v7, v7, 7, s{sT0}
    s_setprio {GPRIO}
    s_mov_b32 s{sI}, {8 - DEF}
    s_mov_b32 s{sSeg}, 0
    s_waitcnt vmcnt(10)
    """)
    def mm6(aw, bo, zero=False):
        for t in range(3):
            for r in range(2):
                a(MF(vr(ACC+48*r+16*t,16), vr(aw+4*t,4), vr(bo+4*r,4), "0" if zero else vr(ACC+48*r+16*t,16)))
    mm6(FR + 8, FR, True)
    a("s_branch K2_Gm\nK2_Gl:")
    for j in range(3):
        b = FR + 20 * j
        a("s_waitcnt vmcnt(10)")
        mm6(b + 8, b)
        if j == 0: a(f"K2_Gm:\ns_add_u32 s{sH0}, s{sH0}, 3072\ns_add_u32 s{sH1}, s{sH1}, 3072")
        gload(j)
    a(f"""
    s_sub_u32 s{sI}, s{sI}, 1
    s_cmp_lg_u32 s{sI}, 0
    s_cbranch_scc1 K2_Gl
    s_cmp_lg_u32 s{sSeg}, 0
    s_cbranch_scc1 K2_Gt
    """); 'st2' in OPT or stamp(a, 4)
    sWo, sO0, sO1 = 54, 55, 56
    OA = 88
    def oaddr(j):
        a(f"""
        s_add_u32 s{OA+2*(j%4)}, s{sO0}, s49
        s_add_u32 s{OA+2*(j%4)+1}, s{sO1}, s49
        s_add_u32 s49, s49, 1024
        s_cmp_eq_u32 s49, 10240
        s_cselect_b32 s49, 0, s49
        """)
    a(f"""
    s_setprio 3
    s_mul_i32 s{sT2}, s{sKQ}, 25600
    s_mul_i32 s{sWo}, s{sKQ}, {10*20480}
    s_mul_i32 s{sT0}, s{sNB}, 2560
    s_add_u32 s{sWo}, s{sWo}, s{sT0}
    s_add_u32 s{sWo}, s{sWo}, {WS_WP + 96*20480}
    s_mov_b32 m0, s{sT2}
    v_add_u32 v4, s{sT2}, v{vW}
    v_add_u32 v6, s{sT2}, v{vW2}
    s_mul_i32 s{sO0}, s{sRB2}, 80
    s_mul_i32 s{sT0}, s{sKQ}, 10
    s_add_u32 s{sO0}, s{sO0}, s{sT0}
    s_lshl_b32 s{sO0}, s{sO0}, 10
    s_add_u32 s{sO0}, s{sO0}, {WS_O}
    s_add_u32 s{sO1}, s{sO0}, 40960
    s_mul_i32 s49, s{sNB}, {ROT3}
    s_lshr_b32 s49, s49, 2
    s_mul_i32 s{sT0}, s49, 20480
    s_add_u32 s50, s{sWo}, {10*20480}
    s_add_u32 s{sWo}, s{sWo}, s{sT0}
    s_lshl_b32 s49, s49, 10
    s_mov_b32 s{sI}, 10
    s_barrier
    K2_f4:
    buffer_load_dwordx4 v{vD}, {sr(WS,4)}, s{sWo} offen sc1 lds
    buffer_load_dwordx4 v{vD}, {sr(WS,4)}, s{sWo} offen offset:1024 sc1 lds
    s_mov_b32 exec_hi, 0
    buffer_load_dwordx4 v{vD}, {sr(WS,4)}, s{sWo} offen offset:2048 sc1 lds
    s_mov_b32 exec_hi, -1
    s_add_u32 s{sWo}, s{sWo}, 20480
    s_cmp_eq_u32 s{sWo}, s50
    s_cselect_b32 s{sT0}, {10*20480}, 0
    s_sub_u32 s{sWo}, s{sWo}, s{sT0}
    s_add_u32 m0, m0, 2560
    s_sub_u32 s{sI}, s{sI}, 1
    s_cmp_lg_u32 s{sI}, 0
    s_cbranch_scc1 K2_f4
    """)
    FO, FW = 104, 140
    def wread(j):
        b = FW + 12 * (j % 2)
        a(f"""
        ds_read_b128 {vr(b,4)}, v4 offset:{2560*j}
        ds_read_b128 {vr(b+4,4)}, v4 offset:{2560*j+1024}
        ds_read_b128 {vr(b+8,4)}, v6 offset:{2560*j+2048}
        """)
    def oissue(j):
        b = FO + 8 * (j % 4)
        a(f"""
        buffer_load_dwordx4 {vr(b,4)}, v{vD}, {sr(WS,4)}, s{OA+2*(j%4)} offen sc1
        buffer_load_dwordx4 {vr(b+4,4)}, v{vD}, {sr(WS,4)}, s{OA+2*(j%4)+1} offen sc1
        """)
    for j in range(4): oaddr(j)
    a(f"""
    s_mov_b32 s51, {SPINMAX}
    s_mov_b32 s{sI}, {DEF - 1}
    s_mov_b32 s{sSeg}, 1
    s_waitcnt vmcnt(0)
    s_barrier
    """)
    if 'p3' in OPT: stamp(a, 1)
    if DEF > 1: a("s_branch K2_Gl")
    a(f"K2_Gt:\nbuffer_load_dword v5, v7, {sr(WS,4)}, 0 offen sc1")
    for j in range(3):
        a(f"s_waitcnt vmcnt({11 - 5*j})")
        mm6(FR + 20 * j + 8, FR + 20 * j)
    wread(0); wread(1)
    a(f"""
    s_waitcnt vmcnt(0)
    v_cmp_ne_u32 vcc, s{sN}, v5
    s_cbranch_vccz K2_p4x
    """)
    poll(a, "K2_p4", 7, 5, WS, sT3)
    'st2' in OPT or stamp(a, 5)
    for j in range(4): oissue(j)
    retry = []
    for j in range(10):
        later = min(j + 3, 9) - j
        b = FO + 8 * (j % 4)
        a(f"""
        s_waitcnt vmcnt({2*later}) lgkmcnt({0 if (j == 9 or PROF) else 3})
        K3_c{j}:
        v_max3_u32 v5, v{b}, v{b+2}, v{b+4}
        v_max_u32 v5, v5, v{b+6}
        v_cmp_eq_u32 vcc, -1, v5
        s_cbranch_vccnz K3_r{j}
        K3_m{j}:
        """)
        mm6(FW + 12 * (j % 2), b)
        if j + 4 < 10: oaddr(j + 4); oissue(j + 4)
        if j + 2 < 10: wread(j + 2)
    def retries():
        for j in range(10):
            a(f"K3_r{j}:\ns_cmp_eq_u32 s51, 0\ns_cbranch_scc1 K3_m{j}\ns_sub_u32 s51, s51, 1")
            oissue(j)
            a(f"s_waitcnt vmcnt(0)\ns_branch K3_c{j}")
    if 'p3' in OPT: stamp(a, 2)
    fin_prep()
    a(f"""
    v_and_b32 v7, 31, v{vL}
    v_mul_u32_u24 v7, 160, v7
    v_lshrrev_b32 v{RR}, 5, v{vL}
    v_mul_u32_u24 v{RR}, 10240, v{RR}
    v_add3_u32 v7, v7, v{RR}, s{sT2}
    """)
    for r in range(2):
        for o in range(10): a(f"ds_write_b128 v7, {vr(ACC+48*r+4*o,4)} offset:{5120*r+16*o}")
    a(f"""
    s_waitcnt lgkmcnt(0)
    {"s_memtime s[76:77]" if PROF and 'p3' in OPT else ""}
    s_cmp_lt_u32 s{sW}, 10
    s_cbranch_scc1 K3_bar
    s_barrier
    {"s_branch K_pe" if PROF else "s_endpgm"}
    """)
    retries()
    vMx = 3
    sP, sO1, sO2, sO3 = 48, 49, 50, 51
    a(f"""
    K_last:
    K2_slow:
    v_subrev_u32 v{vA}, {16*10240}, v{vA}
    v_mov_b32 v{vMx}, 0xff800000
    s_mov_b32 s{sP}, 0
    """)
    for i in range(16): a(f"v_mov_b32 v{O+i}, 0")
    a(f"""
    K2_sp:
    s_mov_b32 s{sI}, 0
    K2_sl:
    s_lshr_b32 s{sT0}, s{sI}, 1
    s_mul_i32 s{sT0}, s{sT0}, 10240
    s_add_u32 s{sT0}, s{sT0}, {WS_KV}
    s_and_b32 s{sT1}, s{sI}, 1
    s_lshl_b32 s{sO1}, s{sT1}, 10
    s_add_u32 s{sO1}, s{sO1}, s{sT0}
    s_lshl_b32 s{sO2}, s{sT1}, 3
    s_add_u32 s{sO2}, s{sO2}, s{sT0}
    s_mul_i32 s{sO3}, s{sT1}, 1280
    s_add_u32 s{sO3}, s{sO3}, s{sT0}
    buffer_load_dwordx4 {vr(KM,4)}, v{vA}, {sr(WS,4)}, s{sO1} offen sc1
    buffer_load_dwordx4 {vr(KM+4,4)}, v{vA}, {sr(WS,4)}, s{sO1} offen offset:512 sc1
    buffer_load_dwordx2 {vr(KT,2)}, v{vA}, {sr(WS,4)}, s{sO2} offen offset:2048 sc1
    s_mov_b64 exec, {sr(sVm,2)}
    """)
    for f in range(4): a(f"buffer_load_dwordx4 {vr(V+4*f,4)}, v{vA}, {sr(WS,4)}, s{sO3} offen offset:{2560+320*f} sc1")
    a(f"""
    s_mov_b64 exec, -1
    s_waitcnt vmcnt(0)
    v_mfma_f32_32x32x4_2b_bf16 {vr(S,32)}, {vr(KT,2)}, {vr(QT,2)}, 0
    s_nop 15
    s_nop 3
    {MF(vr(S,16), vr(KM,4), vr(QM,4), vr(S,16))}
    {MF(vr(S+16,16), vr(KM+4,4), vr(QM,4), vr(S+16,16))}
    s_cmp_lg_u32 s{sP}, 0
    s_nop 12
    s_cbranch_scc1 K2_sp2
    """)
    for i in range(16): a(f"v_max3_f32 v{vMx}, v{S+2*i}, v{S+2*i+1}, v{vMx}")
    a("s_branch K2_snext\nK2_sp2:")
    for i in range(32): a(f"v_sub_f32 v{S+i}, v{S+i}, v{vMx}")
    for i in range(32): a(f"v_exp_f32 v{S+i}, v{S+i}")
    a("s_nop 0")
    for i in range(16): a(f"v_cvt_pk_bf16_f32 v{P+i}, v{S+2*i}, v{S+2*i+1}")
    a("s_nop 1")
    for f in range(4): a(MF(vr(O,16), vr(V+4*f,4), vr(P+4*f,4), vr(O,16)))
    a(f"""
    s_nop 15
    K2_snext:
    s_add_u32 s{sI}, s{sI}, 1
    s_cmp_lt_u32 s{sI}, 32
    s_cbranch_scc1 K2_sl
    s_cmp_lg_u32 s{sP}, 0
    s_cbranch_scc1 K2_fin
    v_mov_b32 v{P}, v{vMx}
    s_nop 1
    v_permlane32_swap_b32 v{P}, v{vMx}
    s_mov_b32 s{sP}, 1
    v_max_f32 v{vMx}, v{vMx}, v{P}
    s_branch K2_sp
    """)
    return 164

def main(out):
    a = Asm()
    gen_k1(a); n = gen_k2(a)
    head = f"""; LayerNorm + MQA attention + SiLU FFN in one launch (generated by work/gen9.py)
; @launch grid=(256,1,1) block=(768,1,1) lds=163840
.amdgcn_target "amdgcn-amd-amdhsa--gfx950"
.text
"""
    tail = '.section .rodata,"a"\n' + kdesc(KN, n)
    txt = a.text()
    import re
    if 'pollsys' in OPT: txt = re.sub(r"(buffer_load_dword v\d+, v\d+, s\[28:31\], 0 offen) sc1", r"\1 sc0 sc1", txt)
    if 'flagsys' in OPT: txt = re.sub(r"(buffer_store_dword v\d+, v\d+, s\[28:31\], s\d+ offen) sc1", r"\1 sc0 sc1", txt)
    if 'flagatom' in OPT: txt = re.sub(r"buffer_store_dword (v\d+, v\d+, s\[28:31\], s\d+ offen) sc1", r"buffer_atomic_swap \1", txt)
    if 'allsys' in OPT: txt = re.sub(r"(?<!sc0) sc1", " sc0 sc1", txt)
    if 'rt' in OPT: txt = txt.replace("s_memtime", "s_memrealtime")
    open(out, "w").write(head + txt + tail)

if __name__ == "__main__":
    if "--prof" in sys.argv:
        PROF = True; sys.argv.remove("--prof")
    main(sys.argv[1] if len(sys.argv) > 1 else f"cdna_kernels/{NAME}.s")
```
